```python
import torch

def _softmax(x, axis=-1):
    return torch.softmax(x, dim=axis)
def _gelu(x):
    return torch.nn.functional.gelu(x, approximate="tanh")
def _silu(x):
    return torch.nn.functional.silu(x)
def _sigmoid(x):
    return torch.sigmoid(x)
def _layernorm(x, axis=-1, eps=1e-5):
    m = x.mean(dim=axis, keepdim=True)
    v = x.var(dim=axis, keepdim=True, unbiased=False)
    return (x - m) / torch.sqrt(v + eps)
def _scatter_add(tgt, idx, src, axis=0):
    return tgt.clone().index_add_(axis, idx, src)
def _segment_sum(src, seg, n):
    out = torch.zeros((n,) + src.shape[1:], dtype=src.dtype)
    return out.index_add_(0, seg, src)
def _pad(x, pw):
    flat = tuple(v for pair in reversed(pw) for v in pair)
    return torch.nn.functional.pad(x, flat)

kernel_name = 'parallel_sum__compressed_kv_cla__dense_activation_squared_relu__prompt'

def setup_inputs():

    _w = (lambda a: (lambda t: t.to(torch.bfloat16) if t.is_floating_point() else t)(torch.as_tensor(a)))
    def _A_setup():
        B, H, Sq, Sk, D, M = 1, 16, 2048, 2048, 256, 448
        Dc = 4 * D
        return {
            "x": _w((lambda *s: torch.randn(*s, dtype=torch.bfloat16) * 0.05)(B, Sq, M)),
            "c_kv": _w((lambda *s: torch.randn(*s, dtype=torch.bfloat16) * 1.6)(B, Sk, Dc)),
            "w_q": _w((lambda *s: torch.randn(*s, dtype=torch.bfloat16) * 0.8)(M, H, D) * (M ** -0.5)),
            "w_uk": _w((lambda *s: torch.randn(*s, dtype=torch.bfloat16) * 0.8)(Dc, H, D) * (Dc ** -0.5)),
            "w_uv": _w((lambda *s: torch.randn(*s, dtype=torch.bfloat16) * 1.6)(Dc, H, D) * (Dc ** -0.5)),
            "w_o": _w((lambda *s: torch.randn(*s, dtype=torch.bfloat16) * 1.6)(H, D, M) * ((H * D) ** -0.5)),
        }
    _A_in = _A_setup()

    def _B_setup():
        B, S, D, F = 1, 2048, 448, 1792
        return {
            "x": _w((lambda *s: torch.randn(*s, dtype=torch.bfloat16) * 0.05)(B, S, D)),
            "w1": _w((lambda *s: torch.randn(*s, dtype=torch.bfloat16) * 0.05)(D, F)),
            "b1": _w((lambda *s: torch.randn(*s, dtype=torch.bfloat16) * 0.2)(F)),
            "w2": _w((lambda *s: torch.randn(*s, dtype=torch.bfloat16) * 0.05)(F, D)),
            "b2": _w((lambda *s: torch.randn(*s, dtype=torch.bfloat16) * 0.8)(D)),
        }
    _B_in = _B_setup()

    return {
        "A_x": _A_in["x"],
        "A_c_kv": _A_in["c_kv"],
        "A_w_q": _A_in["w_q"],
        "A_w_uk": _A_in["w_uk"],
        "A_w_uv": _A_in["w_uv"],
        "A_w_o": _A_in["w_o"],
        "B_x": _B_in["x"],
        "B_w1": _B_in["w1"],
        "B_b1": _B_in["b1"],
        "B_w2": _B_in["w2"],
        "B_b2": _B_in["b2"],
    }

def reference(A_x, A_c_kv, A_w_q, A_w_uk, A_w_uv, A_w_o, B_x, B_w1, B_b1, B_w2, B_b2):
    def _A_ref(x, c_kv, w_q, w_uk, w_uv, w_o):
        B, Sq, M = x.shape[0], x.shape[1], x.shape[2]
        Sk = c_kv.shape[1]
        H, D = w_q.shape[1], w_q.shape[2]
        q = torch.einsum("bqm,mhd->bhqd", x, w_q)
        k = torch.einsum("bkc,chd->bhkd", c_kv, w_uk)
        v = torch.einsum("bkc,chd->bhkd", c_kv, w_uv)
        scores = torch.einsum("bhqd,bhkd->bhqk", q, k) * (D ** -0.5)
        off = Sk - Sq
        qi = torch.arange(Sq)[:, None]
        kj = torch.arange(Sk)[None, :]
        cmask = kj <= (qi + off)
        scores = torch.where(cmask[None, None], scores, -1e9)
        p = _softmax(scores, axis=-1)
        ctx = torch.einsum("bhqk,bhkd->bhqd", p, v)
        return torch.einsum("bhqd,hdm->bqm", ctx, w_o)

    def _B_ref(x, w1, b1, w2, b2):
        h = torch.einsum("bsd,df->bsf", x, w1) + b1
        zero = torch.zeros_like(h)
        r = torch.where(h > zero, h, zero)
        h = r * r
        out = torch.einsum("bsf,fd->bsd", h, w2) + b2
        return out

    x = A_x
    xn = _layernorm(x, axis=-1)
    return x + _A_ref(xn, A_c_kv, A_w_q, A_w_uk, A_w_uv, A_w_o) + _B_ref(xn, B_w1, B_b1, B_w2, B_b2)
```

```python
NAME = 'parallel_sum__compressed_kv_cla__dense_activation_squared_relu__prompt'

class Asm:
    def __init__(s):
        s.L = []
        s.nlab = 0
    def __call__(s, x):
        if isinstance(x, (list, tuple)):
            for y in x: s(y)
        else:
            s.L.append('  ' + x)
    def label(s, n): s.L.append(n + ':')
    def c(s, x): s.L.append('  ; ' + x)
    def raw(s, x): s.L.append(x)
    def newlabel(s, p='L'):
        s.nlab += 1
        return f'{p}_{s.nlab}'
    def text(s): return '\n'.join(s.L) + '\n'

def vr(b, n=4): return f'v[{b}:{b+n-1}]'
def ar(b, n=4): return f'a[{b}:{b+n-1}]'
def sr(b, n=4): return f's[{b}:{b+n-1}]'

def kstart(a, name):
    a.raw('.text')
    a.raw(f'.globl {name}')
    a.raw('.p2align 8')
    a.raw(f'.type {name},@function')
    a.label(name)

def kdesc(a, name, vgpr, acc, sgpr=100):
    for x in ['.section .rodata,"a"', '.p2align 6', f'.amdhsa_kernel {name}', f'  .amdhsa_next_free_vgpr {vgpr}',
              f'  .amdhsa_next_free_sgpr {sgpr}', f'  .amdhsa_accum_offset {acc}',
              '  .amdhsa_group_segment_fixed_size 0', '  .amdhsa_kernarg_size 112', '  .amdhsa_user_sgpr_count 2',
              '  .amdhsa_user_sgpr_kernarg_segment_ptr 1', '  .amdhsa_system_sgpr_workgroup_id_x 1', '.end_amdhsa_kernel']:
        a.raw(x)

def srd(a, d, base, nbytes):
    a(f's_mov_b32 s{d}, s{base}')
    a(f's_mov_b32 s{d+1}, s{base+1}')
    a(f's_mov_b32 s{d+2}, {hex(nbytes)}')
    a(f's_mov_b32 s{d+3}, 0x00020000')

def weave(a, mf, fill, pre=None):
    for i, m in enumerate(mf):
        if pre and i in pre:
            a(pre[i])
        a(m)
        if i in fill:
            a(fill[i])

def spread(items, g0, g1, fill):
    n = len(items)
    ng = g1 - g0 + 1
    for k, it in enumerate(items):
        g = g0 + (k * ng) // n
        fill.setdefault(g, [])
        if isinstance(it, (list, tuple)): fill[g] += list(it)
        else: fill[g].append(it)
```

```python
from asmlib import *
from layout import *

def wave_reduce_sum(a, v, t, sd):
    for mod in ['quad_perm:[1,0,3,2]', 'quad_perm:[2,3,0,1]', 'row_half_mirror', 'row_mirror']:
        a('s_nop 1')
        a(f'v_add_f32 v{v}, v{v}, v{v} {mod} row_mask:0xf bank_mask:0xf')
    a('s_nop 1')
    for i in range(4):
        a(f'v_readlane_b32 s{sd+i}, v{v}, {16*i}')
    a('s_nop 1')
    a(f'v_mov_b32 v{v}, s{sd}')
    for i in range(1, 4):
        a(f'v_add_f32 v{v}, s{sd+i}, v{v}')

def bf16_round(a, d, s):
    a(f'v_cvt_pk_bf16_f32 v{d}, v{s}, v{s}')
    a(f'v_and_b32 v{d}, 0xffff0000, v{d}')

def ln_row(a, xr, f, t, sd, out):
    for i in range(4):
        a(f'v_lshlrev_b32 v{f+2*i}, 16, v{xr+i}')
        a(f'v_and_b32 v{f+2*i+1}, 0xffff0000, v{xr+i}')
    a(f'v_add_f32 v{t}, v{f}, v{f+1}')
    for i in range(2, 8): a(f'v_add_f32 v{t}, v{t}, v{f+i}')
    wave_reduce_sum(a, t, t+1, sd)
    a(f'v_mul_f32 v{t}, 0x3b124925, v{t}')
    a(f'v_mov_b32 v{t+1}, 0')
    a(f's_mov_b32 exec_hi, 0x00ffffff')
    for i in range(8):
        a(f'v_sub_f32 v{t+2}, v{f+i}, v{t}')
        a(f'v_fmac_f32 v{t+1}, v{t+2}, v{t+2}')
    a(f's_mov_b32 exec_hi, -1')
    wave_reduce_sum(a, t+1, t+2, sd)
    a(f'v_mul_f32 v{t+1}, 0x3b124925, v{t+1}')
    bf16_round(a, t, t)
    bf16_round(a, t+1, t+1)
    a(f'v_add_f32 v{t+1}, 0x3727c5ac, v{t+1}')
    bf16_round(a, t+1, t+1)
    a(f'v_sqrt_f32 v{t+1}, v{t+1}')
    a('s_nop 0')
    bf16_round(a, t+1, t+1)
    a(f'v_rcp_f32 v{t+2}, v{t+1}')
    a('s_nop 0')
    a(f'v_fma_f32 v{t+3}, -v{t+1}, v{t+2}, 1.0')
    a(f'v_fmac_f32 v{t+2}, v{t+3}, v{t+2}')
    for i in range(8): a(f'v_sub_f32 v{f+i}, v{f+i}, v{t}')
    for i in range(4):
        a(f'v_cvt_pk_bf16_f32 v{out+i}, v{f+2*i}, v{f+2*i+1}')
    for i in range(4):
        a(f'v_lshlrev_b32 v{f+2*i}, 16, v{out+i}')
        a(f'v_and_b32 v{f+2*i+1}, 0xffff0000, v{out+i}')
    for i in range(8): a(f'v_mul_f32 v{f+i}, v{f+i}, v{t+2}')
    for i in range(4):
        a(f'v_cvt_pk_bf16_f32 v{out+i}, v{f+2*i}, v{f+2*i+1}')

NS = 4
SLOT = 32768
S_WS, S_X, S_W, S_XIN = 8, 12, 16, 28
S_WAVE, S_H, S_KVT, S_KT, S_SOX, S_SOW, S_DSLOT, S_RSLOT, S_CNT = 32, 33, 34, 35, 36, 37, 38, 39, 40
S_T = 41
S_W4K = 50
V_VX, V_VW, V_XAB, V_WAB, V_XA, V_WA = 4, 8, 12, 14, 18, 20
F = [dict(X=32, W=48), dict(X=64, W=80)]

def dma_batch():
    g = []
    g.append([f's_mov_b32 m0, s{S_DSLOT}', 's_nop 0', f'buffer_load_dwordx4 v{V_VX}, {sr(S_X)}, s{S_SOX} offen lds'])
    for i in range(1, 4):
        g.append([f'buffer_load_dwordx4 v{V_VX+i}, {sr(S_X)}, s{S_SOX} offen offset:{1024*i} lds'])
    g.append([f's_add_u32 s{S_T}, s{S_DSLOT}, 16384', f's_mov_b32 m0, s{S_T}', f's_add_u32 s{S_SOX}, s{S_SOX}, 64',
              f'buffer_load_dwordx4 v{V_VW}, {sr(S_W)}, s{S_SOW} offen lds'])
    for i in range(1, 4):
        g.append([f'buffer_load_dwordx4 v{V_VW+i}, {sr(S_W)}, s{S_SOW} offen offset:{1024*i} lds'])
    g[-1] += [f's_add_u32 s{S_SOW}, s{S_SOW}, {32*8192}',
              f's_add_u32 s{S_DSLOT}, s{S_DSLOT}, {SLOT}',
              f's_cmp_ge_u32 s{S_DSLOT}, {NS*SLOT}',
              f's_cselect_b32 s{S_T}, {NS*SLOT}, 0',
              f's_sub_u32 s{S_DSLOT}, s{S_DSLOT}, s{S_T}']
    return g

def frag_reads(ks):
    r = []
    f = F[ks]
    def wr(db): return [f'ds_read_b64_tr_b16 {vr(f["W"]+4*db+2*u,2)}, v{V_WA+db} offset:{8192*ks+2048*u}' for u in range(2)]
    r += wr(0)
    for kb in range(4): r.append(f'ds_read_b128 {vr(f["X"]+4*kb)}, v{V_XA+ks} offset:{2048*kb}')
    for db in range(1, 4): r += wr(db)
    return r

def addr_update():
    r = [f's_add_u32 s{S_RSLOT}, s{S_RSLOT}, {SLOT}',
         f's_cmp_ge_u32 s{S_RSLOT}, {NS*SLOT}',
         f's_cselect_b32 s{S_RSLOT}, 0, s{S_RSLOT}']
    for i in range(2): r.append(f'v_add_u32 v{V_XA+i}, s{S_RSLOT}, v{V_XAB+i}')
    for i in range(4): r.append(f'v_add_u32 v{V_WA+i}, s{S_RSLOT}, v{V_WAB+i}')
    return r

def mfmas(ks, vtype):
    f = F[ks]
    m = []
    for db in range(4):
        for kb in range(4):
            acc = ar((db*4+kb)*16, 16)
            w = vr(f['W']+4*db); x = vr(f['X']+4*kb)
            if vtype: m.append(f'v_mfma_f32_32x32x16_bf16 {acc}, {x}, {w}, {acc}')
            else:     m.append(f'v_mfma_f32_32x32x16_bf16 {acc}, {w}, {x}, {acc}')
    return m

def stage(a, vtype, dma, vm, last=False):
    fill = {}
    spread(frag_reads(1), 0, 7, fill)
    weave(a, mfmas(0, vtype), fill, pre={0: ['s_waitcnt lgkmcnt(0)']})
    if not last:
        a(f's_waitcnt vmcnt({vm}) lgkmcnt(0)')
        a('s_barrier')
    else:
        a('s_waitcnt lgkmcnt(0)')
    fill = {}
    if not last:
        au = addr_update()
        fill[0] = au[:5]
        fill[1] = au[5:]
        spread(frag_reads(0), 2, 8, fill)
    if dma:
        spread(dma_batch(), 8, 15, fill)
    weave(a, mfmas(1, vtype), fill)

def stamp(a, idx):
    a(f's_memtime s[{60+4*idx}:{61+4*idx}]'); a(f's_memrealtime s[{62+4*idx}:{63+4*idx}]')

def gen_k1(a, name='k1_kernel', dbg=False):
    kstart(a, name)
    Lend = a.newlabel('K1END')
    a('s_cmp_ge_u32 s2, 256'); a(f's_cbranch_scc1 {Lend}')
    if dbg: stamp(a, 0)
    a('s_load_dwordx4 s[4:7], s[0:1], 0')
    a('s_load_dwordx2 s[26:27], s[0:1], 96')
    a('s_load_dwordx4 s[20:23], s[0:1], 24')
    a('s_load_dwordx2 s[24:25], s[0:1], 104')
    a('v_and_b32 v1, 63, v0')
    a('v_lshrrev_b32 v2, 6, v0')
    a('s_and_b32 s41, s2, 7')
    a(f'v_readfirstlane_b32 s{S_WAVE}, v2')
    a('s_lshr_b32 s42, s2, 3')
    a('s_and_b32 s43, s42, 1')
    a('s_lshl_b32 s41, s41, 1')
    a(f's_add_u32 s{S_H}, s41, s43')
    a(f's_lshr_b32 s{S_KVT}, s42, 1'); a(f's_and_b32 s{S_KVT}, s{S_KVT}, 1')
    a(f's_lshr_b32 s{S_KT}, s42, 2')
    a(f's_lshl_b32 s{S_W4K}, s{S_WAVE}, 12')
    a('s_waitcnt lgkmcnt(0)')
    srd(a, S_WS, 24, WS_BYTES)
    srd(a, S_X, 6, 2048*1024*2)
    srd(a, S_XIN, 4, 2048*448*2)
    a(f's_cmp_eq_u32 s{S_KVT}, 0')
    a('s_cselect_b32 s20, s20, s22'); a('s_cselect_b32 s21, s21, s23')
    srd(a, S_W, 20, 1024*4096*2)
    a(f's_lshl_b32 s41, s2, 3'); a(f's_lshl_b32 s42, s{S_WAVE}, 1'); a('s_add_u32 s44, s41, s42')
    a('s_mul_i32 s45, s44, 896')
    a('v_lshlrev_b32 v2, 4, v1')
    a('v_mov_b32 v3, 0x7fffffff')
    a('v_cmp_gt_u32 vcc, 56, v1')
    a('s_nop 1')
    a('v_cndmask_b32 v2, v3, v2, vcc')
    a(f'buffer_load_dwordx4 v[96:99], v2, {sr(S_XIN)}, s45 offen')
    a(f'buffer_load_dwordx4 v[100:103], v2, {sr(S_XIN)}, s45 offen offset:896')
    a(f's_lshl_b32 s41, s{S_KT}, 2'); a(f's_add_u32 s41, s41, s{S_WAVE}'); a('s_lshl_b32 s41, s41, 17')
    a('v_lshrrev_b32 v2, 2, v1'); a('v_lshlrev_b32 v2, 11, v2')
    a('v_and_b32 v3, 3, v1'); a('v_lshrrev_b32 v24, 4, v1'); a('v_xor_b32 v3, v3, v24')
    a('v_lshl_add_u32 v2, v3, 4, v2')
    a(f'v_add_u32 v{V_VX}, s41, v2')
    for i in range(1, 4): a(f'v_add_u32 v{V_VX+i}, {i*(16*2048-1024)}, v{V_VX}')
    a(f's_lshl_b32 s41, s{S_WAVE}, 16'); a(f's_lshl_b32 s42, s{S_H}, 9'); a('s_add_u32 s41, s41, s42')
    a('v_lshrrev_b32 v24, 5, v1')
    a('v_and_b32 v25, 31, v1')
    a('v_lshrrev_b32 v26, 2, v25')
    a('v_and_b32 v27, 3, v25')
    for i in range(4):
        a(f'v_add_u32 v2, {(2*i)&3}, v24')
        a('v_xor_b32 v2, v26, v2')
        a('v_lshl_add_u32 v2, v2, 2, v27')
        a('v_lshlrev_b32 v2, 4, v2')
        a('v_lshl_add_u32 v2, v24, 13, v2')
        a(f'v_add_u32 v2, {2*i*8192-1024*i}, v2')
        a(f'v_add_u32 v{V_VW+i}, s41, v2')
    a(f's_mov_b32 s{S_SOX}, 0'); a(f's_mov_b32 s{S_SOW}, 0')
    a(f's_mov_b32 s{S_DSLOT}, s{S_W4K}')
    for s in range(NS):
        for g in dma_batch(): a(g)
    a(f's_and_b32 s41, s{S_WAVE}, 1'); a(f's_lshr_b32 s42, s{S_WAVE}, 1')
    a('s_lshl_b32 s43, s41, 13')
    a('v_lshrrev_b32 v2, 2, v25'); a('v_and_b32 v2, 3, v2')
    for ks in range(2):
        a(f'v_add_u32 v3, {2*ks}, v24')
        a('v_xor_b32 v3, v3, v2')
        a('v_lshlrev_b32 v3, 4, v3')
        a('v_lshl_add_u32 v3, v25, 6, v3')
        a(f'v_add_u32 v{V_XAB+ks}, s43, v3')
    a('v_lshrrev_b32 v2, 4, v1')
    a('v_bfe_u32 v3, v1, 2, 2')
    a('v_lshlrev_b32 v26, 12, v24')
    a('v_lshl_add_u32 v26, v3, 9, v26')
    a('v_and_b32 v2, 1, v2'); a('v_lshl_add_u32 v26, v2, 5, v26')
    a('v_and_b32 v2, 3, v1'); a('v_lshl_add_u32 v26, v2, 3, v26')
    a('s_lshl_b32 s43, s42, 8'); a('s_add_u32 s43, s43, 16384')
    a('v_add_u32 v26, s43, v26')
    for db in range(4):
        a(f'v_xor_b32 v2, {db}, v3')
        a(f'v_lshl_add_u32 v{V_WAB+db}, v2, 6, v26')
    for i in range(2): a(f'v_mov_b32 v{V_XA+i}, v{V_XAB+i}')
    for i in range(4): a(f'v_mov_b32 v{V_WA+i}, v{V_WAB+i}')
    a(f's_mov_b32 s{S_RSLOT}, 0')
    for r in range(256): a(f'v_accvgpr_write_b32 a{r}, 0')
    a(f's_waitcnt vmcnt({8*NS})')
    ln_row(a, 96, 104, 112, 52, 120)
    ln_row(a, 100, 104, 112, 52, 124)
    a('s_lshr_b32 s41, s44, 5'); a('s_mul_i32 s41, s41, 28*1024'); a('s_and_b32 s42, s44, 31'); a('s_lshl_b32 s42, s42, 4')
    a('s_add_u32 s41, s41, s42'); a(f's_add_u32 s41, s41, {hex(WS_XN)}')
    a('v_lshlrev_b32 v2, 9, v1')
    a('s_mov_b32 exec_hi, 0x00ffffff')
    a(f'buffer_store_dwordx4 v[120:123], v2, {sr(S_WS)}, s41 offen')
    a(f'buffer_store_dwordx4 v[124:127], v2, {sr(S_WS)}, s41 offen offset:16')
    a('s_mov_b32 exec_hi, -1')
    a(f's_waitcnt vmcnt({8*(NS-1)+2})')
    a('s_barrier')
    if dbg:
        stamp(a, 1); a('s_waitcnt lgkmcnt(0)')
    a(frag_reads(0))
    Lv = a.newlabel('K1V'); Lepi = a.newlabel('K1EPI')
    a(f's_cmp_eq_u32 s{S_KVT}, 1'); a(f's_cbranch_scc1 {Lv}')
    for vtype in range(2):
        if vtype: a.label(Lv)
        a(f's_mov_b32 s{S_CNT}, 0')
        Ll = a.newlabel('K1LOOP')
        a.label(Ll)
        stage(a, vtype, True, 8*(NS-2))
        a(f's_add_u32 s{S_CNT}, s{S_CNT}, 1'); a(f's_cmp_lt_u32 s{S_CNT}, {32-NS}'); a(f's_cbranch_scc1 {Ll}')
        for t in range(32-NS, 32):
            rem = 31 - (t+1)
            stage(a, vtype, False, 8*max(rem, 0), last=(t == 31))
        a('s_nop 15')
        if dbg: stamp(a, 2)
        a(f's_lshl_b32 s41, s{S_H}, 21')
        a(f's_lshl_b32 s42, s{S_KT}, 18'); a('s_add_u32 s41, s41, s42')
        a(f's_and_b32 s42, s{S_WAVE}, 1'); a('s_lshl_b32 s42, s42, 17'); a('s_add_u32 s41, s41, s42')
        a(f's_lshr_b32 s42, s{S_WAVE}, 1')
        if vtype:
            a('s_lshl_b32 s42, s42, 12'); a('s_add_u32 s41, s41, s42'); a('s_add_u32 s41, s41, 16384')
        else:
            a('s_lshl_b32 s42, s42, 13'); a('s_add_u32 s41, s41, s42')
        a('v_lshlrev_b32 v2, 4, v1')
        n = 0
        for kb in range(4):
            for db in range(4):
                acc = (db*4+kb)*16
                for half in range(2):
                    tb = 96 + (n % 4)*12; n += 1
                    for e in range(8): a(f'v_accvgpr_read_b32 v{tb+e}, a{acc+8*half+e}')
                    for e in range(4): a(f'v_cvt_pk_bf16_f32 v{tb+8+e}, v{tb+2*e}, v{tb+2*e+1}')
                    off = kb*32768 + ((half*8+db)*1024 if vtype else (2*db+half)*1024)
                    a(f's_add_u32 s42, s41, {off}')
                    a(f'buffer_store_dwordx4 {vr(tb+8)}, v2, {sr(S_WS)}, s42 offen')
        if dbg:
            a('s_waitcnt vmcnt(0)')
            stamp(a, 3)
            a('s_waitcnt lgkmcnt(0)')
            srd(a, 84, 26, 256)
            a('s_cmp_lg_u32 s2, 17'); a(f's_cbranch_scc1 {Lend}')
            a(f's_cmp_lg_u32 s{S_WAVE}, 0'); a(f's_cbranch_scc1 {Lend}')
            for i in range(1, 4):
                a(f's_sub_u32 s{60+4*i}, s{60+4*i}, s60'); a(f's_sub_u32 s{62+4*i}, s{62+4*i}, s62')
                a(f'v_mov_b32 v4, s{60+4*i}'); a(f'v_mov_b32 v5, s{62+4*i}'); a(f'v_mov_b32 v6, {8*i}')
                a('buffer_store_dwordx2 v[4:5], v6, s[84:87], 0 offen')
                a('s_nop 2')
        if vtype == 0: a(f's_branch {Lend}')
    a.label(Lend)
    a('s_endpgm')
    kdesc(a, name, 512, 256)

if __name__ == '__main__':
    a = Asm()
    a.raw(f'; @launch kernel=k1_kernel grid=(256,1,1) block=(256,1,1) lds={NS*SLOT}')
    a.raw('.amdgcn_target "amdgcn-amd-amdhsa--gfx950"')
    gen_k1(a, dbg=True)
    open('k1.s', 'w').write(a.text())
```

```python
from asmlib import *
from layout import *
from k1 import ln_row, stamp

WSLOT, NWS = 16384, 4
XBASE, XSLOT, NXS = 65536, 32768, 3
LDS_BYTES = 163840
S_WS, S_X, S_W, S_XIN = 8, 12, 16, 28
S_WAVE, S_H, S_KVT, S_KT, S_SOX, S_SOW, S_DX, S_RX, S_CNT = 32, 33, 34, 35, 36, 37, 38, 39, 40
S_T = 41
S_W4K = 50
V_VX, V_VW, V_XAB, V_XA, V_WA = 4, 8, 12, 14, 16
F = [dict(X=32, W=64), dict(X=96, W=128)]

def dma_w(wslot):
    g = [[f's_add_u32 s{S_T}, s{S_W4K}, {wslot*WSLOT}', f's_mov_b32 m0, s{S_T}', 's_nop 0',
          f'buffer_load_dwordx4 v{V_VW}, {sr(S_W)}, s{S_SOW} offen lds']]
    for i in range(1, 4):
        g.append([f'buffer_load_dwordx4 v{V_VW+i}, {sr(S_W)}, s{S_SOW} offen offset:{1024*i} lds'])
    g[-1] += [f's_add_u32 s{S_SOW}, s{S_SOW}, {32*8192}', f's_and_b32 s{S_SOW}, s{S_SOW}, 0x7fffff']
    return g

def dma_x(half):
    if half == 0:
        g = [[f's_mov_b32 m0, s{S_DX}', 's_nop 0', f'buffer_load_dwordx4 v{V_VX}, {sr(S_X)}, s{S_SOX} offen lds']]
        so = S_SOX
    else:
        so = S_T + 1
        g = [[f's_add_u32 s{S_T}, s{S_DX}, 16384', f's_mov_b32 m0, s{S_T}', f's_add_u32 s{so}, s{S_SOX}, {128*2048}',
              f'buffer_load_dwordx4 v{V_VX}, {sr(S_X)}, s{so} offen lds']]
    for i in range(1, 4):
        g.append([f'buffer_load_dwordx4 v{V_VX+i}, {sr(S_X)}, s{so} offen offset:{1024*i} lds'])
    if half == 1:
        g[-1] += [f's_add_u32 s{S_SOX}, s{S_SOX}, 128', f's_and_b32 s{S_SOX}, s{S_SOX}, 2047',
                  f's_add_u32 s{S_DX}, s{S_DX}, {XSLOT}',
                  f's_cmp_ge_u32 s{S_DX}, {XBASE+NXS*XSLOT}',
                  f's_cselect_b32 s{S_T}, {NXS*XSLOT}, 0',
                  f's_sub_u32 s{S_DX}, s{S_DX}, s{S_T}']
    return g

def frag_reads(u):
    f = F[u & 1]; ks = u & 1; ws = u % NWS
    def wr(db): return [f'ds_read_b64_tr_b16 {vr(f["W"]+4*db+2*h,2)}, v{V_WA+db} offset:{ws*WSLOT+2048*h}' for h in range(2)]
    r = wr(0)
    for kb in range(8): r.append(f'ds_read_b128 {vr(f["X"]+4*kb)}, v{V_XA+ks} offset:{2048*kb}')
    for db in range(1, 8): r += wr(db)
    return r

def xaddr_update():
    r = [f's_add_u32 s{S_RX}, s{S_RX}, {XSLOT}',
         f's_cmp_ge_u32 s{S_RX}, {NXS*XSLOT}',
         f's_cselect_b32 s{S_RX}, 0, s{S_RX}']
    for i in range(2): r.append(f'v_add_u32 v{V_XA+i}, s{S_RX}, v{V_XAB+i}')
    return r

def mfmas(par, vtype):
    f = F[par]; m = []
    for db in range(8):
        for kb in range(8):
            acc = ar((db*8+kb)*4, 4)
            w = vr(f['W']+4*db); x = vr(f['X']+4*kb)
            if vtype: m.append(f'v_mfma_f32_16x16x32_bf16 {acc}, {x}, {w}, {acc}')
            else:     m.append(f'v_mfma_f32_16x16x32_bf16 {acc}, {w}, {x}, {acc}')
    return m

def kstep(a, u, vtype, dmaw, dmax, vm, last=False):
    if not last:
        a(f's_waitcnt vmcnt({vm}) lgkmcnt(0)')
        a('s_barrier')
    else:
        a('s_waitcnt lgkmcnt(0)')
    fill = {}
    if not last:
        g0 = 0
        if (u & 1) == 1:
            au = xaddr_update(); fill[0] = au[:3]; fill[1] = au[3:]; g0 = 2
        spread(frag_reads(u+1), g0, g0+35, fill)
    d = []
    if dmaw: d += dma_w(u % NWS)
    if dmax: d += dma_x(0 if (u & 1) else 1)
    if d: spread(d, 4, 60, fill)
    weave(a, mfmas(u & 1, vtype), fill)

def gen_k1(a, name='k1_kernel', dbg=False, rot='kt'):
    kstart(a, name)
    Lend = a.newlabel('K1END')
    a('s_cmp_ge_u32 s2, 256'); a(f's_cbranch_scc1 {Lend}')
    if dbg: stamp(a, 0)
    a('s_load_dwordx4 s[4:7], s[0:1], 0')
    a('s_load_dwordx4 s[20:23], s[0:1], 24')
    a('s_load_dwordx2 s[24:25], s[0:1], 104')
    a('s_load_dwordx2 s[26:27], s[0:1], 96')
    a('v_and_b32 v1, 63, v0')
    a('v_lshrrev_b32 v2, 6, v0')
    a('s_and_b32 s41, s2, 7')
    a(f'v_readfirstlane_b32 s{S_WAVE}, v2')
    a('s_lshr_b32 s42, s2, 3')
    a('s_and_b32 s43, s42, 1')
    a('s_lshl_b32 s41, s41, 1')
    a(f's_add_u32 s{S_H}, s41, s43')
    a(f's_lshr_b32 s{S_KVT}, s42, 1'); a(f's_and_b32 s{S_KVT}, s{S_KVT}, 1')
    a(f's_lshr_b32 s{S_KT}, s42, 2')
    a(f's_lshl_b32 s{S_W4K}, s{S_WAVE}, 12')
    a(f's_lshl_b32 s41, s{S_KT}, 3'); a(f's_add_u32 s41, s41, s{S_WAVE}'); a('s_lshl_b32 s41, s41, 16')
    a('v_lshrrev_b32 v2, 3, v1'); a('v_lshlrev_b32 v2, 11, v2')
    a('v_and_b32 v3, 7, v1'); a('v_lshrrev_b32 v24, 4, v1'); a('v_xor_b32 v3, v3, v24')
    a('v_add_u32 v2, s41, v2')
    for i in range(4):
        a(f'v_xor_b32 v25, {4*(i&1)}, v3')
        a('v_lshl_add_u32 v25, v25, 4, v2')
        a(f'v_add_u32 v{V_VX+i}, {i*(8*2048-1024)}, v25')
    a(f's_lshl_b32 s41, s{S_WAVE}, 16'); a(f's_lshl_b32 s42, s{S_H}, 9'); a('s_add_u32 s41, s41, s42')
    a(f's_and_b32 s42, s{S_WAVE}, 1'); a('s_lshl_b32 s42, s42, 2')
    a('v_lshrrev_b32 v24, 5, v1')
    a('v_and_b32 v25, 31, v1')
    a('v_lshrrev_b32 v26, 1, v25')
    a('v_xor_b32 v26, s42, v26')
    a('v_and_b32 v27, 1, v25')
    for i in range(4):
        a(f'v_add_u32 v2, {(2*i)&3}, v24')
        a('v_xor_b32 v2, v26, v2')
        a('v_lshl_add_u32 v2, v2, 1, v27')
        a('v_lshlrev_b32 v2, 4, v2')
        a('v_lshl_add_u32 v2, v24, 13, v2')
        a(f'v_add_u32 v2, {2*i*8192-1024*i}, v2')
        a(f'v_add_u32 v{V_VW+i}, s41, v2')
    if rot == 'kt':
        a(f's_lshl_b32 s{S_SOX}, s{S_KT}, 8'); a(f's_lshl_b32 s{S_SOW}, s{S_KT}, 20')
    elif rot == 'j':
        a('s_lshr_b32 s41, s2, 4')
        a(f's_lshl_b32 s{S_SOX}, s41, 7'); a(f's_lshl_b32 s{S_SOW}, s41, 19')
    elif rot == 'kt1':
        a(f's_lshl_b32 s{S_SOX}, s{S_KT}, 7'); a(f's_lshl_b32 s{S_SOW}, s{S_KT}, 19')
    else:
        a(f's_mov_b32 s{S_SOX}, 0'); a(f's_mov_b32 s{S_SOW}, 0')
    a(f's_add_u32 s{S_DX}, s{S_W4K}, {XBASE}')
    a(f's_lshl_b32 s41, s2, 3'); a(f's_lshl_b32 s42, s{S_WAVE}, 1'); a('s_add_u32 s44, s41, s42')
    a('s_mul_i32 s45, s44, 896')
    a('v_lshlrev_b32 v2, 4, v1')
    a('v_mov_b32 v3, 0x7fffffff')
    a('v_cmp_gt_u32 vcc, 56, v1')
    a('s_waitcnt lgkmcnt(0)')
    a('v_cndmask_b32 v2, v3, v2, vcc')
    srd(a, S_WS, 24, WS_BYTES)
    srd(a, S_X, 6, 2048*1024*2)
    srd(a, S_XIN, 4, 2048*448*2)
    a(f's_cmp_eq_u32 s{S_KVT}, 0')
    a('s_cselect_b32 s20, s20, s22'); a('s_cselect_b32 s21, s21, s23')
    srd(a, S_W, 20, 1024*4096*2)
    for g in dma_w(0) + dma_x(0) + dma_x(1): a(g)
    for g in dma_w(1): a(g)
    a(f'buffer_load_dwordx4 v[160:163], v2, {sr(S_XIN)}, s45 offen')
    a(f'buffer_load_dwordx4 v[164:167], v2, {sr(S_XIN)}, s45 offen offset:896')
    for g in dma_x(0) + dma_w(2) + dma_x(1): a(g)
    for g in dma_w(3) + dma_x(0): a(g)
    a(f's_and_b32 s41, s{S_WAVE}, 1'); a(f's_lshr_b32 s42, s{S_WAVE}, 1')
    a('s_lshl_b32 s43, s41, 14'); a(f's_add_u32 s43, s43, {XBASE}')
    a('v_and_b32 v25, 15, v1')
    a('v_lshrrev_b32 v24, 4, v1')
    a('v_lshrrev_b32 v2, 1, v25')
    for ks in range(2):
        a(f'v_add_u32 v3, {4*ks}, v24')
        a('v_xor_b32 v3, v3, v2')
        a('v_lshlrev_b32 v3, 4, v3')
        a('v_lshl_add_u32 v3, v25, 7, v3')
        a(f'v_add_u32 v{V_XAB+ks}, s43, v3')
        a(f'v_mov_b32 v{V_XA+ks}, v{V_XAB+ks}')
    a('v_bfe_u32 v3, v1, 2, 2')
    a('v_lshlrev_b32 v26, 12, v24')
    a('v_lshl_add_u32 v26, v3, 9, v26')
    a('v_and_b32 v2, 3, v1'); a('v_lshl_add_u32 v26, v2, 3, v26')
    a('s_lshl_b32 s43, s42, 8')
    a('v_add_u32 v26, s43, v26')
    a('v_and_b32 v2, 1, v24'); a('v_lshl_or_b32 v3, v2, 2, v3')
    for db in range(8):
        a(f'v_xor_b32 v2, {db}, v3')
        a(f'v_lshl_add_u32 v{V_WA+db}, v2, 5, v26')
    a(f's_mov_b32 s{S_RX}, 0')
    for r in range(256): a(f'v_accvgpr_write_b32 a{r}, 0')
    a(f's_waitcnt vmcnt({4+2+12+8})')
    a('s_barrier')
    a(frag_reads(0))
    a(f's_waitcnt vmcnt({12+8})')
    ln_row(a, 160, 168, 176, 52, 184)
    ln_row(a, 164, 168, 176, 52, 188)
    a('s_lshr_b32 s41, s44, 4'); a('s_mul_i32 s41, s41, 14*1024'); a('s_and_b32 s42, s44, 15'); a('s_lshl_b32 s42, s42, 4')
    a('s_add_u32 s41, s41, s42'); a(f's_add_u32 s41, s41, {hex(WS_XN)}')
    a('v_lshlrev_b32 v2, 8, v1')
    a('s_mov_b32 exec_hi, 0x00ffffff')
    a(f'buffer_store_dwordx4 v[184:187], v2, {sr(S_WS)}, s41 offen')
    a(f'buffer_store_dwordx4 v[188:191], v2, {sr(S_WS)}, s41 offen offset:16')
    a('s_mov_b32 exec_hi, -1')
    if dbg:
        stamp(a, 1); a('s_waitcnt lgkmcnt(0)')
    Lv = a.newlabel('K1V')
    a(f's_cmp_eq_u32 s{S_KVT}, 1'); a(f's_cbranch_scc1 {Lv}')
    for vtype in range(2):
        if vtype: a.label(Lv)
        a(f's_mov_b32 s{S_CNT}, 0')
        Ll = a.newlabel('K1LOOP')
        a.label(Ll)
        for u in range(4): kstep(a, u, vtype, True, True, 16)
        a(f's_add_u32 s{S_CNT}, s{S_CNT}, 1'); a(f's_cmp_lt_u32 s{S_CNT}, 6'); a(f's_cbranch_scc1 {Ll}')
        sizes = {}
        for u in range(20, 32):
            sizes[u] = (4 if u <= 27 else 0) + (4 if u <= 26 else 0)
        for u in range(24, 32):
            vm = sizes[u-1] + sizes[u-2]
            kstep(a, u, vtype, u <= 27, u <= 26, vm, last=(u == 31))
        a('s_nop 7')
        if dbg: stamp(a, 2)
        a(f's_lshl_b32 s41, s{S_H}, 21')
        a(f's_lshl_b32 s42, s{S_KT}, 18'); a('s_add_u32 s41, s41, s42')
        a(f's_and_b32 s42, s{S_WAVE}, 1'); a('s_lshl_b32 s42, s42, 17'); a('s_add_u32 s41, s41, s42')
        a(f's_lshr_b32 s42, s{S_WAVE}, 1')
        if vtype:
            a('s_lshl_b32 s42, s42, 13'); a('s_add_u32 s41, s41, s42'); a('s_add_u32 s41, s41, 16384')
        else:
            a('s_lshl_b32 s42, s42, 12'); a('s_add_u32 s41, s41, s42')
        a('v_lshlrev_b32 v2, 4, v1')
        n = 0
        for tt in range(4):
            for x in range(8):
                if vtype:
                    t0 = (x*8 + 2*tt)*4; t1 = (x*8 + 2*tt+1)*4; off = tt*32768 + x*1024
                else:
                    kb = 2*tt + (x >> 2); s_ = x & 3
                    t0 = ((2*s_)*8 + kb)*4; t1 = ((2*s_+1)*8 + kb)*4; off = tt*32768 + ((x >> 2)*8 + s_)*1024
                tb = 160 + (n % 4)*12; n += 1
                for e in range(4): a(f'v_accvgpr_read_b32 v{tb+e}, a{t0+e}')
                for e in range(4): a(f'v_accvgpr_read_b32 v{tb+4+e}, a{t1+e}')
                for e in range(4): a(f'v_cvt_pk_bf16_f32 v{tb+8+e}, v{tb+2*e}, v{tb+2*e+1}')
                a(f's_add_u32 s42, s41, {off}')
                a(f'buffer_store_dwordx4 {vr(tb+8)}, v2, {sr(S_WS)}, s42 offen')
        if dbg:
            a('s_waitcnt vmcnt(0)')
            stamp(a, 3)
            a('s_waitcnt lgkmcnt(0)')
            srd(a, 84, 26, 256)
            a('s_cmp_lg_u32 s2, 17'); a(f's_cbranch_scc1 {Lend}')
            a(f's_cmp_lg_u32 s{S_WAVE}, 0'); a(f's_cbranch_scc1 {Lend}')
            for i in range(1, 4):
                a(f's_sub_u32 s{60+4*i}, s{60+4*i}, s60'); a(f's_sub_u32 s{62+4*i}, s{62+4*i}, s62')
                a(f'v_mov_b32 v4, s{60+4*i}'); a(f'v_mov_b32 v5, s{62+4*i}'); a(f'v_mov_b32 v6, {8*i}')
                a('buffer_store_dwordx2 v[4:5], v6, s[84:87], 0 offen')
                a('s_nop 2')
        if vtype == 0: a(f's_branch {Lend}')
    a.label(Lend)
    a('s_endpgm')
    kdesc(a, name, 512, 256)

if __name__ == '__main__':
    for rot in ['kt', 'none', 'j', 'kt1']:
        a = Asm()
        a.raw(f'; @launch kernel=k1_kernel grid=(256,1,1) block=(256,1,1) lds={LDS_BYTES}')
        a.raw('.amdgcn_target "amdgcn-amd-amdhsa--gfx950"')
        gen_k1(a, dbg=True, rot=rot)
        open(f'k1b_{rot}.s', 'w').write(a.text())
```

```python
from asmlib import *
from layout import *
from sched import *
import struct

def f32(x): return hex(struct.unpack('<I', struct.pack('<f', x))[0])
MF = 'v_mfma_f32_16x16x32_bf16'

S_WS, S_WQ, S_W1, S_WO, S_W2, S_B1, S_DBG = 8, 12, 16, 20, 24, 28, 44
S_WAVE, S_H, S_ROLE, S_I, S_OWN, S_EXT, S_T0, S_JOB, S_W4K, S_W2K = 32, 33, 34, 35, 36, 37, 38, 39, 40, 41
S_QB, S_XO = 42, 43
S_T = 48
S_KO, S_VO, S_PB, S_PO, S_CNT, S_RB, S_TS, S_N = 58, 59, 60, 61, 62, 63, 64, 65
S_RET = 66
S_MK = 68
S_ST = 76
S_QSC = 80
S_THR = 81
S_PAIR = 82
S_DO, S_D2, S_DS, S_PRT = 83, 84, 85, 86
V_LANE, V_L16 = 1, 4
V_H = 224
A_QA, A_QB = 192, 128

def stamp(a, idx, dbg):
    if not dbg: return
    L = a.newlabel('ST')
    a(f's_cmp_lg_u32 s{S_WAVE}, 0'); a(f's_cbranch_scc1 {L}')
    a(f's_memtime s[{S_ST}:{S_ST+1}]'); a(f's_memrealtime s[{S_ST+2}:{S_ST+3}]')
    a('s_waitcnt lgkmcnt(0)')
    a(f'v_mov_b32 v2, s{S_ST}'); a(f'v_mov_b32 v3, s{S_ST+2}')
    a(f's_lshl_b32 s{S_ST}, s2, 7'); a(f's_add_u32 s{S_ST}, s{S_ST}, {hex(WS_DBG + idx*8)}')
    a(f'v_mov_b32 v5, 0')
    a(f'buffer_store_dwordx2 v[2:3], v5, {sr(S_WS)}, s{S_ST} offen')
    a('s_nop 1')
    a.label(L)

B_VW, B_V1, B_VX = 6, 10, 12
B_WA, B_1A = 16, 24
B_WF, B_NB = 32, 8
B_XF = 64
B_TMP = 96

def phaseB_setup(a):
    t = S_T
    a(f's_lshl_b32 s{t}, s{S_WAVE}, 16'); a(f's_lshl_b32 s{t+1}, s{S_H}, 9'); a(f's_add_u32 s{t}, s{t}, s{t+1}')
    a(f's_and_b32 s{t+1}, s{S_WAVE}, 1'); a(f's_lshl_b32 s{t+1}, s{t+1}, 2')
    a('v_lshrrev_b32 v96, 5, v1'); a('v_and_b32 v97, 31, v1'); a('v_lshrrev_b32 v98, 1, v97')
    a(f'v_xor_b32 v98, s{t+1}, v98'); a('v_and_b32 v99, 1, v97')
    for i in range(4):
        a(f'v_add_u32 v2, {(2*i)&3}, v96'); a('v_xor_b32 v2, v98, v2'); a('v_lshl_add_u32 v2, v2, 1, v99')
        a('v_lshlrev_b32 v2, 4, v2'); a('v_lshl_add_u32 v2, v96, 13, v2')
        a(f'v_add_u32 v2, {2*i*8192-1024*i}, v2'); a(f'v_add_u32 v{B_VW+i}, s{t}, v2')
    a(f's_mul_i32 s{t}, s{S_WAVE}, {8*3584}'); a(f's_mul_i32 s{t+2}, s{S_H}, 224'); a(f's_add_u32 s{t}, s{t}, s{t+2}')
    a('v_lshrrev_b32 v96, 4, v1'); a('v_and_b32 v97, 15, v1'); a('v_lshrrev_b32 v98, 1, v97')
    a(f'v_xor_b32 v98, s{t+1}, v98'); a('v_xor_b32 v98, v96, v98'); a('v_and_b32 v99, 1, v97')
    a('v_lshl_add_u32 v2, v98, 1, v99'); a('v_lshlrev_b32 v2, 4, v2')
    a('v_mul_u32_u24 v3, 3584, v96'); a('v_add_u32 v2, v2, v3')
    a(f'v_add_u32 v{B_V1}, s{t}, v2'); a(f'v_add_u32 v{B_V1+1}, {4*3584-1024}, v{B_V1}')
    a(f'v_mov_b32 v{B_VX}, v{V_L16}'); a(f'v_add_u32 v{B_VX+1}, 14336, v{V_L16}')
    a('v_bfe_u32 v97, v1, 2, 2')
    a('v_lshl_add_u32 v98, v96, 3, v97')
    a('v_and_b32 v99, 3, v1'); a('v_lshlrev_b32 v99, 3, v99')
    a('v_and_b32 v2, 1, v96'); a('v_lshl_or_b32 v97, v2, 2, v97')
    a('v_lshl_add_u32 v100, v98, 9, v99')
    a('v_lshl_add_u32 v101, v98, 8, v99'); a('v_add_u32 v101, 0x10000, v101')
    for d in range(8):
        a(f'v_xor_b32 v2, {d}, v97')
        a(f'v_lshl_add_u32 v{B_WA+d}, v2, 5, v100')
        if d < 7: a(f'v_lshl_add_u32 v{B_1A+d}, v2, 5, v101')

def B_dma(u, ffn):
    sl = u % 4; t = S_T
    g = [[f's_add_u32 m0, s{S_W4K}, {sl*16384}', f's_mov_b32 s{t}, {u*32*8192}',
          f'buffer_load_dwordx4 v{B_VW}, {sr(S_WQ)}, s{t} offen lds']]
    for i in range(1, 4): g.append([f'buffer_load_dwordx4 v{B_VW+i}, {sr(S_WQ)}, s{t} offen offset:{1024*i} lds'])
    if ffn:
        g.append([f's_add_u32 m0, s{S_W2K}, {65536+sl*8192}', f's_mov_b32 s{t}, {u*32*3584}',
                  f'buffer_load_dwordx4 v{B_V1}, {sr(S_W1)}, s{t} offen lds'])
        g.append([f'buffer_load_dwordx4 v{B_V1+1}, {sr(S_W1)}, s{t} offen offset:1024 lds'])
    x = [[f's_add_u32 s{t+1}, s{S_XO}, {u*1024}',
          f'buffer_load_dwordx4 {vr(B_XF+sl*8)}, v{B_VX}, {sr(S_WS)}, s{t+1} offen'],
         [f'buffer_load_dwordx4 {vr(B_XF+sl*8+4)}, v{B_VX+1}, {sr(S_WS)}, s{t+1} offen']]
    return g, x

def phaseB(a, ffn, qdst):
    t = S_T
    nb = 8 if ffn else 6
    a(f's_lshl_b32 s{t}, s{S_QB}, 2'); a(f's_add_u32 s{t}, s{t}, s{S_WAVE}'); a(f's_mul_i32 s{t}, s{t}, {2*14336}')
    a(f's_add_u32 s{S_XO}, s{t}, {hex(WS_XN)}')
    a('s_barrier')
    if ffn:
        a(f's_mul_i32 s{t+2}, s{S_H}, 224')
        a('v_lshrrev_b32 v2, 4, v1'); a('v_lshlrev_b32 v2, 3, v2')
        for fb in range(7):
            a(f'buffer_load_dwordx2 {vr(B_TMP+2*fb,2)}, v2, {sr(S_B1)}, s{t+2} offen offset:{32*fb}')
    for u in range(4):
        g, x = B_dma(u, ffn)
        for y in g + x: a(y)
    if ffn:
        a(f's_waitcnt vmcnt({4*nb})')
        for fb in range(7):
            for k in range(2):
                a(f'v_lshlrev_b32 v2, 16, v{B_TMP+2*fb+k}'); a(f'v_and_b32 v3, 0xffff0000, v{B_TMP+2*fb+k}')
                for qb in range(2):
                    a(f'v_accvgpr_write_b32 a{128+(fb*2+qb)*4+2*k}, v2'); a(f'v_accvgpr_write_b32 a{128+(fb*2+qb)*4+2*k+1}, v3')
    a(f's_waitcnt vmcnt({3*nb})')
    a('s_barrier')
    nf = 23 if ffn else 16
    steps = []
    for u in range(14):
        sl = u % 4
        for f in range(nf):
            idx = len(steps); buf = B_WF + (idx % B_NB)*4
            if f < 16:
                rd = [f'ds_read_b64_tr_b16 {vr(buf+2*h,2)}, v{B_WA+(f&7)} offset:{sl*16384+2048*h+256*(f>>3)}' for h in range(2)]
                acc = f*8
            else:
                rd = [f'ds_read_b64_tr_b16 {vr(buf+2*h,2)}, v{B_1A+f-16} offset:{sl*8192+1024*h}' for h in range(2)]
                acc = 128 + (f-16)*8
            mf = []
            for qb in range(2):
                c = '0' if (u == 0 and f < 16) else ar(acc+4*qb)
                mf.append(f'{MF} {ar(acc+4*qb)}, {vr(buf)}, {vr(B_XF+sl*8+4*qb)}, {c}')
            steps.append(Step(mf, rd))
    LA = 6
    for u in range(13):
        bpos = (u+1)*nf - 3
        younger = min(u+3, 13) - (u+1)
        steps[bpos].pre += [f's_waitcnt vmcnt({younger*nb}) lgkmcnt(0)', 's_barrier']
        steps[bpos].drain = True
        for f in range(nf): steps[(u+1)*nf+f].gate = bpos
        if u + 4 <= 13:
            g, x = B_dma(u+4, ffn)
            add_fill(steps, g, bpos+1, bpos+10)
            add_fill(steps, x, bpos+11, bpos+13)
    pre, out = schedule(steps, LA=LA, maxper=2, wait_group=2, first_issued=LA)
    a(pre)
    for o in out: a(o)
    a('s_nop 7')
    if ffn:
        for ks in range(4):
            for qb in range(2):
                d = V_H + (ks*2+qb)*4
                for half in range(2):
                    fb = 2*ks + half
                    if fb == 7:
                        a(f'v_mov_b32 v{d+2}, 0'); a(f'v_mov_b32 v{d+3}, 0'); continue
                    src = 128 + (fb*2+qb)*4
                    for e in range(4): a(f'v_accvgpr_read_b32 v{B_TMP+e}, a{src+e}')
                    for e in range(4): a(f'v_max_f32 v{B_TMP+e}, 0, v{B_TMP+e}')
                    for e in range(4): a(f'v_mul_f32 v{B_TMP+e}, v{B_TMP+e}, v{B_TMP+e}')
                    for e in range(2): a(f'v_cvt_pk_bf16_f32 v{d+2*half+e}, v{B_TMP+2*e}, v{B_TMP+2*e+1}')
    for s in range(8):
        for qb in range(2):
            d = qdst + (s*2+qb)*4
            for half in range(2):
                src = ((2*s+half)*2+qb)*4
                for e in range(4): a(f'v_accvgpr_read_b32 v{B_TMP+4*half+e}, a{src+e}')
            for e in range(8): a(f'v_mul_f32 v{B_TMP+e}, s{S_QSC}, v{B_TMP+e}')
            for e in range(4): a(f'v_cvt_pk_bf16_f32 v{B_TMP+8+e}, v{B_TMP+2*e}, v{B_TMP+2*e+1}')
            for e in range(4): a(f'v_accvgpr_write_b32 a{d+e}, v{B_TMP+8+e}')

C_KA, C_VA, C_VD, C_DV, C_DV0, C_TM, C_NINF, C_ONE = 16, 17, 18, 19, 20, 21, 22, 24
C_BP16, C_BP32 = 28, 29
C_S = [32, 48]
C_P, C_NM, C_L, C_T, C_F = 64, 72, 80, 88, 96
C_NB = 8
C_MRG = 96

def C_dma(kind, m0expr):
    so = S_KO if kind == 'K' else S_VO
    g = [[m0expr, 's_nop 0', f'buffer_load_dwordx4 v{C_VD}, {sr(S_WS)}, s{so} offen lds']]
    for i in range(1, 4): g.append([f'buffer_load_dwordx4 v{C_VD}, {sr(S_WS)}, s{so} offen offset:{1024*i} lds'])
    g[-1].append(f's_add_u32 s{so}, s{so}, 32768')
    return g

def mask_ops(S):
    el = [(kb, qb, r) for kb in range(2) for qb in range(2) for r in range(4)]
    ops = []
    for i in range(0, 16, 4):
        for k in range(4):
            kb, qb, r = el[i+k]
            ops.append(f'v_cmp_gt_i32 s[{S_MK+2*k}:{S_MK+2*k+1}], {16*(kb-qb)+r}, v{C_DV}')
        for k in range(4):
            kb, qb, r = el[i+k]; reg = S + (kb*2+qb)*4 + r
            ops.append(f'v_cndmask_b32 v{reg}, v{reg}, v{C_NINF}, s[{S_MK+2*k}:{S_MK+2*k+1}]')
    return ops

def max_ops(S):
    ops = [f'v_max3_f32 v{C_TM}, v{S}, v{S+1}, v{S+2}']
    for i in range(3, 15, 2): ops.append(f'v_max3_f32 v{C_TM}, v{C_TM}, v{S+i}, v{S+i+1}')
    ops.append(f'v_max_f32 v{C_TM}, v{C_TM}, v{S+15}')
    return ops

def rowmax(a, S, qb, d):
    r = [S + (kb*2+qb)*4 + e for kb in range(2) for e in range(4)]
    a(f'v_max3_f32 v{d}, v{r[0]}, v{r[1]}, v{r[2]}')
    a(f'v_max3_f32 v{d}, v{d}, v{r[3]}, v{r[4]}')
    a(f'v_max3_f32 v{d}, v{d}, v{r[5]}, v{r[6]}')
    a(f'v_max_f32 v{d}, v{d}, v{r[7]}')
    for bp in (C_BP16, C_BP32):
        a(f'ds_bpermute_b32 v{C_T+7}, v{bp}, v{d}')
        a('s_waitcnt lgkmcnt(0)')
        a(f'v_max_f32 v{d}, v{d}, v{C_T+7}')

def rare_path(a, S, first):
    a('s_nop 7')
    for qb in range(2):
        d = C_T + qb
        rowmax(a, S, qb, d)
        if not first: a(f'v_max_f32 v{d}, 0, v{d}')
        for kb in range(2):
            for e in range(4):
                r = S + (kb*2+qb)*4 + e
                a(f'v_sub_f32 v{r}, v{r}, v{d}')
        for e in range(4): a(f'v_sub_f32 v{C_NM+4*qb+e}, v{C_NM+4*qb+e}, v{d}')
        if not first:
            al = C_T + 2 + qb
            a(f'v_exp_f32 v{al}, -v{d}')
            a('s_nop 0')
            for e in range(4): a(f'v_mul_f32 v{C_L+4*qb+e}, v{C_L+4*qb+e}, v{al}')
            for db in range(16):
                o = (db*2+qb)*4
                for e in range(4): a(f'v_accvgpr_read_b32 v{C_T+4+e}, a{o+e}')
                for e in range(4): a(f'v_mul_f32 v{C_T+4+e}, v{C_T+4+e}, v{al}')
                for e in range(4): a(f'v_accvgpr_write_b32 a{o+e}, v{C_T+4+e}')
    a('s_nop 1')

def C_ksteps(steps, j, cinit):
    S = C_S[j & 1]
    for kb in range(2):
        for s in range(8):
            buf = C_F + (len(steps) % C_NB)*4
            rd = [f'ds_read_b128 {vr(buf)}, v{C_KA} offset:{(j&1)*16384 + (kb*8+s)*1024}']
            mf = []
            for qb in range(2):
                d = vr(S + (kb*2+qb)*4)
                c = d if s > 0 else (cinit if cinit is not None else vr(C_NM+4*qb))
                mf.append(f'{MF} {d}, {vr(buf)}, {ar(A_QA+(s*2+qb)*4)}, {c}')
            steps.append(Step(mf, rd, tag=('K', j, kb*8+s)))

def C_vsteps(steps, j):
    for db in range(16):
        buf = C_F + (len(steps) % C_NB)*4
        rd = [f'ds_read_b128 {vr(buf)}, v{C_VA} offset:{(j&1)*16384 + db*1024}']
        mf = [f'{MF} {ar((db*2+qb)*4)}, {vr(buf)}, {vr(C_P+4*qb)}, {ar((db*2+qb)*4)}' for qb in range(2)]
        if db == 15:
            mf += [f'{MF} {vr(C_L+4*qb)}, {vr(C_ONE)}, {vr(C_P+4*qb)}, {vr(C_L+4*qb)}' for qb in range(2)]
        steps.append(Step(mf, rd, tag=('V', j, db)))

def softmax_ops(S):
    ops = []
    for qb in range(2):
        for kb in range(2):
            b = S + (kb*2+qb)*4
            for e in range(4): ops.append(f'v_exp_f32 v{b+e}, v{b+e}')
        for kb in range(2):
            b = S + (kb*2+qb)*4
            for e in range(2): ops.append(f'v_cvt_pk_bf16_f32 v{C_P+4*qb+2*kb+e}, v{b+2*e}, v{b+2*e+1}')
    return ops

def phaseC(a, rare_labels):
    t = S_T
    LA = 6
    a('s_barrier')
    a(f's_lshl_b32 s{t}, s{S_H}, 21'); a(f's_lshl_b32 s{t+1}, s{S_TS}, 15'); a(f's_add_u32 s{S_KO}, s{t}, s{t+1}')
    a(f's_add_u32 s{S_VO}, s{S_KO}, 16384')
    a(f'v_add_u32 v{C_VD}, s{S_W4K}, v{V_L16}')
    for kind, sl in [('K', 0), ('K', 1), ('V', 0), ('K', 2), ('V', 1), ('K', 3)]:
        for g in C_dma(kind, f's_add_u32 m0, s{S_W4K}, {(0 if kind=="K" else 65536) + sl*16384}'): a(g)
    a(f's_mov_b32 s{S_PB}, s{S_W4K}'); a(f's_xor_b32 s{S_PO}, s{S_PB}, 0x8000')
    a(f'v_mov_b32 v{C_KA}, v{V_L16}'); a(f'v_add_u32 v{C_VA}, 0x18000, v{V_L16}')
    a('v_and_b32 v2, 15, v1'); a('v_lshrrev_b32 v3, 4, v1'); a('v_lshlrev_b32 v3, 2, v3'); a(f'v_sub_u32 v{C_DV0}, v2, v3')
    a(f's_sub_u32 s{t}, s{S_RB}, s{S_TS}'); a(f's_lshl_b32 s{t}, s{t}, 5')
    a(f'v_add_u32 v{C_DV}, s{t}, v{C_DV0}')
    a(f'v_mov_b32 v{C_NINF}, 0xff800000')
    for e in range(4): a(f'v_mov_b32 v{C_ONE+e}, 0x3f803f80')
    a(f'v_xor_b32 v{C_BP16}, 16, v1'); a(f'v_lshlrev_b32 v{C_BP16}, 2, v{C_BP16}')
    a(f'v_xor_b32 v{C_BP32}, 32, v1'); a(f'v_lshlrev_b32 v{C_BP32}, 2, v{C_BP32}')
    for e in range(8): a(f'v_mov_b32 v{C_NM+e}, 0'); a(f'v_mov_b32 v{C_L+e}, 0')
    for r in range(128): a(f'v_accvgpr_write_b32 a{r}, 0')
    a('s_waitcnt vmcnt(12)')
    a('s_barrier')
    n = 10
    steps = []; start = {}
    start[-1] = 0
    C_ksteps(steps, 0, '0')
    for j in range(n):
        start[j] = len(steps)
        p = j & 1
        if j < n-1: C_ksteps(steps, j+1, None)
        h2 = len(steps)
        C_vsteps(steps, j)
        end = len(steps) - 1
        sm = softmax_ops(C_S[p])
        if j < n-1:
            add_fill(steps, sm, start[j], h2-2)
        else:
            steps[h2].pre += sm + ['s_nop 1']
        steps[h2].j = j
        tail = j - (n-6)
        vm = {0: 12, 1: 12, 2: 8, 3: 4, 4: 0}.get(max(tail, 0), None)
        if vm is not None:
            steps[h2+2].pre += [f's_waitcnt vmcnt({vm})', 's_barrier']
        d = []
        if tail <= 2:
            d += C_dma('V', f's_add_u32 m0, s{S_PO if p==0 else S_PB}, {65536 + (16384 if p==0 else 0)}')
        if tail <= 0:
            d += C_dma('K', f's_add_u32 m0, s{S_PB if p==0 else S_PO}, {16384 if p==0 else 0}')
        if d: add_fill(steps, d, h2+2, h2+13)
        if j < n-1:
            Sn = C_S[p ^ 1]
            ops = []
            if tail >= 1:
                ops += [f'v_subrev_u32 v{C_DV}, 32, v{C_DV}'] + mask_ops(Sn)
            ops += max_ops(Sn) + [f'v_cmp_lt_f32 vcc, s{S_THR}, v{C_TM}']
            add_fill(steps, ops, h2+3, end)
        if p == 1:
            steps[end].fill[-1] += [f's_xor_b32 s{S_PB}, s{S_PB}, 0x8000', f's_xor_b32 s{S_PO}, s{S_PO}, 0x8000']
    for st in steps:
        kind, j, f = st.tag
        if f == 0 and (j & 1) == 0 and (j > 0 or kind == 'V'):
            st.toggle = f'v_xor_b32 v{C_KA if kind=="K" else C_VA}, 0x8000, v{C_KA if kind=="K" else C_VA}'
            st.reads[0] = st.toggle + '\n  ' + st.reads[0]
    pre, out = schedule(steps, LA=LA, maxper=1, wait_group=2, first_issued=LA)
    def text(j0, j1):
        lo = start[j0]; hi = start[j1+1] if j1+1 in start else len(steps)
        return [x for o in out[lo:hi] for x in o]
    def emit_iter(j):
        a(text(j, j))
        if j < n-1:
            Lb = a.newlabel('CB'); Ls = a.newlabel('CS')
            a(f's_cbranch_vccnz {Ls}')
            a.label(Lb)
            rare_labels['stubs'].append((Ls, Lb, (j&1)^1))
    a(pre)
    a(text(-1, -1))
    a('s_barrier')
    for g in C_dma('V', f's_add_u32 m0, s{S_W4K}, {65536+2*16384}') + C_dma('K', f's_mov_b32 m0, s{S_W4K}'): a(g)
    a(mask_ops(C_S[0]))
    rare_path(a, C_S[0], True)
    a(f's_add_u32 s{t}, s{S_TS}, s{S_N}'); a(f's_sub_u32 s{t}, s{S_RB}, s{t}'); a(f's_add_u32 s{t}, s{t}, 5'); a(f's_lshl_b32 s{t}, s{t}, 5')
    Ltail4 = a.newlabel('CT4'); Ltail = a.newlabel('CT6'); Lloop = a.newlabel('CL')
    a(f's_cmp_eq_u32 s{S_N}, 4'); a(f's_cbranch_scc1 {Ltail4}')
    a(f'v_add_u32 v{C_DV}, s{t}, v{C_DV0}')
    a(f's_sub_u32 s{S_CNT}, s{S_N}, 6')
    a(f's_cmp_eq_u32 s{S_CNT}, 0'); a(f's_cbranch_scc1 {Ltail}')
    b0 = text(0, 1); b2 = text(2, 3)
    a.label(Lloop)
    emit_iter(2); emit_iter(3)
    a(f's_sub_u32 s{S_CNT}, s{S_CNT}, 2'); a(f's_cmp_lg_u32 s{S_CNT}, 0'); a(f's_cbranch_scc1 {Lloop}')
    a.label(Ltail)
    emit_iter(4); emit_iter(5)
    a.label(Ltail4)
    for j in range(6, 10): emit_iter(j)
    return b0, b2

def rare_subs(a, rare_labels):
    for (Ls, Lb, p) in rare_labels['stubs']:
        a.label(Ls)
        a(f's_getpc_b64 s[{S_RET}:{S_RET+1}]')
        Lp = a.newlabel('CP'); a.label(Lp)
        a(f's_sub_u32 s{S_RET}, s{S_RET}, {Lp}-{Lb}'); a(f's_subb_u32 s{S_RET+1}, s{S_RET+1}, 0')
        a(f's_branch {rare_labels[p]}')
    for p in range(2):
        a.label(rare_labels[p])
        rare_path(a, C_S[p], False)
        a(f's_setpc_b64 s[{S_RET}:{S_RET+1}]')

def op_base(a, d):
    a(f's_mul_i32 s{d}, s{S_PAIR}, {OP_PAIR}'); a(f's_mul_i32 s{d+1}, s{S_WAVE}, {OP_WAVE}')
    a(f's_add_u32 s{d}, s{d}, s{d+1}'); a(f's_add_u32 s{d}, s{d}, {hex(WS_OP)}')

def publish(a):
    t = S_T
    a('s_nop 7')
    op_base(a, t)
    for k in range(32):
        if k % 4 == 0 and k: a(f's_add_u32 s{t}, s{t}, 4096')
        a(f'buffer_store_dwordx4 {ar(4*k)}, v{V_L16}, {sr(S_WS)}, s{t} offen offset:{1024*(k%4)} sc1')
    a(f's_add_u32 s{t}, s{t}, 4096')
    a(f'v_mov_b32 v{C_T}, v{C_NM}'); a(f'v_mov_b32 v{C_T+1}, v{C_NM+4}'); a(f'v_mov_b32 v{C_T+2}, v{C_L}'); a(f'v_mov_b32 v{C_T+3}, v{C_L+4}')
    a(f'buffer_store_dwordx4 {vr(C_T)}, v{V_L16}, {sr(S_WS)}, s{t} offen sc1')
    a('s_waitcnt vmcnt(0)')
    a('s_barrier')
    L = a.newlabel('PUB')
    a(f's_cmp_lg_u32 s{S_WAVE}, 0'); a(f's_cbranch_scc1 {L}')
    a('s_mov_b64 exec, 1')
    a(f'v_mov_b32 v2, s{S_PAIR}'); a('v_mov_b32 v3, 1')
    a(f'buffer_store_byte v3, v2, {sr(S_DBG)}, 0 offen sc1')
    a('s_mov_b64 exec, -1')
    a.label(L)

D_CTX = 32
D_WF, D_NB = 96, 8
D_ACC = 128
D_PK = 160
D_VO = 6
D_RA, D_RB = 16, 20
DSLOT = 49152

def finalize(a, merge_label_skip):
    t = S_T
    Lno = a.newlabel('NOMRG'); Ldone = a.newlabel('FIN')
    a('s_nop 7')
    a(f's_cmp_eq_u32 s{S_JOB}, 2'); a(f's_cbranch_scc0 {Lno}')
    Lp = a.newlabel('POLL'); Lpd = a.newlabel('POLLD')
    a(f's_cmp_lg_u32 s{S_WAVE}, 0'); a(f's_cbranch_scc1 {Lpd}')
    a(f'v_mov_b32 v2, s{S_PAIR}')
    a(f's_mov_b32 s{t+2}, 0')
    a.label(Lp)
    a(f'buffer_load_ubyte v3, v2, {sr(S_DBG)}, 0 offen sc1')
    a('s_waitcnt vmcnt(0)')
    a(f'v_readfirstlane_b32 s{t+3}, v3')
    a(f's_add_u32 s{t+2}, s{t+2}, 1')
    a(f's_cmp_lg_u32 s{t+3}, 0'); a(f's_cbranch_scc1 {Lpd}')
    a('s_sleep 8')
    a(f's_cmp_lt_u32 s{t+2}, 20000'); a(f's_cbranch_scc1 {Lp}')
    a.label(Lpd)
    a('s_barrier')
    op_base(a, t)
    a(f's_add_u32 s{t+1}, s{t}, 32768')
    a(f'buffer_load_dwordx4 {vr(C_T)}, v{V_L16}, {sr(S_WS)}, s{t+1} offen sc1')
    for k in range(32):
        if k % 4 == 0 and k: a(f's_add_u32 s{t}, s{t}, 4096')
        a(f'buffer_load_dwordx4 {vr(C_MRG+4*k)}, v{V_L16}, {sr(S_WS)}, s{t} offen offset:{1024*(k%4)} sc1')
    a('s_waitcnt vmcnt(32)')
    for qb in range(2):
        nm_a = C_NM + 4*qb; nm_b = C_T + qb; l_a = C_L + 4*qb; l_b = C_T + 2 + qb
        a(f'v_min_f32 v2, v{nm_a}, v{nm_b}')
        a(f'v_sub_f32 v3, v2, v{nm_a}'); a(f'v_exp_f32 v{8+qb}, v3')
        a(f'v_sub_f32 v3, v2, v{nm_b}'); a(f'v_exp_f32 v{10+qb}, v3')
        a('s_nop 0')
        a(f'v_mul_f32 v2, v{8+qb}, v{l_a}'); a(f'v_fmac_f32 v2, v{10+qb}, v{l_b}')
        a('v_rcp_f32 v2, v2'); a('s_nop 0')
        a(f'v_mul_f32 v{8+qb}, v{8+qb}, v2'); a(f'v_mul_f32 v{10+qb}, v{10+qb}, v2')
    for s in range(8):
        a(f's_waitcnt vmcnt({28-4*s})')
        for qb in range(2):
            for half in range(2):
                o = ((2*s+half)*2+qb)*4
                for e in range(4): a(f'v_accvgpr_read_b32 v{12+e}, a{o+e}')
                for e in range(4): a(f'v_mul_f32 v{12+e}, v{12+e}, v{8+qb}')
                for e in range(4): a(f'v_fmac_f32 v{12+e}, v{C_MRG+o+e}, v{10+qb}')
                for e in range(2): a(f'v_cvt_pk_bf16_f32 v{D_CTX+(s*2+qb)*4+2*half+e}, v{12+2*e}, v{12+2*e+1}')
    a(f's_branch {Ldone}')
    a.label(Lno)
    for qb in range(2):
        a(f'v_rcp_f32 v{8+qb}, v{C_L+4*qb}')
    a('s_nop 0')
    for s in range(8):
        for qb in range(2):
            for half in range(2):
                o = ((2*s+half)*2+qb)*4
                for e in range(4): a(f'v_accvgpr_read_b32 v{12+e}, a{o+e}')
                for e in range(4): a(f'v_mul_f32 v{12+e}, v{12+e}, v{8+qb}')
                for e in range(2): a(f'v_cvt_pk_bf16_f32 v{D_CTX+(s*2+qb)*4+2*half+e}, v{12+2*e}, v{12+2*e+1}')
    a.label(Ldone)

def D_dma():
    t = S_T
    g = []
    for half in range(2):
        first = [f's_lshl_b32 s{t}, s{S_W4K}, 1', f's_add_u32 s{t}, s{t}, s{S_DS}'] if half == 0 else []
        first += [f's_add_u32 m0, s{t}, {4096*half}', f's_add_u32 s{t+1}, s{S_DO}, {half*32*896}']
        for i in range(4):
            g.append((first if i == 0 else []) + [f'buffer_load_dwordx4 v{D_VO+i}, {sr(S_WO)}, s{t+1} offen offset:{1024*i} lds'])
    first = [f's_add_u32 s{t}, s{S_W4K}, s{S_DS}', f's_add_u32 m0, s{t}, 32768', 's_nop 0']
    for i in range(4):
        g.append((first if i == 0 else []) + [f'buffer_load_dwordx4 v{D_VO+i}, {sr(S_W2)}, s{S_D2} offen offset:{1024*i} lds'])
    g[-1] += [f's_add_u32 s{S_DO}, s{S_DO}, 128', f's_add_u32 s{S_D2}, s{S_D2}, 128',
              f's_add_u32 s{S_DS}, s{S_DS}, {DSLOT}', f's_cmp_ge_u32 s{S_DS}, {3*DSLOT}', f's_cselect_b32 s{S_DS}, 0, s{S_DS}']
    return g

def phaseD_start(a):
    t = S_T
    a('s_barrier')
    a('v_lshrrev_b32 v2, 3, v1'); a('v_mul_u32_u24 v3, 896, v2')
    a('v_bfe_u32 v2, v1, 4, 2')
    a('v_bfe_u32 v5, v1, 1, 2'); a('v_xor_b32 v2, v2, v5')
    a('v_and_b32 v5, 1, v1'); a('v_lshl_add_u32 v2, v2, 1, v5'); a('v_lshl_add_u32 v3, v2, 4, v3')
    for i in range(4): a(f'v_add_u32 v{D_VO+i}, {i*(8*896-1024)}, v3')
    a(f's_lshl_b32 s{t}, s{S_H}, 8'); a(f's_lshl_b32 s{t+1}, s{S_WAVE}, 6'); a(f's_add_u32 s{t}, s{t}, s{t+1}'); a(f's_mul_i32 s{S_DO}, s{t}, 896')
    a(f's_mul_i32 s{t}, s{S_H}, 112'); a(f's_lshl_b32 s{t+1}, s{S_WAVE}, 5'); a(f's_add_u32 s{t}, s{t}, s{t+1}'); a(f's_mul_i32 s{S_D2}, s{t}, 896')
    a(f's_mov_b32 s{S_DS}, 0')
    for k in range(3):
        for g in D_dma(): a(g)

def phaseD(a):
    t = S_T
    a('v_lshrrev_b32 v2, 2, v1')
    a('v_bfe_u32 v3, v1, 3, 2')
    a('v_and_b32 v5, 3, v1'); a('v_lshlrev_b32 v5, 3, v5'); a('v_lshl_add_u32 v5, v2, 7, v5')
    for c in range(4):
        a(f'v_xor_b32 v2, {c}, v3'); a(f'v_lshl_add_u32 v{D_RB+c}, v2, 5, v5')
    a(f's_lshl_b32 s{t}, s{S_H}, 7'); a(f's_lshl_b32 s{t+1}, s{S_OWN}, 3'); a(f's_add_u32 s{t}, s{t}, s{t+1}')
    a(f's_lshl_b32 s{t+1}, s{S_WAVE}, 1'); a(f's_add_u32 s{t}, s{t}, s{t+1}'); a(f's_mul_i32 s{t}, s{t}, 14336')
    a(f's_add_u32 s{S_PRT}, s{t}, {hex(WS_PART)}')
    a(f'v_add_u32 v10, 14336, v{V_L16}')
    steps = []
    for tile in range(7):
        sl = tile % 3
        for c in range(4):
            for ks in range(12):
                buf = D_WF + (len(steps) % D_NB)*4
                rd = [f'ds_read_b64_tr_b16 {vr(buf+2*h,2)}, v{D_RA+c} offset:{4096*ks+2048*h}' for h in range(2)]
                if ks == 0: rd[0] = f'v_add_u32 v{D_RA+c}, {sl*DSLOT}, v{D_RB+c}\n  ' + rd[0]
                mf = []
                for qb in range(2):
                    d = vr(D_ACC + (c*2+qb)*4)
                    b = vr(D_CTX + (ks*2+qb)*4) if ks < 8 else vr(V_H + ((ks-8)*2+qb)*4)
                    mf.append(f'{MF} {d}, {vr(buf)}, {b}, {d if ks else "0"}')
                steps.append(Step(mf, rd))
    nst = 48
    vm_events = []
    for tile in range(7):
        for cp in range(2):
            v = tile*2 + cp
            endstep = (tile*4 + cp*2 + 2)*12
            ops = []
            for qb in range(2):
                pk = D_PK + (cp*2+qb)*4
                for half in range(2):
                    src = D_ACC + ((cp*2+half)*2+qb)*4
                    for e in range(2): ops.append(f'v_cvt_pk_bf16_f32 v{pk+2*half+e}, v{src+2*e}, v{src+2*e+1}')
                st = [f's_add_u32 s{t+4}, s{S_PRT}, {v*1024}'] if qb == 0 else []
                ops.append(st + [f'buffer_store_dwordx4 {vr(pk)}, v{V_L16 if qb==0 else 10}, {sr(S_WS)}, s{t+4} offen sc1'])
            if endstep + 3 < len(steps):
                add_fill(steps, ops, endstep+3, endstep+8)
            else:
                tail_ops = ops
    for tile in range(6):
        bpos = (tile+1)*nst - 3
        steps[bpos].pre += [f's_waitcnt vmcnt(@T{tile+1}) lgkmcnt(0)', 's_barrier']
        steps[bpos].drain = True
        for f in range(nst): steps[(tile+1)*nst+f].gate = bpos
        if tile + 3 <= 6:
            add_fill(steps, tag(D_dma(), f'T{tile+3}'), bpos+13, bpos+24)
    pre, out = schedule(steps, LA=6, maxper=2, wait_group=2, first_issued=6)
    head = [x for k in range(3) for g in tag(D_dma(), f'T{k}') for x in g]
    body = resolve_vm(head + ['MARK', 's_waitcnt vmcnt(@T0)', 's_barrier'] + pre + [x for o in out for x in o])
    a(body[body.index('MARK')+1:])
    a('s_nop 7')
    a(tail_ops)

def gen_k2(a, name='k2_kernel', dbg=False):
    kstart(a, name)
    Lend = a.newlabel('K2END')
    a('s_cmp_ge_u32 s2, 256'); a(f's_cbranch_scc1 {Lend}')
    a('s_load_dwordx2 s[4:5], s[0:1], 16')
    a('s_load_dwordx2 s[6:7], s[0:1], 40')
    a('s_load_dwordx4 s[88:91], s[0:1], 56')
    a('s_load_dwordx2 s[92:93], s[0:1], 72')
    a('s_load_dwordx4 s[96:99], s[0:1], 96')
    a('v_and_b32 v1, 63, v0')
    a('v_lshrrev_b32 v2, 6, v0')
    a(f'v_lshlrev_b32 v{V_L16}, 4, v1')
    a(f'v_readfirstlane_b32 s{S_WAVE}, v2')
    t = S_T
    a(f's_and_b32 s{t}, s2, 7'); a(f's_lshr_b32 s{t+1}, s2, 3'); a(f's_and_b32 s{t+2}, s{t+1}, 1')
    a(f's_lshl_b32 s{t}, s{t}, 1'); a(f's_add_u32 s{S_H}, s{t}, s{t+2}')
    a(f's_lshr_b32 s{t+1}, s{t+1}, 1'); a(f's_and_b32 s{S_ROLE}, s{t+1}, 1'); a(f's_lshr_b32 s{S_I}, s{t+1}, 1')
    a(f's_lshl_b32 s{S_W4K}, s{S_WAVE}, 12'); a(f's_lshl_b32 s{S_W2K}, s{S_WAVE}, 11')
    a(f's_lshl_b32 s{S_PAIR}, s{S_H}, 3'); a(f's_add_u32 s{S_PAIR}, s{S_PAIR}, s{S_I}')
    lo = sum(T0[i] << (8*i) for i in range(4)); hi = sum(T0[4+i] << (8*i) for i in range(4))
    a(f's_mov_b32 s{t}, {hex(lo)}'); a(f's_mov_b32 s{t+1}, {hex(hi)}')
    a(f's_lshl_b32 s{t+2}, s{S_I}, 3'); a(f's_lshr_b64 s[{t}:{t+1}], s[{t}:{t+1}], s{t+2}'); a(f's_and_b32 s{S_T0}, s{t}, 0xff')
    a(f's_sub_u32 s{S_EXT}, 15, s{S_I}')
    a(f's_cmp_eq_u32 s{S_ROLE}, 0'); a(f's_cselect_b32 s{S_OWN}, s{S_EXT}, s{S_I}')
    a(f's_mov_b32 s{S_QSC}, {f32(1.4426950408889634/16)}')
    a(f's_mov_b32 s{S_THR}, {f32(16.0)}')
    a('s_waitcnt lgkmcnt(0)')
    srd(a, S_WS, 98, WS_BYTES); srd(a, S_WQ, 4, 448*4096*2); srd(a, S_W1, 88, 448*1792*2); srd(a, S_WO, 6, 4096*448*2)
    srd(a, S_W2, 92, 1792*448*2); srd(a, S_B1, 90, 1792*2); srd(a, S_DBG, 96, 256)
    stamp(a, 0, dbg)
    phaseB_setup(a)
    Lnoext = a.newlabel('NOEXT'); Lattn = a.newlabel('ATTN'); Lown = a.newlabel('OWN'); Lfin = a.newlabel('FINAL')
    a(f's_mul_i32 s{S_JOB}, s{S_ROLE}, s{S_T0}')
    a(f's_cmp_eq_u32 s{S_JOB}, 0'); a(f's_cbranch_scc1 {Lnoext}')
    a(f's_mov_b32 s{S_QB}, s{S_EXT}')
    phaseB(a, False, A_QA)
    a.label(Lnoext)
    stamp(a, 1, dbg)
    a(f's_mov_b32 s{S_QB}, s{S_OWN}')
    phaseB(a, True, A_QB)
    stamp(a, 2, dbg)
    a(f's_cmp_eq_u32 s{S_JOB}, 0'); a(f's_cbranch_scc1 {Lown}')
    a(f's_mov_b32 s{S_JOB}, 1')
    a(f's_lshl_b32 s{S_RB}, s{S_EXT}, 2'); a(f's_add_u32 s{S_RB}, s{S_RB}, s{S_WAVE}')
    a(f's_mov_b32 s{S_TS}, 0'); a(f's_mov_b32 s{S_N}, s{S_T0}')
    a(f's_branch {Lattn}')
    a.label(Lown)
    for r in range(64): a(f'v_accvgpr_mov_b32 a{A_QA+r}, a{A_QB+r}')
    a(f's_lshl_b32 s{S_RB}, s{S_OWN}, 2'); a(f's_add_u32 s{S_N}, s{S_RB}, 4'); a(f's_add_u32 s{S_RB}, s{S_RB}, s{S_WAVE}')
    a(f's_cmp_eq_u32 s{S_ROLE}, 0'); a(f's_cselect_b32 s{S_TS}, s{S_T0}, 0')
    a(f's_sub_u32 s{S_N}, s{S_N}, s{S_TS}')
    a(f's_cmp_lg_u32 s{S_TS}, 0'); a(f's_cselect_b32 s{S_JOB}, 2, 3')
    a.label(Lattn)
    rl = {0: a.newlabel('RARE'), 1: a.newlabel('RARE'), 'stubs': []}
    b0, b2 = phaseC(a, rl)
    assert b0 == b2, 'loop body not periodic'
    a(f's_cmp_lg_u32 s{S_JOB}, 1'); a(f's_cbranch_scc1 {Lfin}')
    publish(a)
    stamp(a, 3, dbg)
    a(f's_branch {Lown}')
    a.label(Lfin)
    stamp(a, 4, dbg)
    finalize(a, None)
    phaseD_start(a)
    stamp(a, 5, dbg)
    phaseD(a)
    if dbg:
        a('s_waitcnt vmcnt(0)')
        stamp(a, 6, dbg)
    a.label(Lend)
    a('s_endpgm')
    rare_subs(a, rl)
    kdesc(a, name, 512, 256, sgpr=102)

def gen_k3(a, name='k3_kernel'):
    kstart(a, name)
    Lend = a.newlabel('K3END')
    a('s_cmp_ge_u32 s2, 448'); a(f's_cbranch_scc1 {Lend}')
    a('s_load_dwordx2 s[4:5], s[0:1], 0')
    a('s_load_dwordx4 s[20:23], s[0:1], 80')
    a('s_load_dwordx2 s[6:7], s[0:1], 104')
    a('v_and_b32 v1, 63, v0'); a('v_lshrrev_b32 v2, 6, v0')
    a('s_lshl_b32 s3, s2, 2')
    a('v_readfirstlane_b32 s24, v2')
    a('v_lshlrev_b32 v3, 4, v1')
    a('s_add_u32 s24, s24, s3')
    a('s_mul_hi_u32 s25, s24, 0x1249249a')
    a('s_mul_i32 s26, s25, 14'); a('s_sub_u32 s26, s24, s26')
    a('s_lshl_b32 s27, s24, 10'); a(f's_add_u32 s27, s27, {hex(WS_PART)}')
    a('s_waitcnt lgkmcnt(0)')
    srd(a, 8, 6, WS_BYTES); srd(a, 12, 4, 2048*448*2); srd(a, 16, 20, 448*2); srd(a, 28, 22, 2048*448*2)
    for h in range(16):
        a(f'buffer_load_dwordx4 {vr(16+4*h)}, v3, s[8:11], s27 offen')
        if h < 15: a(f's_add_u32 s27, s27, {128*14*1024}')
    a('v_and_b32 v4, 15, v1'); a('v_mul_u32_u24 v4, 896, v4'); a('v_lshrrev_b32 v5, 4, v1'); a('v_lshlrev_b32 v5, 3, v5')
    a('v_add_u32 v4, v4, v5')
    a('s_mul_i32 s25, s25, 16*896'); a('s_lshl_b32 s26, s26, 6'); a('s_add_u32 s25, s25, s26')
    a('buffer_load_dwordx2 v[80:81], v4, s[12:15], s25 offen')
    a('buffer_load_dwordx2 v[82:83], v4, s[12:15], s25 offen offset:32')
    a('buffer_load_dwordx2 v[84:85], v5, s[16:19], s26 offen')
    a('buffer_load_dwordx2 v[86:87], v5, s[16:19], s26 offen offset:32')
    for h in range(18):
        a(f's_waitcnt vmcnt({max(19-h,0) if h < 16 else (2 if h == 16 else 0)})')
        src = 16 + 4*h
        for i in range(4):
            if h == 0:
                a(f'v_lshlrev_b32 v{8+2*i}, 16, v{src+i}'); a(f'v_and_b32 v{9+2*i}, 0xffff0000, v{src+i}')
            else:
                a(f'v_lshlrev_b32 v6, 16, v{src+i}'); a(f'v_and_b32 v7, 0xffff0000, v{src+i}')
                a(f'v_add_f32 v{8+2*i}, v{8+2*i}, v6'); a(f'v_add_f32 v{9+2*i}, v{9+2*i}, v7')
    for i in range(4): a(f'v_cvt_pk_bf16_f32 v{16+i}, v{8+2*i}, v{9+2*i}')
    a('buffer_store_dwordx2 v[16:17], v4, s[28:31], s25 offen')
    a('buffer_store_dwordx2 v[18:19], v4, s[28:31], s25 offen offset:32')
    a.label(Lend)
    a('s_endpgm')
    kdesc(a, name, 88, 88, sgpr=40)
```

```python
class Step:
    def __init__(s, mf, reads=(), gate=None, tag=None):
        s.mf = list(mf)
        s.reads = list(reads)
        s.gate = gate
        s.pre = []
        s.fill = [[] for _ in s.mf]
        s.tag = tag
        s.drain = False

def schedule(steps, LA=6, maxper=2, wait_group=1, first_issued=0):
    n = len(steps)
    out = [[] for _ in steps]
    issued_cnt = 0
    last_idx = [None]*n
    done_upto = 0
    nxt = 0
    pre = []
    def issue(dst, i):
        nonlocal issued_cnt
        for r in steps[i].reads:
            dst.append(r); issued_cnt += 1
        last_idx[i] = issued_cnt
    while nxt < min(first_issued, n):
        issue(pre, nxt); nxt += 1
    for p, st in enumerate(steps):
        o = out[p]
        o += st.pre
        if st.drain: done_upto = issued_cnt
        while nxt <= p:
            assert steps[nxt].gate is None or steps[nxt].gate <= p, (p, nxt)
            issue(o, nxt); nxt += 1
        if last_idx[p] > done_upto:
            tgt = p
            while tgt + 1 < min(p + wait_group, n) and last_idx[tgt+1] is not None: tgt += 1
            N = issued_cnt - last_idx[tgt]
            assert N <= 15, N
            o.append(f's_waitcnt lgkmcnt({N})')
            done_upto = last_idx[tgt]
        rd = []
        k = 0
        while nxt < n and nxt <= p + LA and k < maxper and (steps[nxt].gate is None or steps[nxt].gate <= p):
            if issued_cnt + len(steps[nxt].reads) - done_upto > 15: break
            tmp = []
            issue(tmp, nxt); rd += tmp; nxt += 1; k += 1
        nm = len(st.mf)
        for gi, m in enumerate(st.mf):
            o.append(m)
            lo = (gi*len(rd))//nm; hi = ((gi+1)*len(rd))//nm
            o += rd[lo:hi]
            o += st.fill[gi]
        if nm == 0: o += rd
    return pre, out

def add_fill(steps, items, s0, s1):
    gaps = [(i, g) for i in range(s0, s1+1) for g in range(len(steps[i].mf))]
    n = len(items)
    for k, it in enumerate(items):
        i, g = gaps[(k*len(gaps))//n]
        if isinstance(it, (list, tuple)): steps[i].fill[g] += list(it)
        else: steps[i].fill[g].append(it)

import re
def resolve_vm(lines):
    flat = []
    for l in lines:
        flat += [x.strip() for x in l.split('\n')]
    cnt = 0; last = {}
    out = []
    for l in flat:
        m = re.search(r'vmcnt\(@(\w+)\)', l)
        if m:
            n = cnt - last[m.group(1)]
            assert 0 <= n <= 63, n
            l = l.replace(m.group(0), f'vmcnt({n})')
        if l.startswith('buffer_') or l.startswith('global_'):
            cnt += 1
            m = re.search(r';@(\w+)', l)
            if m:
                last[m.group(1)] = cnt
                l = l[:m.start()].rstrip()
        out.append(l)
    return out

def tag(groups, t):
    return [[(x + f' ;@{t}') if x.startswith('buffer_') else x for x in g] for g in groups]
```

```python
import sys
from asmlib import *
import k1b, k2
def build(path, dbg=False):
    a = Asm()
    a.raw(f'; @launch kernel=k1_kernel grid=(256,1,1) block=(256,1,1) lds=163840')
    a.raw(f'; @launch kernel=k2_kernel grid=(256,1,1) block=(256,1,1) lds=163840')
    a.raw(f'; @launch kernel=k3_kernel grid=(448,1,1) block=(256,1,1) lds=0')
    a.raw('.amdgcn_target "amdgcn-amd-amdhsa--gfx950"')
    k1b.gen_k1(a, dbg=False, rot='none')
    k2.gen_k2(a, dbg=dbg)
    k2.gen_k3(a)
    open(path, 'w').write(a.text())
if __name__ == '__main__':
    build('full_dbg.s', dbg=True)
    build('cdna_kernels/' + NAME + '.s', dbg=False)
```

```python
NAME = 'parallel_sum__compressed_kv_cla__dense_activation_squared_relu__prompt'

class Asm:
    def __init__(s):
        s.L = []
        s.nlab = 0
    def __call__(s, x):
        if isinstance(x, (list, tuple)):
            for y in x: s(y)
        else:
            s.L.append('  ' + x)
    def label(s, n): s.L.append(n + ':')
    def c(s, x): s.L.append('  ; ' + x)
    def raw(s, x): s.L.append(x)
    def newlabel(s, p='L'):
        s.nlab += 1
        return f'{p}_{s.nlab}'
    def text(s): return '\n'.join(s.L) + '\n'

def vr(b, n=4): return f'v[{b}:{b+n-1}]'
def ar(b, n=4): return f'a[{b}:{b+n-1}]'
def sr(b, n=4): return f's[{b}:{b+n-1}]'

def kstart(a, name):
    a.raw('.text')
    a.raw(f'.globl {name}')
    a.raw('.p2align 8')
    a.raw(f'.type {name},@function')
    a.label(name)

def kdesc(a, name, vgpr, acc, sgpr=100):
    for x in ['.section .rodata,"a"', '.p2align 6', f'.amdhsa_kernel {name}', f'  .amdhsa_next_free_vgpr {vgpr}',
              f'  .amdhsa_next_free_sgpr {sgpr}', f'  .amdhsa_accum_offset {acc}',
              '  .amdhsa_group_segment_fixed_size 0', '  .amdhsa_kernarg_size 112', '  .amdhsa_user_sgpr_count 2',
              '  .amdhsa_user_sgpr_kernarg_segment_ptr 1', '  .amdhsa_system_sgpr_workgroup_id_x 1', '.end_amdhsa_kernel']:
        a.raw(x)

def srd(a, d, base, nbytes):
    a(f's_mov_b32 s{d}, s{base}')
    a(f's_mov_b32 s{d+1}, s{base+1}')
    a(f's_mov_b32 s{d+2}, {hex(nbytes)}')
    a(f's_mov_b32 s{d+3}, 0x00020000')

def weave(a, mf, fill, pre=None):
    for i, m in enumerate(mf):
        if pre and i in pre:
            a(pre[i])
        a(m)
        if i in fill:
            a(fill[i])

def spread(items, g0, g1, fill):
    n = len(items)
    ng = g1 - g0 + 1
    for k, it in enumerate(items):
        g = g0 + (k * ng) // n
        fill.setdefault(g, [])
        if isinstance(it, (list, tuple)): fill[g] += list(it)
        else: fill[g].append(it)

def code_prefetch(a, start_label, end_label, nbytes, vtmp, s0, wave_sgpr_ready=False):
    Lp = a.newlabel('PF')
    a(f's_getpc_b64 s[{s0}:{s0+1}]')
    a.label(Lp)
    a(f's_sub_u32 s{s0}, s{s0}, {Lp}-{start_label}'); a(f's_subb_u32 s{s0+1}, s{s0+1}, 0')
    a(f'v_lshlrev_b32 v{vtmp}, 7, v0')
    n = (nbytes + 32767) // 32768
    for i in range(n):
        a(f'v_min_u32 v{vtmp+1}, {end_label}-{start_label}-4, v{vtmp}')
        a(f'global_load_dword v{vtmp+2}, v{vtmp+1}, s[{s0}:{s0+1}]')
        if i < n-1: a(f'v_add_u32 v{vtmp}, 0x8000, v{vtmp}')
    return n

import re as _re
def compact(text):
    macros = {}
    out = []
    mf = _re.compile(r'^\s*v_mfma_f32_16x16x32_bf16 ([av])\[(\d+):\d+\], ([av])\[(\d+):\d+\], ([av])\[(\d+):\d+\], (?:([av])\[(\d+):\d+\]|(0))\s*$')
    r4 = _re.compile(r'^\s*ds_read_b128 v\[(\d+):\d+\], v(\d+) offset:(\d+)\s*$')
    rt = _re.compile(r'^\s*ds_read_b64_tr_b16 v\[(\d+):\d+\], v(\d+) offset:(\d+)\s*$')
    ard = _re.compile(r'^\s*v_accvgpr_read_b32 v(\d+), a(\d+)\s*$')
    awr = _re.compile(r'^\s*v_accvgpr_write_b32 a(\d+), (\S+)\s*$')
    cv = _re.compile(r'^\s*v_cvt_pk_bf16_f32 v(\d+), v(\d+), v(\d+)\s*$')
    lg = _re.compile(r'^\s*s_waitcnt lgkmcnt\((\d+)\)\s*$')
    for l in text.split('\n'):
        m = mf.match(l)
        if m:
            d, dn, x, xn, y, yn, c, cn, z = m.groups()
            if z: kind = 'z'
            elif c == d and cn == dn: kind = 's'
            else: kind = 'c'
            name = f'M{d}{x}{y}{kind}'
            if name not in macros:
                cs = {'z': '0', 's': f'{d}[\\d:\\d+3]', 'c': f'{d}[\\c:\\c+3]'}[kind]
                args = 'd,x,y' + (',c' if kind == 'c' else '')
                macros[name] = f'.macro {name} {args}\nv_mfma_f32_16x16x32_bf16 {d}[\\d:\\d+3], {x}[\\x:\\x+3], {y}[\\y:\\y+3], {cs}\n.endm'
            out.append(f'{name} {dn},{xn},{yn}' + (f',{cn}' if kind == 'c' else '')); continue
        m = r4.match(l)
        if m:
            macros['R4'] = '.macro R4 d,a,o\nds_read_b128 v[\\d:\\d+3], v\\a offset:\\o\n.endm'
            out.append('R4 %s,%s,%s' % m.groups()); continue
        m = rt.match(l)
        if m:
            macros['RT'] = '.macro RT d,a,o\nds_read_b64_tr_b16 v[\\d:\\d+1], v\\a offset:\\o\n.endm'
            out.append('RT %s,%s,%s' % m.groups()); continue
        m = ard.match(l)
        if m:
            macros['AR'] = '.macro AR d,s\nv_accvgpr_read_b32 v\\d, a\\s\n.endm'
            out.append('AR %s,%s' % m.groups()); continue
        m = awr.match(l)
        if m:
            macros['AW'] = '.macro AW d,s\nv_accvgpr_write_b32 a\\d, \\s\n.endm'
            out.append('AW %s,%s' % m.groups()); continue
        m = cv.match(l)
        if m:
            macros['CV'] = '.macro CV d,x,y\nv_cvt_pk_bf16_f32 v\\d, v\\x, v\\y\n.endm'
            out.append('CV %s,%s,%s' % m.groups()); continue
        m = lg.match(l)
        if m:
            macros['LW'] = '.macro LW n\ns_waitcnt lgkmcnt(\\n)\n.endm'
            out.append('LW %s' % m.groups()); continue
        if l.startswith('  ') and not l.startswith('  .amdhsa'): l = l.strip()
        out.append(l)
    i = next(k for k, l in enumerate(out) if l.startswith('.amdgcn_target'))
    out[i+1:i+1] = list(macros.values())
    return '\n'.join(out)
```

```python
import sys
from asmlib import *
import mega, k3
def build(path, dbg=False, **opt):
    mega.OPT.update(opt)
    a = Asm()
    a.raw(f'; @launch kernel=m_kernel grid=(256,1,1) block=(256,1,1) lds=163840')
    a.raw(f'; @launch kernel=k3_kernel grid=(448,1,1) block=(256,1,1) lds=0')
    a.raw('.amdgcn_target "amdgcn-amd-amdhsa--gfx950"')
    mega.gen_mega(a, dbg=dbg)
    k3.gen_k3(a, dbg=dbg)
    open(path, 'w').write(compact(a.text()))
if __name__ == '__main__':
    build('full_dbg.s', dbg=True)
    build('cdna_kernels/' + NAME + '.s', dbg=False)
```

```python
from asmlib import *
from layout import *
from sched import *
import struct

def f32(x): return hex(struct.unpack('<I', struct.pack('<f', x))[0])
MF = 'v_mfma_f32_16x16x32_bf16'
DBG = [False]

S_WS, S_WQ, S_W1, S_WO, S_W2, S_B1, S_DBG = 8, 12, 16, 20, 24, 28, 44
S_WAVE, S_H, S_ROLE, S_I, S_OWN, S_EXT, S_T0, S_JOB, S_W4K, S_W2K = 32, 33, 34, 35, 36, 37, 38, 39, 40, 41
S_QB, S_XO = 42, 43
S_T = 48
S_KO, S_VO, S_PB, S_PO, S_CNT, S_RB, S_TS, S_N = 58, 59, 60, 61, 62, 63, 64, 65
S_RET = 66
S_MK = 68
S_ST = 76
S_QSC = 80
S_THR = 81
S_PAIR = 82
S_DO, S_D2, S_DS, S_PRT = 83, 84, 85, 86
V_LANE, V_L16 = 1, 4
V_H = 224
A_QA, A_QB = 192, 128

def stamp(a, idx, dbg):
    if not dbg: return
    L = a.newlabel('ST')
    a(f's_cmp_lg_u32 s{S_WAVE}, 0'); a(f's_cbranch_scc1 {L}')
    a(f's_memtime s[{S_ST}:{S_ST+1}]'); a(f's_memrealtime s[{S_ST+2}:{S_ST+3}]')
    a('s_waitcnt lgkmcnt(0)')
    a(f'v_mov_b32 v2, s{S_ST}'); a(f'v_mov_b32 v3, s{S_ST+2}')
    a(f's_lshl_b32 s{S_ST}, s2, 7'); a(f's_add_u32 s{S_ST}, s{S_ST}, {hex(WS_DBG + idx*8)}')
    a(f'v_mov_b32 v5, 0')
    a(f'buffer_store_dwordx2 v[2:3], v5, {sr(S_WS)}, s{S_ST} offen')
    a('s_nop 1')
    a.label(L)

B_VW, B_V1, B_VX = 6, 10, 12
B_WA, B_1A = 16, 24
B_WF, B_NB = 32, 8
B_XF = 64
B_TMP = 96

def phaseB_setup(a):
    t = S_T
    a(f's_lshl_b32 s{t}, s{S_WAVE}, 16'); a(f's_lshl_b32 s{t+1}, s{S_H}, 9'); a(f's_add_u32 s{t}, s{t}, s{t+1}')
    a(f's_and_b32 s{t+1}, s{S_WAVE}, 1'); a(f's_lshl_b32 s{t+1}, s{t+1}, 2')
    a('v_lshrrev_b32 v96, 5, v1'); a('v_and_b32 v97, 31, v1'); a('v_lshrrev_b32 v98, 1, v97')
    a(f'v_xor_b32 v98, s{t+1}, v98'); a('v_and_b32 v99, 1, v97')
    for i in range(4):
        a(f'v_add_u32 v2, {(2*i)&3}, v96'); a('v_xor_b32 v2, v98, v2'); a('v_lshl_add_u32 v2, v2, 1, v99')
        a('v_lshlrev_b32 v2, 4, v2'); a('v_lshl_add_u32 v2, v96, 13, v2')
        a(f'v_add_u32 v2, {2*i*8192-1024*i}, v2'); a(f'v_add_u32 v{B_VW+i}, s{t}, v2')
    a(f's_mul_i32 s{t}, s{S_WAVE}, {8*3584}'); a(f's_mul_i32 s{t+2}, s{S_H}, 224'); a(f's_add_u32 s{t}, s{t}, s{t+2}')
    a('v_lshrrev_b32 v96, 4, v1'); a('v_and_b32 v97, 15, v1'); a('v_lshrrev_b32 v98, 1, v97')
    a(f'v_xor_b32 v98, s{t+1}, v98'); a('v_xor_b32 v98, v96, v98'); a('v_and_b32 v99, 1, v97')
    a('v_lshl_add_u32 v2, v98, 1, v99'); a('v_lshlrev_b32 v2, 4, v2')
    a('v_mul_u32_u24 v3, 3584, v96'); a('v_add_u32 v2, v2, v3')
    a(f'v_add_u32 v{B_V1}, s{t}, v2'); a(f'v_add_u32 v{B_V1+1}, {4*3584-1024}, v{B_V1}')
    a(f'v_mov_b32 v{B_VX}, v{V_L16}'); a(f'v_add_u32 v{B_VX+1}, 14336, v{V_L16}')
    a('v_bfe_u32 v97, v1, 2, 2')
    a('v_lshl_add_u32 v98, v96, 3, v97')
    a('v_and_b32 v99, 3, v1'); a('v_lshlrev_b32 v99, 3, v99')
    a('v_and_b32 v2, 1, v96'); a('v_lshl_or_b32 v97, v2, 2, v97')
    a('v_lshl_add_u32 v100, v98, 9, v99')
    a('v_lshl_add_u32 v101, v98, 8, v99'); a('v_add_u32 v101, 0x10000, v101')
    for d in range(8):
        a(f'v_xor_b32 v2, {d}, v97')
        a(f'v_lshl_add_u32 v{B_WA+d}, v2, 5, v100')
        if d < 7: a(f'v_lshl_add_u32 v{B_1A+d}, v2, 5, v101')

def B_dma(u, ffn):
    sl = u % 4; t = S_T
    g = [[f's_add_u32 m0, s{S_W4K}, {sl*16384}', f's_mov_b32 s{t}, {u*32*8192}',
          f'buffer_load_dwordx4 v{B_VW}, {sr(S_WQ)}, s{t} offen lds']]
    for i in range(1, 4): g.append([f'buffer_load_dwordx4 v{B_VW+i}, {sr(S_WQ)}, s{t} offen offset:{1024*i} lds'])
    if ffn:
        g.append([f's_add_u32 m0, s{S_W2K}, {65536+sl*8192}', f's_mov_b32 s{t}, {u*32*3584}',
                  f'buffer_load_dwordx4 v{B_V1}, {sr(S_W1)}, s{t} offen lds'])
        g.append([f'buffer_load_dwordx4 v{B_V1+1}, {sr(S_W1)}, s{t} offen offset:1024 lds'])
    x = [[f's_add_u32 s{t+1}, s{S_XO}, {u*1024}',
          f'buffer_load_dwordx4 {vr(B_XF+sl*8)}, v{B_VX}, {sr(S_WS)}, s{t+1} offen'],
         [f'buffer_load_dwordx4 {vr(B_XF+sl*8+4)}, v{B_VX+1}, {sr(S_WS)}, s{t+1} offen']]
    return g, x

def phaseB(a, ffn, qdst):
    t = S_T
    nb = 8 if ffn else 6
    a(f's_lshl_b32 s{t}, s{S_QB}, 2'); a(f's_add_u32 s{t}, s{t}, s{S_WAVE}'); a(f's_mul_i32 s{t}, s{t}, {2*14336}')
    a(f's_add_u32 s{S_XO}, s{t}, {hex(WS_XN)}')
    a('s_barrier')
    if ffn:
        a(f's_mul_i32 s{t+2}, s{S_H}, 224')
        a('v_lshrrev_b32 v2, 4, v1'); a('v_lshlrev_b32 v2, 3, v2')
        for fb in range(7):
            a(f'buffer_load_dwordx2 {vr(B_TMP+2*fb,2)}, v2, {sr(S_B1)}, s{t+2} offen offset:{32*fb}')
    head = []
    for u in range(3):
        g, x = B_dma(u, ffn)
        for y in tag(g + x, f'B{u}'): head += y
    a(resolve_vm(head))
    if ffn:
        a(f's_waitcnt vmcnt({3*nb})')
        for fb in range(7):
            for k in range(2):
                a(f'v_lshlrev_b32 v2, 16, v{B_TMP+2*fb+k}'); a(f'v_and_b32 v3, 0xffff0000, v{B_TMP+2*fb+k}')
                for qb in range(2):
                    a(f'v_accvgpr_write_b32 a{128+(fb*2+qb)*4+2*k}, v2'); a(f'v_accvgpr_write_b32 a{128+(fb*2+qb)*4+2*k+1}, v3')
    a(f's_waitcnt vmcnt({2*nb})')
    a('s_barrier')
    stamp(a, 8 if ffn else 11, DBG[0])
    nf = 23 if ffn else 16
    steps = []
    for u in range(14):
        sl = u % 4
        for f in range(nf):
            idx = len(steps); buf = B_WF + (idx % B_NB)*4
            if f < 16:
                rd = [f'ds_read_b64_tr_b16 {vr(buf+2*h,2)}, v{B_WA+(f&7)} offset:{sl*16384+2048*h+256*(f>>3)}' for h in range(2)]
                acc = f*8
            else:
                rd = [f'ds_read_b64_tr_b16 {vr(buf+2*h,2)}, v{B_1A+f-16} offset:{sl*8192+1024*h}' for h in range(2)]
                acc = 128 + (f-16)*8
            mf = []
            for qb in range(2):
                c = '0' if (u == 0 and f < 16) else ar(acc+4*qb)
                mf.append(f'{MF} {ar(acc+4*qb)}, {vr(buf)}, {vr(B_XF+sl*8+4*qb)}, {c}')
            steps.append(Step(mf, rd))
    LA = 6
    g, x = B_dma(3, ffn)
    add_fill(steps, tag(g + x, 'B3'), 0, nf-LA-2)
    for u in range(13):
        bpos = (u+1)*nf - LA - 1
        steps[bpos].pre += [f's_waitcnt vmcnt(@B{u+1})', 's_barrier']
        for f in range(nf): steps[(u+1)*nf+f].gate = bpos
        if u >= 1 and u + 3 <= 13:
            g, x = B_dma(u+3, ffn)
            add_fill(steps, tag(g + x, f'B{u+3}'), bpos, bpos+nf-2)
    pre, out = schedule(steps, LA=LA, maxper=2, wait_group=2, first_issued=LA)
    body = resolve_vm(head + ['MARK'] + pre + [x for o in out for x in o])
    a(body[body.index('MARK')+1:])
    stamp(a, 9 if ffn else 12, DBG[0])
    a('s_nop 7')
    if ffn:
        for ks in range(4):
            for qb in range(2):
                d = V_H + (ks*2+qb)*4
                for half in range(2):
                    fb = 2*ks + half
                    if fb == 7:
                        a(f'v_mov_b32 v{d+2}, 0'); a(f'v_mov_b32 v{d+3}, 0'); continue
                    src = 128 + (fb*2+qb)*4
                    for e in range(4): a(f'v_accvgpr_read_b32 v{B_TMP+e}, a{src+e}')
                    for e in range(4): a(f'v_max_f32 v{B_TMP+e}, 0, v{B_TMP+e}')
                    for e in range(4): a(f'v_mul_f32 v{B_TMP+e}, v{B_TMP+e}, v{B_TMP+e}')
                    for e in range(2): a(f'v_cvt_pk_bf16_f32 v{d+2*half+e}, v{B_TMP+2*e}, v{B_TMP+2*e+1}')
    for s in range(8):
        for qb in range(2):
            d = qdst + (s*2+qb)*4
            for half in range(2):
                src = ((2*s+half)*2+qb)*4
                for e in range(4): a(f'v_accvgpr_read_b32 v{B_TMP+4*half+e}, a{src+e}')
            for e in range(8): a(f'v_mul_f32 v{B_TMP+e}, s{S_QSC}, v{B_TMP+e}')
            for e in range(4): a(f'v_cvt_pk_bf16_f32 v{B_TMP+8+e}, v{B_TMP+2*e}, v{B_TMP+2*e+1}')
            for e in range(4): a(f'v_accvgpr_write_b32 a{d+e}, v{B_TMP+8+e}')

C_KA, C_VA, C_VD, C_DV, C_DV0, C_TM, C_NINF, C_ONE = 16, 17, 18, 19, 20, 21, 22, 24
C_BP16, C_BP32 = 28, 29
C_S = [32, 48]
C_P, C_NM, C_L, C_T, C_F = 64, 72, 80, 88, 96
C_NB = 8
C_MRG = 96

def C_dma(kind, m0expr):
    so = S_KO if kind == 'K' else S_VO
    g = [[m0expr, 's_nop 0', f'buffer_load_dwordx4 v{C_VD}, {sr(S_WS)}, s{so} offen lds']]
    for i in range(1, 4): g.append([f'buffer_load_dwordx4 v{C_VD}, {sr(S_WS)}, s{so} offen offset:{1024*i} lds'])
    g[-1].append(f's_add_u32 s{so}, s{so}, 32768')
    return g

def mask_ops(S):
    el = [(kb, qb, r) for kb in range(2) for qb in range(2) for r in range(4)]
    ops = []
    for i in range(0, 16, 4):
        for k in range(4):
            kb, qb, r = el[i+k]
            ops.append(f'v_cmp_gt_i32 s[{S_MK+2*k}:{S_MK+2*k+1}], {16*(kb-qb)+r}, v{C_DV}')
        for k in range(4):
            kb, qb, r = el[i+k]; reg = S + (kb*2+qb)*4 + r
            ops.append(f'v_cndmask_b32 v{reg}, v{reg}, v{C_NINF}, s[{S_MK+2*k}:{S_MK+2*k+1}]')
    return ops

def max_ops(S):
    ops = [f'v_max3_f32 v{C_TM}, v{S}, v{S+1}, v{S+2}']
    for i in range(3, 15, 2): ops.append(f'v_max3_f32 v{C_TM}, v{C_TM}, v{S+i}, v{S+i+1}')
    ops.append(f'v_max_f32 v{C_TM}, v{C_TM}, v{S+15}')
    return ops

def rowmax(a, S, qb, d):
    r = [S + (kb*2+qb)*4 + e for kb in range(2) for e in range(4)]
    a(f'v_max3_f32 v{d}, v{r[0]}, v{r[1]}, v{r[2]}')
    a(f'v_max3_f32 v{d}, v{d}, v{r[3]}, v{r[4]}')
    a(f'v_max3_f32 v{d}, v{d}, v{r[5]}, v{r[6]}')
    a(f'v_max_f32 v{d}, v{d}, v{r[7]}')
    for bp in (C_BP16, C_BP32):
        a(f'ds_bpermute_b32 v{C_T+7}, v{bp}, v{d}')
        a('s_waitcnt lgkmcnt(0)')
        a(f'v_max_f32 v{d}, v{d}, v{C_T+7}')

def rare_path(a, S, first):
    a('s_nop 7')
    for qb in range(2):
        d = C_T + qb
        rowmax(a, S, qb, d)
        if not first: a(f'v_max_f32 v{d}, 0, v{d}')
        for kb in range(2):
            for e in range(4):
                r = S + (kb*2+qb)*4 + e
                a(f'v_sub_f32 v{r}, v{r}, v{d}')
        for e in range(4): a(f'v_sub_f32 v{C_NM+4*qb+e}, v{C_NM+4*qb+e}, v{d}')
        if not first:
            al = C_T + 2 + qb
            a(f'v_exp_f32 v{al}, -v{d}')
            a('s_nop 0')
            for e in range(4): a(f'v_mul_f32 v{C_L+4*qb+e}, v{C_L+4*qb+e}, v{al}')
            for db in range(16):
                o = (db*2+qb)*4
                for e in range(4): a(f'v_accvgpr_read_b32 v{C_T+4+e}, a{o+e}')
                for e in range(4): a(f'v_mul_f32 v{C_T+4+e}, v{C_T+4+e}, v{al}')
                for e in range(4): a(f'v_accvgpr_write_b32 a{o+e}, v{C_T+4+e}')
    a('s_nop 1')

def C_ksteps(steps, j, cinit):
    S = C_S[j & 1]
    for kb in range(2):
        for s in range(8):
            buf = C_F + (len(steps) % C_NB)*4
            rd = [f'ds_read_b128 {vr(buf)}, v{C_KA} offset:{(j&1)*16384 + (kb*8+s)*1024}']
            mf = []
            for qb in range(2):
                d = vr(S + (kb*2+qb)*4)
                c = d if s > 0 else (cinit if cinit is not None else vr(C_NM+4*qb))
                mf.append(f'{MF} {d}, {vr(buf)}, {ar(A_QA+(s*2+qb)*4)}, {c}')
            steps.append(Step(mf, rd, tag=('K', j, kb*8+s)))

def C_vsteps(steps, j):
    for db in range(16):
        buf = C_F + (len(steps) % C_NB)*4
        rd = [f'ds_read_b128 {vr(buf)}, v{C_VA} offset:{(j&1)*16384 + db*1024}']
        mf = [f'{MF} {ar((db*2+qb)*4)}, {vr(buf)}, {vr(C_P+4*qb)}, {ar((db*2+qb)*4)}' for qb in range(2)]
        if db == 15:
            mf += [f'{MF} {vr(C_L+4*qb)}, {vr(C_ONE)}, {vr(C_P+4*qb)}, {vr(C_L+4*qb)}' for qb in range(2)]
        steps.append(Step(mf, rd, tag=('V', j, db)))

def softmax_ops(S):
    ops = []
    for qb in range(2):
        for kb in range(2):
            b = S + (kb*2+qb)*4
            for e in range(4): ops.append(f'v_exp_f32 v{b+e}, v{b+e}')
        for kb in range(2):
            b = S + (kb*2+qb)*4
            for e in range(2): ops.append(f'v_cvt_pk_bf16_f32 v{C_P+4*qb+2*kb+e}, v{b+2*e}, v{b+2*e+1}')
    return ops

def phaseC(a, rare_labels):
    t = S_T
    LA = 6
    a('s_barrier')
    a(f's_lshl_b32 s{t}, s{S_H}, 21'); a(f's_lshl_b32 s{t+1}, s{S_TS}, 15'); a(f's_add_u32 s{S_KO}, s{t}, s{t+1}')
    a(f's_add_u32 s{S_VO}, s{S_KO}, 16384')
    a(f'v_add_u32 v{C_VD}, s{S_W4K}, v{V_L16}')
    for kind, sl in [('K', 0), ('K', 1), ('V', 0), ('K', 2), ('V', 1), ('K', 3)]:
        for g in C_dma(kind, f's_add_u32 m0, s{S_W4K}, {(0 if kind=="K" else 65536) + sl*16384}'): a(g)
    a(f's_mov_b32 s{S_PB}, s{S_W4K}'); a(f's_xor_b32 s{S_PO}, s{S_PB}, 0x8000')
    a(f'v_mov_b32 v{C_KA}, v{V_L16}'); a(f'v_add_u32 v{C_VA}, 0x18000, v{V_L16}')
    a('v_and_b32 v2, 15, v1'); a('v_lshrrev_b32 v3, 4, v1'); a('v_lshlrev_b32 v3, 2, v3'); a(f'v_sub_u32 v{C_DV0}, v2, v3')
    a(f's_sub_u32 s{t}, s{S_RB}, s{S_TS}'); a(f's_lshl_b32 s{t}, s{t}, 5')
    a(f'v_add_u32 v{C_DV}, s{t}, v{C_DV0}')
    a(f'v_mov_b32 v{C_NINF}, 0xff800000')
    for e in range(4): a(f'v_mov_b32 v{C_ONE+e}, 0x3f803f80')
    a(f'v_xor_b32 v{C_BP16}, 16, v1'); a(f'v_lshlrev_b32 v{C_BP16}, 2, v{C_BP16}')
    a(f'v_xor_b32 v{C_BP32}, 32, v1'); a(f'v_lshlrev_b32 v{C_BP32}, 2, v{C_BP32}')
    for e in range(8): a(f'v_mov_b32 v{C_NM+e}, 0'); a(f'v_mov_b32 v{C_L+e}, 0')
    for r in range(128): a(f'v_accvgpr_write_b32 a{r}, 0')
    a('s_waitcnt vmcnt(12)')
    a('s_barrier')
    n = 10
    steps = []; start = {}
    start[-1] = 0
    C_ksteps(steps, 0, '0')
    for j in range(n):
        start[j] = len(steps)
        p = j & 1
        if j < n-1: C_ksteps(steps, j+1, None)
        h2 = len(steps)
        C_vsteps(steps, j)
        end = len(steps) - 1
        sm = softmax_ops(C_S[p])
        if j < n-1:
            add_fill(steps, sm, start[j], h2-2)
        else:
            steps[h2].pre += sm + ['s_nop 1']
        steps[h2].j = j
        tail = j - (n-6)
        vm = {0: 12, 1: 12, 2: 8, 3: 4, 4: 0}.get(max(tail, 0), None)
        if vm is not None:
            steps[h2+2].pre += [f's_waitcnt vmcnt({vm})', 's_barrier']
        d = []
        if tail <= 2:
            d += C_dma('V', f's_add_u32 m0, s{S_PO if p==0 else S_PB}, {65536 + (16384 if p==0 else 0)}')
        if tail <= 0:
            d += C_dma('K', f's_add_u32 m0, s{S_PB if p==0 else S_PO}, {16384 if p==0 else 0}')
        if d: add_fill(steps, d, h2+2, h2+13)
        if j < n-1:
            Sn = C_S[p ^ 1]
            ops = []
            if tail >= 1:
                ops += [f'v_subrev_u32 v{C_DV}, 32, v{C_DV}'] + mask_ops(Sn)
            ops += max_ops(Sn) + [f'v_cmp_lt_f32 vcc, s{S_THR}, v{C_TM}']
            add_fill(steps, ops, h2+3, end)
        if p == 1:
            steps[end].fill[-1] += [f's_xor_b32 s{S_PB}, s{S_PB}, 0x8000', f's_xor_b32 s{S_PO}, s{S_PO}, 0x8000']
    for st in steps:
        kind, j, f = st.tag
        if f == 0 and (j & 1) == 0 and (j > 0 or kind == 'V'):
            st.toggle = f'v_xor_b32 v{C_KA if kind=="K" else C_VA}, 0x8000, v{C_KA if kind=="K" else C_VA}'
            st.reads[0] = st.toggle + '\n  ' + st.reads[0]
    pre, out = schedule(steps, LA=LA, maxper=1, wait_group=2, first_issued=LA)
    def text(j0, j1):
        lo = start[j0]; hi = start[j1+1] if j1+1 in start else len(steps)
        return [x for o in out[lo:hi] for x in o]
    def emit_iter(j):
        a(text(j, j))
        if j < n-1:
            Lb = a.newlabel('CB'); Ls = a.newlabel('CS')
            a(f's_cbranch_vccnz {Ls}')
            a.label(Lb)
            rare_labels['stubs'].append((Ls, Lb, (j&1)^1))
    a(pre)
    a(text(-1, -1))
    a('s_barrier')
    for g in C_dma('V', f's_add_u32 m0, s{S_W4K}, {65536+2*16384}') + C_dma('K', f's_mov_b32 m0, s{S_W4K}'): a(g)
    a(mask_ops(C_S[0]))
    rare_path(a, C_S[0], True)
    a(f's_add_u32 s{t}, s{S_TS}, s{S_N}'); a(f's_sub_u32 s{t}, s{S_RB}, s{t}'); a(f's_add_u32 s{t}, s{t}, 5'); a(f's_lshl_b32 s{t}, s{t}, 5')
    Ltail4 = a.newlabel('CT4'); Ltail = a.newlabel('CT6'); Lloop = a.newlabel('CL')
    a(f's_cmp_eq_u32 s{S_N}, 4'); a(f's_cbranch_scc1 {Ltail4}')
    a(f'v_add_u32 v{C_DV}, s{t}, v{C_DV0}')
    a(f's_sub_u32 s{S_CNT}, s{S_N}, 6')
    a(f's_cmp_eq_u32 s{S_CNT}, 0'); a(f's_cbranch_scc1 {Ltail}')
    b0 = text(0, 1); b2 = text(2, 3)
    a.label(Lloop)
    emit_iter(2); emit_iter(3)
    a(f's_sub_u32 s{S_CNT}, s{S_CNT}, 2'); a(f's_cmp_lg_u32 s{S_CNT}, 0'); a(f's_cbranch_scc1 {Lloop}')
    a.label(Ltail)
    emit_iter(4); emit_iter(5)
    a.label(Ltail4)
    for j in range(6, 10): emit_iter(j)
    return b0, b2

def rare_subs(a, rare_labels):
    for (Ls, Lb, p) in rare_labels['stubs']:
        a.label(Ls)
        a(f's_getpc_b64 s[{S_RET}:{S_RET+1}]')
        Lp = a.newlabel('CP'); a.label(Lp)
        a(f's_sub_u32 s{S_RET}, s{S_RET}, {Lp}-{Lb}'); a(f's_subb_u32 s{S_RET+1}, s{S_RET+1}, 0')
        a(f's_branch {rare_labels[p]}')
    for p in range(2):
        a.label(rare_labels[p])
        rare_path(a, C_S[p], False)
        a(f's_setpc_b64 s[{S_RET}:{S_RET+1}]')

def op_base(a, d):
    a(f's_mul_i32 s{d}, s{S_PAIR}, {OP_PAIR}'); a(f's_mul_i32 s{d+1}, s{S_WAVE}, {OP_WAVE}')
    a(f's_add_u32 s{d}, s{d}, s{d+1}'); a(f's_add_u32 s{d}, s{d}, {hex(WS_OP)}')

def publish(a):
    t = S_T
    a('s_nop 7')
    op_base(a, t)
    for k in range(32):
        if k % 4 == 0 and k: a(f's_add_u32 s{t}, s{t}, 4096')
        a(f'buffer_store_dwordx4 {ar(4*k)}, v{V_L16}, {sr(S_WS)}, s{t} offen offset:{1024*(k%4)} sc1')
    a(f's_add_u32 s{t}, s{t}, 4096')
    a(f'v_mov_b32 v{C_T}, v{C_NM}'); a(f'v_mov_b32 v{C_T+1}, v{C_NM+4}'); a(f'v_mov_b32 v{C_T+2}, v{C_L}'); a(f'v_mov_b32 v{C_T+3}, v{C_L+4}')
    a(f'buffer_store_dwordx4 {vr(C_T)}, v{V_L16}, {sr(S_WS)}, s{t} offen sc1')
    a('s_waitcnt vmcnt(0)')
    a('s_barrier')
    L = a.newlabel('PUB')
    a(f's_cmp_lg_u32 s{S_WAVE}, 0'); a(f's_cbranch_scc1 {L}')
    a('s_mov_b64 exec, 1')
    a(f'v_mov_b32 v2, s{S_PAIR}'); a('v_mov_b32 v3, 1')
    a(f'buffer_store_byte v3, v2, {sr(S_DBG)}, 0 offen sc1')
    a('s_mov_b64 exec, -1')
    a.label(L)

D_CTX = 32
D_WF, D_NB = 96, 8
D_ACC = 128
D_PK = 160
D_VO = 24
D_RA, D_RB = 16, 20
DSLOT = 49152

def finalize(a, merge_label_skip):
    t = S_T
    Lno = a.newlabel('NOMRG'); Ldone = a.newlabel('FIN')
    a('s_nop 7')
    a(f's_cmp_eq_u32 s{S_JOB}, 2'); a(f's_cbranch_scc0 {Lno}')
    Lp = a.newlabel('POLL'); Lpd = a.newlabel('POLLD')
    a(f's_cmp_lg_u32 s{S_WAVE}, 0'); a(f's_cbranch_scc1 {Lpd}')
    a(f'v_mov_b32 v2, s{S_PAIR}')
    a(f's_mov_b32 s{t+2}, 0')
    a.label(Lp)
    a(f'buffer_load_ubyte v3, v2, {sr(S_DBG)}, 0 offen sc1')
    a('s_waitcnt vmcnt(0)')
    a(f'v_readfirstlane_b32 s{t+3}, v3')
    a(f's_add_u32 s{t+2}, s{t+2}, 1')
    a(f's_cmp_lg_u32 s{t+3}, 0'); a(f's_cbranch_scc1 {Lpd}')
    a('s_sleep 8')
    a(f's_cmp_lt_u32 s{t+2}, 20000'); a(f's_cbranch_scc1 {Lp}')
    a.label(Lpd)
    a('s_barrier')
    op_base(a, t)
    a(f's_add_u32 s{t+1}, s{t}, 32768')
    a(f'buffer_load_dwordx4 {vr(C_T)}, v{V_L16}, {sr(S_WS)}, s{t+1} offen sc1')
    for k in range(32):
        if k % 4 == 0 and k: a(f's_add_u32 s{t}, s{t}, 4096')
        a(f'buffer_load_dwordx4 {vr(C_MRG+4*k)}, v{V_L16}, {sr(S_WS)}, s{t} offen offset:{1024*(k%4)} sc1')
    a('s_waitcnt vmcnt(32)')
    for qb in range(2):
        nm_a = C_NM + 4*qb; nm_b = C_T + qb; l_a = C_L + 4*qb; l_b = C_T + 2 + qb
        a(f'v_min_f32 v2, v{nm_a}, v{nm_b}')
        a(f'v_sub_f32 v3, v2, v{nm_a}'); a(f'v_exp_f32 v{8+qb}, v3')
        a(f'v_sub_f32 v3, v2, v{nm_b}'); a(f'v_exp_f32 v{10+qb}, v3')
        a('s_nop 0')
        a(f'v_mul_f32 v2, v{8+qb}, v{l_a}'); a(f'v_fmac_f32 v2, v{10+qb}, v{l_b}')
        a('v_rcp_f32 v2, v2'); a('s_nop 0')
        a(f'v_mul_f32 v{8+qb}, v{8+qb}, v2'); a(f'v_mul_f32 v{10+qb}, v{10+qb}, v2')
    for s in range(8):
        a(f's_waitcnt vmcnt({28-4*s})')
        for qb in range(2):
            for half in range(2):
                o = ((2*s+half)*2+qb)*4
                for e in range(4): a(f'v_accvgpr_read_b32 v{12+e}, a{o+e}')
                for e in range(4): a(f'v_mul_f32 v{12+e}, v{12+e}, v{8+qb}')
                for e in range(4): a(f'v_fmac_f32 v{12+e}, v{C_MRG+o+e}, v{10+qb}')
                for e in range(2): a(f'v_cvt_pk_bf16_f32 v{D_CTX+(s*2+qb)*4+2*half+e}, v{12+2*e}, v{12+2*e+1}')
    a(f's_branch {Ldone}')
    a.label(Lno)
    for qb in range(2):
        a(f'v_rcp_f32 v{8+qb}, v{C_L+4*qb}')
    a('s_nop 0')
    for s in range(8):
        for qb in range(2):
            for half in range(2):
                o = ((2*s+half)*2+qb)*4
                for e in range(4): a(f'v_accvgpr_read_b32 v{12+e}, a{o+e}')
                for e in range(4): a(f'v_mul_f32 v{12+e}, v{12+e}, v{8+qb}')
                for e in range(2): a(f'v_cvt_pk_bf16_f32 v{D_CTX+(s*2+qb)*4+2*half+e}, v{12+2*e}, v{12+2*e+1}')
    a.label(Ldone)

def D_dma():
    t = S_T
    g = []
    for half in range(2):
        first = [f's_lshl_b32 s{t}, s{S_W4K}, 1', f's_add_u32 s{t}, s{t}, s{S_DS}'] if half == 0 else []
        first += [f's_add_u32 m0, s{t}, {4096*half}', f's_add_u32 s{t+1}, s{S_DO}, {half*32*896}']
        for i in range(4):
            g.append((first if i == 0 else []) + [f'buffer_load_dwordx4 v{D_VO+i}, {sr(S_WO)}, s{t+1} offen offset:{1024*i} lds'])
    first = [f's_add_u32 s{t}, s{S_W4K}, s{S_DS}', f's_add_u32 m0, s{t}, 32768', 's_nop 0']
    for i in range(4):
        g.append((first if i == 0 else []) + [f'buffer_load_dwordx4 v{D_VO+i}, {sr(S_W2)}, s{S_D2} offen offset:{1024*i} lds'])
    g[-1] += [f's_add_u32 s{S_DO}, s{S_DO}, 128', f's_add_u32 s{S_D2}, s{S_D2}, 128',
              f's_add_u32 s{S_DS}, s{S_DS}, {DSLOT}', f's_cmp_ge_u32 s{S_DS}, {3*DSLOT}', f's_cselect_b32 s{S_DS}, 0, s{S_DS}']
    return g

def phaseD_start(a):
    t = S_T
    a('s_barrier')
    a('v_lshrrev_b32 v2, 3, v1'); a('v_mul_u32_u24 v3, 896, v2')
    a('v_bfe_u32 v2, v1, 4, 2')
    a('v_bfe_u32 v5, v1, 1, 2'); a('v_xor_b32 v2, v2, v5')
    a('v_and_b32 v5, 1, v1'); a('v_lshl_add_u32 v2, v2, 1, v5'); a('v_lshl_add_u32 v3, v2, 4, v3')
    for i in range(4): a(f'v_add_u32 v{D_VO+i}, {i*(8*896-1024)}, v3')
    a(f's_lshl_b32 s{t}, s{S_H}, 8'); a(f's_lshl_b32 s{t+1}, s{S_WAVE}, 6'); a(f's_add_u32 s{t}, s{t}, s{t+1}'); a(f's_mul_i32 s{S_DO}, s{t}, 896')
    a(f's_mul_i32 s{t}, s{S_H}, 112'); a(f's_lshl_b32 s{t+1}, s{S_WAVE}, 5'); a(f's_add_u32 s{t}, s{t}, s{t+1}'); a(f's_mul_i32 s{S_D2}, s{t}, 896')
    a(f's_mov_b32 s{S_DS}, 0')
    for k in range(2):
        for g in D_dma(): a(g)

def phaseD(a):
    t = S_T
    a('v_lshrrev_b32 v2, 2, v1')
    a('v_bfe_u32 v3, v1, 3, 2')
    a('v_and_b32 v5, 3, v1'); a('v_lshlrev_b32 v5, 3, v5'); a('v_lshl_add_u32 v5, v2, 7, v5')
    for c in range(4):
        a(f'v_xor_b32 v2, {c}, v3'); a(f'v_lshl_add_u32 v{D_RB+c}, v2, 5, v5')
    a(f's_lshl_b32 s{t}, s{S_H}, 7'); a(f's_lshl_b32 s{t+1}, s{S_OWN}, 3'); a(f's_add_u32 s{t}, s{t}, s{t+1}')
    a(f's_lshl_b32 s{t+1}, s{S_WAVE}, 1'); a(f's_add_u32 s{t}, s{t}, s{t+1}'); a(f's_mul_i32 s{t}, s{t}, 14336')
    a(f's_add_u32 s{S_PRT}, s{t}, {hex(WS_PART)}')
    a(f'v_add_u32 v10, 14336, v{V_L16}')
    steps = []
    for tile in range(7):
        sl = tile % 3
        for c in range(4):
            for ks in range(12):
                buf = D_WF + (len(steps) % D_NB)*4
                rd = [f'ds_read_b64_tr_b16 {vr(buf+2*h,2)}, v{D_RA+c} offset:{4096*ks+2048*h}' for h in range(2)]
                if ks == 0: rd[0] = f'v_add_u32 v{D_RA+c}, {sl*DSLOT}, v{D_RB+c}\n  ' + rd[0]
                mf = []
                for qb in range(2):
                    d = vr(D_ACC + (c*2+qb)*4)
                    b = vr(D_CTX + (ks*2+qb)*4) if ks < 8 else vr(V_H + ((ks-8)*2+qb)*4)
                    mf.append(f'{MF} {d}, {vr(buf)}, {b}, {d if ks else "0"}')
                steps.append(Step(mf, rd))
    nst = 48
    vm_events = []
    for tile in range(7):
        for cp in range(2):
            v = tile*2 + cp
            endstep = (tile*4 + cp*2 + 2)*12
            ops = []
            for qb in range(2):
                pk = D_PK + (cp*2+qb)*4
                for half in range(2):
                    src = D_ACC + ((cp*2+half)*2+qb)*4
                    for e in range(2): ops.append(f'v_cvt_pk_bf16_f32 v{pk+2*half+e}, v{src+2*e}, v{src+2*e+1}')
                st = [f's_add_u32 s{t+4}, s{S_PRT}, {v*1024}'] if qb == 0 else []
                ops.append(st + [f'buffer_store_dwordx4 {vr(pk)}, v{V_L16 if qb==0 else 10}, {sr(S_WS)}, s{t+4} offen sc1'])
            if endstep + 3 < len(steps):
                add_fill(steps, ops, endstep+3, endstep+8)
            else:
                tail_ops = ops
    LA = 6
    add_fill(steps, tag(D_dma(), 'T2'), 0, 30)
    for tile in range(6):
        bpos = (tile+1)*nst - LA - 1
        steps[bpos].pre += [f's_waitcnt vmcnt(@T{tile+1})', 's_barrier']
        for f in range(nst): steps[(tile+1)*nst+f].gate = bpos
        if tile >= 1 and tile + 2 <= 6:
            add_fill(steps, tag(D_dma(), f'T{tile+2}'), bpos, bpos+14)
    pre, out = schedule(steps, LA=LA, maxper=2, wait_group=2, first_issued=LA)
    head = [x for k in range(2) for g in tag(D_dma(), f'T{k}') for x in g]
    body = resolve_vm(head + ['MARK', 's_waitcnt vmcnt(@T0)', 's_barrier'] + pre + [x for o in out for x in o])
    a(body[body.index('MARK')+1:])
    a('s_nop 7')
    a(tail_ops)

def gen_k2(a, name='k2_kernel', dbg=False):
    DBG[0] = dbg
    kstart(a, name)
    Lend = a.newlabel('K2END')
    a('s_cmp_ge_u32 s2, 256'); a(f's_cbranch_scc1 {Lend}')
    a('s_load_dwordx2 s[4:5], s[0:1], 16')
    a('s_load_dwordx2 s[6:7], s[0:1], 40')
    a('s_load_dwordx4 s[88:91], s[0:1], 56')
    a('s_load_dwordx2 s[92:93], s[0:1], 72')
    a('s_load_dwordx4 s[96:99], s[0:1], 96')
    code_prefetch(a, name, 'K2_CODE_END', 3*32768, 100, 94)
    a('v_and_b32 v1, 63, v0')
    a('v_lshrrev_b32 v2, 6, v0')
    a(f'v_lshlrev_b32 v{V_L16}, 4, v1')
    a(f'v_readfirstlane_b32 s{S_WAVE}, v2')
    t = S_T
    a(f's_and_b32 s{t}, s2, 7'); a(f's_lshr_b32 s{t+1}, s2, 3'); a(f's_and_b32 s{t+2}, s{t+1}, 1')
    a(f's_lshl_b32 s{t}, s{t}, 1'); a(f's_add_u32 s{S_H}, s{t}, s{t+2}')
    a(f's_lshr_b32 s{t+1}, s{t+1}, 1'); a(f's_and_b32 s{S_ROLE}, s{t+1}, 1'); a(f's_lshr_b32 s{S_I}, s{t+1}, 1')
    a(f's_lshl_b32 s{S_W4K}, s{S_WAVE}, 12'); a(f's_lshl_b32 s{S_W2K}, s{S_WAVE}, 11')
    a(f's_lshl_b32 s{S_PAIR}, s{S_H}, 3'); a(f's_add_u32 s{S_PAIR}, s{S_PAIR}, s{S_I}')
    lo = sum(T0[i] << (8*i) for i in range(4)); hi = sum(T0[4+i] << (8*i) for i in range(4))
    a(f's_mov_b32 s{t}, {hex(lo)}'); a(f's_mov_b32 s{t+1}, {hex(hi)}')
    a(f's_lshl_b32 s{t+2}, s{S_I}, 3'); a(f's_lshr_b64 s[{t}:{t+1}], s[{t}:{t+1}], s{t+2}'); a(f's_and_b32 s{S_T0}, s{t}, 0xff')
    a(f's_sub_u32 s{S_EXT}, 15, s{S_I}')
    a(f's_cmp_eq_u32 s{S_ROLE}, 0'); a(f's_cselect_b32 s{S_OWN}, s{S_EXT}, s{S_I}')
    a(f's_mov_b32 s{S_QSC}, {f32(1.4426950408889634/16)}')
    a(f's_mov_b32 s{S_THR}, {f32(16.0)}')
    a('s_waitcnt lgkmcnt(0)')
    srd(a, S_WS, 98, WS_BYTES); srd(a, S_WQ, 4, 448*4096*2); srd(a, S_W1, 88, 448*1792*2); srd(a, S_WO, 6, 4096*448*2)
    srd(a, S_W2, 92, 1792*448*2); srd(a, S_B1, 90, 1792*2); srd(a, S_DBG, 96, 256)
    stamp(a, 0, dbg)
    phaseB_setup(a)
    Lnoext = a.newlabel('NOEXT'); Lattn = a.newlabel('ATTN'); Lown = a.newlabel('OWN'); Lfin = a.newlabel('FINAL')
    a(f's_mul_i32 s{S_JOB}, s{S_ROLE}, s{S_T0}')
    a(f's_cmp_eq_u32 s{S_JOB}, 0'); a(f's_cbranch_scc1 {Lnoext}')
    a(f's_mov_b32 s{S_QB}, s{S_EXT}')
    phaseB(a, False, A_QA)
    a.label(Lnoext)
    stamp(a, 1, dbg)
    a(f's_mov_b32 s{S_QB}, s{S_OWN}')
    phaseB(a, True, A_QB)
    stamp(a, 2, dbg)
    a(f's_cmp_eq_u32 s{S_JOB}, 0'); a(f's_cbranch_scc1 {Lown}')
    a(f's_mov_b32 s{S_JOB}, 1')
    a(f's_lshl_b32 s{S_RB}, s{S_EXT}, 2'); a(f's_add_u32 s{S_RB}, s{S_RB}, s{S_WAVE}')
    a(f's_mov_b32 s{S_TS}, 0'); a(f's_mov_b32 s{S_N}, s{S_T0}')
    a(f's_branch {Lattn}')
    a.label(Lown)
    for r in range(64): a(f'v_accvgpr_mov_b32 a{A_QA+r}, a{A_QB+r}')
    a(f's_lshl_b32 s{S_RB}, s{S_OWN}, 2'); a(f's_add_u32 s{S_N}, s{S_RB}, 4'); a(f's_add_u32 s{S_RB}, s{S_RB}, s{S_WAVE}')
    a(f's_cmp_eq_u32 s{S_ROLE}, 0'); a(f's_cselect_b32 s{S_TS}, s{S_T0}, 0')
    a(f's_sub_u32 s{S_N}, s{S_N}, s{S_TS}')
    a(f's_cmp_lg_u32 s{S_TS}, 0'); a(f's_cselect_b32 s{S_JOB}, 2, 3')
    a.label(Lattn)
    rl = {0: a.newlabel('RARE'), 1: a.newlabel('RARE'), 'stubs': []}
    b0, b2 = phaseC(a, rl)
    assert b0 == b2, 'loop body not periodic'
    a(f's_cmp_lg_u32 s{S_JOB}, 1'); a(f's_cbranch_scc1 {Lfin}')
    publish(a)
    stamp(a, 3, dbg)
    a(f's_branch {Lown}')
    a.label(Lfin)
    stamp(a, 4, dbg)
    phaseD_start(a)
    finalize(a, None)
    stamp(a, 5, dbg)
    phaseD(a)
    if dbg:
        a('s_waitcnt vmcnt(0)')
        stamp(a, 6, dbg)
    a.label(Lend)
    a('s_endpgm')
    rare_subs(a, rl)
    a.label('K2_CODE_END')
    kdesc(a, name, 512, 256, sgpr=102)

def gen_k3(a, name='k3_kernel'):
    kstart(a, name)
    Lend = a.newlabel('K3END')
    a('s_cmp_ge_u32 s2, 448'); a(f's_cbranch_scc1 {Lend}')
    a('s_load_dwordx2 s[4:5], s[0:1], 0')
    a('s_load_dwordx4 s[20:23], s[0:1], 80')
    a('s_load_dwordx2 s[6:7], s[0:1], 104')
    a('v_and_b32 v1, 63, v0'); a('v_lshrrev_b32 v2, 6, v0')
    a('s_lshl_b32 s3, s2, 2')
    a('v_readfirstlane_b32 s24, v2')
    a('v_lshlrev_b32 v3, 4, v1')
    a('s_add_u32 s24, s24, s3')
    a('s_mul_hi_u32 s25, s24, 0x1249249a')
    a('s_mul_i32 s26, s25, 14'); a('s_sub_u32 s26, s24, s26')
    a('s_lshl_b32 s27, s24, 10'); a(f's_add_u32 s27, s27, {hex(WS_PART)}')
    a('s_waitcnt lgkmcnt(0)')
    srd(a, 8, 6, WS_BYTES); srd(a, 12, 4, 2048*448*2); srd(a, 16, 20, 448*2); srd(a, 28, 22, 2048*448*2)
    for h in range(16):
        a(f'buffer_load_dwordx4 {vr(16+4*h)}, v3, s[8:11], s27 offen')
        if h < 15: a(f's_add_u32 s27, s27, {128*14*1024}')
    a('v_and_b32 v4, 15, v1'); a('v_mul_u32_u24 v4, 896, v4'); a('v_lshrrev_b32 v5, 4, v1'); a('v_lshlrev_b32 v5, 3, v5')
    a('v_add_u32 v4, v4, v5')
    a('s_mul_i32 s25, s25, 16*896'); a('s_lshl_b32 s26, s26, 6'); a('s_add_u32 s25, s25, s26')
    a('buffer_load_dwordx2 v[80:81], v4, s[12:15], s25 offen')
    a('buffer_load_dwordx2 v[82:83], v4, s[12:15], s25 offen offset:32')
    a('buffer_load_dwordx2 v[84:85], v5, s[16:19], s26 offen')
    a('buffer_load_dwordx2 v[86:87], v5, s[16:19], s26 offen offset:32')
    for h in range(18):
        a(f's_waitcnt vmcnt({max(19-h,0) if h < 16 else (2 if h == 16 else 0)})')
        src = 16 + 4*h
        for i in range(4):
            if h == 0:
                a(f'v_lshlrev_b32 v{8+2*i}, 16, v{src+i}'); a(f'v_and_b32 v{9+2*i}, 0xffff0000, v{src+i}')
            else:
                a(f'v_lshlrev_b32 v6, 16, v{src+i}'); a(f'v_and_b32 v7, 0xffff0000, v{src+i}')
                a(f'v_add_f32 v{8+2*i}, v{8+2*i}, v6'); a(f'v_add_f32 v{9+2*i}, v{9+2*i}, v7')
    for i in range(4): a(f'v_cvt_pk_bf16_f32 v{16+i}, v{8+2*i}, v{9+2*i}')
    a('buffer_store_dwordx2 v[16:17], v4, s[28:31], s25 offen')
    a('buffer_store_dwordx2 v[18:19], v4, s[28:31], s25 offen offset:32')
    a.label(Lend)
    a('s_endpgm')
    kdesc(a, name, 88, 88, sgpr=40)
```

```python
WS_KV   = 0x8000000
WS_XN   = 0x2000000
WS_OP   = 0x2400000
OP_WAVE = 0x8400
OP_PAIR = 0x21000
WS_PART = 0x4000000
WS_DBG  = 0x6000000
WS_BYTES = 0x10000000
T0 = [26, 22, 18, 14, 10, 6, 0, 0]
WS_FLG  = 0x6100000
WS_QX   = 0x3800000
```

```python
from asmlib import *
from layout import *
from sched import *
import struct

def f32(x): return hex(struct.unpack('<I', struct.pack('<f', x))[0])
MF = 'v_mfma_f32_16x16x32_bf16'
DBG = [False]
OPT = dict(kv_sc1=True)

S_WS, S_CKV, S_W, S_WQ, S_W1, S_WO, S_W2, S_B1, S_XIN, S_DBG = 4, 8, 12, 16, 20, 24, 28, 32, 36, 40
S_WAVE, S_H, S_ROLE, S_I, S_OWN, S_EXT, S_T0, S_HASX, S_W4K, S_W2K, S_PAIR, S_QSC, S_THR = range(44, 57)
S_KVT, S_KT = S_ROLE, S_I
S_SOX, S_SOW, S_DX, S_RX, S_CNT = 57, 58, 59, 60, 61
S_XO, S_KVB, S_HALF = 57, 62, 63
S_KO, S_VO, S_PB, S_PO, S_RB, S_TS, S_N = 57, 58, 59, 60, 62, 63, 64
S_DO, S_D2, S_DS, S_PRT = 57, 58, 59, 60
S_FKV = 65
S_FP = 70
S_PC = 66
S_T = 72
S_RET = 84
S_MK = 86
S_ST = 94
PTR = 72
V_L16, V_SIG, V_NONCE, V_POLL = 4, 5, 6, 7
V_SIG16 = 31 if False else 254
V_H = 128
A_QX, A_QO, A_H = 192, 128, 192
CNT_KV, CNT_XN = 128, 192

def stamp(a, idx, dyn=None):
    if not DBG[0]: return
    L = a.newlabel('ST')
    a(f's_cmp_lg_u32 s{S_WAVE}, 0'); a(f's_cbranch_scc1 {L}')
    a(f's_memtime s[{S_ST}:{S_ST+1}]'); a(f's_memrealtime s[{S_ST+2}:{S_ST+3}]')
    a('s_waitcnt lgkmcnt(0)')
    a(f'v_mov_b32 v2, s{S_ST}'); a(f'v_mov_b32 v3, s{S_ST+2}')
    a(f's_lshl_b32 s{S_ST}, s2, 8'); a(f's_add_u32 s{S_ST}, s{S_ST}, {hex(WS_DBG + idx*8)}')
    if dyn is not None:
        a(f's_lshl_b32 s{S_ST+1}, s{dyn}, 3'); a(f's_add_u32 s{S_ST}, s{S_ST}, s{S_ST+1}')
    a(f'buffer_store_dwordx2 v[2:3], v{V_SIG}, {sr(S_WS)}, s{S_ST} offen')
    a('s_nop 1')
    a.label(L)

def code_pf(off, n, vt):
    g = []
    for i in range(n):
        g.append([f'v_lshlrev_b32 v{vt}, 7, v0', f'v_add_u32 v{vt}, {off + i*32768}, v{vt}',
                  f'v_min_u32 v{vt}, M_CODE_END-M_CODE_START-4, v{vt}',
                  f'global_load_dword v255, v{vt}, s[{S_PC}:{S_PC+1}]'])
    return g

def spin_wait(a, soff, mask=0xffff):
    t = S_T
    Lok = a.newlabel('WOK'); Ls = a.newlabel('WSP')
    a(f's_cmp_lg_u32 s{S_WAVE}, 0'); a(f's_cbranch_scc1 {Lok}')
    a(f's_mov_b32 s{t+1}, 0')
    a.label(Ls)
    a(f'v_cmp_eq_u32 vcc, v{V_POLL}, v{V_NONCE}')
    a(f's_and_b32 s{t}, vcc_lo, {hex(mask)}')
    a(f's_cmp_eq_u32 s{t}, {hex(mask)}'); a(f's_cbranch_scc1 {Lok}')
    a('s_sleep 8')
    a(poll_issue(soff))
    a('s_waitcnt vmcnt(0)')
    a(f's_add_u32 s{t+1}, s{t+1}, 1')
    a(f's_cmp_lt_u32 s{t+1}, 20000'); a(f's_cbranch_scc1 {Ls}')
    a.label(Lok)

def poll_issue(soff):
    return [f'buffer_load_dword v{V_POLL}, v{V_SIG16}, {sr(S_WS)}, s{soff} offen sc1']

def xn_flag_addr(dst, qb):
    return [f's_lshl_b32 s{dst}, s{qb}, 12', f's_add_u32 s{dst}, s{dst}, {hex(WS_FLG + 0x10000)}']

def wave_reduce_sum(a, v, sd):
    for mod in ['quad_perm:[1,0,3,2]', 'quad_perm:[2,3,0,1]', 'row_half_mirror', 'row_mirror']:
        a('s_nop 1')
        a(f'v_add_f32 v{v}, v{v}, v{v} {mod} row_mask:0xf bank_mask:0xf')
    a('s_nop 1')
    for i in range(4): a(f'v_readlane_b32 s{sd+i}, v{v}, {16*i}')
    a('s_nop 1')
    a(f'v_mov_b32 v{v}, s{sd}')
    for i in range(1, 4): a(f'v_add_f32 v{v}, s{sd+i}, v{v}')

def bf16_round(a, d, s):
    a(f'v_cvt_pk_bf16_f32 v{d}, v{s}, v{s}')
    a(f'v_and_b32 v{d}, 0xffff0000, v{d}')

def ln_row(a, xr, f, t, sd, out):
    for i in range(4):
        a(f'v_lshlrev_b32 v{f+2*i}, 16, v{xr+i}')
        a(f'v_and_b32 v{f+2*i+1}, 0xffff0000, v{xr+i}')
    a(f'v_add_f32 v{t}, v{f}, v{f+1}')
    for i in range(2, 8): a(f'v_add_f32 v{t}, v{t}, v{f+i}')
    wave_reduce_sum(a, t, sd)
    a(f'v_mul_f32 v{t}, 0x3b124925, v{t}')
    a(f'v_mov_b32 v{t+1}, 0')
    a(f's_mov_b32 exec_hi, 0x00ffffff')
    for i in range(8):
        a(f'v_sub_f32 v{t+2}, v{f+i}, v{t}')
        a(f'v_fmac_f32 v{t+1}, v{t+2}, v{t+2}')
    a(f's_mov_b32 exec_hi, -1')
    wave_reduce_sum(a, t+1, sd)
    a(f'v_mul_f32 v{t+1}, 0x3b124925, v{t+1}')
    bf16_round(a, t, t)
    bf16_round(a, t+1, t+1)
    a(f'v_add_f32 v{t+1}, 0x3727c5ac, v{t+1}')
    bf16_round(a, t+1, t+1)
    a(f'v_sqrt_f32 v{t+1}, v{t+1}')
    a('s_nop 0')
    bf16_round(a, t+1, t+1)
    a(f'v_rcp_f32 v{t+2}, v{t+1}')
    a('s_nop 0')
    a(f'v_fma_f32 v{t+3}, -v{t+1}, v{t+2}, 1.0')
    a(f'v_fmac_f32 v{t+2}, v{t+3}, v{t+2}')
    for i in range(8): a(f'v_sub_f32 v{f+i}, v{f+i}, v{t}')
    for i in range(4): a(f'v_cvt_pk_bf16_f32 v{out+i}, v{f+2*i}, v{f+2*i+1}')
    for i in range(4):
        a(f'v_lshlrev_b32 v{f+2*i}, 16, v{out+i}')
        a(f'v_and_b32 v{f+2*i+1}, 0xffff0000, v{out+i}')
    for i in range(8): a(f'v_mul_f32 v{f+i}, v{f+i}, v{t+2}')
    for i in range(4): a(f'v_cvt_pk_bf16_f32 v{out+i}, v{f+2*i}, v{f+2*i+1}')

WSLOT, NWS = 16384, 4
XBASE, XSLOT, NXS = 65536, 32768, 3
A_VX, A_VW, A_XAB, A_XA, A_WA = 8, 12, 16, 18, 20
AF = [dict(X=32, W=64), dict(X=96, W=128)]

def A_dma_w(wslot):
    g = [[f's_add_u32 m0, s{S_W4K}, {wslot*WSLOT}', f's_add_u32 s{S_SOW}, s{S_SOW}, {32*8192}',
          f'buffer_load_dwordx4 v{A_VW}, {sr(S_W)}, s{S_SOW} offen lds']]
    for i in range(1, 4):
        g.append([f'buffer_load_dwordx4 v{A_VW+i}, {sr(S_W)}, s{S_SOW} offen offset:{1024*i} lds'])
    return g

def A_dma_x(half):
    if half == 0:
        so = S_SOX
        g = [[f's_mov_b32 m0, s{S_DX}', f's_add_u32 s{S_SOX}, s{S_SOX}, 128', f'buffer_load_dwordx4 v{A_VX}, {sr(S_CKV)}, s{so} offen lds']]
    else:
        so = S_T + 1
        g = [[f's_add_u32 m0, s{S_DX}, 16384', f's_add_u32 s{so}, s{S_SOX}, {128*2048}',
              f'buffer_load_dwordx4 v{A_VX}, {sr(S_CKV)}, s{so} offen lds']]
    for i in range(1, 4):
        g.append([f'buffer_load_dwordx4 v{A_VX+i}, {sr(S_CKV)}, s{so} offen offset:{1024*i} lds'])
    if half == 1:
        g[-1] += [f's_add_u32 s{S_DX}, s{S_DX}, {XSLOT}',
                  f's_cmp_ge_u32 s{S_DX}, {XBASE+NXS*XSLOT}\ns_cselect_b32 s{S_T}, {NXS*XSLOT}, 0',
                  f's_sub_u32 s{S_DX}, s{S_DX}, s{S_T}']
    return g

def A_reads(u):
    f = AF[u & 1]; ks = u & 1; ws = u % NWS
    def wr(db): return [f'ds_read_b64_tr_b16 {vr(f["W"]+4*db+2*h,2)}, v{A_WA+db} offset:{ws*WSLOT+2048*h}' for h in range(2)]
    r = wr(0)
    for kb in range(8): r.append(f'ds_read_b128 {vr(f["X"]+4*kb)}, v{A_XA+ks} offset:{2048*kb}')
    for db in range(1, 8): r += wr(db)
    return r

def A_kstep(u, vtype, dmaw, dmax, vm, last=False, extra=None, xr=(30, 61)):
    out = []
    if not last: out += [f's_waitcnt vmcnt({vm}) lgkmcnt(0)', 's_barrier']
    else: out += ['s_waitcnt lgkmcnt(0)']
    f = AF[u & 1]
    steps = []
    for db in range(8):
        for kb in range(8):
            acc = ar((db*8+kb)*4, 4); w = vr(f['W']+4*db); x = vr(f['X']+4*kb)
            steps.append(Step([f'{MF} {acc}, {x}, {w}, {acc}' if vtype else f'{MF} {acc}, {w}, {x}, {acc}']))
    sc = Sched(steps, LA=0, first_issued=0)
    d = []
    if dmaw: d += A_dma_w(u % NWS)
    if dmax: d += A_dma_x(0 if (u & 1) else 1)
    if d: sc.place(d, 2, 58)
    if not last:
        r = []
        if (u & 1) == 1:
            r += [f's_add_u32 s{S_RX}, s{S_RX}, {XSLOT}', f's_cmp_ge_u32 s{S_RX}, {NXS*XSLOT}\ns_cselect_b32 s{S_RX}, 0, s{S_RX}']
            r += [f'v_add_u32 v{A_XA+i}, s{S_RX}, v{A_XAB+i}' for i in range(2)]
        sc.place(r + A_reads(u+1), 0, 44)
    if extra: sc.place(extra, xr[0], xr[1])
    return out + sc.text(0, 63)

A_PX, A_PW = 28, 29
S_PFX, S_PFW = 62, 63
def A_pf():
    return [f's_add_u32 s{S_PFX}, s{S_PFX}, 256', f'buffer_load_dword v255, v{A_PX}, {sr(S_CKV)}, s{S_PFX} offen',
            f's_add_u32 s{S_PFW}, s{S_PFW}, {128*8192}', f'buffer_load_dword v255, v{A_PW}, {sr(S_W)}, s{S_PFW} offen']
def A_pf_setup(a):
    t = S_T
    a(f's_lshr_b32 s{t}, s2, 3'); a(f's_and_b32 s{t}, s{t}, 3'); a(f's_lshl_b32 s{t}, s{t}, 2'); a(f's_add_u32 s{t}, s{t}, s{S_WAVE}')
    a(f's_lshl_b32 s{t+1}, s{S_KT}, 4'); a(f's_add_u32 s{t}, s{t}, s{t+1}'); a(f's_lshl_b32 s{t}, s{t}, 15')
    a('v_lshrrev_b32 v2, 1, v1'); a('v_lshlrev_b32 v2, 11, v2'); a('v_and_b32 v3, 1, v1'); a('v_lshl_add_u32 v2, v3, 7, v2')
    a(f'v_add_u32 v2, s{t}, v2'); a('v_mov_b32 v3, 0x7fffff00'); a('v_cmp_gt_u32 vcc, 32, v1'); a('s_nop 1')
    a(f'v_cndmask_b32 v{A_PX}, v3, v2, vcc')
    a(f's_lshl_b32 s{t}, s{S_KT}, 2'); a(f's_add_u32 s{t}, s{t}, s{S_WAVE}'); a(f's_lshl_b32 s{t}, s{t}, 15')
    a(f's_lshl_b32 s{t+1}, s{S_H}, 9'); a(f's_add_u32 s{t}, s{t}, s{t+1}')
    a('v_lshrrev_b32 v2, 2, v1'); a('v_lshlrev_b32 v2, 13, v2'); a('v_and_b32 v200, 3, v1'); a('v_lshl_add_u32 v2, v200, 7, v2')
    a(f'v_add_u32 v2, s{t}, v2'); a('v_cmp_gt_u32 vcc, 16, v1'); a('s_nop 1')
    a(f'v_cndmask_b32 v{A_PW}, v3, v2, vcc')
    a(f's_mov_b32 s{S_PFX}, 0'); a(f's_mov_b32 s{S_PFW}, 0')

PEND = 32

def phaseA(a):
    t = 4
    S_ROW0, S_ROWO = 68, 69
    a(f's_lshl_b32 s{t}, s{S_KT}, 3'); a(f's_add_u32 s{t}, s{t}, s{S_WAVE}'); a(f's_lshl_b32 s{t}, s{t}, 16')
    a('v_lshrrev_b32 v2, 3, v1'); a('v_lshlrev_b32 v2, 11, v2')
    a('v_and_b32 v3, 7, v1'); a('v_lshrrev_b32 v200, 4, v1'); a('v_xor_b32 v3, v3, v200')
    a(f'v_add_u32 v2, s{t}, v2')
    for i in range(4):
        a(f'v_xor_b32 v201, {4*(i&1)}, v3'); a('v_lshl_add_u32 v201, v201, 4, v2')
        a(f'v_add_u32 v{A_VX+i}, {i*(8*2048-1024)}, v201')
    w_voffsets(a, A_VW, t)
    a(f's_mov_b32 s{S_SOX}, -128'); a(f's_mov_b32 s{S_SOW}, {-32*8192}')
    a(f's_add_u32 s{S_DX}, s{S_W4K}, {XBASE}')
    a(f's_lshl_b32 s{t}, s2, 3'); a(f's_lshl_b32 s{t+1}, s{S_WAVE}, 1'); a(f's_add_u32 s{S_ROW0}, s{t}, s{t+1}')
    a(f's_mul_i32 s{S_ROWO}, s{S_ROW0}, 896')
    a('v_cmp_gt_u32 vcc, 56, v1')
    a('s_waitcnt lgkmcnt(0)')
    build_srds(a)
    t = S_T
    Ln = a.newlabel('NON')
    a('s_cmp_lg_u32 s2, 0'); a(f's_cbranch_scc1 {Ln}')
    a(f's_memrealtime s[{t}:{t+1}]'); a('s_waitcnt lgkmcnt(0)')
    a(f's_or_b32 s{t+2}, s{t}, 1'); a(f'v_mov_b32 v2, s{t+2}')
    a(f'buffer_store_dword v2, v{V_SIG}, {sr(S_DBG)}, 0 offen sc1')
    a.label(Ln)
    stamp(a, 0)
    a('v_mov_b32 v3, 0x7fffffff')
    a(f'v_cndmask_b32 v2, v3, v{V_L16}, vcc')
    a(f'buffer_load_dwordx4 v[160:163], v2, {sr(S_XIN)}, s{S_ROWO} offen')
    a(f'buffer_load_dwordx4 v[164:167], v2, {sr(S_XIN)}, s{S_ROWO} offen offset:896')
    a(flat(A_dma_w(0) + A_dma_x(0) + A_dma_x(1) + A_dma_w(1)))
    if OPT.get('tlb', True):
        a('v_lshlrev_b32 v2, 16, v1')
        Ls = [a.newlabel('TW') for _ in range(4)]
        for w, sd in enumerate((S_WQ, S_W1, S_WO, S_W2)):
            a(f's_cmp_lg_u32 s{S_WAVE}, {w}'); a(f's_cbranch_scc1 {Ls[w]}')
            a(f'buffer_load_dword v255, v2, {sr(sd)}, 0 offen')
            a.label(Ls[w])
    a(f's_and_b32 s{t}, s{S_WAVE}, 1'); a(f's_lshr_b32 s{t+1}, s{S_WAVE}, 1')
    a(f's_lshl_b32 s{t+2}, s{t}, 14'); a(f's_add_u32 s{t+2}, s{t+2}, {XBASE}')
    a('v_and_b32 v201, 15, v1'); a('v_lshrrev_b32 v200, 4, v1'); a('v_lshrrev_b32 v2, 1, v201')
    for ks in range(2):
        a(f'v_add_u32 v3, {4*ks}, v200'); a('v_xor_b32 v3, v3, v2'); a('v_lshlrev_b32 v3, 4, v3')
        a('v_lshl_add_u32 v3, v201, 7, v3')
        a(f'v_add_u32 v{A_XAB+ks}, s{t+2}, v3'); a(f'v_mov_b32 v{A_XA+ks}, v{A_XAB+ks}')
    a('v_bfe_u32 v3, v1, 2, 2')
    a('v_lshlrev_b32 v202, 12, v200'); a('v_lshl_add_u32 v202, v3, 9, v202')
    a('v_and_b32 v2, 3, v1'); a('v_lshl_add_u32 v202, v2, 3, v202')
    a(f's_lshl_b32 s{t+2}, s{t+1}, 8'); a(f'v_add_u32 v202, s{t+2}, v202')
    a('v_and_b32 v2, 1, v200'); a('v_lshl_or_b32 v3, v2, 2, v3')
    for db in range(8):
        a(f'v_xor_b32 v2, {db}, v3'); a(f'v_lshl_add_u32 v{A_WA+db}, v2, 5, v202')
    a(f's_mov_b32 s{S_RX}, 0')
    A_pf_setup(a)
    for r in range(256): a(f'v_accvgpr_write_b32 a{r}, 0')
    a(flat(A_dma_x(0) + A_dma_w(2) + A_dma_x(1)))
    a(f's_waitcnt vmcnt({29 if OPT.get("tlb", True) else 28})')
    ln_row(a, 160, 168, 176, S_MK, 184)
    ln_row(a, 164, 168, 176, S_MK, 188)
    a(f's_lshr_b32 s{t}, s{S_ROW0}, 4'); a(f's_mul_i32 s{t}, s{t}, 14*1024'); a(f's_and_b32 s{t+1}, s{S_ROW0}, 15'); a(f's_lshl_b32 s{t+1}, s{t+1}, 4')
    a(f's_add_u32 s{t}, s{t}, s{t+1}'); a(f's_add_u32 s{t}, s{t}, {hex(WS_XN)}')
    a('v_lshlrev_b32 v2, 8, v1')
    a('s_mov_b32 exec_hi, 0x00ffffff')
    a(f'buffer_store_dwordx4 v[184:187], v2, {sr(S_WS)}, s{t} offen sc1')
    a(f'buffer_store_dwordx4 v[188:191], v2, {sr(S_WS)}, s{t} offen offset:16 sc1')
    a('s_mov_b32 exec_hi, -1')
    a(f's_waitcnt vmcnt({19 if OPT.get("tlb", True) else 18})')
    a('s_barrier')
    a(A_reads(0))
    a(flat(A_dma_w(3) + A_dma_x(0)))
    PFA = OPT.get('a_pf', 3)
    if PFA:
        NPRO = OPT.get('a_npro', 0)
        a(f's_mov_b32 s{S_PFX}, {256*(PFA-1-NPRO)}'); a(f's_mov_b32 s{S_PFW}, {128*8192*(PFA-1-NPRO)}')
        for k in range(NPRO): a(A_pf())
    stamp(a, 1)
    Lv = a.newlabel('AV'); Lj = a.newlabel('AJ')
    a(f's_cmp_eq_u32 s{S_KVT}, 1'); a(f's_cbranch_scc1 {Lv}')
    pf = [[f's_lshr_b32 s{t+4}, s2, 4', f's_mul_i32 s{t+4}, s{t+4}, 28', f's_mul_i32 s{t+5}, s{S_WAVE}, 7', f's_add_u32 s{t+4}, s{t+4}, s{t+5}'],
          ['v_lshrrev_b32 v200, 2, v1', 'v_min_u32 v200, 6, v200', f'v_add_u32 v200, s{t+4}, v200', 'v_and_b32 v201, 3, v1'],
          ['v_lshlrev_b32 v201, 7, v201', 'v_lshl_add_u32 v202, v200, 13, v201', f's_lshl_b32 s{t+4}, s{S_H}, 9',
           f'buffer_load_dword v255, v202, {sr(S_WQ)}, s{t+4} offen'],
          ['v_mul_u32_u24 v202, 3584, v200', 'v_add_u32 v202, v202, v201', f's_mul_i32 s{t+4}, s{S_H}, 224', f's_and_b32 s{t+4}, s{t+4}, 0xffffff80',
           f'buffer_load_dword v255, v202, {sr(S_W1)}, s{t+4} offen']]
    for vtype in range(2):
        if vtype: a.label(Lv)
        a(f's_mov_b32 s{S_CNT}, 0')
        Ll = a.newlabel('AL'); a.label(Ll)
        for u in range(4):
            if PFA: a(A_kstep(u, vtype, True, True, 16 if u == 0 else 18, extra=(A_pf() if u == 0 else None), xr=(59, 63)))
            else: a(A_kstep(u, vtype, True, True, 16))
        Lm1 = a.newlabel('AM'); Lm2 = a.newlabel('AM'); Lm3 = a.newlabel('AM')
        if OPT.get('astamp'): stamp(a, 16, S_CNT)
        BPI = OPT.get('bpi', None)
        if BPI is not None:
            Lq = a.newlabel('AQ')
            a(f's_cmp_lg_u32 s{S_CNT}, {BPI}'); a(f's_cbranch_scc1 {Lq}')
            a(flat(pf)); a(flat(code_pf(32768, 2, 200)))
            a.label(Lq)
        a(f's_add_u32 s{S_CNT}, s{S_CNT}, 1')
        a(f's_cmp_lg_u32 s{S_WAVE}, 0'); a(f's_cbranch_scc1 {Lm2}')
        a(f's_cmp_lg_u32 s{S_CNT}, 1'); a(f's_cbranch_scc1 {Lm1}')
        a(f'v_mov_b32 v2, 0')
        a(f'buffer_load_dword v{V_NONCE}, v2, {sr(S_DBG)}, 0 offen sc1')
        a.label(Lm1)
        a(f's_cmp_lg_u32 s{S_CNT}, 3'); a(f's_cbranch_scc1 {Lm2}')
        a(f's_mov_b32 s{t+5}, 0')
        a.label(Lm3)
        a(f'v_readfirstlane_b32 s{t+4}, v{V_NONCE}')
        Lm4 = a.newlabel('AM')
        a(f's_cmp_lg_u32 s{t+4}, 0'); a(f's_cbranch_scc1 {Lm4}')
        a('s_sleep 8'); a(f'v_mov_b32 v2, 0')
        a(f'buffer_load_dword v{V_NONCE}, v2, {sr(S_DBG)}, 0 offen sc1')
        a('s_waitcnt vmcnt(0)')
        a(f's_add_u32 s{t+5}, s{t+5}, 1'); a(f's_cmp_lt_u32 s{t+5}, 20000'); a(f's_cbranch_scc1 {Lm3}')
        a.label(Lm4)
        a(f's_lshr_b32 s{t+4}, s2, 4'); a(xn_flag_addr(t+4, t+4))
        a(f's_and_b32 s{t+5}, s2, 15'); a(f's_lshl_b32 s{t+5}, s{t+5}, 2'); a(f's_add_u32 s{t+4}, s{t+4}, s{t+5}')
        a(f'buffer_store_dword v{V_NONCE}, v{V_SIG}, {sr(S_WS)}, s{t+4} offen sc1')
        a.label(Lm2)
        a(f's_cmp_lt_u32 s{S_CNT}, 6'); a(f's_cbranch_scc1 {Ll}')
        sizes = {u: (4 if u <= 27 else 0) + (4 if u <= 26 else 0) for u in range(20, 32)}
        cpf = [[f's_lshr_b32 s{t+4}, s2, 3', f's_mul_i32 s{t+4}, s{t+4}, 2560', f's_add_u32 s{t+4}, s{t+4}, 32768',
                'v_min_u32 v200, 19, v1', 'v_lshlrev_b32 v200, 7, v200', f'v_add_u32 v200, s{t+4}, v200',
                'v_min_u32 v200, M_CODE_END-M_CODE_START-4, v200', f'global_load_dword v255, v200, s[{S_PC}:{S_PC+1}]']]
        extra = {28: pf + cpf, 26: [xn_flag_addr(S_FP, S_OWN) + poll_issue(S_FP)]}
        for u in range(24, 32):
            vm = sizes[u-1] + sizes[u-2] + (3 if u > 28 else 0)
            a(A_kstep(u, vtype, u <= 27, u <= 26, vm, last=(u == 31), extra=extra.get(u), xr=(0, 30) if u == 28 else (5, 20)))
            if OPT.get('astamp') and u == 27: stamp(a, 22)
        stamp(a, 2)
        phaseB_begin(a, True)
        for tt in range(4):
            for x in range(8):
                if vtype: t0 = (x*8 + 2*tt)*4; t1 = (x*8 + 2*tt+1)*4
                else:
                    kb = 2*tt + (x >> 2); s_ = x & 3
                    t0 = ((2*s_)*8 + kb)*4; t1 = ((2*s_+1)*8 + kb)*4
                d = PEND + (tt*8+x)*4; tb = 192 + ((tt*8+x) & 1)*8
                for e in range(4): a(f'v_accvgpr_read_b32 v{tb+e}, a{t0+e}')
                for e in range(4): a(f'v_accvgpr_read_b32 v{tb+4+e}, a{t1+e}')
                for e in range(4): a(f'v_cvt_pk_bf16_f32 v{d+e}, v{tb+2*e}, v{tb+2*e+1}')
        a(f's_lshl_b32 s{S_KVB}, s{S_H}, 21')
        a(f's_lshl_b32 s{t}, s{S_KT}, 18'); a(f's_add_u32 s{S_KVB}, s{S_KVB}, s{t}')
        a(f's_and_b32 s{t}, s{S_WAVE}, 1'); a(f's_lshl_b32 s{t}, s{t}, 17'); a(f's_add_u32 s{S_KVB}, s{S_KVB}, s{t}')
        a(f's_lshr_b32 s{t}, s{S_WAVE}, 1')
        if vtype:
            a(f's_lshl_b32 s{t}, s{t}, 13'); a(f's_add_u32 s{S_KVB}, s{S_KVB}, s{t}'); a(f's_add_u32 s{S_KVB}, s{S_KVB}, 16384')
            a(f's_mov_b32 s{S_HALF}, 4096')
        else:
            a(f's_lshl_b32 s{t}, s{t}, 12'); a(f's_add_u32 s{S_KVB}, s{S_KVB}, s{t}')
            a(f's_mov_b32 s{S_HALF}, 8192')
            a(f's_branch {Lj}')
    a.label(Lj)

def kv_stores():
    g = []
    so = S_T + 6
    sc = ' sc1' if OPT['kv_sc1'] else ''
    for k in range(32):
        tt, x = k >> 3, k & 7
        pre = []
        if x == 0: pre = [f's_add_u32 s{so}, s{S_KVB}, {tt*32768}']
        if x == 4: pre = [f's_add_u32 s{so}, s{so}, s{S_HALF}']
        g.append(pre + [f'buffer_store_dwordx4 {vr(PEND+4*k)}, v{V_L16}, {sr(S_WS)}, s{so} offen offset:{(x&3)*1024}{sc} ;@KVST'])
    return g

def w_voffsets(a, dst, t):
    a(f's_lshl_b32 s{t}, s{S_WAVE}, 16'); a(f's_lshl_b32 s{t+1}, s{S_H}, 9'); a(f's_add_u32 s{t}, s{t}, s{t+1}')
    a(f's_and_b32 s{t+1}, s{S_WAVE}, 1'); a(f's_lshl_b32 s{t+1}, s{t+1}, 2')
    a('v_lshrrev_b32 v200, 5, v1'); a('v_and_b32 v201, 31, v1'); a('v_lshrrev_b32 v202, 1, v201')
    a(f'v_xor_b32 v202, s{t+1}, v202'); a('v_and_b32 v203, 1, v201')
    for i in range(4):
        a(f'v_add_u32 v2, {(2*i)&3}, v200'); a('v_xor_b32 v2, v202, v2'); a('v_lshl_add_u32 v2, v2, 1, v203')
        a('v_lshlrev_b32 v2, 4, v2'); a('v_lshl_add_u32 v2, v200, 13, v2')
        a(f'v_add_u32 v2, {2*i*8192-1024*i}, v2'); a(f'v_add_u32 v{dst+i}, s{t}, v2')

B_VW, B_V1, B_VX1 = A_VW, 8, 10
B_WA, B_1A = 16, 24
B_XF = 160
B_WF, B_NB = 192, 8
B_TMP = 224

def B_setup(a):
    t = S_T
    a(f's_and_b32 s{t+1}, s{S_WAVE}, 1'); a(f's_lshl_b32 s{t+1}, s{t+1}, 2')
    a(f's_mul_i32 s{t}, s{S_WAVE}, {8*3584}'); a(f's_mul_i32 s{t+2}, s{S_H}, 224'); a(f's_add_u32 s{t}, s{t}, s{t+2}')
    a('v_lshrrev_b32 v240, 4, v1'); a('v_and_b32 v241, 15, v1'); a('v_lshrrev_b32 v242, 1, v241')
    a(f'v_xor_b32 v242, s{t+1}, v242'); a('v_xor_b32 v242, v240, v242'); a('v_and_b32 v243, 1, v241')
    a('v_lshl_add_u32 v2, v242, 1, v243'); a('v_lshlrev_b32 v2, 4, v2')
    a('v_mul_u32_u24 v3, 3584, v240'); a('v_add_u32 v2, v2, v3')
    a(f'v_add_u32 v{B_V1}, s{t}, v2'); a(f'v_add_u32 v{B_V1+1}, {4*3584-1024}, v{B_V1}')
    a(f'v_add_u32 v{B_VX1}, 14336, v{V_L16}')

def B_setup2(a):
    a('v_lshrrev_b32 v240, 4, v1')
    a('v_bfe_u32 v241, v1, 2, 2')
    a('v_lshl_add_u32 v242, v240, 3, v241')
    a('v_and_b32 v243, 3, v1'); a('v_lshlrev_b32 v243, 3, v243')
    a('v_and_b32 v2, 1, v240'); a('v_lshl_or_b32 v241, v2, 2, v241')
    a('v_lshl_add_u32 v244, v242, 9, v243')
    a('v_lshl_add_u32 v245, v242, 8, v243'); a('v_add_u32 v245, 0x10000, v245')
    for d in range(8):
        a(f'v_xor_b32 v2, {d}, v241')
        a(f'v_lshl_add_u32 v{B_WA+d}, v2, 5, v244')
        if d < 7: a(f'v_lshl_add_u32 v{B_1A+d}, v2, 5, v245')

def B_dma(u, ffn):
    sl = u % 4; t = S_T
    g = [[f's_add_u32 m0, s{S_W4K}, {sl*16384}', f's_mov_b32 s{t}, {u*32*8192}',
          f'buffer_load_dwordx4 v{B_VW}, {sr(S_WQ)}, s{t} offen lds']]
    for i in range(1, 4): g.append([f'buffer_load_dwordx4 v{B_VW+i}, {sr(S_WQ)}, s{t} offen offset:{1024*i} lds'])
    if ffn:
        g.append([f's_add_u32 m0, s{S_W2K}, {65536+sl*8192}', f's_mov_b32 s{t}, {u*32*3584}',
                  f'buffer_load_dwordx4 v{B_V1}, {sr(S_W1)}, s{t} offen lds'])
        g.append([f'buffer_load_dwordx4 v{B_V1+1}, {sr(S_W1)}, s{t} offen offset:1024 lds'])
    g += [[f's_add_u32 s{t+1}, s{S_XO}, {u*1024}',
           f'buffer_load_dwordx4 {vr(B_XF+sl*8)}, v{V_L16}, {sr(S_WS)}, s{t+1} offen'],
          [f'buffer_load_dwordx4 {vr(B_XF+sl*8+4)}, v{B_VX1}, {sr(S_WS)}, s{t+1} offen']]
    return tag(g, f'B{u}')

def B_head(ffn):
    h = []
    for u in range(3): h += flat(B_dma(u, ffn))
    return h

def phaseB_begin(a, ffn):
    t = S_T
    if ffn:
        B_setup(a)
    spin_wait(a, S_FP)
    qb = S_OWN if ffn else S_EXT
    a(f's_lshl_b32 s{t}, s{qb}, 2'); a(f's_add_u32 s{t}, s{t}, s{S_WAVE}'); a(f's_mul_i32 s{t}, s{t}, {2*14336}')
    a(f's_add_u32 s{S_XO}, s{t}, {hex(WS_XN)}')
    a('s_barrier')
    if ffn:
        a(f's_mul_i32 s{t+2}, s{S_H}, 224')
        a('v_lshrrev_b32 v2, 4, v1'); a('v_lshlrev_b32 v2, 3, v2')
        for fb in range(7):
            a(f'buffer_load_dwordx2 {vr(B_TMP+2*fb,2)}, v2, {sr(S_B1)}, s{t+2} offen offset:{32*fb}')
    a(resolve_vm(B_head(ffn)))

def phaseB_main(a, ffn, poll_kv):
    nb = 8 if ffn else 6
    pre0 = []
    if ffn:
        B_setup2(a)
        a(f's_waitcnt vmcnt({3*nb})')
        for fb in range(7):
            for k in range(2):
                a(f'v_lshlrev_b32 v2, 16, v{B_TMP+2*fb+k}'); a(f'v_and_b32 v3, 0xffff0000, v{B_TMP+2*fb+k}')
                for qb in range(2):
                    a(f'v_accvgpr_write_b32 a{128+(fb*2+qb)*4+2*k}, v2'); a(f'v_accvgpr_write_b32 a{128+(fb*2+qb)*4+2*k+1}, v3')
    a(f's_waitcnt vmcnt({2*nb})')
    a('s_barrier')
    stamp(a, 3 if ffn else 6)
    nf = 23 if ffn else 16
    steps = []
    for u in range(14):
        sl = u % 4
        for f in range(nf):
            buf = B_WF + (len(steps) % B_NB)*4
            if f < 16:
                rd = [f'ds_read_b64_tr_b16 {vr(buf+2*h,2)}, v{B_WA+(f&7)} offset:{sl*16384+2048*h+256*(f>>3)}' for h in range(2)]
                acc = f*8
            else:
                rd = [f'ds_read_b64_tr_b16 {vr(buf+2*h,2)}, v{B_1A+f-16} offset:{sl*8192+1024*h}' for h in range(2)]
                acc = 128 + (f-16)*8
            mf = []
            for qb in range(2):
                c = '0' if (u == 0 and f < 16) else ar(acc+4*qb)
                mf.append(f'{MF} {ar(acc+4*qb)}, {vr(buf)}, {vr(B_XF+sl*8+4*qb)}, {c}')
            steps.append(Step(mf, rd))
    LA = 6
    bp = {}
    for u in range(13):
        bp[u] = (u+1)*nf - LA - 1
        steps[bp[u]].pre += [f's_waitcnt vmcnt(@B{u+1})', 's_barrier']
        for f in range(nf): steps[(u+1)*nf+f].gate = bp[u]
    SIGU = 12
    if ffn:
        steps[bp[SIGU]].pre.insert(0, 's_waitcnt vmcnt(@KVST)')
    sc = Sched(steps, LA=LA, wait_group=2)
    sc.place(B_dma(3, ffn), 0, bp[0]-2)
    for u in range(1, 11):
        sc.place(B_dma(u+3, ffn), bp[u], bp[u+1]-2)
    if ffn:
        st_ = kv_stores()
        if OPT.get('nost'): st_ = st_[:1]
        sc.place(st_, 0, bp[OPT.get('st_end', 9)])
        sc.place([[f's_lshr_b32 s{S_T+7}, s2, 4', f's_lshl_b32 s{S_T+7}, s{S_T+7}, 2', f's_add_u32 s{S_T+7}, s{S_T+7}, s{S_FKV}',
                   f'buffer_store_dword v{V_NONCE}, v{V_SIG}, {sr(S_WS)}, s{S_T+7} offen sc1']], bp[SIGU], bp[SIGU]+3)
    if ffn:
        pl = xn_flag_addr(S_FP, S_EXT) + [f's_cmp_eq_u32 s{S_HASX}, 0\ns_cselect_b32 s{S_FP}, s{S_FKV}, s{S_FP}'] + poll_issue(S_FP)
    else:
        pl = [f's_mov_b32 s{S_FP}, s{S_FKV}'] + poll_issue(S_FP)
    sc.place([pl], len(steps)-9, len(steps)-5)
    print('phaseB overflow', sc.overflow(0, len(steps)-1))
    body = resolve_vm(B_head(ffn) + ['MARK'] + sc.pre + sc.text(0, len(steps)-1))
    a(body[body.index('MARK')+1:])
    stamp(a, 4 if ffn else 7)

def phaseB_epi(a, ffn, qdst):
    a('s_nop 7')
    if ffn:
        for ks in range(4):
            for qb in range(2):
                d = V_H + (ks*2+qb)*4
                for half in range(2):
                    fb = 2*ks + half
                    if fb == 7:
                        a(f'v_mov_b32 v{d+2}, 0'); a(f'v_mov_b32 v{d+3}, 0'); continue
                    src = 128 + (fb*2+qb)*4
                    for e in range(4): a(f'v_accvgpr_read_b32 v{B_TMP+e}, a{src+e}')
                    for e in range(4): a(f'v_max_f32 v{B_TMP+e}, 0, v{B_TMP+e}')
                    for e in range(4): a(f'v_mul_f32 v{B_TMP+e}, v{B_TMP+e}, v{B_TMP+e}')
                    for e in range(2): a(f'v_cvt_pk_bf16_f32 v{d+2*half+e}, v{B_TMP+2*e}, v{B_TMP+2*e+1}')
    for s in range(8):
        for qb in range(2):
            d = qdst + (s*2+qb)*4
            for half in range(2):
                src = ((2*s+half)*2+qb)*4
                for e in range(4): a(f'v_accvgpr_read_b32 v{B_TMP+4*half+e}, a{src+e}')
            for e in range(0, 8, 2): a(f'v_pk_mul_f32 {vr(B_TMP+e,2)}, {vr(B_TMP+e,2)}, {vr(240,2)}')
            for e in range(4): a(f'v_cvt_pk_bf16_f32 v{B_TMP+8+e}, v{B_TMP+2*e}, v{B_TMP+2*e+1}')
            for e in range(4): a(f'v_accvgpr_write_b32 a{d+e}, v{B_TMP+8+e}')

C_KA, C_VA, C_VD, C_DV, C_DV0, C_TM, C_NINF, C_ONE = 8, 9, 10, 11, 12, 13, 14, 16
C_BP16, C_BP32 = 20, 21
C_T = 24
C_S = [32, 48]
C_P, C_NM, C_L = 64, 72, 80
C_F, C_NB = 160, 16
C_MRG = 128

def C_dma(kind, m0expr):
    so = S_KO if kind == 'K' else S_VO
    g = [[m0expr, f's_add_u32 s{so}, s{so}, 32768', f'buffer_load_dwordx4 v{C_VD}, {sr(S_WS)}, s{so} offen lds']]
    for i in range(1, 4): g.append([f'buffer_load_dwordx4 v{C_VD}, {sr(S_WS)}, s{so} offen offset:{1024*i} lds'])
    return g

def mask_ops(S):
    el = [(kb, qb, r) for kb in range(2) for qb in range(2) for r in range(4)]
    ops = []
    for i in range(0, 16, 4):
        for k in range(4):
            kb, qb, r = el[i+k]
            ops.append(f'v_cmp_gt_i32 s[{S_MK+2*k}:{S_MK+2*k+1}], {16*(kb-qb)+r}, v{C_DV}')
        for k in range(4):
            kb, qb, r = el[i+k]; reg = S + (kb*2+qb)*4 + r
            ops.append(f'v_cndmask_b32 v{reg}, v{reg}, v{C_NINF}, s[{S_MK+2*k}:{S_MK+2*k+1}]')
    return ops

def max_ops(S):
    ops = [f'v_max3_f32 v{C_TM}, v{S}, v{S+1}, v{S+2}']
    for i in range(3, 15, 2): ops.append(f'v_max3_f32 v{C_TM}, v{C_TM}, v{S+i}, v{S+i+1}')
    ops.append(f'v_max_f32 v{C_TM}, v{C_TM}, v{S+15}')
    return ops

def rowmax(a, S, qb, d):
    r = [S + (kb*2+qb)*4 + e for kb in range(2) for e in range(4)]
    a(f'v_max3_f32 v{d}, v{r[0]}, v{r[1]}, v{r[2]}')
    a(f'v_max3_f32 v{d}, v{d}, v{r[3]}, v{r[4]}')
    a(f'v_max3_f32 v{d}, v{d}, v{r[5]}, v{r[6]}')
    a(f'v_max_f32 v{d}, v{d}, v{r[7]}')
    for bp in (C_BP16, C_BP32):
        a(f'ds_bpermute_b32 v{C_T+7}, v{bp}, v{d}')
        a('s_waitcnt lgkmcnt(0)')
        a(f'v_max_f32 v{d}, v{d}, v{C_T+7}')

def rare_path(a, S, first):
    a('s_nop 7')
    for qb in range(2):
        d = C_T + qb
        rowmax(a, S, qb, d)
        if not first: a(f'v_max_f32 v{d}, 0, v{d}')
        for kb in range(2):
            for e in range(4):
                r = S + (kb*2+qb)*4 + e
                a(f'v_sub_f32 v{r}, v{r}, v{d}')
        for e in range(4): a(f'v_sub_f32 v{C_NM+4*qb+e}, v{C_NM+4*qb+e}, v{d}')
        if not first:
            al = C_T + 2 + qb
            a(f'v_exp_f32 v{al}, -v{d}')
            a('s_nop 0')
            for e in range(4): a(f'v_mul_f32 v{C_L+4*qb+e}, v{C_L+4*qb+e}, v{al}')
            for db in range(16):
                o = (db*2+qb)*4
                for e in range(3): a(f'v_accvgpr_read_b32 v{C_T+4+e}, a{o+e}')
                a(f'v_accvgpr_read_b32 v2, a{o+3}')
                for e in range(3): a(f'v_mul_f32 v{C_T+4+e}, v{C_T+4+e}, v{al}')
                a(f'v_mul_f32 v2, v2, v{al}')
                for e in range(3): a(f'v_accvgpr_write_b32 a{o+e}, v{C_T+4+e}')
                a(f'v_accvgpr_write_b32 a{o+3}, v2')
    a('s_nop 1')

def softmax_ops(S):
    ops = []
    for qb in range(2):
        for kb in range(2):
            b = S + (kb*2+qb)*4
            for e in range(4): ops.append(f'v_exp_f32 v{b+e}, v{b+e}')
        for kb in range(2):
            b = S + (kb*2+qb)*4
            for e in range(2): ops.append(f'v_cvt_pk_bf16_f32 v{C_P+4*qb+2*kb+e}, v{b+2*e}, v{b+2*e+1}')
    return ops

def phaseC_begin(a):
    t = S_T
    a('s_barrier')
    a(f's_lshl_b32 s{t}, s{S_H}, 21'); a(f's_lshl_b32 s{t+1}, s{S_TS}, 15'); a(f's_add_u32 s{S_KO}, s{t}, s{t+1}')
    a(f's_sub_u32 s{S_KO}, s{S_KO}, 32768')
    a(f's_add_u32 s{S_VO}, s{S_KO}, 16384')
    a(f'v_add_u32 v{C_VD}, s{S_W4K}, v{V_L16}')
    for kind, sl in [('K', 0), ('K', 1), ('V', 0), ('K', 2), ('V', 1), ('K', 3)]:
        a(flat(C_dma(kind, f's_add_u32 m0, s{S_W4K}, {(0 if kind=="K" else 65536) + sl*16384}')))

def phaseC(a, own, rl, after_first_wait=None, tail_extra=None):
    t = S_T
    AQ = A_QO if own else A_QX
    NBUF = C_NB
    a(f's_mov_b32 s{S_PB}, s{S_W4K}'); a(f's_xor_b32 s{S_PO}, s{S_PB}, 0x8000')
    a(f'v_mov_b32 v{C_KA}, v{V_L16}'); a(f'v_add_u32 v{C_VA}, 0x18000, v{V_L16}')
    if own:
        a('v_and_b32 v2, 15, v1'); a('v_lshrrev_b32 v3, 4, v1'); a('v_lshlrev_b32 v3, 2, v3'); a(f'v_sub_u32 v{C_DV0}, v2, v3')
        a(f's_sub_u32 s{t}, s{S_RB}, s{S_TS}'); a(f's_lshl_b32 s{t}, s{t}, 5')
        a(f'v_add_u32 v{C_DV}, s{t}, v{C_DV0}')
        a(f'v_mov_b32 v{C_NINF}, 0xff800000')
        for r in range(32): a(f'v_accvgpr_write_b32 a{A_H+r}, v{V_H+r}')
    for e in range(4): a(f'v_mov_b32 v{C_ONE+e}, 0x3f803f80')
    a(f'v_xor_b32 v{C_BP16}, 16, v1'); a(f'v_lshlrev_b32 v{C_BP16}, 2, v{C_BP16}')
    a(f'v_xor_b32 v{C_BP32}, 32, v1'); a(f'v_lshlrev_b32 v{C_BP32}, 2, v{C_BP32}')
    for e in range(8): a(f'v_mov_b32 v{C_NM+e}, 0'); a(f'v_mov_b32 v{C_L+e}, 0')
    for r in range(128): a(f'v_accvgpr_write_b32 a{r}, 0')
    a('s_waitcnt vmcnt(12)')
    a('s_barrier')
    if after_first_wait: after_first_wait(a)
    n = 10
    steps = []; start = {}; h2s = {}
    cnt = [0]
    def nbuf():
        b = C_F + (cnt[0] % OPT.get('c_nb', 16))*4; cnt[0] += 1; return b
    def ksteps(j, cinit):
        S = C_S[j & 1]
        for kb in range(2):
            for s in range(8):
                buf = nbuf()
                rd = f'ds_read_b128 {vr(buf)}, v{C_KA} offset:{(j&1)*16384 + (kb*8+s)*1024}'
                pv = f'v_xor_b32 v{C_KA}, 0x8000, v{C_KA}' if (kb == 0 and s == 0 and (j & 1) == 0 and j > 0) else None
                mf = []
                for qb in range(2):
                    d = vr(S + (kb*2+qb)*4)
                    c = d if s > 0 else (cinit if cinit is not None else vr(C_NM+4*qb))
                    mf.append(f'{MF} {d}, {vr(buf)}, {ar(AQ+(s*2+qb)*4)}, {c}')
                steps.append(Step(mf, [rd], prev=pv))
    def vsteps(j):
        for db in range(16):
            buf = nbuf()
            rd = f'ds_read_b128 {vr(buf)}, v{C_VA} offset:{(j&1)*16384 + db*1024}'
            pv = f'v_xor_b32 v{C_VA}, 0x8000, v{C_VA}' if (db == 0 and (j & 1) == 0) else None
            mf = [f'{MF} {ar((db*2+qb)*4)}, {vr(buf)}, {vr(C_P+4*qb)}, {ar((db*2+qb)*4)}' for qb in range(2)]
            if db == 15:
                mf += [f'{MF} {vr(C_L+4*qb)}, {vr(C_ONE)}, {vr(C_P+4*qb)}, {vr(C_L+4*qb)}' for qb in range(2)]
            steps.append(Step(mf, [rd], prev=pv))
    start[-1] = 0
    ksteps(0, '0')
    for j in range(n):
        start[j] = len(steps)
        if j < n-1: ksteps(j+1, None)
        h2s[j] = len(steps)
        vsteps(j)
        tail = j - (n-6)
        vm = {0: 12, 1: 12, 2: 8, 3: 4, 4: 0}.get(max(tail, 0), None)
        if vm is not None: steps[h2s[j]+2].pre += [f's_waitcnt vmcnt({vm})', 's_barrier']
        if j == n-1: steps[h2s[j]].block += softmax_ops(C_S[j & 1]) + ['s_nop 1']
    start[n] = len(steps)
    sc = Sched(steps, LA=OPT.get('c_la', 9), wait_group=OPT.get('c_wg', 4), wait_first=True)
    for j in range(n):
        p = j & 1; h2 = h2s[j]; end = start[j+1] - 1; tail = j - (n-6)
        if j < n-1:
            S = C_S[p]
            regs = [S + (kb*2+qb)*4 + e for qb in range(2) for kb in range(2) for e in range(4)]
            for k in range(16):
                sc.put(start[j]+k, 0, f'v_exp_f32 v{regs[k]}, v{regs[k]}')
                if k & 1: sc.put(start[j]+k, 1, f'v_cvt_pk_bf16_f32 v{C_P+k//2}, v{regs[k-1]}, v{regs[k]}')
        dv = C_dma('V', f's_add_u32 m0, s{S_PO if p==0 else S_PB}, {65536 + (16384 if p==0 else 0)}') if tail <= 2 else None
        dk = C_dma('K', f's_add_u32 m0, s{S_PB if p==0 else S_PO}, {16384 if p==0 else 0}') if tail <= 0 else None
        if dv:
            dv = flat(dv)
            sc.put(h2, 0, dv[0]); sc.put(h2, 0, dv[1])
            for x, st_ in zip(dv[2:], (2, 4, 5, 6)): sc.put(h2+st_, 0, x)
        else: sc.put(h2, 0, 's_nop 0')
        if dk:
            dk = flat(dk)
            sc.put(h2+7, 0, dk[0]); sc.put(h2+7, 0, dk[1])
            for x, st_ in zip(dk[2:], (8, 9, 10, 12)): sc.put(h2+st_, 0, x)
        if tail_extra and tail in tail_extra: sc.place(tail_extra[tail], h2+7, end-1)
        if p == 1:
            e = [f's_xor_b32 s{S_PB}, s{S_PB}, 0x8000', f's_xor_b32 s{S_PO}, s{S_PO}, 0x8000']
            if j < 4: e += [f's_sub_u32 s{S_CNT}, s{S_CNT}, 2', f's_cmp_lg_u32 s{S_CNT}, 0']
            sc.place(e, end-2, end)
        if j < n-1:
            Sn = C_S[p ^ 1]; ops = []
            if own and tail >= 1: ops += [f'v_subrev_u32 v{C_DV}, 32, v{C_DV}'] + mask_ops(Sn)
            ops += max_ops(Sn) + [f'v_cmp_lt_f32 vcc, s{S_THR}, v{C_TM}']
            sc.place(ops, h2+3, end)
    def text(j0, j1): return sc.text(start[j0], start[j1+1]-1)
    def emit_iter(j):
        tx = flat([x.split('\n') for x in text(j, j)])
        ab = OPT.get('ablate', '')
        if 'dma' in ab: tx = [x for x in tx if not (x.startswith('buffer_load') or 'vmcnt' in x)]
        if 'bar' in ab: tx = [x for x in tx if not x.startswith('s_barrier')]
        if 'exp' in ab: tx = [x for x in tx if not x.startswith('v_exp')]
        if 'max' in ab: tx = [x for x in tx if not x.startswith('v_max')]
        if 'read' in ab: tx = [x for x in tx if not (x.startswith('ds_read') or 'lgkmcnt' in x)]
        a(tx)
        if j < n-1 and not ab:
            Lb = a.newlabel('CB'); Ls = a.newlabel('CS')
            a(f's_cbranch_vccnz {Ls}')
            a.label(Lb)
            rl['stubs'].append((Ls, Lb, (j&1)^1))
    assert text(0, 1) == text(2, 3), 'not periodic'
    print('phaseC overflow per pair', sc.overflow(start[2], start[4]-1))
    a(sc.pre)
    a(text(-1, -1))
    a('s_barrier')
    a(flat(C_dma('V', f's_add_u32 m0, s{S_W4K}, {65536+2*16384}') + C_dma('K', f's_mov_b32 m0, s{S_W4K}')))
    if own: a(mask_ops(C_S[0]))
    rare_path(a, C_S[0], True)
    Ltail4 = a.newlabel('CT4'); Ltail = a.newlabel('CT6'); Lloop = a.newlabel('CL')
    if own:
        a(f's_add_u32 s{t}, s{S_TS}, s{S_N}'); a(f's_sub_u32 s{t}, s{S_RB}, s{t}'); a(f's_add_u32 s{t}, s{t}, 5'); a(f's_lshl_b32 s{t}, s{t}, 5')
        a(f's_cmp_eq_u32 s{S_N}, 4'); a(f's_cbranch_scc1 {Ltail4}')
        a(f'v_add_u32 v{C_DV}, s{t}, v{C_DV0}')
    a(f's_sub_u32 s{S_CNT}, s{S_N}, 6')
    a(f's_cmp_eq_u32 s{S_CNT}, 0'); a(f's_cbranch_scc1 {Ltail}')
    a.label(Lloop)
    emit_iter(2); emit_iter(3)
    a(f's_cbranch_scc1 {Lloop}')
    a.label(Ltail)
    emit_iter(4); emit_iter(5)
    if own: a.label(Ltail4)
    for j in range(6, 10): emit_iter(j)

def rare_subs(a, rl):
    for (Ls, Lb, p) in rl['stubs']:
        a.label(Ls)
        a(f's_cselect_b32 s{S_T+8}, 1, 0')
        a(f's_getpc_b64 s[{S_RET}:{S_RET+1}]')
        Lp = a.newlabel('CP'); a.label(Lp)
        a(f's_sub_u32 s{S_RET}, s{S_RET}, {Lp}-{Lb}'); a(f's_subb_u32 s{S_RET+1}, s{S_RET+1}, 0')
        a(f's_branch {rl[p]}')
    for p in range(2):
        a.label(rl[p])
        rare_path(a, C_S[p], False)
        a(f's_cmp_lg_u32 s{S_T+8}, 0')
        a(f's_setpc_b64 s[{S_RET}:{S_RET+1}]')

def op_base(a, d):
    a(f's_mul_i32 s{d}, s{S_PAIR}, {OP_PAIR}'); a(f's_mul_i32 s{d+1}, s{S_WAVE}, {OP_WAVE}')
    a(f's_add_u32 s{d}, s{d}, s{d+1}'); a(f's_add_u32 s{d}, s{d}, {hex(WS_OP)}')

def publish_stores(a):
    t = S_T
    a('s_nop 7')
    op_base(a, t)
    for k in range(32):
        if k % 4 == 0 and k: a(f's_add_u32 s{t}, s{t}, 4096')
        a(f'buffer_store_dwordx4 {ar(4*k)}, v{V_L16}, {sr(S_WS)}, s{t} offen offset:{1024*(k%4)} sc1')
    a(f's_add_u32 s{t}, s{t}, 4096')
    a(f'v_mov_b32 v{C_T}, v{C_NM}'); a(f'v_mov_b32 v{C_T+1}, v{C_NM+4}'); a(f'v_mov_b32 v{C_T+2}, v{C_L}'); a(f'v_mov_b32 v{C_T+3}, v{C_L+4}')
    a(f'buffer_store_dwordx4 {vr(C_T)}, v{V_L16}, {sr(S_WS)}, s{t} offen sc1')
    a('s_nop 1')

def publish_flag(a):
    L = a.newlabel('PF')
    a(f's_cmp_eq_u32 s{S_HASX}, 0'); a(f's_cbranch_scc1 {L}')
    a(f's_lshl_b32 s{S_T}, s{S_PAIR}, 8'); a(f's_add_u32 s{S_T}, s{S_T}, {hex(WS_FLG + 0x20000)}')
    a(f'buffer_store_dword v{V_NONCE}, v{V_SIG}, {sr(S_WS)}, s{S_T} offen sc1')
    a.label(L)

D_CTX = 32
D_WF, D_NB = 96, 8
D_ACC = 128
D_PK = 160
D_VO = 16
D_RA, D_RB = 20, 24
D_ST1 = 28
DSLOT = 49152

def finalize(a):
    t = S_T
    Lno = a.newlabel('NOMRG'); Ldone = a.newlabel('FIN')
    a(f's_cmp_lg_u32 s{S_TS}, 0'); a(f's_cbranch_scc0 {Lno}')
    a(f's_lshl_b32 s{S_FP}, s{S_PAIR}, 8'); a(f's_add_u32 s{S_FP}, s{S_FP}, {hex(WS_FLG + 0x20000)}')
    a(poll_issue(S_FP))
    a('s_waitcnt vmcnt(0)')
    spin_wait(a, S_FP, mask=1)
    a('s_barrier')
    op_base(a, t)
    a(f's_add_u32 s{t+1}, s{t}, 32768')
    a(f'buffer_load_dwordx4 {vr(C_T)}, v{V_L16}, {sr(S_WS)}, s{t+1} offen sc1')
    for k in range(32):
        if k % 4 == 0 and k: a(f's_add_u32 s{t}, s{t}, 4096')
        a(f'buffer_load_dwordx4 {vr(C_MRG+4*k)}, v{V_L16}, {sr(S_WS)}, s{t} offen offset:{1024*(k%4)} sc1')
    a('s_waitcnt vmcnt(32)')
    for qb in range(2):
        nm_a = C_NM + 4*qb; nm_b = C_T + qb; l_a = C_L + 4*qb; l_b = C_T + 2 + qb
        a(f'v_min_f32 v2, v{nm_a}, v{nm_b}')
        a(f'v_sub_f32 v3, v2, v{nm_a}'); a(f'v_exp_f32 v{8+qb}, v3')
        a(f'v_sub_f32 v3, v2, v{nm_b}'); a(f'v_exp_f32 v{10+qb}, v3')
        a('s_nop 0')
        a(f'v_mul_f32 v2, v{8+qb}, v{l_a}'); a(f'v_fmac_f32 v2, v{10+qb}, v{l_b}')
        a('v_rcp_f32 v2, v2'); a('s_nop 0')
        a(f'v_mul_f32 v{8+qb}, v{8+qb}, v2'); a(f'v_mul_f32 v{10+qb}, v{10+qb}, v2')
    for s in range(8):
        a(f's_waitcnt vmcnt({28-4*s})')
        for qb in range(2):
            for half in range(2):
                o = ((2*s+half)*2+qb)*4
                for e in range(4): a(f'v_accvgpr_read_b32 v{12+e}, a{o+e}')
                for e in range(4): a(f'v_mul_f32 v{12+e}, v{12+e}, v{8+qb}')
                for e in range(4): a(f'v_fmac_f32 v{12+e}, v{C_MRG+o+e}, v{10+qb}')
                for e in range(2): a(f'v_cvt_pk_bf16_f32 v{D_CTX+(s*2+qb)*4+2*half+e}, v{12+2*e}, v{12+2*e+1}')
    a(f's_branch {Ldone}')
    a.label(Lno)
    for qb in range(2): a(f'v_rcp_f32 v{8+qb}, v{C_L+4*qb}')
    a('s_nop 0')
    for s in range(8):
        for qb in range(2):
            for half in range(2):
                o = ((2*s+half)*2+qb)*4
                for e in range(4): a(f'v_accvgpr_read_b32 v{12+e}, a{o+e}')
                for e in range(4): a(f'v_mul_f32 v{12+e}, v{12+e}, v{8+qb}')
                for e in range(2): a(f'v_cvt_pk_bf16_f32 v{D_CTX+(s*2+qb)*4+2*half+e}, v{12+2*e}, v{12+2*e+1}')
    a.label(Ldone)

def D_dma(tile):
    t = S_T; sl = (tile % 3)*DSLOT
    g = []
    for half in range(2):
        first = [f's_lshl_b32 s{t}, s{S_W4K}, 1'] if half == 0 else []
        first += [f's_add_u32 m0, s{t}, {sl + 4096*half}', f's_add_u32 s{t+1}, s{S_DO}, {half*32*896 + tile*128}']
        for i in range(4):
            g.append((first if i == 0 else []) + [f'buffer_load_dwordx4 v{D_VO+i}, {sr(S_WO)}, s{t+1} offen offset:{1024*i} lds'])
    first = [f's_add_u32 m0, s{S_W4K}, {sl + 32768}', f's_add_u32 s{t+1}, s{S_D2}, {tile*128}']
    for i in range(4):
        g.append((first if i == 0 else []) + [f'buffer_load_dwordx4 v{D_VO+i}, {sr(S_W2)}, s{t+1} offen offset:{1024*i} lds'])
    return tag(g, f'T{tile}')

def phaseD_begin(a):
    t = S_T
    a('s_barrier')
    a('v_lshrrev_b32 v2, 3, v1'); a('v_mul_u32_u24 v3, 896, v2')
    a('v_bfe_u32 v2, v1, 4, 2')
    a('v_bfe_u32 v20, v1, 1, 2'); a('v_xor_b32 v2, v2, v20')
    a('v_and_b32 v20, 1, v1'); a('v_lshl_add_u32 v2, v2, 1, v20'); a('v_lshl_add_u32 v3, v2, 4, v3')
    for i in range(4): a(f'v_add_u32 v{D_VO+i}, {i*(8*896-1024)}, v3')
    a(f's_lshl_b32 s{t}, s{S_H}, 8'); a(f's_lshl_b32 s{t+1}, s{S_WAVE}, 6'); a(f's_add_u32 s{t}, s{t}, s{t+1}'); a(f's_mul_i32 s{S_DO}, s{t}, 896')
    a(f's_mul_i32 s{t}, s{S_H}, 112'); a(f's_lshl_b32 s{t+1}, s{S_WAVE}, 5'); a(f's_add_u32 s{t}, s{t}, s{t+1}'); a(f's_mul_i32 s{S_D2}, s{t}, 896')
    a(resolve_vm(flat(D_dma(0) + D_dma(1))))

def phaseD(a):
    t = S_T
    a('v_lshrrev_b32 v2, 2, v1'); a('v_bfe_u32 v3, v1, 3, 2')
    a('v_and_b32 v8, 3, v1'); a('v_lshlrev_b32 v8, 3, v8'); a('v_lshl_add_u32 v8, v2, 7, v8')
    for c in range(4):
        a(f'v_xor_b32 v2, {c}, v3'); a(f'v_lshl_add_u32 v{D_RB+c}, v2, 5, v8')
    a(f's_lshl_b32 s{t}, s{S_H}, 7'); a(f's_lshl_b32 s{t+1}, s{S_OWN}, 3'); a(f's_add_u32 s{t}, s{t}, s{t+1}')
    a(f's_lshl_b32 s{t+1}, s{S_WAVE}, 1'); a(f's_add_u32 s{t}, s{t}, s{t+1}'); a(f's_mul_i32 s{t}, s{t}, 14336')
    a(f's_add_u32 s{S_PRT}, s{t}, {hex(WS_PART)}')
    a(f'v_add_u32 v{D_ST1}, 14336, v{V_L16}')
    steps = []
    for tile in range(7):
        sl = tile % 3
        for c in range(4):
            for ks in range(12):
                buf = D_WF + (len(steps) % D_NB)*4
                rd = [f'ds_read_b64_tr_b16 {vr(buf+2*h,2)}, v{D_RA+c} offset:{4096*ks+2048*h}' for h in range(2)]
                pv = f'v_add_u32 v{D_RA+c}, {sl*DSLOT}, v{D_RB+c}' if ks == 0 else None
                mf = []
                for qb in range(2):
                    d = vr(D_ACC + (c*2+qb)*4)
                    b = vr(D_CTX + (ks*2+qb)*4) if ks < 8 else ar(A_H + ((ks-8)*2+qb)*4)
                    mf.append(f'{MF} {d}, {vr(buf)}, {b}, {d if ks else "0"}')
                steps.append(Step(mf, rd, prev=pv))
    nst = 48; LA = 6
    bp = {}
    for tile in range(6):
        bp[tile] = (tile+1)*nst - LA - 1
        steps[bp[tile]].pre += [f's_waitcnt vmcnt(@T{tile+1})', 's_barrier']
        for f in range(nst): steps[(tile+1)*nst+f].gate = bp[tile]
    sc = Sched(steps, LA=LA, wait_group=2)
    sc.place(D_dma(2), 0, 30)
    for tile in range(1, 5): sc.place(D_dma(tile+2), bp[tile], bp[tile]+26)
    tail_ops = None
    for tile in range(7):
        for cp in range(2):
            v = tile*2 + cp
            endstep = (tile*4 + cp*2 + 2)*12
            ops = []
            for qb in range(2):
                pk = D_PK + (cp*2+qb)*4
                for half in range(2):
                    src = D_ACC + ((cp*2+half)*2+qb)*4
                    for e in range(2): ops.append(f'v_cvt_pk_bf16_f32 v{pk+2*half+e}, v{src+2*e}, v{src+2*e+1}')
                st = [f's_add_u32 s{t+4}, s{S_PRT}, {v*1024}'] if qb == 0 else []
                ops.append(st + [f'buffer_store_dwordx4 {vr(pk)}, v{V_L16 if qb==0 else D_ST1}, {sr(S_WS)}, s{t+4} offen sc1'])
            if endstep + 3 < len(steps): sc.place(ops, endstep+3, endstep+12)
            else: tail_ops = ops
    print('phaseD overflow', sc.overflow(0, len(steps)-1))
    head = flat(D_dma(0) + D_dma(1))
    body = resolve_vm(head + ['MARK', 's_waitcnt vmcnt(@T0)', 's_barrier'] + sc.pre + sc.text(0, len(steps)-1))
    a(body[body.index('MARK')+1:])
    a('s_nop 7')
    a(flat(tail_ops))

def build_srds(a):
    P = PTR
    srd(a, S_WS, P+26, WS_BYTES); srd(a, S_CKV, P+2, 2048*1024*2); srd(a, S_XIN, P+0, 2048*448*2)
    a(f's_cmp_eq_u32 s{S_KVT}, 0')
    a(f's_cselect_b32 s{P+6}, s{P+6}, s{P+8}'); a(f's_cselect_b32 s{P+7}, s{P+7}, s{P+9}')
    srd(a, S_W, P+6, 1024*4096*2)
    srd(a, S_WQ, P+4, 448*4096*2); srd(a, S_W1, P+14, 448*1792*2); srd(a, S_WO, P+10, 4096*448*2)
    srd(a, S_W2, P+18, 1792*448*2); srd(a, S_B1, P+16, 1792*2); srd(a, S_DBG, P+24, 256)

def gen_mega(a, name='m_kernel', dbg=False):
    DBG[0] = dbg
    kstart(a, name)
    a.label('M_CODE_START')
    Lend = a.newlabel('MEND')
    a('s_cmp_ge_u32 s2, 256'); a(f's_cbranch_scc1 {Lend}')
    a(f's_load_dwordx16 s[{PTR}:{PTR+15}], s[0:1], 0')
    a(f's_load_dwordx8 s[{PTR+16}:{PTR+23}], s[0:1], 64')
    a(f's_load_dwordx4 s[{PTR+24}:{PTR+27}], s[0:1], 96')
    Lp = a.newlabel('PC')
    a(f's_getpc_b64 s[{S_PC}:{S_PC+1}]')
    a.label(Lp)
    a(f's_sub_u32 s{S_PC}, s{S_PC}, {Lp}-M_CODE_START'); a(f's_subb_u32 s{S_PC+1}, s{S_PC+1}, 0')
    a(flat(code_pf(0, 1, 200)))
    a('v_and_b32 v1, 63, v0')
    a('v_lshrrev_b32 v2, 6, v0')
    a(f'v_lshlrev_b32 v{V_L16}, 4, v1')
    a(f'v_readfirstlane_b32 s{S_WAVE}, v2')
    t = 4
    a(f's_and_b32 s{t}, s2, 7'); a(f's_lshr_b32 s{t+1}, s2, 3'); a(f's_and_b32 s{t+2}, s{t+1}, 1')
    a(f's_lshl_b32 s{t}, s{t}, 1'); a(f's_add_u32 s{S_H}, s{t}, s{t+2}')
    a(f's_lshr_b32 s{t+1}, s{t+1}, 1'); a(f's_and_b32 s{S_ROLE}, s{t+1}, 1'); a(f's_lshr_b32 s{S_I}, s{t+1}, 1')
    a(f's_lshl_b32 s{S_W4K}, s{S_WAVE}, 12'); a(f's_lshl_b32 s{S_W2K}, s{S_WAVE}, 11')
    a(f's_lshl_b32 s{S_PAIR}, s{S_H}, 3'); a(f's_add_u32 s{S_PAIR}, s{S_PAIR}, s{S_I}')
    a(f's_lshl_b32 s{S_FKV}, s{S_H}, 12'); a(f's_add_u32 s{S_FKV}, s{S_FKV}, {hex(WS_FLG)}')
    lo = sum(T0[i] << (8*i) for i in range(4)); hi = sum(T0[4+i] << (8*i) for i in range(4))
    a(f's_mov_b32 s{t}, {hex(lo)}'); a(f's_mov_b32 s{t+1}, {hex(hi)}')
    a(f's_lshl_b32 s{t+2}, s{S_I}, 3'); a(f's_lshr_b64 s[{t}:{t+1}], s[{t}:{t+1}], s{t+2}'); a(f's_and_b32 s{S_T0}, s{t}, 0xff')
    a(f's_sub_u32 s{S_EXT}, 15, s{S_I}')
    a(f's_cmp_eq_u32 s{S_ROLE}, 0'); a(f's_cselect_b32 s{S_OWN}, s{S_EXT}, s{S_I}')
    a(f's_mul_i32 s{S_HASX}, s{S_ROLE}, s{S_T0}')
    a(f's_mov_b32 s{S_QSC}, {f32(1.4426950408889634/16)}')
    a(f's_mov_b32 s{S_THR}, {f32(16.0)}')
    a('v_mov_b32 v3, 0x7fffff00'); a('v_cmp_eq_u32 vcc, 0, v0'); a(f'v_mov_b32 v{V_NONCE}, 0')
    a('v_lshlrev_b32 v2, 2, v0')
    a(f'v_cndmask_b32 v{V_SIG}, v3, 0, vcc')
    a('v_cmp_gt_u32 vcc, 16, v0'); a('s_nop 1')
    a(f'v_cndmask_b32 v{V_SIG16}, v3, v2, vcc')
    phaseA(a)
    phaseB_main(a, True, True)
    Lown = a.newlabel('OWN'); Lown2 = a.newlabel('OWN2')
    rl = {0: a.newlabel('RARE'), 1: a.newlabel('RARE'), 'stubs': []}
    def qsc(): a(f'v_mov_b32 v240, s{S_QSC}'); a(f'v_mov_b32 v241, s{S_QSC}')
    def own_params():
        a(f's_lshl_b32 s{S_RB}, s{S_OWN}, 2'); a(f's_add_u32 s{S_N}, s{S_RB}, 4'); a(f's_add_u32 s{S_RB}, s{S_RB}, s{S_WAVE}')
        a(f's_cmp_eq_u32 s{S_ROLE}, 0'); a(f's_cselect_b32 s{S_TS}, s{S_T0}, 0')
        a(f's_sub_u32 s{S_N}, s{S_N}, s{S_TS}')
    qsc()
    a(f's_cmp_eq_u32 s{S_HASX}, 0'); a(f's_cbranch_scc1 {Lown}')
    a('s_waitcnt vmcnt(0)')
    phaseB_begin(a, False)
    phaseB_epi(a, True, A_QO)
    stamp(a, 5)
    phaseB_main(a, False, True)
    a('s_waitcnt vmcnt(0)')
    spin_wait(a, S_FP)
    stamp(a, 8)
    a(f's_mov_b32 s{S_TS}, 0'); a(f's_mov_b32 s{S_N}, s{S_T0}')
    phaseC_begin(a)
    phaseB_epi(a, False, A_QX)
    phaseC(a, False, rl)
    stamp(a, 9)
    publish_stores(a)
    own_params()
    phaseC_begin(a)
    a(f's_branch {Lown2}')
    a.label(Lown)
    a('s_waitcnt vmcnt(0)')
    spin_wait(a, S_FP)
    stamp(a, 8)
    own_params()
    phaseC_begin(a)
    phaseB_epi(a, True, A_QO)
    a.label(Lown2)
    stamp(a, 10)
    t = S_T
    pfD = [[f's_lshr_b32 s{t+4}, s2, 4', f's_lshl_b32 s{t+4}, s{t+4}, 2', f's_add_u32 s{t+4}, s{t+4}, s{S_WAVE}',
            f's_lshl_b32 s{t+5}, s{S_H}, 6', f's_add_u32 s{t+5}, s{t+5}, s{t+4}', f's_mul_i32 s{t+5}, s{t+5}, {4*896}'],
           ['v_lshlrev_b32 v2, 7, v1', 'v_min_u32 v2, 3580, v2', f'buffer_load_dword v255, v2, {sr(S_WO)}, s{t+5} offen'],
           [f's_mul_i32 s{t+5}, s{S_H}, {112*896}', f's_mul_i32 s{t+4}, s{t+4}, {2*896}', f's_add_u32 s{t+5}, s{t+5}, s{t+4}',
            'v_min_u32 v2, 1788, v2', f'buffer_load_dword v255, v2, {sr(S_W2)}, s{t+5} offen'],
           ['v_lshlrev_b32 v2, 7, v0', 'v_add_u32 v2, M_D_START-M_CODE_START, v2', 'v_min_u32 v2, M_CODE_END-M_CODE_START-4, v2',
            f'global_load_dword v255, v2, s[{S_PC}:{S_PC+1}]']]
    def afw(a):
        publish_flag(a)
        a(flat(pfD))
    phaseC(a, True, rl, after_first_wait=afw)
    a.label('M_D_START')
    stamp(a, 11)
    phaseD_begin(a)
    finalize(a)
    stamp(a, 12)
    phaseD(a)
    if dbg:
        a('s_waitcnt vmcnt(0)')
        stamp(a, 13)
    a.label(Lend)
    a('s_endpgm')
    rare_subs(a, rl)
    a.label('M_CODE_END')
    kdesc(a, name, 512, 256, sgpr=102)
```

```python
import re

def is_valu(l): return l.startswith('v_')
def icost(l):
    if '\n' in l: return sum(icost(x) for x in l.split('\n'))
    if l.startswith('v_exp') or l.startswith('v_rcp'): return 8
    if l.startswith('buffer_') or l.startswith('global_'): return 12
    if l.startswith('ds_'): return 6
    return 4
def gtime(items):
    t = 0
    for ll, _ in items:
        for l in ll.split('\n'):
            if is_valu(l): t = max(t, 4)
            t += icost(l)
    return t

class Step:
    def __init__(s, mf, reads=(), gate=None, prev=None):
        s.mf = list(mf); s.reads = list(reads); s.gate = gate
        s.pre = []
        s.block = []
        s.prev = prev

class Sched:
    def __init__(s, steps, LA=6, wait_group=2, first_issued=None, wait_first=False):
        s.steps = steps; n = len(steps)
        if first_issued is None: first_issued = LA
        s.gidx = []; g = 0
        for st in steps:
            s.gidx.append(g); g += len(st.mf)
        s.gidx.append(g)
        s.gaps = [[] for _ in range(g)]
        s.pre = []
        issued = 0; last = [None]*n; done = 0; nxt = 0
        while nxt < min(first_issued, n):
            if steps[nxt].prev: s.pre.append(steps[nxt].prev)
            for r in steps[nxt].reads: s.pre.append(r); issued += 1
            last[nxt] = issued; nxt += 1
        def need_wait(p, dst):
            nonlocal done
            if not steps[p].reads: return
            assert last[p] is not None, p
            if last[p] > done:
                tgt = p
                while tgt + 1 < min(p + getattr(steps[p], 'wg', wait_group), n) and last[tgt+1] is not None: tgt += 1
                N = issued - last[tgt]
                assert N <= 15
                dst.append(f's_waitcnt lgkmcnt({N})')
                done = last[tgt]
        s.pre += steps[0].pre
        need_wait(0, s.pre)
        s.rstep = {}
        for p, st in enumerate(steps):
            g0 = s.gidx[p]; gl = s.gidx[p+1] - 1
            q = None
            if nxt < n and nxt <= p + LA and (steps[nxt].gate is None or steps[nxt].gate <= p) and issued + len(steps[nxt].reads) - done <= 15:
                q = nxt; nxt += 1
            rd = steps[q].reads if q is not None else []
            if q is not None and steps[q].prev:
                tg = g0 - 1
                s.gaps[tg].append((steps[q].prev, 'R'))
            early = rd[:-1]
            for i, r in enumerate(early):
                s.gaps[min(g0 + i, gl)].insert(0 if g0 + i < gl else len(s.gaps[gl]), (r, 'R')); issued += 1
            if p + 1 < n:
                w = list(steps[p+1].pre)
                if q == p + 1:
                    if rd: s.gaps[gl].append((rd[-1], 'R')); issued += 1
                    last[q] = issued
                    need_wait(p+1, w)
                    s.gaps[gl] += [(x, 'R') for x in w]
                    continue
                need_wait(p+1, w)
                gw = gl - 1 if (wait_first and gl > g0 and len(rd) <= 1) else gl
                s.gaps[gw] = [(x, 'R') for x in w] + s.gaps[gw]
            if rd:
                k = len([1 for x, _ in s.gaps[gl] if not is_valu(x)])
                s.gaps[gl].insert(k, (rd[-1], 'R')); issued += 1
            if q is not None: last[q] = issued
        s.nlist = 0
    def _try(s, g, ins, lid):
        items = s.gaps[g]
        if is_valu(ins): pos = len(items)
        else:
            lo = 0
            for i, (x, l) in enumerate(items):
                if l == lid or x.startswith('s_barrier'): lo = i + 1
            pos = lo
            while pos < len(items) and not is_valu(items[pos][0]): pos += 1
        new = items[:pos] + [(ins, lid)] + items[pos:]
        return new, max(0, gtime(new) - 12) - max(0, gtime(items) - 12)
    def put(s, step, gi, ins):
        g = s.gidx[step] + gi
        s.gaps[g], _ = s._try(g, ins, 'P')
    def free_for_vmem(s, g):
        it = s.gaps[g]
        if len(it) == 1 and it[0][0].startswith('ds_') and g + 1 < len(s.gaps):
            nx = s.gaps[g+1]
            if len(nx) == 1 and nx[0][0].startswith('ds_') and (g + 1) not in s.gidx:
                return True
        return False
    def place(s, items, s0, s1, window=4):
        flat_ = []
        for it in items: flat_ += list(it) if isinstance(it, (list, tuple)) else [it]
        s.nlist += 1; lid = s.nlist
        lo = s.gidx[s0]; hi = s.gidx[s1+1] - 1
        tot = sum(icost(x) for x in flat_); acc = 0; pos = lo
        for k, ins in enumerate(flat_):
            ideal = lo + (acc*(hi-lo+1))//tot; acc += icost(ins)
            remaining = len(flat_) - k - 1
            a = max(pos, ideal - 2); b = min(hi, max(a, ideal + window))
            best = None
            for g in range(a, b+1):
                if (ins.startswith('buffer_') or ins.startswith('global_')) and s.free_for_vmem(g):
                    best = (0, g, 'mv'); break
                new, c = s._try(g, ins, lid)
                if best is None or c < best[0]: best = (c, g, new)
                if c == 0: break
            c, g, new = best
            if new == 'mv':
                s.gaps[g+1] = s.gaps[g] + s.gaps[g+1]; s.gaps[g] = [(ins, lid)]
            else: s.gaps[g] = new
            pos = g
    def text(s, s0, s1):
        out = []
        for p in range(s0, s1+1):
            out += s.steps[p].block
            for i, m in enumerate(s.steps[p].mf):
                out.append(m); out += [y for x, _ in s.gaps[s.gidx[p] + i] for y in x.split('\n')]
        return out
    def overflow(s, s0, s1):
        return sum(max(0, gtime(g) - 12) for g in s.gaps[s.gidx[s0]:s.gidx[s1+1]])

def resolve_vm(lines):
    flat_ = []
    for l in lines: flat_ += [x.strip() for x in l.split('\n')]
    cnt = 0; last = {}; out = []
    for l in flat_:
        m = re.search(r'vmcnt\(@(\w+)\)', l)
        if m:
            n = cnt - last[m.group(1)]
            assert 0 <= n, n
            l = l.replace(m.group(0), f'vmcnt({min(n,63)})')
        if l.endswith(';!'):
            out.append(l[:-2].rstrip()); continue
        if l.startswith('buffer_') or l.startswith('global_'):
            cnt += 1
            m = re.search(r';@(\w+)', l)
            if m:
                last[m.group(1)] = cnt
                l = l[:m.start()].rstrip()
        out.append(l)
    return out

def tag(groups, t):
    return [[(x + f' ;@{t}') if x.startswith('buffer_') else x for x in g] for g in groups]
def flat(groups): return [x for g in groups for x in (g if isinstance(g, (list, tuple)) else [g])]
```

```python
import build, mega
base = dict(ablate='', a_pf=0, kv_sc1=True, nost=False, st_end=9, tlb=True, astamp=True, a_npro=0, bpi=None)
for name, opt in [('p0', dict(a_pf=0)), ('p2', dict(a_pf=2)), ('p0nt', dict(a_pf=0, tlb=False))]:
    o = dict(base); o.update(opt)
    build.build(f'ab_{name}.s', dbg=True, **o)
```

```python
def header(launches):
    L=[]
    for (k,g,b,l) in launches: L.append(f'; @launch kernel={k} grid=({g},1,1) block=({b},1,1) lds={l}')
    L += ['.amdgcn_target "amdgcn-amd-amdhsa--gfx950"', '.text']
    return L
def kstart(name): return [f'.globl {name}', '.p2align 8', f'.type {name},@function', f'{name}:']
def kdesc(name, vgpr, acc, sgpr=64):
    return ['.section .rodata,"a"', '.p2align 6', f'.amdhsa_kernel {name}', f'  .amdhsa_next_free_vgpr {vgpr}', f'  .amdhsa_accum_offset {acc}',
      f'  .amdhsa_next_free_sgpr {sgpr}', '  .amdhsa_group_segment_fixed_size 0', '  .amdhsa_kernarg_size 112', '  .amdhsa_user_sgpr_count 2',
      '  .amdhsa_user_sgpr_kernarg_segment_ptr 1', '  .amdhsa_system_sgpr_workgroup_id_x 1', '.end_amdhsa_kernel', '.text']
def gen(pre, nst, post, flags='', two=True):
    L = header([('a_kernel',256,256,0)] + ([('b_kernel',256,256,0)] if two else []))
    A=L.append
    L += kstart('a_kernel')
    A('s_cmp_ge_u32 s2, 256'); A('s_cbranch_scc1 L_enda')
    A('s_load_dwordx2 s[4:5], s[0:1], 104')
    A('s_load_dwordx2 s[6:7], s[0:1], 96')
    A('s_memrealtime s[40:41]')
    A('s_memtime s[44:45]')
    A('s_waitcnt lgkmcnt(0)')
    A('s_mov_b32 s8, s4'); A('s_mov_b32 s9, s5'); A('s_mov_b32 s10, 0x10000000'); A('s_mov_b32 s11, 0x00020000')
    A('s_mov_b32 s12, s6'); A('s_mov_b32 s13, s7'); A('s_mov_b32 s14, 256'); A('s_mov_b32 s15, 0x00020000')
    A('v_lshlrev_b32 v3, 4, v0')
    A('s_lshl_b32 s20, s2, 17')
    for r in range(4, 40): A(f'v_mov_b32 v{r}, 1.0')
    def loop(n, lab):
        if n==0: return
        A(f's_mov_b32 s25, 0'); A(f'{lab}:')
        for i in range(16): A('v_mfma_f32_32x32x16_bf16 v[16:31], v[4:7], v[8:11], v[16:31]')
        A('s_add_u32 s25, s25, 1'); A(f's_cmp_lt_u32 s25, {n}'); A(f's_cbranch_scc1 {lab}')
    loop(pre, 'L_pre')
    for i in range(nst):
        A(f's_add_u32 s21, s20, {i*4096}')
        A(f'buffer_store_dwordx4 v[32:35], v3, s[8:11], s21 offen {flags}')
    loop(post, 'L_post')
    A('s_waitcnt vmcnt(0)')
    A('s_memrealtime s[42:43]')
    A('s_memtime s[46:47]')
    A('s_waitcnt lgkmcnt(0)')
    A('s_cmp_lg_u32 s2, 17'); A('s_cbranch_scc1 L_enda')
    A('s_sub_u32 s42, s42, s40'); A('s_sub_u32 s46, s46, s44')
    A('v_mov_b32 v4, s42'); A('v_mov_b32 v5, s46'); A('v_mov_b32 v6, s40'); A('v_mov_b32 v7, 0')
    A('v_mov_b32 v8, 0')
    A('v_cmp_eq_u32 vcc, 0, v0'); A('s_and_saveexec_b64 s[50:51], vcc')
    A('buffer_store_dwordx4 v[4:7], v8, s[12:15], 0 offen')
    A('L_enda:'); A('s_endpgm')
    L += kdesc('a_kernel', 64, 64)
    if two:
        L += kstart('b_kernel')
        A('s_cmp_lg_u32 s2, 17'); A('s_cbranch_scc1 L_endb')
        A('s_load_dwordx2 s[6:7], s[0:1], 96')
        A('s_memrealtime s[40:41]')
        A('s_waitcnt lgkmcnt(0)')
        A('s_mov_b32 s12, s6'); A('s_mov_b32 s13, s7'); A('s_mov_b32 s14, 256'); A('s_mov_b32 s15, 0x00020000')
        A('v_mov_b32 v4, s40'); A('v_mov_b32 v8, 0')
        A('v_cmp_eq_u32 vcc, 0, v0'); A('s_and_saveexec_b64 s[50:51], vcc')
        A('buffer_store_dword v4, v8, s[12:15], 0 offen')
        A('L_endb:'); A('s_endpgm')
        L += kdesc('b_kernel', 64, 64)
    return '\n'.join(L)+'\n'
cfgs = {
 'a_nost': dict(pre=60, nst=0, post=0),
 'b_st_end': dict(pre=60, nst=32, post=0),
 'c_st_end_sc1': dict(pre=60, nst=32, post=0, flags='sc1'),
 'd_st_end_nt': dict(pre=60, nst=32, post=0, flags='nt'),
 'e_st_mid': dict(pre=40, nst=32, post=20),
 'f_st_mid_sc1': dict(pre=40, nst=32, post=20, flags='sc1'),
 'g_st_mid_nt': dict(pre=40, nst=32, post=20, flags='nt'),
 'h_st_mid_sc01': dict(pre=40, nst=32, post=20, flags='sc0 sc1'),
 'i_one': dict(pre=60, nst=0, post=0, two=False),
 'j_empty': dict(pre=0, nst=0, post=0, two=False),
}
if __name__=='__main__':
    for k,v in cfgs.items(): open(f'm2_{k}.s','w').write(gen(**v))
```

```python
from mb2 import header, kstart, kdesc
def gen(shape, iters, reads=0, nfr=8, waves=4, valu=0):
    L = header([('a_kernel',256,waves*64,65536)])
    A=L.append
    L += kstart('a_kernel')
    A('s_cmp_ge_u32 s2, 256'); A('s_cbranch_scc1 L_enda')
    A('s_load_dwordx2 s[4:5], s[0:1], 8')
    A('s_load_dwordx2 s[6:7], s[0:1], 96')
    A('s_waitcnt lgkmcnt(0)')
    A('s_mov_b32 s8, s4'); A('s_mov_b32 s9, s5'); A('s_mov_b32 s10, 0x400000'); A('s_mov_b32 s11, 0x00020000')
    A('s_mov_b32 s12, s6'); A('s_mov_b32 s13, s7'); A('s_mov_b32 s14, 256'); A('s_mov_b32 s15, 0x00020000')
    A('v_lshlrev_b32 v1, 4, v0')
    A('s_lshl_b32 s20, s2, 14')
    for i in range(16):
        A(f's_add_u32 s21, s20, {i*8192}')
        A(f'buffer_load_dwordx4 v[{64+4*i}:{67+4*i}], v1, s[8:11], s21 offen')
    A('s_waitcnt vmcnt(0)')
    for i in range(16):
        A(f'ds_write_b128 v1, v[{64+4*i}:{67+4*i}] offset:{(i*4096)%65536}')
    A('v_and_b32 v2, 63, v0'); A('v_lshlrev_b32 v2, 4, v2')
    for r in range(128): A(f'v_accvgpr_write_b32 a{r}, 0')
    for r in range(8): A(f'v_mov_b32 v{8+r}, v{64+r}')
    A('s_waitcnt lgkmcnt(0)'); A('s_barrier')
    A('s_memtime s[44:45]'); A('s_memrealtime s[40:41]')
    A('s_mov_b32 s25, 0')
    A('L_loop:')
    n = 32 if shape==32 else 64
    for i in range(n):
        a_ = 64 + 4*(i % nfr); b_ = 96 + 4*((i//2) % nfr)
        if shape==32:
            acc = (i%8)*16
            A(f'v_mfma_f32_32x32x16_bf16 a[{acc}:{acc+15}], v[{a_}:{a_+3}], v[{b_}:{b_+3}], a[{acc}:{acc+15}]')
            for k in range(reads):
                d = 64 + 4*((i+4) % nfr) if k==0 else 96+4*(((i//2)+4)%nfr)
                A(f'ds_read_b128 v[{d}:{d+3}], v2 offset:{((i*2+k)*1024)%65536}')
            for k in range(valu): A(f'v_fma_f32 v{8+k}, v{64+k}, v{70+k}, v{8+k}')
        else:
            acc = (i%32)*4
            A(f'v_mfma_f32_16x16x32_bf16 a[{acc}:{acc+3}], v[{a_}:{a_+3}], v[{b_}:{b_+3}], a[{acc}:{acc+3}]')
            if i%2==0:
                for k in range(reads):
                    d = 64 + 4*((i+4) % nfr) if k==0 else 96+4*(((i//2)+4)%nfr)
                    A(f'ds_read_b128 v[{d}:{d+3}], v2 offset:{((i+k)*1024)%65536}')
            else:
                for k in range(valu): A(f'v_fma_f32 v{8+k}, v{64+k}, v{70+k}, v{8+k}')
    A('s_add_u32 s25, s25, 1'); A(f's_cmp_lt_u32 s25, {iters}'); A('s_cbranch_scc1 L_loop')
    A('s_waitcnt lgkmcnt(0)')
    A('s_memtime s[46:47]'); A('s_memrealtime s[42:43]')
    A('s_waitcnt lgkmcnt(0)')
    A('s_cmp_lg_u32 s2, 17'); A('s_cbranch_scc1 L_enda')
    A('s_sub_u32 s42, s42, s40'); A('s_sub_u32 s46, s46, s44')
    A('v_mov_b32 v4, s42'); A('v_mov_b32 v5, s46'); A('v_mov_b32 v8, 0')
    A('v_cmp_eq_u32 vcc, 0, v0'); A('s_and_saveexec_b64 s[50:51], vcc')
    A('buffer_store_dwordx2 v[4:5], v8, s[12:15], 0 offen')
    A('L_enda:'); A('s_endpgm')
    L += kdesc('a_kernel', 256, 128)
    return '\n'.join(L)+'\n'
cfgs = {
 'a_32': dict(shape=32, iters=64),
 'b_16': dict(shape=16, iters=64),
 'c_32_r1': dict(shape=32, iters=64, reads=1),
 'd_16_r1': dict(shape=16, iters=64, reads=1),
 'e_32_long': dict(shape=32, iters=256),
 'f_16_long': dict(shape=16, iters=256),
 'g_32_r1v3': dict(shape=32, iters=64, reads=1, valu=3),
 'h_16_r1v3': dict(shape=16, iters=64, reads=1, valu=2),
 'i_32_short': dict(shape=32, iters=16),
 'j_16_short': dict(shape=16, iters=16),
}
if __name__=='__main__':
    for k,v in cfgs.items(): open(f'm4_{k}.s','w').write(gen(**v))
```

```python
import mb4, re
from mb2 import header, kstart, kdesc
def gen(fa, fb, facc, iters=64):
    s = mb4.gen(shape=16, iters=iters)
    out = []; i = 0
    for l in s.split('\n'):
        if l.startswith('v_mfma'):
            a_ = 64 + 4*fa(i); b_ = 96 + 4*fb(i); acc = 4*facc(i)
            l = f'v_mfma_f32_16x16x32_bf16 a[{acc}:{acc+3}], v[{a_}:{a_+3}], v[{b_}:{b_+3}], a[{acc}:{acc+3}]'
            i += 1
        out.append(l)
    return '\n'.join(out)
cf = {
 'a_bothfix': gen(lambda i: 0, lambda i: 0, lambda i: i % 32),
 'b_Afix8': gen(lambda i: (i//8) % 8, lambda i: i % 8, lambda i: i % 32),
 'c_Bfix8': gen(lambda i: i % 8, lambda i: (i//8) % 8, lambda i: i % 32),
 'd_bothvar': gen(lambda i: i % 8, lambda i: (i*3+1) % 8, lambda i: i % 32),
 'e_Afix2': gen(lambda i: (i//2) % 8, lambda i: i % 8, lambda i: i % 32),
 'f_Afix2_B2_acc32': gen(lambda i: (i//2) % 8, lambda i: i % 2, lambda i: i % 32),
 'g_Afix2_Bvar_acc2': gen(lambda i: (i//2) % 8, lambda i: i % 8, lambda i: i % 2),
 'h_Bfix8_acc1': gen(lambda i: i % 8, lambda i: i % 8, lambda i: (i//8) % 32),
}
for k, v in cf.items(): open(f'm8_{k}.s', 'w').write(v)
print(' '.join(f'm8_{k}.s' for k in cf))
```

```python
from asmlib import *
from layout import *
def gen_k3(a, name='k3_kernel', dbg=False):
    kstart(a, name)
    Lend = a.newlabel('K3END')
    a('s_cmp_ge_u32 s2, 448'); a(f's_cbranch_scc1 {Lend}')
    if dbg: a('s_memrealtime s[32:33]')
    a('s_load_dwordx2 s[4:5], s[0:1], 0')
    a('s_load_dwordx4 s[20:23], s[0:1], 80')
    a('s_load_dwordx2 s[6:7], s[0:1], 104')
    a('v_and_b32 v1, 63, v0'); a('v_lshrrev_b32 v2, 6, v0')
    a('s_lshl_b32 s3, s2, 2')
    a('v_readfirstlane_b32 s24, v2')
    a('v_lshlrev_b32 v3, 4, v1')
    a('s_add_u32 s24, s24, s3')
    a('s_mul_hi_u32 s25, s24, 0x1249249a')
    a('s_mul_i32 s26, s25, 14'); a('s_sub_u32 s26, s24, s26')
    a('s_lshl_b32 s27, s24, 10'); a(f's_add_u32 s27, s27, {hex(WS_PART)}')
    a('s_waitcnt lgkmcnt(0)')
    srd(a, 8, 6, WS_BYTES); srd(a, 12, 4, 2048*448*2); srd(a, 16, 20, 448*2); srd(a, 28, 22, 2048*448*2)
    for h in range(16):
        a(f'buffer_load_dwordx4 {vr(16+4*h)}, v3, s[8:11], s27 offen')
        if h < 15: a(f's_add_u32 s27, s27, {128*14*1024}')
    a('v_and_b32 v4, 15, v1'); a('v_mul_u32_u24 v4, 896, v4'); a('v_lshrrev_b32 v5, 4, v1'); a('v_lshlrev_b32 v5, 3, v5')
    a('v_add_u32 v4, v4, v5')
    a('s_mul_i32 s25, s25, 16*896'); a('s_lshl_b32 s26, s26, 6'); a('s_add_u32 s25, s25, s26')
    a('buffer_load_dwordx2 v[80:81], v4, s[12:15], s25 offen')
    a('buffer_load_dwordx2 v[82:83], v4, s[12:15], s25 offen offset:32')
    a('buffer_load_dwordx2 v[84:85], v5, s[16:19], s26 offen')
    a('buffer_load_dwordx2 v[86:87], v5, s[16:19], s26 offen offset:32')
    for h in range(18):
        a(f's_waitcnt vmcnt({max(19-h,0) if h < 16 else (2 if h == 16 else 0)})')
        src = 16 + 4*h
        for i in range(4):
            if h == 0:
                a(f'v_lshlrev_b32 v{8+2*i}, 16, v{src+i}'); a(f'v_and_b32 v{9+2*i}, 0xffff0000, v{src+i}')
            else:
                a(f'v_lshlrev_b32 v6, 16, v{src+i}'); a(f'v_and_b32 v7, 0xffff0000, v{src+i}')
                a(f'v_add_f32 v{8+2*i}, v{8+2*i}, v6'); a(f'v_add_f32 v{9+2*i}, v{9+2*i}, v7')
    for i in range(4): a(f'v_cvt_pk_bf16_f32 v{16+i}, v{8+2*i}, v{9+2*i}')
    a('buffer_store_dwordx2 v[16:17], v4, s[28:31], s25 offen')
    a('buffer_store_dwordx2 v[18:19], v4, s[28:31], s25 offen offset:32')
    if dbg:
        a('s_waitcnt vmcnt(0)')
        a('s_memrealtime s[34:35]'); a('s_waitcnt lgkmcnt(0)')
        a('v_mov_b32 v2, s32'); a('v_mov_b32 v3, s34'); a('s_lshl_b32 s36, s24, 3'); a(f's_add_u32 s36, s36, {hex(WS_DBG + 0x20000)}')
        a('v_mov_b32 v4, 0'); a('s_mov_b64 exec, 1')
        a('buffer_store_dwordx2 v[2:3], v4, s[8:11], s36 offen')
    a.label(Lend)
    a('s_endpgm')
    kdesc(a, name, 88, 88, sgpr=40)
```

```python
from asmlib import *
from layout import *
from sched import *
import struct

def f32(x): return hex(struct.unpack('<I', struct.pack('<f', x))[0])
MF = 'v_mfma_f32_16x16x32_bf16'
DBG = [False]
OPT = dict(kv_sc1=True, a_pf=0, tlb=False)

S_WS, S_CKV, S_W, S_WQ, S_W1, S_WO, S_W2, S_B1, S_XIN, S_DBG = 4, 8, 12, 16, 20, 24, 28, 32, 36, 40
S_WAVE, S_H, S_ROLE, S_I, S_OWN, S_EXT, S_T0, S_HASX, S_W4K, S_W2K, S_PAIR, S_QSC, S_THR = range(44, 57)
S_KVT, S_KT = S_ROLE, S_I
S_SOX, S_SOW, S_DX, S_RX, S_CNT = 57, 58, 59, 60, 61
S_XO, S_KVO = 71, 62
S_DL = 86
S_KO, S_VO, S_PB, S_PO, S_RB, S_TS, S_N = 57, 58, 59, 60, 62, 63, 64
S_DO, S_D2, S_DS, S_PRT = 57, 58, 59, 60
S_FKV = 65
S_FP = 70
S_PUBQ = 68
S_PC = 66
S_T = 72
S_RET = 84
S_MK = 86
S_ST = 94
PTR = 72
V_L16, V_SIG, V_NONCE, V_POLL = 4, 5, 6, 7
V_SIG16, V_DUM = 30, 31
V_H = 128
A_QX, A_QO, A_H = 128, 192, 128
CNT_KV, CNT_XN = 128, 192

def stamp(a, idx, dyn=None):
    if not DBG[0]: return
    L = a.newlabel('ST')
    a(f's_cmp_lg_u32 s{S_WAVE}, 0'); a(f's_cbranch_scc1 {L}')
    a(f's_memtime s[{S_ST}:{S_ST+1}]'); a(f's_memrealtime s[{S_ST+2}:{S_ST+3}]')
    a('s_waitcnt lgkmcnt(0)')
    a(f'v_mov_b32 v2, s{S_ST}'); a(f'v_mov_b32 v3, s{S_ST+2}')
    a(f's_lshl_b32 s{S_ST}, s2, 8'); a(f's_add_u32 s{S_ST}, s{S_ST}, {hex(WS_DBG + idx*8)}')
    if dyn is not None:
        a(f's_lshl_b32 s{S_ST+1}, s{dyn}, 3'); a(f's_add_u32 s{S_ST}, s{S_ST}, s{S_ST+1}')
    a(f'buffer_store_dwordx2 v[2:3], v{V_SIG}, {sr(S_WS)}, s{S_ST} offen')
    a('s_nop 1')
    a.label(L)

def code_pf(off, n, vt):
    g = []
    for i in range(n):
        g.append([f'v_lshlrev_b32 v{vt}, 7, v0', f'v_add_u32 v{vt}, {off + i*32768}, v{vt}',
                  f'v_min_u32 v{vt}, M_CODE_END-M_CODE_START-4, v{vt}',
                  f'global_load_dword v31, v{vt}, s[{S_PC}:{S_PC+1}]'])
    return g

def spin_wait(a, soff, mask=0xffff):
    t = S_T
    Lok = a.newlabel('WOK'); Ls = a.newlabel('WSP')
    a(f's_cmp_lg_u32 s{S_WAVE}, 0'); a(f's_cbranch_scc1 {Lok}')
    a(f's_mov_b32 s{t+1}, 0')
    a.label(Ls)
    a(f'v_cmp_eq_u32 vcc, v{V_POLL}, v{V_NONCE}')
    a(f's_and_b32 s{t}, vcc_lo, {hex(mask)}')
    a(f's_cmp_eq_u32 s{t}, {hex(mask)}'); a(f's_cbranch_scc1 {Lok}')
    a('s_sleep 8')
    a(poll_issue(soff))
    a('s_waitcnt vmcnt(0)')
    a(f's_add_u32 s{t+1}, s{t+1}, 1')
    a(f's_cmp_lt_u32 s{t+1}, 20000'); a(f's_cbranch_scc1 {Ls}')
    a.label(Lok)

def poll_issue(soff):
    return [f'buffer_load_dword v{V_POLL}, v{V_SIG16}, {sr(S_WS)}, s{soff} offen sc1']

def xn_flag_addr(dst, qb):
    return [f's_lshl_b32 s{dst}, s{qb}, 12', f's_add_u32 s{dst}, s{dst}, {hex(WS_FLG + 0x10000)}']

def wave_reduce_sum(a, v, sd):
    for mod in ['quad_perm:[1,0,3,2]', 'quad_perm:[2,3,0,1]', 'row_half_mirror', 'row_mirror']:
        a('s_nop 1')
        a(f'v_add_f32 v{v}, v{v}, v{v} {mod} row_mask:0xf bank_mask:0xf')
    a('s_nop 1')
    for i in range(4): a(f'v_readlane_b32 s{sd+i}, v{v}, {16*i}')
    a('s_nop 1')
    a(f'v_mov_b32 v{v}, s{sd}')
    for i in range(1, 4): a(f'v_add_f32 v{v}, s{sd+i}, v{v}')

def bf16_round(a, d, s):
    a(f'v_cvt_pk_bf16_f32 v{d}, v{s}, v{s}')
    a(f'v_and_b32 v{d}, 0xffff0000, v{d}')

def ln_row(a, xr, f, t, sd, out):
    for i in range(4):
        a(f'v_lshlrev_b32 v{f+2*i}, 16, v{xr+i}')
        a(f'v_and_b32 v{f+2*i+1}, 0xffff0000, v{xr+i}')
    a(f'v_add_f32 v{t}, v{f}, v{f+1}')
    for i in range(2, 8): a(f'v_add_f32 v{t}, v{t}, v{f+i}')
    wave_reduce_sum(a, t, sd)
    a(f'v_mul_f32 v{t}, 0x3b124925, v{t}')
    a(f'v_mov_b32 v{t+1}, 0')
    a(f's_mov_b32 exec_hi, 0x00ffffff')
    for i in range(8):
        a(f'v_sub_f32 v{t+2}, v{f+i}, v{t}')
        a(f'v_fmac_f32 v{t+1}, v{t+2}, v{t+2}')
    a(f's_mov_b32 exec_hi, -1')
    wave_reduce_sum(a, t+1, sd)
    a(f'v_mul_f32 v{t+1}, 0x3b124925, v{t+1}')
    bf16_round(a, t, t)
    bf16_round(a, t+1, t+1)
    a(f'v_add_f32 v{t+1}, 0x3727c5ac, v{t+1}')
    bf16_round(a, t+1, t+1)
    a(f'v_sqrt_f32 v{t+1}, v{t+1}')
    a('s_nop 0')
    bf16_round(a, t+1, t+1)
    a(f'v_rcp_f32 v{t+2}, v{t+1}')
    a('s_nop 0')
    a(f'v_fma_f32 v{t+3}, -v{t+1}, v{t+2}, 1.0')
    a(f'v_fmac_f32 v{t+2}, v{t+3}, v{t+2}')
    for i in range(8): a(f'v_sub_f32 v{f+i}, v{f+i}, v{t}')
    for i in range(4): a(f'v_cvt_pk_bf16_f32 v{out+i}, v{f+2*i}, v{f+2*i+1}')
    for i in range(4):
        a(f'v_lshlrev_b32 v{f+2*i}, 16, v{out+i}')
        a(f'v_and_b32 v{f+2*i+1}, 0xffff0000, v{out+i}')
    for i in range(8): a(f'v_mul_f32 v{f+i}, v{f+i}, v{t+2}')
    for i in range(4): a(f'v_cvt_pk_bf16_f32 v{out+i}, v{f+2*i}, v{f+2*i+1}')

WSLOT, NWS = 16384, 4
XBASE, XSLOT, NXS = 65536, 32768, 3
A_VX, A_VW, A_XAB, A_XA, A_WA = 8, 12, 16, 18, 20
AF = [dict(X=32, W=64), dict(X=96, W=128)]

def A_dma_w(wslot):
    g = [[f's_add_u32 m0, s{S_W4K}, {wslot*WSLOT}', f's_add_u32 s{S_SOW}, s{S_SOW}, {32*8192}',
          f'buffer_load_dwordx4 v{A_VW}, {sr(S_W)}, s{S_SOW} offen lds']]
    for i in range(1, 4):
        g.append([f'buffer_load_dwordx4 v{A_VW+i}, {sr(S_W)}, s{S_SOW} offen offset:{1024*i} lds'])
    return g

def A_dma_x(half):
    if half == 0:
        so = S_SOX
        g = [[f's_mov_b32 m0, s{S_DX}', f's_add_u32 s{S_SOX}, s{S_SOX}, 128', f'buffer_load_dwordx4 v{A_VX}, {sr(S_CKV)}, s{so} offen lds']]
    else:
        so = S_T + 1
        g = [[f's_add_u32 m0, s{S_DX}, 16384', f's_add_u32 s{so}, s{S_SOX}, {128*2048}',
              f'buffer_load_dwordx4 v{A_VX}, {sr(S_CKV)}, s{so} offen lds']]
    for i in range(1, 4):
        g.append([f'buffer_load_dwordx4 v{A_VX+i}, {sr(S_CKV)}, s{so} offen offset:{1024*i} lds'])
    if half == 1:
        g[-1] += [f's_add_u32 s{S_DX}, s{S_DX}, {XSLOT}',
                  f's_cmp_ge_u32 s{S_DX}, {XBASE+NXS*XSLOT}\ns_cselect_b32 s{S_T}, {NXS*XSLOT}, 0',
                  f's_sub_u32 s{S_DX}, s{S_DX}, s{S_T}']
    return g

def A_reads(u):
    f = AF[u & 1]; ks = u & 1; ws = u % NWS
    def wr(db): return [f'ds_read_b64_tr_b16 {vr(f["W"]+4*db+2*h,2)}, v{A_WA+db} offset:{ws*WSLOT+2048*h}' for h in range(2)]
    r = wr(0)
    for kb in range(8): r.append(f'ds_read_b128 {vr(f["X"]+4*kb)}, v{A_XA+ks} offset:{2048*kb}')
    for db in range(1, 8): r += wr(db)
    return r

def A_order(vtype):
    if vtype: return [(db, 2*tt+h) for db in range(8) for tt in range(4) for h in range(2)]
    return [(2*s_+h, kb) for s_ in range(4) for kb in range(8) for h in range(2)]

def A_kstep(u, vtype, dmaw, dmax, vm, last=False, extras=(), head=()):
    out = list(head)
    if not last: out += [f's_waitcnt vmcnt({vm}) lgkmcnt(0)', 's_barrier']
    else: out += ['s_waitcnt lgkmcnt(0)']
    f = AF[u & 1]
    steps = []
    for i, (db, kb) in enumerate(A_order(vtype)):
        acc = ar(i*4, 4); w = vr(f['W']+4*db); x = vr(f['X']+4*kb)
        steps.append(Step([f'{MF} {acc}, {x}, {w}, {acc}' if vtype else f'{MF} {acc}, {w}, {x}, {acc}']))
    sc = Sched(steps, LA=0, first_issued=0)
    d = []
    if dmaw: d += A_dma_w(u % NWS)
    if dmax: d += A_dma_x(0 if (u & 1) else 1)
    if d: sc.place(tag(d, f'A{u}'), 2, 58)
    if not last:
        r = []
        if (u & 1) == 1:
            r += [f's_add_u32 s{S_RX}, s{S_RX}, {XSLOT}', f's_cmp_ge_u32 s{S_RX}, {NXS*XSLOT}\ns_cselect_b32 s{S_RX}, 0, s{S_RX}']
            r += [f'v_add_u32 v{A_XA+i}, s{S_RX}, v{A_XAB+i}' for i in range(2)]
        sc.place(r + A_reads(u+1), 0, 44)
    for (items, lo, hi) in extras: sc.place(items, lo, hi)
    return out + sc.text(0, 63)

PEND = 32

def phaseA(a):
    t = 4
    S_ROW0, S_ROWO = 68, 69
    a(f's_lshl_b32 s{t}, s{S_KT}, 3'); a(f's_add_u32 s{t}, s{t}, s{S_WAVE}'); a(f's_lshl_b32 s{t}, s{t}, 16')
    a('v_lshrrev_b32 v2, 3, v1'); a('v_lshlrev_b32 v2, 11, v2')
    a('v_and_b32 v3, 7, v1'); a('v_lshrrev_b32 v200, 4, v1'); a('v_xor_b32 v3, v3, v200')
    a(f'v_add_u32 v2, s{t}, v2')
    for i in range(4):
        a(f'v_xor_b32 v201, {4*(i&1)}, v3'); a('v_lshl_add_u32 v201, v201, 4, v2')
        a(f'v_add_u32 v{A_VX+i}, {i*(8*2048-1024)}, v201')
    w_voffsets(a, A_VW, t)
    a(f's_mov_b32 s{S_SOX}, -128'); a(f's_mov_b32 s{S_SOW}, {-32*8192}')
    a(f's_add_u32 s{S_DX}, s{S_W4K}, {XBASE}')
    a(f's_lshl_b32 s{t}, s2, 3'); a(f's_lshl_b32 s{t+1}, s{S_WAVE}, 1'); a(f's_add_u32 s{S_ROW0}, s{t}, s{t+1}')
    a(f's_mul_i32 s{S_ROWO}, s{S_ROW0}, 896')
    a('v_cmp_gt_u32 vcc, 56, v1')
    a('s_waitcnt lgkmcnt(0)')
    build_srds(a)
    t = S_T
    Ln = a.newlabel('NON')
    a('s_cmp_lg_u32 s2, 0'); a(f's_cbranch_scc1 {Ln}')
    a(f's_memrealtime s[{t}:{t+1}]'); a('s_waitcnt lgkmcnt(0)')
    a(f's_or_b32 s{t+2}, s{t}, 1'); a(f'v_mov_b32 v2, s{t+2}')
    a(f'buffer_store_dword v2, v{V_SIG}, {sr(S_DBG)}, 0 offen sc1')
    a.label(Ln)
    stamp(a, 0)
    a('v_mov_b32 v3, 0x7fffffff')
    a(f'v_cndmask_b32 v2, v3, v{V_L16}, vcc')
    a(f'buffer_load_dwordx4 v[160:163], v2, {sr(S_XIN)}, s{S_ROWO} offen')
    a(f'buffer_load_dwordx4 v[164:167], v2, {sr(S_XIN)}, s{S_ROWO} offen offset:896')
    a(flat(A_dma_w(0) + A_dma_x(0) + A_dma_x(1) + A_dma_w(1)))
    if OPT.get('tlb', True):
        a('v_lshlrev_b32 v2, 16, v1')
        Ls = [a.newlabel('TW') for _ in range(4)]
        for w, sd in enumerate((S_WQ, S_W1, S_WO, S_W2)):
            a(f's_cmp_lg_u32 s{S_WAVE}, {w}'); a(f's_cbranch_scc1 {Ls[w]}')
            a(f'buffer_load_dword v31, v2, {sr(sd)}, 0 offen')
            a.label(Ls[w])
    a(f's_and_b32 s{t}, s{S_WAVE}, 1'); a(f's_lshr_b32 s{t+1}, s{S_WAVE}, 1')
    a(f's_lshl_b32 s{t+2}, s{t}, 14'); a(f's_add_u32 s{t+2}, s{t+2}, {XBASE}')
    a('v_and_b32 v201, 15, v1'); a('v_lshrrev_b32 v200, 4, v1'); a('v_lshrrev_b32 v2, 1, v201')
    for ks in range(2):
        a(f'v_add_u32 v3, {4*ks}, v200'); a('v_xor_b32 v3, v3, v2'); a('v_lshlrev_b32 v3, 4, v3')
        a('v_lshl_add_u32 v3, v201, 7, v3')
        a(f'v_add_u32 v{A_XAB+ks}, s{t+2}, v3'); a(f'v_mov_b32 v{A_XA+ks}, v{A_XAB+ks}')
    a('v_bfe_u32 v3, v1, 2, 2')
    a('v_lshlrev_b32 v202, 12, v200'); a('v_lshl_add_u32 v202, v3, 9, v202')
    a('v_and_b32 v2, 3, v1'); a('v_lshl_add_u32 v202, v2, 3, v202')
    a(f's_lshl_b32 s{t+2}, s{t+1}, 8'); a(f'v_add_u32 v202, s{t+2}, v202')
    a('v_and_b32 v2, 1, v200'); a('v_lshl_or_b32 v3, v2, 2, v3')
    for db in range(8):
        a(f'v_xor_b32 v2, {db}, v3'); a(f'v_lshl_add_u32 v{A_WA+db}, v2, 5, v202')
    a(f's_mov_b32 s{S_RX}, 0')
    B_setup(a)
    for r in range(256): a(f'v_accvgpr_write_b32 a{r}, 0')
    a(flat(A_dma_x(0) + A_dma_w(2) + A_dma_x(1)))
    a(f's_waitcnt vmcnt({29 if OPT.get("tlb", True) else 28})')
    ln_row(a, 160, 168, 176, S_MK, 184)
    ln_row(a, 164, 168, 176, S_MK, 188)
    a(f's_lshr_b32 s{t}, s{S_ROW0}, 4'); a(f's_mul_i32 s{t}, s{t}, 14*1024'); a(f's_and_b32 s{t+1}, s{S_ROW0}, 15'); a(f's_lshl_b32 s{t+1}, s{t+1}, 4')
    a(f's_add_u32 s{t}, s{t}, s{t+1}'); a(f's_add_u32 s{t}, s{t}, {hex(WS_XN)}')
    a('v_lshlrev_b32 v2, 8, v1')
    a('s_mov_b32 exec_hi, 0x00ffffff')
    a(f'buffer_store_dwordx4 v[184:187], v2, {sr(S_WS)}, s{t} offen sc1')
    a(f'buffer_store_dwordx4 v[188:191], v2, {sr(S_WS)}, s{t} offen offset:16 sc1')
    a('s_mov_b32 exec_hi, -1')
    a(f's_waitcnt vmcnt({19 if OPT.get("tlb", True) else 18})')
    a('s_barrier')
    a(A_reads(0))
    a(flat(A_dma_w(3) + A_dma_x(0)))
    if OPT.get('pfb_pro'): a(flat(pfB() + cpfB()))
    stamp(a, 1)
    Lv = a.newlabel('AV'); Lj = a.newlabel('AJ')
    a(f's_cmp_eq_u32 s{S_KVT}, 1'); a(f's_cbranch_scc1 {Lv}')
    pf = pfB()
    for vtype in range(2):
        if vtype: a.label(Lv)
        a(f's_mov_b32 s{S_CNT}, 0')
        Ll = a.newlabel('AL'); a.label(Ll)
        for u in range(4): a(resolve_vm(A_kstep(u, vtype, True, True, 16)))
        Lm1 = a.newlabel('AM'); Lm2 = a.newlabel('AM'); Lm3 = a.newlabel('AM')
        if OPT.get('astamp'): stamp(a, 16, S_CNT)
        a(f's_add_u32 s{S_CNT}, s{S_CNT}, 1')
        a(f's_cmp_lg_u32 s{S_WAVE}, 0'); a(f's_cbranch_scc1 {Lm2}')
        a(f's_cmp_lg_u32 s{S_CNT}, 1'); a(f's_cbranch_scc1 {Lm1}')
        a(f'v_mov_b32 v2, 0')
        a(f'buffer_load_dword v{V_NONCE}, v2, {sr(S_DBG)}, 0 offen' + (' sc1' if OPT.get('nonce_sc1') else ''))
        a.label(Lm1)
        a(f's_cmp_lg_u32 s{S_CNT}, 3'); a(f's_cbranch_scc1 {Lm2}')
        a(f's_mov_b32 s{t+5}, 0')
        a.label(Lm3)
        a(f'v_readfirstlane_b32 s{t+4}, v{V_NONCE}')
        Lm4 = a.newlabel('AM')
        a(f's_cmp_lg_u32 s{t+4}, 0'); a(f's_cbranch_scc1 {Lm4}')
        a('s_sleep 8'); a(f'v_mov_b32 v2, 0')
        a(f'buffer_load_dword v{V_NONCE}, v2, {sr(S_DBG)}, 0 offen sc1')
        a('s_waitcnt vmcnt(0)')
        a(f's_add_u32 s{t+5}, s{t+5}, 1'); a(f's_cmp_lt_u32 s{t+5}, 20000'); a(f's_cbranch_scc1 {Lm3}')
        a.label(Lm4)
        a(f's_lshr_b32 s{t+4}, s2, 4'); a(xn_flag_addr(t+4, t+4))
        a(f's_and_b32 s{t+5}, s2, 15'); a(f's_lshl_b32 s{t+5}, s{t+5}, 2'); a(f's_add_u32 s{t+4}, s{t+4}, s{t+5}')
        a(f'buffer_store_dword v{V_NONCE}, v{V_SIG}, {sr(S_WS)}, s{t+4} offen sc1')
        a.label(Lm2)
        a(f's_cmp_lt_u32 s{S_CNT}, 6'); a(f's_cbranch_scc1 {Ll}')
        cpf = cpfB()
        kvs = [f's_lshl_b32 s{S_KVO}, s{S_H}, 21', f's_lshl_b32 s{t+4}, s{S_KT}, 18', f's_add_u32 s{S_KVO}, s{S_KVO}, s{t+4}',
               f's_and_b32 s{t+4}, s{S_WAVE}, 1', f's_lshl_b32 s{t+4}, s{t+4}, 17', f's_add_u32 s{S_KVO}, s{S_KVO}, s{t+4}',
               f's_lshr_b32 s{t+4}, s{S_WAVE}, 1', f's_lshl_b32 s{t+4}, s{t+4}, {13 if vtype else 12}', f's_add_u32 s{S_KVO}, s{S_KVO}, s{t+4}']
        if vtype: kvs.append(f's_add_u32 s{S_KVO}, s{S_KVO}, 16384')
        w_ = [32768, 65536, 1024, 2048] if vtype else [8192, 32768, 65536, 1024]
        for b in range(4): kvs.append(f's_mov_b32 s{S_DL+b}, {w_[b] - sum(w_[:b])}')
        xo = [f's_lshl_b32 s{t+4}, s{S_OWN}, 2', f's_add_u32 s{t+4}, s{t+4}, s{S_WAVE}', f's_mul_i32 s{t+4}, s{t+4}, {2*14336}',
              f's_add_u32 s{S_XO}, s{t+4}, {hex(WS_XN)}']
        bias = [f's_mul_i32 s{t+4}, s{S_H}, 224', 'v_lshrrev_b32 v200, 4, v1', 'v_lshlrev_b32 v200, 3, v200']
        bias += [f'buffer_load_dwordx2 {vr(B_TMP+2*fb,2)}, v200, {sr(S_B1)}, s{t+4} offen offset:{32*fb} ;@BIAS' for fb in range(7)]
        sw = Asm(); sw.nlab = a.nlab; spin_wait(sw, S_FP); a.nlab = sw.nlab
        chk = ['s_waitcnt vmcnt(@POLL)'] + [x.strip() + (' ;!' if x.strip().startswith('buffer_') else '') for x in sw.L]
        NW = OPT.get('nweave', 8); BH = OPT.get('bh', 0)
        ex = {25: [(kvs + xo, 46, 62)],
              26: [(xn_flag_addr(S_FP, S_OWN) + [poll_issue(S_FP)[0] + ' ;@POLL'], 5, 20)],
              28: [(pf + cpf, 0, 24)] + ([(B_dma_w(0, True), 32, 62)] if BH == 0 else []),
              29: [(B_dma_x(0) + [bias] + B_dma_w(1, True) + B_dma_x(1), 0, 60)] if BH == 0 else [],
              30: [(B_dma_w(2, True) + B_dma_x(2), 0, 50)] if BH == 0 else [(B_dma(0, True) + [bias] + B_dma(1, True) + B_dma(2, True), BH, 63)],
              31: [([x for k in range(NW) for x in pack_store(k, 208 + 8*(k & 1), True)], 10, 63)]}
        tail = []
        for k in (21, 22, 23): tail += [f'buffer_dummy ;@A{k}']*8
        tail.append('MARK')
        for u in range(24, 32):
            tail += A_kstep(u, vtype, u <= 27, u <= 26, f'@A{min(u-3, 27)}', last=(u == 31), extras=ex.get(u, ()), head=(chk if u == 29 else ()))
        tail.append('MARK2')
        hist = tail
        r = resolve_vm(tail)
        for x in r[r.index('MARK')+1:r.index('MARK2')]:
            if x.endswith(':'): a.raw(x)
            else: a(x)
        if vtype == 0: a(f's_branch {Lj}')
    a.label(Lj)
    stamp(a, 2)
    return hist

def pfB():
    t = S_T
    return [[f's_lshr_b32 s{t+4}, s2, 4', f's_mul_i32 s{t+4}, s{t+4}, 28', f's_mul_i32 s{t+5}, s{S_WAVE}, 7', f's_add_u32 s{t+4}, s{t+4}, s{t+5}'],
          ['v_lshrrev_b32 v200, 2, v1', 'v_min_u32 v200, 6, v200', f'v_add_u32 v200, s{t+4}, v200', 'v_and_b32 v201, 3, v1'],
          ['v_lshlrev_b32 v201, 7, v201', 'v_lshl_add_u32 v202, v200, 13, v201', f's_lshl_b32 s{t+4}, s{S_H}, 9',
           f'buffer_load_dword v31, v202, {sr(S_WQ)}, s{t+4} offen'],
          ['v_mul_u32_u24 v202, 3584, v200', 'v_add_u32 v202, v202, v201', f's_mul_i32 s{t+4}, s{S_H}, 224', f's_and_b32 s{t+4}, s{t+4}, 0xffffff80',
           f'buffer_load_dword v31, v202, {sr(S_W1)}, s{t+4} offen']]
def cpfB():
    t = S_T
    return [[f's_lshr_b32 s{t+4}, s2, 3', f's_mul_i32 s{t+4}, s{t+4}, 2560', f's_add_u32 s{t+4}, s{t+4}, 32768',
             'v_min_u32 v200, 19, v1', 'v_lshlrev_b32 v200, 7, v200', f'v_add_u32 v200, s{t+4}, v200',
             'v_min_u32 v200, M_CODE_END-M_CODE_START-4, v200', f'global_load_dword v31, v200, s[{S_PC}:{S_PC+1}]']]

def pfD_big(a):
    t = S_T
    L = a.newlabel('PD'); L7 = a.newlabel('PD'); La = a.newlabel('PD')
    a(f's_cmp_lt_u32 s{S_I}, 6'); a(f's_cbranch_scc1 {L}')
    a('v_lshlrev_b32 v2, 7, v0')
    a(f's_mul_i32 s{t+1}, s{S_H}, {256*896}'); a(f's_mul_i32 s{t+2}, s{S_H}, {112*896}')
    def wo(u): a(f's_add_u32 s{t}, s{t+1}, {u*32768}'); a(f'buffer_load_dword v31, v2, {sr(S_WO)}, s{t} offen')
    def w2(off): a(f's_add_u32 s{t}, s{t+2}, {off}'); a(f'buffer_load_dword v31, v2, {sr(S_W2)}, s{t} offen')
    n6 = OPT.get('pf_n6', 6)
    a(f's_cmp_eq_u32 s{S_ROLE}, 0'); a(f's_cbranch_scc1 {La}')
    a(f's_cmp_eq_u32 s{S_I}, 7'); a(f's_cbranch_scc1 {L7}')
    for u in range(n6): wo(u)
    a(f's_branch {L}')
    a.label(L7)
    for u in range(n6, 7): wo(u)
    for k in range(3): w2(k*32768)
    a(f's_branch {L}')
    a.label(La)
    a(f's_cmp_eq_u32 s{S_I}, 6'); a(f's_cbranch_scc1 {L}')
    a('v_min_u32 v3, 16256, v2')
    a(f's_add_u32 s{t}, s{t+2}, {3*32768}'); a(f'buffer_load_dword v31, v3, {sr(S_W2)}, s{t} offen')
    a('v_add_u32 v2, M_D_START-M_CODE_START-10240, v2'); a('v_min_u32 v2, M_CODE_END-M_CODE_START-4, v2')
    a(f'global_load_dword v31, v2, s[{S_PC}:{S_PC+1}]')
    a.label(L)

def pfD(v, code=True):
    t = S_T
    g = [[f's_lshr_b32 s{t+9}, s2, 4', f's_lshl_b32 s{t+9}, s{t+9}, 2', f's_add_u32 s{t+9}, s{t+9}, s{S_WAVE}',
          f's_lshl_b32 s{t+10}, s{S_H}, 6', f's_add_u32 s{t+10}, s{t+10}, s{t+9}', f's_mul_i32 s{t+10}, s{t+10}, {4*896}'],
         [f'v_lshlrev_b32 v{v}, 7, v1', f'v_min_u32 v{v}, 3580, v{v}', f'buffer_load_dword v31, v{v}, {sr(S_WO)}, s{t+10} offen'],
         [f's_mul_i32 s{t+10}, s{S_H}, {112*896}', f's_mul_i32 s{t+11}, s{t+9}, {2*896}', f's_add_u32 s{t+10}, s{t+10}, s{t+11}',
          f'v_min_u32 v{v}, 1788, v{v}', f'buffer_load_dword v31, v{v}, {sr(S_W2)}, s{t+10} offen']]
    if code:
        g += [[f's_lshl_b32 s{t+9}, s{t+9}, 9',
          f'v_min_u32 v{v}, 384, v{v}', f'v_add_u32 v{v}, s{t+9}, v{v}', f'v_add_u32 v{v}, M_D_START-M_CODE_START-10240, v{v}',
          f'v_min_u32 v{v}, M_CODE_END-M_CODE_START-4, v{v}', f'global_load_dword v31, v{v}, s[{S_PC}:{S_PC+1}]']]
    return g

def pack_store(k, tb, store):
    ops = [f'v_accvgpr_read_b32 v{tb+e}, a{8*k+e}' for e in range(8)]
    ops += [f'v_cvt_pk_bf16_f32 v{PEND+4*k+e}, v{tb+2*e}, v{tb+2*e+1}' for e in range(4)]
    if store:
        st = kv_store(k)
        ops = st[:-1] + ops + st[-1:]
    return ops

def kv_store(k):
    ops = []
    if k > 0:
        b = min((k & -k).bit_length() - 1, 3)
        ops.append(f's_add_u32 s{S_KVO}, s{S_KVO}, s{S_DL+b}')
    ops.append(f'buffer_store_dwordx4 {vr(PEND+4*k)}, v{V_L16}, {sr(S_WS)}, s{S_KVO} offen {OPT.get("kvf", "sc1")} ;@KVST')
    return ops

def w_voffsets(a, dst, t):
    a(f's_lshl_b32 s{t}, s{S_WAVE}, 16'); a(f's_lshl_b32 s{t+1}, s{S_H}, 9'); a(f's_add_u32 s{t}, s{t}, s{t+1}')
    a(f's_and_b32 s{t+1}, s{S_WAVE}, 1'); a(f's_lshl_b32 s{t+1}, s{t+1}, 2')
    a('v_lshrrev_b32 v200, 5, v1'); a('v_and_b32 v201, 31, v1'); a('v_lshrrev_b32 v202, 1, v201')
    a(f'v_xor_b32 v202, s{t+1}, v202'); a('v_and_b32 v203, 1, v201')
    for i in range(4):
        a(f'v_add_u32 v2, {(2*i)&3}, v200'); a('v_xor_b32 v2, v202, v2'); a('v_lshl_add_u32 v2, v2, 1, v203')
        a('v_lshlrev_b32 v2, 4, v2'); a('v_lshl_add_u32 v2, v200, 13, v2')
        a(f'v_add_u32 v2, {2*i*8192-1024*i}, v2'); a(f'v_add_u32 v{dst+i}, s{t}, v2')

B_VW, B_V1, B_VX1 = A_VW, 28, 255
B_WA, B_1A = 240, 248
B_XF = 160
B_WF, B_NB = 192, 8
B_TMP = 224
B_QS = 8
W1BASE = 98304

def B_setup(a):
    t = S_T
    a(f's_and_b32 s{t+1}, s{S_WAVE}, 1'); a(f's_lshl_b32 s{t+1}, s{t+1}, 2')
    a(f's_mul_i32 s{t}, s{S_WAVE}, {8*3584}'); a(f's_mul_i32 s{t+2}, s{S_H}, 224'); a(f's_add_u32 s{t}, s{t}, s{t+2}')
    a('v_lshrrev_b32 v200, 4, v1'); a('v_and_b32 v201, 15, v1'); a('v_lshrrev_b32 v202, 1, v201')
    a(f'v_xor_b32 v202, s{t+1}, v202'); a('v_xor_b32 v202, v200, v202'); a('v_and_b32 v203, 1, v201')
    a('v_lshl_add_u32 v2, v202, 1, v203'); a('v_lshlrev_b32 v2, 4, v2')
    a('v_mul_u32_u24 v3, 3584, v200'); a('v_add_u32 v2, v2, v3')
    a(f'v_add_u32 v{B_V1}, s{t}, v2'); a(f'v_add_u32 v{B_V1+1}, {4*3584-1024}, v{B_V1}')
    a(f'v_add_u32 v{B_VX1}, 14336, v{V_L16}')
    a('v_bfe_u32 v201, v1, 2, 2')
    a('v_lshl_add_u32 v202, v200, 3, v201')
    a('v_and_b32 v203, 3, v1'); a('v_lshlrev_b32 v203, 3, v203')
    a('v_and_b32 v2, 1, v200'); a('v_lshl_or_b32 v201, v2, 2, v201')
    a('v_lshl_add_u32 v204, v202, 9, v203')
    a('v_lshl_add_u32 v205, v202, 8, v203'); a(f'v_add_u32 v205, {W1BASE}, v205')
    for d in range(8):
        a(f'v_xor_b32 v2, {d}, v201')
        a(f'v_lshl_add_u32 v{B_WA+d}, v2, 5, v204')
        if d < 7: a(f'v_lshl_add_u32 v{B_1A+d}, v2, 5, v205')

def B_dma_w(u, ffn):
    sl = u % 4; t = S_T + 2
    g = [[f's_add_u32 m0, s{S_W4K}, {sl*16384}', f's_mov_b32 s{t}, {u*32*8192}',
          f'buffer_load_dwordx4 v{B_VW}, {sr(S_WQ)}, s{t} offen lds']]
    for i in range(1, 4): g.append([f'buffer_load_dwordx4 v{B_VW+i}, {sr(S_WQ)}, s{t} offen offset:{1024*i} lds'])
    if ffn:
        g.append([f's_add_u32 m0, s{S_W2K}, {W1BASE+sl*8192}', f's_mov_b32 s{t}, {u*32*3584}',
                  f'buffer_load_dwordx4 v{B_V1}, {sr(S_W1)}, s{t} offen lds'])
        g.append([f'buffer_load_dwordx4 v{B_V1+1}, {sr(S_W1)}, s{t} offen offset:1024 lds'])
    return tag(g, f'B{u}')

def B_dma_x(u):
    sl = u % 4; t = S_T + 3
    g = [[f's_add_u32 s{t}, s{S_XO}, {u*1024}',
          f'buffer_load_dwordx4 {vr(B_XF+sl*8)}, v{V_L16}, {sr(S_WS)}, s{t} offen'],
         [f'buffer_load_dwordx4 {vr(B_XF+sl*8+4)}, v{B_VX1}, {sr(S_WS)}, s{t} offen']]
    return tag(g, f'B{u}')

def B_dma(u, ffn): return B_dma_w(u, ffn) + B_dma_x(u)

def B_head(ffn):
    h = []
    for u in range(3): h += flat(B_dma(u, ffn))
    return h

def phaseB_begin_ext(a):
    t = S_T
    spin_wait(a, S_FP)
    a(f's_lshl_b32 s{t}, s{S_EXT}, 2'); a(f's_add_u32 s{t}, s{t}, s{S_WAVE}'); a(f's_mul_i32 s{t}, s{t}, {2*14336}')
    a(f's_add_u32 s{S_XO}, s{t}, {hex(WS_XN)}')
    a('s_barrier')
    a(resolve_vm(B_head(False)))

def phaseB_main(a, ffn, hist):
    pre = []
    NW = OPT.get('nweave', 8); NL = 23
    if ffn:
        pre.append('s_nop 7')
        nst_pre = OPT.get('nst_pre', 6)
        for k in range(NW, NL):
            pre += pack_store(k, 208 + 8*(k & 1), False)
            if (k - NW) % 2 == 1 and NW + (k - NW)//2 < NW + nst_pre: pre += kv_store(NW + (k - NW)//2)
        nsd = NW + min(nst_pre, (NL - NW)//2)
        pre.append('s_waitcnt vmcnt(@BIAS)')
        for fb in range(7):
            for k in range(2):
                pre += [f'v_lshlrev_b32 v2, 16, v{B_TMP+2*fb+k}', f'v_and_b32 v3, 0xffff0000, v{B_TMP+2*fb+k}']
                for qb in range(2):
                    pre += [f'v_accvgpr_write_b32 a{128+(fb*2+qb)*4+2*k}, v2', f'v_accvgpr_write_b32 a{128+(fb*2+qb)*4+2*k+1}, v3']
    pre += ['s_waitcnt vmcnt(@B0)', 's_barrier', 'STAMP']
    nf = 23 if ffn else 16
    steps = []
    for u in range(14):
        sl = u % 4
        for f in range(nf):
            buf = B_WF + (len(steps) % B_NB)*4
            if f < 16:
                rd = [f'ds_read_b64_tr_b16 {vr(buf+2*h,2)}, v{B_WA+(f&7)} offset:{sl*16384+2048*h+256*(f>>3)}' for h in range(2)]
                acc = f*8
            else:
                rd = [f'ds_read_b64_tr_b16 {vr(buf+2*h,2)}, v{B_1A+f-16} offset:{sl*8192+1024*h}' for h in range(2)]
                acc = 128 + (f-16)*8
            mf = []
            for qb in range(2):
                c = '0' if (u == 0 and f < 16) else ar(acc+4*qb)
                mf.append(f'{MF} {ar(acc+4*qb)}, {vr(buf)}, {vr(B_XF+sl*8+4*qb)}, {c}')
            steps.append(Step(mf, rd))
    LA = 6
    bp = {}
    for u in range(13):
        bp[u] = (u+1)*nf - LA - 1
        steps[bp[u]].pre += [f's_waitcnt vmcnt(@B{u+1})', 's_barrier']
        for f in range(nf): steps[(u+1)*nf+f].gate = bp[u]
    SIGU = OPT.get('sigu', 11)
    if ffn:
        steps[bp[SIGU]].pre.insert(0, 's_waitcnt vmcnt(@KVST)')
    sc = Sched(steps, LA=LA, wait_group=2)
    sc.place(B_dma(3, ffn), 0, bp[0]-2)
    for u in range(1, 11):
        sc.place(B_dma(u+3, ffn), bp[u], bp[u+1]-2)
    if ffn:
        st_ = []
        for k in range(nsd, 32):
            st_ += kv_store(k) if k < NL else pack_store(k, B_TMP + 8*(k & 1), True)
        sc.place(st_, 0, bp[OPT.get('st_end', 8)])
        sc.place([[f's_lshr_b32 s{S_T+7}, s2, 4', f's_lshl_b32 s{S_T+7}, s{S_T+7}, 2', f's_add_u32 s{S_T+7}, s{S_T+7}, s{S_FKV}',
                   f'buffer_store_dword v{V_NONCE}, v{V_SIG}, {sr(S_WS)}, s{S_T+7} offen sc1']], bp[SIGU], bp[SIGU]+3)
    pl = [f's_mov_b32 s{S_FP}, s{S_FKV}'] + poll_issue(S_FP)
    sc.place([pl], len(steps)-OPT.get('pollat', 24), len(steps)-OPT.get('pollat', 24)+4)
    print('phaseB overflow', sc.overflow(0, len(steps)-1))
    body = resolve_vm(hist + ['MARKB'] + pre + sc.pre + sc.text(0, len(steps)-1))
    for x in body[body.index('MARKB')+1:]:
        if x == 'STAMP': stamp(a, 3 if ffn else 6)
        else: a(x)
    stamp(a, 4 if ffn else 7)

def qx_base(a, d):
    a(f's_lshl_b32 s{d}, s{S_PAIR}, 16'); a(f's_lshl_b32 s{d+1}, s{S_WAVE}, 14'); a(f's_add_u32 s{d}, s{d}, s{d+1}')
    a(f's_add_u32 s{d}, s{d}, {hex(WS_QX)}')

def phaseB_epi(a):
    t = S_T
    a('s_nop 3')
    qx_base(a, t)
    a(f's_cmp_eq_u32 s{S_PUBQ}, 0'); a(f's_cselect_b32 s{t}, 0x70000000, s{t}')
    k = 0
    for s in range(8):
        for qb in range(2):
            d = A_QO + (s*2+qb)*4
            tb = B_TMP + 8 + 4*(k & 1)
            for half in range(2):
                src = ((2*s+half)*2+qb)*4
                for e in range(4): a(f'v_accvgpr_read_b32 v{B_TMP+4*half+e}, a{src+e}')
            for e in range(0, 8, 2): a(f'v_pk_mul_f32 {vr(B_TMP+e,2)}, {vr(B_TMP+e,2)}, {vr(B_QS,2)}')
            for e in range(4): a(f'v_cvt_pk_bf16_f32 v{tb+e}, v{B_TMP+2*e}, v{B_TMP+2*e+1}')
            if k % 4 == 0 and k: a(f's_add_u32 s{t}, s{t}, 4096')
            a(f'buffer_store_dwordx4 {vr(tb)}, v{V_L16}, {sr(S_WS)}, s{t} offen offset:{1024*(k%4)} sc1')
            for e in range(4): a(f'v_accvgpr_write_b32 a{d+e}, v{tb+e}')
            k += 1

def phaseB_epi_h(a):
    for ks in range(4):
        for qb in range(2):
            d = V_H + (ks*2+qb)*4
            for half in range(2):
                fb = 2*ks + half
                if fb == 7:
                    a(f'v_mov_b32 v{d+2}, 0'); a(f'v_mov_b32 v{d+3}, 0'); continue
                src = 128 + (fb*2+qb)*4
                for e in range(4): a(f'v_accvgpr_read_b32 v{B_TMP+e}, a{src+e}')
                for e in range(4): a(f'v_max_f32 v{B_TMP+e}, 0, v{B_TMP+e}')
                for e in range(0, 4, 2): a(f'v_pk_mul_f32 {vr(B_TMP+e,2)}, {vr(B_TMP+e,2)}, {vr(B_TMP+e,2)}')
                for e in range(2): a(f'v_cvt_pk_bf16_f32 v{d+2*half+e}, v{B_TMP+2*e}, v{B_TMP+2*e+1}')

def fetch_qx(a):
    t = S_T
    a(f's_lshl_b32 s{S_FP}, s{S_PAIR}, 8'); a(f's_add_u32 s{S_FP}, s{S_FP}, {hex(WS_FLG + 0x30000)}')
    a(poll_issue(S_FP))
    a('s_waitcnt vmcnt(0)')
    spin_wait(a, S_FP, mask=1)
    a('s_barrier')
    qx_base(a, t)
    for k in range(16):
        if k % 4 == 0 and k: a(f's_add_u32 s{t}, s{t}, 4096')
        a(f'buffer_load_dwordx4 {ar(A_QX+4*k)}, v{V_L16}, {sr(S_WS)}, s{t} offen offset:{1024*(k%4)} sc1')

C_KA, C_VA, C_VD, C_DV, C_DV0, C_TM, C_NINF, C_ONE = 8, 9, 10, 11, 12, 13, 14, 16
C_BP16, C_BP32 = 20, 21
C_T = 22
C_S = [32, 48]
C_P, C_NM, C_L = 64, 72, 80
C_F, C_NB = 88, 8
C_MRG = 128

def C_dma(kind, m0expr):
    so = S_KO if kind == 'K' else S_VO
    g = [[m0expr, f's_add_u32 s{so}, s{so}, 32768', f'buffer_load_dwordx4 v{C_VD}, {sr(S_WS)}, s{so} offen lds']]
    for i in range(1, 4): g.append([f'buffer_load_dwordx4 v{C_VD}, {sr(S_WS)}, s{so} offen offset:{1024*i} lds'])
    return g

def mask_ops(S):
    el = [(kb, qb, r) for kb in range(2) for qb in range(2) for r in range(4)]
    ops = []
    for i in range(0, 16, 4):
        for k in range(4):
            kb, qb, r = el[i+k]
            ops.append(f'v_cmp_gt_i32 s[{S_MK+2*k}:{S_MK+2*k+1}], {16*(kb-qb)+r}, v{C_DV}')
        for k in range(4):
            kb, qb, r = el[i+k]; reg = S + (kb*2+qb)*4 + r
            ops.append(f'v_cndmask_b32 v{reg}, v{reg}, v{C_NINF}, s[{S_MK+2*k}:{S_MK+2*k+1}]')
    return ops

def max_ops(S):
    ops = [f'v_max3_f32 v{C_TM}, v{S}, v{S+1}, v{S+2}']
    for i in range(3, 15, 2): ops.append(f'v_max3_f32 v{C_TM}, v{C_TM}, v{S+i}, v{S+i+1}')
    ops.append(f'v_max_f32 v{C_TM}, v{C_TM}, v{S+15}')
    return ops

def rowmax(a, S, qb, d):
    r = [S + (kb*2+qb)*4 + e for kb in range(2) for e in range(4)]
    a(f'v_max3_f32 v{d}, v{r[0]}, v{r[1]}, v{r[2]}')
    a(f'v_max3_f32 v{d}, v{d}, v{r[3]}, v{r[4]}')
    a(f'v_max3_f32 v{d}, v{d}, v{r[5]}, v{r[6]}')
    a(f'v_max_f32 v{d}, v{d}, v{r[7]}')
    for bp in (C_BP16, C_BP32):
        a(f'ds_bpermute_b32 v{C_T+7}, v{bp}, v{d}')
        a('s_waitcnt lgkmcnt(0)')
        a(f'v_max_f32 v{d}, v{d}, v{C_T+7}')

def rare_path(a, S, first):
    a('s_nop 7')
    for qb in range(2):
        d = C_T + qb
        rowmax(a, S, qb, d)
        if not first: a(f'v_max_f32 v{d}, 0, v{d}')
        for kb in range(2):
            for e in range(4):
                r = S + (kb*2+qb)*4 + e
                a(f'v_sub_f32 v{r}, v{r}, v{d}')
        for e in range(4): a(f'v_sub_f32 v{C_NM+4*qb+e}, v{C_NM+4*qb+e}, v{d}')
        if not first:
            al = C_T + 2 + qb
            a(f'v_exp_f32 v{al}, -v{d}')
            a('s_nop 0')
            for e in range(4): a(f'v_mul_f32 v{C_L+4*qb+e}, v{C_L+4*qb+e}, v{al}')
            for db in range(16):
                o = (db*2+qb)*4
                for e in range(3): a(f'v_accvgpr_read_b32 v{C_T+4+e}, a{o+e}')
                a(f'v_accvgpr_read_b32 v2, a{o+3}')
                for e in range(3): a(f'v_mul_f32 v{C_T+4+e}, v{C_T+4+e}, v{al}')
                a(f'v_mul_f32 v2, v2, v{al}')
                for e in range(3): a(f'v_accvgpr_write_b32 a{o+e}, v{C_T+4+e}')
                a(f'v_accvgpr_write_b32 a{o+3}, v2')
    a('s_nop 1')

def softmax_ops(S):
    ops = []
    for qb in range(2):
        for kb in range(2):
            b = S + (kb*2+qb)*4
            for e in range(4): ops.append(f'v_exp_f32 v{b+e}, v{b+e}')
        for kb in range(2):
            b = S + (kb*2+qb)*4
            for e in range(2): ops.append(f'v_cvt_pk_bf16_f32 v{C_P+4*qb+2*kb+e}, v{b+2*e}, v{b+2*e+1}')
    return ops

def phaseC_begin(a, part=3):
    t = S_T
    lst = [('K', 0), ('K', 1), ('V', 0), ('K', 2), ('V', 1), ('K', 3)]
    if part & 1:
        a('s_barrier')
        a(f's_lshl_b32 s{t}, s{S_H}, 21'); a(f's_lshl_b32 s{t+1}, s{S_TS}, 15'); a(f's_add_u32 s{S_KO}, s{t}, s{t+1}')
        a(f's_sub_u32 s{S_KO}, s{S_KO}, 32768')
        a(f's_add_u32 s{S_VO}, s{S_KO}, 16384')
        a(f'v_add_u32 v{C_VD}, s{S_W4K}, v{V_L16}')
    for kind, sl in (lst[:3] if part & 1 else []) + (lst[3:] if part & 2 else []):
        a(flat(C_dma(kind, f's_add_u32 m0, s{S_W4K}, {(0 if kind=="K" else 65536) + sl*16384}')))

def phaseC(a, own, rl, after_first_wait=None, tail_extra=None):
    t = S_T
    AQ = A_QO if own else A_QX
    NBUF = C_NB
    a(f's_mov_b32 s{S_PB}, s{S_W4K}'); a(f's_xor_b32 s{S_PO}, s{S_PB}, 0x8000')
    a(f'v_mov_b32 v{C_KA}, v{V_L16}'); a(f'v_add_u32 v{C_VA}, 0x18000, v{V_L16}')
    if own:
        a('v_and_b32 v2, 15, v1'); a('v_lshrrev_b32 v3, 4, v1'); a('v_lshlrev_b32 v3, 2, v3'); a(f'v_sub_u32 v{C_DV0}, v2, v3')
        a(f's_sub_u32 s{t}, s{S_RB}, s{S_TS}'); a(f's_lshl_b32 s{t}, s{t}, 5')
        a(f'v_add_u32 v{C_DV}, s{t}, v{C_DV0}')
        a(f'v_mov_b32 v{C_NINF}, 0xff800000')
        for r in range(32): a(f'v_accvgpr_write_b32 a{A_H+r}, v{V_H+r}')
    for e in range(4): a(f'v_mov_b32 v{C_ONE+e}, 0x3f803f80')
    a(f'v_xor_b32 v{C_BP16}, 16, v1'); a(f'v_lshlrev_b32 v{C_BP16}, 2, v{C_BP16}')
    a(f'v_xor_b32 v{C_BP32}, 32, v1'); a(f'v_lshlrev_b32 v{C_BP32}, 2, v{C_BP32}')
    for e in range(8): a(f'v_mov_b32 v{C_NM+e}, 0'); a(f'v_mov_b32 v{C_L+e}, 0')
    for r in range(128): a(f'v_accvgpr_write_b32 a{r}, 0')
    if own:
        Lw = a.newlabel('FW'); Lw2 = a.newlabel('FW')
        a(f's_cmp_eq_u32 s{S_HASX}, 0'); a(f's_cbranch_scc1 {Lw}')
        a('s_waitcnt vmcnt(45)'); a(f's_branch {Lw2}')
        a.label(Lw); a('s_waitcnt vmcnt(13)'); a.label(Lw2)
    else:
        fetch_qx(a)
        a('s_waitcnt vmcnt(0)')
    a('s_barrier')
    if after_first_wait: after_first_wait(a)
    n = 10
    NM2, NM3, NM4 = 7, 10, 10
    steps = []; start = {}; h2s = {}
    cnt = [0]
    def nbuf():
        b = C_F + (cnt[0] % OPT.get('c_nb', 8))*4; cnt[0] += 1; return b
    def ksteps(j, cinit):
        S = C_S[j & 1]
        for kb in range(2):
            for s in range(8):
                buf = nbuf()
                rd = f'ds_read_b128 {vr(buf)}, v{C_KA} offset:{(j&1)*16384 + (kb*8+s)*1024}'
                pv = f'v_xor_b32 v{C_KA}, 0x8000, v{C_KA}' if (kb == 0 and s == 0 and (j & 1) == 0 and j > 0) else None
                mf = []
                for qb in range(2):
                    d = vr(S + (kb*2+qb)*4)
                    c = d if s > 0 else (cinit if cinit is not None else vr(C_NM+4*qb))
                    mf.append(f'{MF} {d}, {vr(buf)}, {ar(AQ+(s*2+qb)*4)}, {c}')
                steps.append(Step(mf, [rd], prev=pv))
    def vsteps(j):
        for db in range(16):
            buf = nbuf()
            rd = f'ds_read_b128 {vr(buf)}, v{C_VA} offset:{(j&1)*16384 + db*1024}'
            pv = f'v_xor_b32 v{C_VA}, 0x8000, v{C_VA}' if (db == 0 and (j & 1) == 0) else None
            mf = [f'{MF} {ar((db*2+qb)*4)}, {vr(buf)}, {vr(C_P+4*qb)}, {ar((db*2+qb)*4)}' for qb in range(2)]
            if db == 15:
                mf += [f'{MF} {vr(C_L+4*qb)}, {vr(C_ONE)}, {vr(C_P+4*qb)}, {vr(C_L+4*qb)}' for qb in range(2)]
            steps.append(Step(mf, [rd], prev=pv))
    start[-1] = 0
    ksteps(0, '0')
    for j in range(n):
        start[j] = len(steps)
        if j < n-1: ksteps(j+1, None)
        h2s[j] = len(steps)
        vsteps(j)
        tail = j - (n-6)
        vm = {0: 12, 1: 12, 2: 8, 3: (4 + NM2 if own else 4), 4: (NM2 + NM3 if own else 0)}.get(max(tail, 0), None)
        if vm is not None: steps[h2s[j]+2].pre += [f's_waitcnt vmcnt({vm})', 's_barrier']
        if j == n-1: steps[h2s[j]].block += softmax_ops(C_S[j & 1]) + ['s_nop 1']
    start[n] = len(steps)
    sc = Sched(steps, LA=OPT.get('c_la', 7), wait_group=OPT.get('c_wg', 4), wait_first=True)
    for j in range(n):
        p = j & 1; h2 = h2s[j]; end = start[j+1] - 1; tail = j - (n-6)
        if j < n-1:
            S = C_S[p]
            regs = [S + (kb*2+qb)*4 + e for qb in range(2) for kb in range(2) for e in range(4)]
            for k in range(16):
                sc.put(start[j]+k, 0, f'v_exp_f32 v{regs[k]}, v{regs[k]}')
                if k & 1: sc.put(start[j]+k, 1, f'v_cvt_pk_bf16_f32 v{C_P+k//2}, v{regs[k-1]}, v{regs[k]}')
        dv = C_dma('V', f's_add_u32 m0, s{S_PO if p==0 else S_PB}, {65536 + (16384 if p==0 else 0)}') if tail <= 2 else None
        dk = C_dma('K', f's_add_u32 m0, s{S_PB if p==0 else S_PO}, {16384 if p==0 else 0}') if tail <= 0 else None
        if dv:
            dv = flat(dv)
            sc.put(h2, 0, dv[0]); sc.put(h2, 0, dv[1])
            for x, st_ in zip(dv[2:], (2, 4, 5, 6)): sc.put(h2+st_, 0, x)
        else: sc.put(h2, 0, 's_nop 0')
        if dk:
            dk = flat(dk)
            sc.put(h2+7, 0, dk[0]); sc.put(h2+7, 0, dk[1])
            for x, st_ in zip(dk[2:], (8, 9, 10, 12)): sc.put(h2+st_, 0, x)
        if own:
            ml = merge_loads()
            if tail == 2: sc.place(ml[:NM2], h2+7, end)
            if tail == 3: sc.place(ml[NM2:NM2+NM3], h2+2, end)
            if tail == 3: sc.place(D_setup(), start[j], h2-1)
            if tail == 4: sc.place(ml[NM2+NM3:NM2+NM3+NM4], h2+2, end)
            if tail == 5: sc.place(ml[NM2+NM3+NM4:] + flat(D_dma(0)), h2, end)
        if p == 1:
            e = [f's_xor_b32 s{S_PB}, s{S_PB}, 0x8000', f's_xor_b32 s{S_PO}, s{S_PO}, 0x8000']
            if j < 4: e += [f's_sub_u32 s{S_CNT}, s{S_CNT}, 2', f's_cmp_lg_u32 s{S_CNT}, 0']
            sc.place(e, end-2, end)
        if j < n-1:
            Sn = C_S[p ^ 1]; ops = []
            if own and tail >= 1: ops += [f'v_subrev_u32 v{C_DV}, 32, v{C_DV}'] + mask_ops(Sn)
            ops += max_ops(Sn) + [f'v_cmp_lt_f32 vcc, s{S_THR}, v{C_TM}']
            sc.place(ops, h2+3, end)
    def text(j0, j1): return sc.text(start[j0], start[j1+1]-1)
    def emit_iter(j):
        tx = resolve_vm(text(j, j))
        if own and j == n-6:
            a(f's_lshl_b32 s{S_FP}, s{S_PAIR}, 8'); a(f's_add_u32 s{S_FP}, s{S_FP}, {hex(WS_FLG + 0x20000)}')
            a(poll_issue(S_FP))
        if own and j == n-4:
            L = a.newlabel('NMC')
            for x in merge_setup(): a(x.split('\n'))
            a(f's_cmp_eq_u32 s{S_TS}, 0'); a(f's_cbranch_scc1 {L}')
            a('s_waitcnt vmcnt(12)')
            spin_wait(a, S_FP, mask=1)
            a.label(L)
        ab = OPT.get('ablate', '')
        if 'dma' in ab: tx = [x for x in tx if not (x.startswith('buffer_load') or 'vmcnt' in x)]
        if 'bar' in ab: tx = [x for x in tx if not x.startswith('s_barrier')]
        if 'exp' in ab: tx = [x for x in tx if not x.startswith('v_exp')]
        if 'max' in ab: tx = [x for x in tx if not x.startswith('v_max')]
        if 'read' in ab: tx = [x for x in tx if not (x.startswith('ds_read') or 'lgkmcnt' in x)]
        a(tx)
        if j < n-1 and not ab:
            Lb = a.newlabel('CB'); Ls = a.newlabel('CS')
            a(f's_cbranch_vccnz {Ls}')
            a.label(Lb)
            rl['stubs'].append((Ls, Lb, (j&1)^1))
    assert text(0, 1) == text(2, 3), 'not periodic'
    print('phaseC overflow per pair', sc.overflow(start[2], start[4]-1))
    if own: stamp(a, 14)
    a(sc.pre)
    a(text(-1, -1))
    if own: stamp(a, 15)
    if own:
        Lx = a.newlabel('FX')
        a(f's_cmp_eq_u32 s{S_HASX}, 0'); a(f's_cbranch_scc1 {Lx}')
        a('s_waitcnt vmcnt(12)')
        a.label(Lx)
    a('s_barrier')
    if own: publish_flag(a)
    a(flat(C_dma('V', f's_add_u32 m0, s{S_W4K}, {65536+2*16384}') + C_dma('K', f's_mov_b32 m0, s{S_W4K}')))
    if own: a(mask_ops(C_S[0]))
    rare_path(a, C_S[0], True)
    if own: stamp(a, 16)
    Ltail4 = a.newlabel('CT4'); Ltail = a.newlabel('CT6'); Lloop = a.newlabel('CL')
    if own:
        a(f's_add_u32 s{t}, s{S_TS}, s{S_N}'); a(f's_sub_u32 s{t}, s{S_RB}, s{t}'); a(f's_add_u32 s{t}, s{t}, 5'); a(f's_lshl_b32 s{t}, s{t}, 5')
        a(f's_cmp_eq_u32 s{S_N}, 4'); a(f's_cbranch_scc1 {Ltail4}')
        a(f'v_add_u32 v{C_DV}, s{t}, v{C_DV0}')
    a(f's_sub_u32 s{S_CNT}, s{S_N}, 6')
    a(f's_cmp_eq_u32 s{S_CNT}, 0'); a(f's_cbranch_scc1 {Ltail}')
    a.label(Lloop)
    emit_iter(2); emit_iter(3)
    a(f's_cbranch_scc1 {Lloop}')
    a.label(Ltail)
    if own: stamp(a, 17)
    emit_iter(4); emit_iter(5)
    if own: a.label(Ltail4)
    for j in range(6, 10): emit_iter(j)

def rare_subs(a, rl):
    for (Ls, Lb, p) in rl['stubs']:
        a.label(Ls)
        a(f's_cselect_b32 s{S_T+8}, 1, 0')
        a(f's_getpc_b64 s[{S_RET}:{S_RET+1}]')
        Lp = a.newlabel('CP'); a.label(Lp)
        a(f's_sub_u32 s{S_RET}, s{S_RET}, {Lp}-{Lb}'); a(f's_subb_u32 s{S_RET+1}, s{S_RET+1}, 0')
        a(f's_branch {rl[p]}')
    for p in range(2):
        a.label(rl[p])
        rare_path(a, C_S[p], False)
        a(f's_cmp_lg_u32 s{S_T+8}, 0')
        a(f's_setpc_b64 s[{S_RET}:{S_RET+1}]')

def op_base(a, d):
    a(f's_mul_i32 s{d}, s{S_PAIR}, {OP_PAIR}'); a(f's_mul_i32 s{d+1}, s{S_WAVE}, {OP_WAVE}')
    a(f's_add_u32 s{d}, s{d}, s{d+1}'); a(f's_add_u32 s{d}, s{d}, {hex(WS_OP)}')

def publish_stores(a):
    t = S_T
    a('s_nop 7')
    op_base(a, t)
    for k in range(32):
        if k % 4 == 0 and k: a(f's_add_u32 s{t}, s{t}, 4096')
        a(f'buffer_store_dwordx4 {ar(4*k)}, v{V_L16}, {sr(S_WS)}, s{t} offen offset:{1024*(k%4)} sc1')
    a(f's_add_u32 s{t}, s{t}, 4096')
    a(f'v_mov_b32 v{C_T}, v{C_NM}'); a(f'v_mov_b32 v{C_T+1}, v{C_NM+4}'); a(f'v_mov_b32 v{C_T+2}, v{C_L}'); a(f'v_mov_b32 v{C_T+3}, v{C_L+4}')
    a(f'buffer_store_dwordx4 {vr(C_T)}, v{V_L16}, {sr(S_WS)}, s{t} offen sc1')
    a('s_nop 1')

def publish_flag(a):
    L = a.newlabel('PF')
    a(f's_cmp_eq_u32 s{S_HASX}, 0'); a(f's_cbranch_scc1 {L}')
    a(f's_lshl_b32 s{S_T}, s{S_PAIR}, 8'); a(f's_add_u32 s{S_T}, s{S_T}, {hex(WS_FLG + 0x20000)}')
    a(f'buffer_store_dword v{V_NONCE}, v{V_SIG}, {sr(S_WS)}, s{S_T} offen sc1')
    a.label(L)

D_CTX = 32
D_WF, D_NB = 176, 8
D_ACC = 128
D_PK = 160
D_VO = 120
D_RA, D_RB = 20, 24
D_ST1 = 28
DSLOT = 49152
S_MB = 71
C_ML = 124

def merge_setup():
    t = S_T + 4
    return [f's_mul_i32 s{S_MB}, s{S_PAIR}, {OP_PAIR}', f's_mul_i32 s{t}, s{S_WAVE}, {OP_WAVE}',
            f's_add_u32 s{S_MB}, s{S_MB}, s{t}', f's_add_u32 s{S_MB}, s{S_MB}, {hex(WS_OP)}',
            f's_cmp_eq_u32 s{S_TS}, 0\ns_cselect_b32 s{S_MB}, 0x70000000, s{S_MB}']

def merge_loads():
    t = S_T + 4
    g = [[f's_add_u32 s{t}, s{S_MB}, 32768', f'buffer_load_dwordx4 {vr(C_ML)}, v{V_L16}, {sr(S_WS)}, s{t} offen sc1']]
    for k in range(32):
        pre = [f's_add_u32 s{S_MB}, s{S_MB}, 4096'] if (k % 4 == 0 and k) else []
        g.append(pre + [f'buffer_load_dwordx4 {vr(C_MRG+4*k)}, v{V_L16}, {sr(S_WS)}, s{S_MB} offen offset:{1024*(k%4)} sc1'])
    return g

def D_setup():
    t = S_T + 5
    r = ['v_lshrrev_b32 v2, 3, v1', 'v_mul_u32_u24 v3, 896, v2', 'v_bfe_u32 v2, v1, 4, 2', f'v_bfe_u32 v{D_VO}, v1, 1, 2', f'v_xor_b32 v2, v2, v{D_VO}',
         f'v_and_b32 v{D_VO}, 1, v1', f'v_lshl_add_u32 v2, v2, 1, v{D_VO}', 'v_lshl_add_u32 v3, v2, 4, v3']
    r += [f'v_add_u32 v{D_VO+i}, {i*(8*896-1024)}, v3' for i in range(4)]
    r += [f's_lshl_b32 s{t}, s{S_H}, 8', f's_lshl_b32 s{t+1}, s{S_WAVE}, 6', f's_add_u32 s{t}, s{t}, s{t+1}', f's_mul_i32 s{S_DO}, s{t}, 896',
          f's_mul_i32 s{t}, s{S_H}, 112', f's_lshl_b32 s{t+1}, s{S_WAVE}, 5', f's_add_u32 s{t}, s{t}, s{t+1}', f's_mul_i32 s{S_D2}, s{t}, 896']
    return r

def finalize(a):
    t = S_T
    Lno = a.newlabel('NOMRG'); Ldone = a.newlabel('FIN')
    a(f's_cmp_lg_u32 s{S_TS}, 0'); a(f's_cbranch_scc0 {Lno}')
    a('s_waitcnt vmcnt(24)')
    for qb in range(2):
        nm_a = C_NM + 4*qb; nm_b = C_ML + qb; l_a = C_L + 4*qb; l_b = C_ML + 2 + qb
        sa = 8 + 2*qb; sb = 16 + 2*qb
        a(f'v_min_f32 v2, v{nm_a}, v{nm_b}')
        a(f'v_sub_f32 v3, v2, v{nm_a}'); a(f'v_exp_f32 v{sa}, v3')
        a(f'v_sub_f32 v3, v2, v{nm_b}'); a(f'v_exp_f32 v{sb}, v3')
        a('s_nop 0')
        a(f'v_mul_f32 v2, v{sa}, v{l_a}'); a(f'v_fmac_f32 v2, v{sb}, v{l_b}')
        a('v_rcp_f32 v2, v2'); a('s_nop 0')
        a(f'v_mul_f32 v{sa}, v{sa}, v2'); a(f'v_mul_f32 v{sb}, v{sb}, v2')
        a(f'v_mov_b32 v{sa+1}, v{sa}'); a(f'v_mov_b32 v{sb+1}, v{sb}')
    k = 0
    for s in range(8):
        for qb in range(2):
            for half in range(2):
                o = ((2*s+half)*2+qb)*4; tb = 12 if k & 1 else 20; k += 1
                for e in range(4): a(f'v_accvgpr_read_b32 v{tb+e}, a{o+e}')
                for e in (0, 2): a(f'v_pk_mul_f32 {vr(C_MRG+o+e,2)}, {vr(C_MRG+o+e,2)}, {vr(16+2*qb,2)}')
                for e in (0, 2): a(f'v_pk_fma_f32 {vr(tb+e,2)}, {vr(tb+e,2)}, {vr(8+2*qb,2)}, {vr(C_MRG+o+e,2)}')
                for e in range(2): a(f'v_cvt_pk_bf16_f32 v{D_CTX+(s*2+qb)*4+2*half+e}, v{tb+2*e}, v{tb+2*e+1}')
    a(f's_branch {Ldone}')
    a.label(Lno)
    for qb in range(2): a(f'v_rcp_f32 v{8+2*qb}, v{C_L+4*qb}')
    a('s_nop 0')
    for qb in range(2): a(f'v_mov_b32 v{9+2*qb}, v{8+2*qb}')
    for s in range(8):
        for qb in range(2):
            for half in range(2):
                o = ((2*s+half)*2+qb)*4; tb = 12 if k & 1 else 20; k += 1
                for e in range(4): a(f'v_accvgpr_read_b32 v{tb+e}, a{o+e}')
                for e in (0, 2): a(f'v_pk_mul_f32 {vr(tb+e,2)}, {vr(tb+e,2)}, {vr(8+2*qb,2)}')
                for e in range(2): a(f'v_cvt_pk_bf16_f32 v{D_CTX+(s*2+qb)*4+2*half+e}, v{tb+2*e}, v{tb+2*e+1}')
    a.label(Ldone)

def D_dma(tile):
    t = S_T; sl = (tile % 3)*DSLOT
    g = []
    for half in range(2):
        first = [f's_lshl_b32 s{t}, s{S_W4K}, 1'] if half == 0 else []
        first += [f's_add_u32 m0, s{t}, {sl + 4096*half}', f's_add_u32 s{t+1}, s{S_DO}, {half*32*896 + tile*128}']
        for i in range(4):
            g.append((first if i == 0 else []) + [f'buffer_load_dwordx4 v{D_VO+i}, {sr(S_WO)}, s{t+1} offen offset:{1024*i} lds'])
    first = [f's_add_u32 m0, s{S_W4K}, {sl + 32768}', f's_add_u32 s{t+1}, s{S_D2}, {tile*128}']
    for i in range(4):
        g.append((first if i == 0 else []) + [f'buffer_load_dwordx4 v{D_VO+i}, {sr(S_W2)}, s{t+1} offen offset:{1024*i} lds'])
    return tag(g, f'T{tile}')

def phaseD_begin(a):
    a('s_barrier')
    a(resolve_vm(flat(D_dma(1))))

def phaseD(a):
    t = S_T
    a('v_lshrrev_b32 v2, 2, v1'); a('v_bfe_u32 v3, v1, 3, 2')
    a('v_and_b32 v8, 3, v1'); a('v_lshlrev_b32 v8, 3, v8'); a('v_lshl_add_u32 v8, v2, 7, v8')
    for c in range(4):
        a(f'v_xor_b32 v2, {c}, v3'); a(f'v_lshl_add_u32 v{D_RB+c}, v2, 5, v8')
    a(f's_lshl_b32 s{t}, s{S_H}, 7'); a(f's_lshl_b32 s{t+1}, s{S_OWN}, 3'); a(f's_add_u32 s{t}, s{t}, s{t+1}')
    a(f's_lshl_b32 s{t+1}, s{S_WAVE}, 1'); a(f's_add_u32 s{t}, s{t}, s{t+1}'); a(f's_mul_i32 s{t}, s{t}, 14336')
    a(f's_add_u32 s{S_PRT}, s{t}, {hex(WS_PART)}')
    a(f'v_add_u32 v{D_ST1}, 14336, v{V_L16}')
    steps = []
    for tile in range(7):
        sl = tile % 3
        for c in range(4):
            for ks in range(12):
                buf = D_WF + (len(steps) % D_NB)*4
                rd = [f'ds_read_b64_tr_b16 {vr(buf+2*h,2)}, v{D_RA+c} offset:{4096*ks+2048*h}' for h in range(2)]
                pv = f'v_add_u32 v{D_RA+c}, {sl*DSLOT}, v{D_RB+c}' if ks == 0 else None
                mf = []
                for qb in range(2):
                    d = vr(D_ACC + (c*2+qb)*4)
                    b = vr(D_CTX + (ks*2+qb)*4) if ks < 8 else ar(A_H + ((ks-8)*2+qb)*4)
                    mf.append(f'{MF} {d}, {vr(buf)}, {b}, {d if ks else "0"}')
                steps.append(Step(mf, rd, prev=pv))
    nst = 48; LA = 6
    bp = {}
    for tile in range(6):
        bp[tile] = (tile+1)*nst - LA - 1
        steps[bp[tile]].pre += [f's_waitcnt vmcnt(@T{tile+1})', 's_barrier']
        for f in range(nst): steps[(tile+1)*nst+f].gate = bp[tile]
    sc = Sched(steps, LA=LA, wait_group=2)
    sc.place(D_dma(2), 0, 24)
    for tile in range(1, 5): sc.place(D_dma(tile+2), bp[tile], bp[tile]+OPT.get('d_dw', 9))
    tail_ops = None
    for tile in range(7):
        for cp in range(2):
            v = tile*2 + cp
            endstep = (tile*4 + cp*2 + 2)*12
            ops = []
            for qb in range(2):
                pk = D_PK + (cp*2+qb)*4
                for half in range(2):
                    src = D_ACC + ((cp*2+half)*2+qb)*4
                    for e in range(2): ops.append(f'v_cvt_pk_bf16_f32 v{pk+2*half+e}, v{src+2*e}, v{src+2*e+1}')
                st = [f's_add_u32 s{t+4}, s{S_PRT}, {v*1024}'] if qb == 0 else []
                ops.append(st + [f'buffer_store_dwordx4 {vr(pk)}, v{V_L16 if qb==0 else D_ST1}, {sr(S_WS)}, s{t+4} offen sc1'])
            if endstep + 3 < len(steps): sc.place(ops, endstep+3, endstep+12)
            else: tail_ops = ops
    print('phaseD overflow', sc.overflow(0, len(steps)-1))
    head = flat(D_dma(0) + D_dma(1))
    body = resolve_vm(head + ['MARK', 's_waitcnt vmcnt(@T0)', 's_barrier'] + sc.pre + sc.text(0, len(steps)-1))
    a(body[body.index('MARK')+1:])
    a('s_nop 7')
    a(flat(tail_ops))

def build_srds(a):
    P = PTR
    srd(a, S_WS, P+26, WS_BYTES); srd(a, S_CKV, P+2, 2048*1024*2); srd(a, S_XIN, P+0, 2048*448*2)
    a(f's_cmp_eq_u32 s{S_KVT}, 0')
    a(f's_cselect_b32 s{P+6}, s{P+6}, s{P+8}'); a(f's_cselect_b32 s{P+7}, s{P+7}, s{P+9}')
    srd(a, S_W, P+6, 1024*4096*2)
    srd(a, S_WQ, P+4, 448*4096*2); srd(a, S_W1, P+14, 448*1792*2); srd(a, S_WO, P+10, 4096*448*2)
    srd(a, S_W2, P+18, 1792*448*2); srd(a, S_B1, P+16, 1792*2); srd(a, S_DBG, P+24, 256)

def gen_mega(a, name='m_kernel', dbg=False):
    DBG[0] = dbg
    kstart(a, name)
    a.label('M_CODE_START')
    Lend = a.newlabel('MEND')
    a('s_cmp_ge_u32 s2, 256'); a(f's_cbranch_scc1 {Lend}')
    a(f's_load_dwordx16 s[{PTR}:{PTR+15}], s[0:1], 0')
    a(f's_load_dwordx8 s[{PTR+16}:{PTR+23}], s[0:1], 64')
    a(f's_load_dwordx4 s[{PTR+24}:{PTR+27}], s[0:1], 96')
    Lp = a.newlabel('PC')
    a(f's_getpc_b64 s[{S_PC}:{S_PC+1}]')
    a.label(Lp)
    a(f's_sub_u32 s{S_PC}, s{S_PC}, {Lp}-M_CODE_START'); a(f's_subb_u32 s{S_PC+1}, s{S_PC+1}, 0')
    a(flat(code_pf(0, 1, 200)))
    a('v_and_b32 v1, 63, v0')
    a('v_lshrrev_b32 v2, 6, v0')
    a(f'v_lshlrev_b32 v{V_L16}, 4, v1')
    a(f'v_readfirstlane_b32 s{S_WAVE}, v2')
    t = 4
    a(f's_and_b32 s{t}, s2, 7'); a(f's_lshr_b32 s{t+1}, s2, 3'); a(f's_and_b32 s{t+2}, s{t+1}, 1')
    a(f's_lshl_b32 s{t}, s{t}, 1'); a(f's_add_u32 s{S_H}, s{t}, s{t+2}')
    a(f's_lshr_b32 s{t+1}, s{t+1}, 1'); a(f's_and_b32 s{S_ROLE}, s{t+1}, 1'); a(f's_lshr_b32 s{S_I}, s{t+1}, 1')
    a(f's_lshl_b32 s{S_W4K}, s{S_WAVE}, 12'); a(f's_lshl_b32 s{S_W2K}, s{S_WAVE}, 11')
    a(f's_lshl_b32 s{S_PAIR}, s{S_H}, 3'); a(f's_add_u32 s{S_PAIR}, s{S_PAIR}, s{S_I}')
    a(f's_lshl_b32 s{S_FKV}, s{S_H}, 12'); a(f's_add_u32 s{S_FKV}, s{S_FKV}, {hex(WS_FLG)}')
    lo = sum(T0[i] << (8*i) for i in range(4)); hi = sum(T0[4+i] << (8*i) for i in range(4))
    a(f's_mov_b32 s{t}, {hex(lo)}'); a(f's_mov_b32 s{t+1}, {hex(hi)}')
    a(f's_lshl_b32 s{t+2}, s{S_I}, 3'); a(f's_lshr_b64 s[{t}:{t+1}], s[{t}:{t+1}], s{t+2}'); a(f's_and_b32 s{S_T0}, s{t}, 0xff')
    a(f's_sub_u32 s{S_EXT}, 15, s{S_I}')
    a(f's_cmp_eq_u32 s{S_ROLE}, 0'); a(f's_cselect_b32 s{S_OWN}, s{S_EXT}, s{S_I}')
    a(f's_mul_i32 s{S_HASX}, s{S_ROLE}, s{S_T0}')
    a(f's_mov_b32 s{S_QSC}, {f32(1.4426950408889634/16)}')
    a(f's_mov_b32 s{S_THR}, {f32(16.0)}')
    a('v_mov_b32 v3, 0x7fffff00'); a('v_cmp_eq_u32 vcc, 0, v0'); a(f'v_mov_b32 v{V_NONCE}, 0')
    a('v_lshlrev_b32 v2, 2, v0')
    a(f'v_cndmask_b32 v{V_SIG}, v3, 0, vcc')
    a('v_cmp_gt_u32 vcc, 16, v0'); a('s_nop 1')
    a(f'v_cndmask_b32 v{V_SIG16}, v3, v2, vcc')
    hist = phaseA(a)
    phaseB_main(a, True, hist)
    Lown = a.newlabel('OWN'); Lown2 = a.newlabel('OWN2')
    rl = {0: a.newlabel('RARE'), 1: a.newlabel('RARE'), 'stubs': []}
    def qsc(): a(f'v_mov_b32 v{B_QS}, s{S_QSC}'); a(f'v_mov_b32 v{B_QS+1}, s{S_QSC}')
    def own_params():
        a(f's_lshl_b32 s{S_RB}, s{S_OWN}, 2'); a(f's_add_u32 s{S_N}, s{S_RB}, 4'); a(f's_add_u32 s{S_RB}, s{S_RB}, s{S_WAVE}')
        a(f's_cmp_eq_u32 s{S_ROLE}, 0'); a(f's_cselect_b32 s{S_TS}, s{S_T0}, 0')
        a(f's_sub_u32 s{S_N}, s{S_N}, s{S_TS}')
    qsc()
    a(f's_sub_u32 s{S_PUBQ}, s{S_T0}, s{S_HASX}')
    own_params()
    a(f's_cmp_lg_u32 s{S_HASX}, 0'); a(f's_cselect_b32 s{S_N}, s{S_T0}, s{S_N}')
    a('s_waitcnt vmcnt(0)')
    spin_wait(a, S_FP)
    stamp(a, 8)
    phaseC_begin(a, 1)
    phaseB_epi(a)
    phaseC_begin(a, 2)
    phaseB_epi_h(a)
    Lq = a.newlabel('QF')
    a(f's_cmp_eq_u32 s{S_PUBQ}, 0'); a(f's_cbranch_scc1 {Lq}')
    a('s_waitcnt vmcnt(12)')
    a('s_barrier')
    a(f's_lshl_b32 s{S_T}, s{S_PAIR}, 8'); a(f's_add_u32 s{S_T}, s{S_T}, {hex(WS_FLG + 0x30000)}')
    a(f'buffer_store_dword v{V_NONCE}, v{V_SIG}, {sr(S_WS)}, s{S_T} offen sc1')
    a.label(Lq)
    stamp(a, 5)
    a(f's_cmp_eq_u32 s{S_HASX}, 0'); a(f's_cbranch_scc1 {Lown2}')
    phaseC(a, False, rl, after_first_wait=lambda a: stamp(a, 6))
    stamp(a, 9)
    own_params()
    phaseC_begin(a, 1)
    publish_stores(a)
    phaseC_begin(a, 2)
    a.label(Lown2)
    stamp(a, 10)
    t = S_T
    def afw(a):
        if OPT.get('pfd_c0'): a(flat(pfD(2)))
        if OPT.get('pfd_big', True): pfD_big(a)
    phaseC(a, True, rl, after_first_wait=afw)
    a.label('M_D_START')
    stamp(a, 11)
    phaseD_begin(a)
    finalize(a)
    stamp(a, 12)
    phaseD(a)
    if dbg:
        a('s_waitcnt vmcnt(0)')
        stamp(a, 13)
    a.label(Lend)
    a('s_endpgm')
    rare_subs(a, rl)
    a.label('M_CODE_END')
    kdesc(a, name, 512, 256, sgpr=102)
```

```python
from asmlib import *
from layout import *
from sched import *
import struct

def f32(x): return hex(struct.unpack('<I', struct.pack('<f', x))[0])
MF = 'v_mfma_f32_16x16x32_bf16'
DBG = [False]
OPT = dict(kv_sc1=True, a_pf=0, tlb=False)

S_WS, S_CKV, S_W, S_WQ, S_W1, S_WO, S_W2, S_B1, S_XIN, S_DBG = 4, 8, 12, 16, 20, 24, 28, 32, 36, 40
S_WAVE, S_H, S_ROLE, S_I, S_OWN, S_EXT, S_T0, S_HASX, S_W4K, S_W2K, S_PAIR, S_QSC, S_THR = range(44, 57)
S_KVT, S_KT = S_ROLE, S_I
S_SOX, S_SOW, S_DX, S_RX, S_CNT = 57, 58, 59, 60, 61
S_XO, S_KVO = 71, 62
S_DL = 86
S_KO, S_VO, S_PB, S_PO, S_RB, S_TS, S_N = 57, 58, 59, 60, 62, 63, 64
S_DO, S_D2, S_DS, S_PRT = 57, 58, 59, 60
S_FKV = 65
S_FP = 70
S_PUBQ = 68
S_PC = 66
S_T = 72
S_RET = 84
S_MK = 86
S_ST = 94
PTR = 72
V_L16, V_SIG, V_NONCE, V_POLL = 4, 5, 6, 7
V_SIG16, V_DUM = 30, 31
V_H = 128
A_QX, A_QO, A_H = 128, 192, 128
CNT_KV, CNT_XN = 128, 192

def stamp(a, idx, dyn=None):
    if not DBG[0]: return
    L = a.newlabel('ST')
    a(f's_cmp_lg_u32 s{S_WAVE}, 0'); a(f's_cbranch_scc1 {L}')
    a(f's_memtime s[{S_ST}:{S_ST+1}]'); a(f's_memrealtime s[{S_ST+2}:{S_ST+3}]')
    a('s_waitcnt lgkmcnt(0)')
    a(f'v_mov_b32 v2, s{S_ST}'); a(f'v_mov_b32 v3, s{S_ST+2}')
    a(f's_lshl_b32 s{S_ST}, s2, 8'); a(f's_add_u32 s{S_ST}, s{S_ST}, {hex(WS_DBG + idx*8)}')
    if dyn is not None:
        a(f's_lshl_b32 s{S_ST+1}, s{dyn}, 3'); a(f's_add_u32 s{S_ST}, s{S_ST}, s{S_ST+1}')
    a(f'buffer_store_dwordx2 v[2:3], v{V_SIG}, {sr(S_WS)}, s{S_ST} offen')
    a('s_nop 1')
    a.label(L)

def code_pf(off, n, vt):
    g = []
    for i in range(n):
        g.append([f'v_lshlrev_b32 v{vt}, 7, v0', f'v_add_u32 v{vt}, {off + i*32768}, v{vt}',
                  f'v_min_u32 v{vt}, M_CODE_END-M_CODE_START-4, v{vt}',
                  f'global_load_dword v31, v{vt}, s[{S_PC}:{S_PC+1}]'])
    return g

def spin_wait(a, soff, mask=0xffff):
    t = S_T
    Lok = a.newlabel('WOK'); Ls = a.newlabel('WSP')
    a(f's_cmp_lg_u32 s{S_WAVE}, 0'); a(f's_cbranch_scc1 {Lok}')
    a(f's_mov_b32 s{t+1}, 0')
    a.label(Ls)
    a(f'v_cmp_eq_u32 vcc, v{V_POLL}, v{V_NONCE}')
    a(f's_and_b32 s{t}, vcc_lo, {hex(mask)}')
    a(f's_cmp_eq_u32 s{t}, {hex(mask)}'); a(f's_cbranch_scc1 {Lok}')
    a('s_sleep 8')
    a(poll_issue(soff))
    a('s_waitcnt vmcnt(0)')
    a(f's_add_u32 s{t+1}, s{t+1}, 1')
    a(f's_cmp_lt_u32 s{t+1}, 20000'); a(f's_cbranch_scc1 {Ls}')
    a.label(Lok)

def poll_issue(soff):
    return [f'buffer_load_dword v{V_POLL}, v{V_SIG16}, {sr(S_WS)}, s{soff} offen sc1']

def xn_flag_addr(dst, qb):
    return [f's_lshl_b32 s{dst}, s{qb}, 12', f's_add_u32 s{dst}, s{dst}, {hex(WS_FLG + 0x10000)}']

def wave_reduce_sum(a, v, sd):
    for mod in ['quad_perm:[1,0,3,2]', 'quad_perm:[2,3,0,1]', 'row_half_mirror', 'row_mirror']:
        a('s_nop 1')
        a(f'v_add_f32 v{v}, v{v}, v{v} {mod} row_mask:0xf bank_mask:0xf')
    a('s_nop 1')
    for i in range(4): a(f'v_readlane_b32 s{sd+i}, v{v}, {16*i}')
    a('s_nop 1')
    a(f'v_mov_b32 v{v}, s{sd}')
    for i in range(1, 4): a(f'v_add_f32 v{v}, s{sd+i}, v{v}')

def bf16_round(a, d, s):
    a(f'v_cvt_pk_bf16_f32 v{d}, v{s}, v{s}')
    a(f'v_and_b32 v{d}, 0xffff0000, v{d}')

def ln_row(a, xr, f, t, sd, out):
    for i in range(4):
        a(f'v_lshlrev_b32 v{f+2*i}, 16, v{xr+i}')
        a(f'v_and_b32 v{f+2*i+1}, 0xffff0000, v{xr+i}')
    a(f'v_add_f32 v{t}, v{f}, v{f+1}')
    for i in range(2, 8): a(f'v_add_f32 v{t}, v{t}, v{f+i}')
    wave_reduce_sum(a, t, sd)
    a(f'v_mul_f32 v{t}, 0x3b124925, v{t}')
    a(f'v_mov_b32 v{t+1}, 0')
    a(f's_mov_b32 exec_hi, 0x00ffffff')
    for i in range(8):
        a(f'v_sub_f32 v{t+2}, v{f+i}, v{t}')
        a(f'v_fmac_f32 v{t+1}, v{t+2}, v{t+2}')
    a(f's_mov_b32 exec_hi, -1')
    wave_reduce_sum(a, t+1, sd)
    a(f'v_mul_f32 v{t+1}, 0x3b124925, v{t+1}')
    bf16_round(a, t, t)
    bf16_round(a, t+1, t+1)
    a(f'v_add_f32 v{t+1}, 0x3727c5ac, v{t+1}')
    bf16_round(a, t+1, t+1)
    a(f'v_sqrt_f32 v{t+1}, v{t+1}')
    a('s_nop 0')
    bf16_round(a, t+1, t+1)
    a(f'v_rcp_f32 v{t+2}, v{t+1}')
    a('s_nop 0')
    a(f'v_fma_f32 v{t+3}, -v{t+1}, v{t+2}, 1.0')
    a(f'v_fmac_f32 v{t+2}, v{t+3}, v{t+2}')
    for i in range(8): a(f'v_sub_f32 v{f+i}, v{f+i}, v{t}')
    for i in range(4): a(f'v_cvt_pk_bf16_f32 v{out+i}, v{f+2*i}, v{f+2*i+1}')
    for i in range(4):
        a(f'v_lshlrev_b32 v{f+2*i}, 16, v{out+i}')
        a(f'v_and_b32 v{f+2*i+1}, 0xffff0000, v{out+i}')
    for i in range(8): a(f'v_mul_f32 v{f+i}, v{f+i}, v{t+2}')
    for i in range(4): a(f'v_cvt_pk_bf16_f32 v{out+i}, v{f+2*i}, v{f+2*i+1}')

WSLOT, NWS = 16384, 4
XBASE, XSLOT, NXS = 65536, 32768, 3
A_VX, A_VW, A_XAB, A_XA, A_WA = 8, 12, 16, 18, 20
AF = [dict(X=32, W=64), dict(X=96, W=128)]

def A_dma_w(wslot):
    g = [[f's_add_u32 m0, s{S_W4K}, {wslot*WSLOT}', f's_add_u32 s{S_SOW}, s{S_SOW}, {32*8192}',
          f'buffer_load_dwordx4 v{A_VW}, {sr(S_W)}, s{S_SOW} offen lds']]
    for i in range(1, 4):
        g.append([f'buffer_load_dwordx4 v{A_VW+i}, {sr(S_W)}, s{S_SOW} offen offset:{1024*i} lds'])
    return g

def A_dma_x(half):
    if half == 0:
        so = S_SOX
        g = [[f's_mov_b32 m0, s{S_DX}', f's_add_u32 s{S_SOX}, s{S_SOX}, 128', f'buffer_load_dwordx4 v{A_VX}, {sr(S_CKV)}, s{so} offen lds']]
    else:
        so = S_T + 1
        g = [[f's_add_u32 m0, s{S_DX}, 16384', f's_add_u32 s{so}, s{S_SOX}, {128*2048}',
              f'buffer_load_dwordx4 v{A_VX}, {sr(S_CKV)}, s{so} offen lds']]
    for i in range(1, 4):
        g.append([f'buffer_load_dwordx4 v{A_VX+i}, {sr(S_CKV)}, s{so} offen offset:{1024*i} lds'])
    if half == 1:
        g[-1] += [f's_add_u32 s{S_DX}, s{S_DX}, {XSLOT}',
                  f's_cmp_ge_u32 s{S_DX}, {XBASE+NXS*XSLOT}\ns_cselect_b32 s{S_T}, {NXS*XSLOT}, 0',
                  f's_sub_u32 s{S_DX}, s{S_DX}, s{S_T}']
    return g

def A_reads(u):
    f = AF[u & 1]; ks = u & 1; ws = u % NWS
    def wr(db): return [f'ds_read_b64_tr_b16 {vr(f["W"]+4*db+2*h,2)}, v{A_WA+db} offset:{ws*WSLOT+2048*h}' for h in range(2)]
    r = wr(0)
    for kb in range(8): r.append(f'ds_read_b128 {vr(f["X"]+4*kb)}, v{A_XA+ks} offset:{2048*kb}')
    for db in range(1, 8): r += wr(db)
    return r

def A_order(vtype):
    if vtype: return [(db, 2*tt+h) for db in range(8) for tt in range(4) for h in range(2)]
    return [(2*s_+h, kb) for s_ in range(4) for kb in range(8) for h in range(2)]

def A_kstep(u, vtype, dmaw, dmax, vm, last=False, extras=(), head=()):
    out = list(head)
    if not last: out += [f's_waitcnt vmcnt({vm}) lgkmcnt(0)', 's_barrier']
    else: out += ['s_waitcnt lgkmcnt(0)']
    f = AF[u & 1]
    steps = []
    for i, (db, kb) in enumerate(A_order(vtype)):
        acc = ar(i*4, 4); w = vr(f['W']+4*db); x = vr(f['X']+4*kb)
        steps.append(Step([f'{MF} {acc}, {x}, {w}, {acc}' if vtype else f'{MF} {acc}, {w}, {x}, {acc}']))
    sc = Sched(steps, LA=0, first_issued=0)
    d = []
    if dmaw: d += A_dma_w(u % NWS)
    if dmax: d += A_dma_x(0 if (u & 1) else 1)
    if d: sc.place(tag(d, f'A{u}'), 2, 58)
    if not last:
        r = []
        if (u & 1) == 1:
            r += [f's_add_u32 s{S_RX}, s{S_RX}, {XSLOT}', f's_cmp_ge_u32 s{S_RX}, {NXS*XSLOT}\ns_cselect_b32 s{S_RX}, 0, s{S_RX}']
            r += [f'v_add_u32 v{A_XA+i}, s{S_RX}, v{A_XAB+i}' for i in range(2)]
        sc.place(r + A_reads(u+1), 0, 44)
    for (items, lo, hi) in extras: sc.place(items, lo, hi)
    return out + sc.text(0, 63)

PEND = 32

def phaseA(a):
    t = 4
    S_ROW0, S_ROWO = 68, 69
    a(f's_lshl_b32 s{t}, s{S_KT}, 3'); a(f's_add_u32 s{t}, s{t}, s{S_WAVE}'); a(f's_lshl_b32 s{t}, s{t}, 16')
    a('v_lshrrev_b32 v2, 3, v1'); a('v_lshlrev_b32 v2, 11, v2')
    a('v_and_b32 v3, 7, v1'); a('v_lshrrev_b32 v200, 4, v1'); a('v_xor_b32 v3, v3, v200')
    a(f'v_add_u32 v2, s{t}, v2')
    for i in range(4):
        a(f'v_xor_b32 v201, {4*(i&1)}, v3'); a('v_lshl_add_u32 v201, v201, 4, v2')
        a(f'v_add_u32 v{A_VX+i}, {i*(8*2048-1024)}, v201')
    w_voffsets(a, A_VW, t)
    a(f's_mov_b32 s{S_SOX}, -128'); a(f's_mov_b32 s{S_SOW}, {-32*8192}')
    a(f's_add_u32 s{S_DX}, s{S_W4K}, {XBASE}')
    a(f's_lshl_b32 s{t}, s2, 3'); a(f's_lshl_b32 s{t+1}, s{S_WAVE}, 1'); a(f's_add_u32 s{S_ROW0}, s{t}, s{t+1}')
    a(f's_mul_i32 s{S_ROWO}, s{S_ROW0}, 896')
    a('v_cmp_gt_u32 vcc, 56, v1')
    a('s_waitcnt lgkmcnt(0)')
    build_srds(a)
    t = S_T
    Ln = a.newlabel('NON')
    a('s_cmp_lg_u32 s2, 0'); a(f's_cbranch_scc1 {Ln}')
    a(f's_memrealtime s[{t}:{t+1}]'); a('s_waitcnt lgkmcnt(0)')
    a(f's_or_b32 s{t+2}, s{t}, 1'); a(f'v_mov_b32 v2, s{t+2}')
    a(f'buffer_store_dword v2, v{V_SIG}, {sr(S_DBG)}, 0 offen sc1')
    a.label(Ln)
    stamp(a, 0)
    a('v_mov_b32 v3, 0x7fffffff')
    a(f'v_cndmask_b32 v2, v3, v{V_L16}, vcc')
    a(f'buffer_load_dwordx4 v[160:163], v2, {sr(S_XIN)}, s{S_ROWO} offen')
    a(f'buffer_load_dwordx4 v[164:167], v2, {sr(S_XIN)}, s{S_ROWO} offen offset:896')
    a(flat(A_dma_w(0) + A_dma_x(0) + A_dma_x(1) + A_dma_w(1)))
    if OPT.get('tlb', True):
        a('v_lshlrev_b32 v2, 16, v1')
        Ls = [a.newlabel('TW') for _ in range(4)]
        for w, sd in enumerate((S_WQ, S_W1, S_WO, S_W2)):
            a(f's_cmp_lg_u32 s{S_WAVE}, {w}'); a(f's_cbranch_scc1 {Ls[w]}')
            a(f'buffer_load_dword v31, v2, {sr(sd)}, 0 offen')
            a.label(Ls[w])
    a(f's_and_b32 s{t}, s{S_WAVE}, 1'); a(f's_lshr_b32 s{t+1}, s{S_WAVE}, 1')
    a(f's_lshl_b32 s{t+2}, s{t}, 14'); a(f's_add_u32 s{t+2}, s{t+2}, {XBASE}')
    a('v_and_b32 v201, 15, v1'); a('v_lshrrev_b32 v200, 4, v1'); a('v_lshrrev_b32 v2, 1, v201')
    for ks in range(2):
        a(f'v_add_u32 v3, {4*ks}, v200'); a('v_xor_b32 v3, v3, v2'); a('v_lshlrev_b32 v3, 4, v3')
        a('v_lshl_add_u32 v3, v201, 7, v3')
        a(f'v_add_u32 v{A_XAB+ks}, s{t+2}, v3'); a(f'v_mov_b32 v{A_XA+ks}, v{A_XAB+ks}')
    a('v_bfe_u32 v3, v1, 2, 2')
    a('v_lshlrev_b32 v202, 12, v200'); a('v_lshl_add_u32 v202, v3, 9, v202')
    a('v_and_b32 v2, 3, v1'); a('v_lshl_add_u32 v202, v2, 3, v202')
    a(f's_lshl_b32 s{t+2}, s{t+1}, 8'); a(f'v_add_u32 v202, s{t+2}, v202')
    a('v_and_b32 v2, 1, v200'); a('v_lshl_or_b32 v3, v2, 2, v3')
    for db in range(8):
        a(f'v_xor_b32 v2, {db}, v3'); a(f'v_lshl_add_u32 v{A_WA+db}, v2, 5, v202')
    a(f's_mov_b32 s{S_RX}, 0')
    B_setup(a)
    for r in range(256): a(f'v_accvgpr_write_b32 a{r}, 0')
    a(flat(A_dma_x(0) + A_dma_w(2) + A_dma_x(1)))
    a(f's_waitcnt vmcnt({29 if OPT.get("tlb", True) else 28})')
    ln_row(a, 160, 168, 176, S_MK, 184)
    ln_row(a, 164, 168, 176, S_MK, 188)
    a(f's_lshr_b32 s{t}, s{S_ROW0}, 4'); a(f's_mul_i32 s{t}, s{t}, 14*1024'); a(f's_and_b32 s{t+1}, s{S_ROW0}, 15'); a(f's_lshl_b32 s{t+1}, s{t+1}, 4')
    a(f's_add_u32 s{t}, s{t}, s{t+1}'); a(f's_add_u32 s{t}, s{t}, {hex(WS_XN)}')
    a('v_lshlrev_b32 v2, 8, v1')
    a('s_mov_b32 exec_hi, 0x00ffffff')
    a(f'buffer_store_dwordx4 v[184:187], v2, {sr(S_WS)}, s{t} offen sc1')
    a(f'buffer_store_dwordx4 v[188:191], v2, {sr(S_WS)}, s{t} offen offset:16 sc1')
    a('s_mov_b32 exec_hi, -1')
    a(f's_waitcnt vmcnt({19 if OPT.get("tlb", True) else 18})')
    a('s_barrier')
    a(A_reads(0))
    a(flat(A_dma_w(3) + A_dma_x(0)))
    if OPT.get('pfb_pro'): a(flat(pfB() + cpfB()))
    stamp(a, 1)
    Lv = a.newlabel('AV'); Lj = a.newlabel('AJ')
    a(f's_cmp_eq_u32 s{S_KVT}, 1'); a(f's_cbranch_scc1 {Lv}')
    pf = pfB()
    for vtype in range(2):
        if vtype: a.label(Lv)
        a(f's_mov_b32 s{S_CNT}, 0')
        Ll = a.newlabel('AL'); a.label(Ll)
        for u in range(4): a(resolve_vm(A_kstep(u, vtype, True, True, 16)))
        Lm1 = a.newlabel('AM'); Lm2 = a.newlabel('AM'); Lm3 = a.newlabel('AM')
        if OPT.get('astamp'): stamp(a, 16, S_CNT)
        a(f's_add_u32 s{S_CNT}, s{S_CNT}, 1')
        a(f's_cmp_lg_u32 s{S_WAVE}, 0'); a(f's_cbranch_scc1 {Lm2}')
        a(f's_cmp_lg_u32 s{S_CNT}, 1'); a(f's_cbranch_scc1 {Lm1}')
        a(f'v_mov_b32 v2, 0')
        a(f'buffer_load_dword v{V_NONCE}, v2, {sr(S_DBG)}, 0 offen' + (' sc1' if OPT.get('nonce_sc1') else ''))
        a.label(Lm1)
        a(f's_cmp_lg_u32 s{S_CNT}, 3'); a(f's_cbranch_scc1 {Lm2}')
        a(f's_mov_b32 s{t+5}, 0')
        a.label(Lm3)
        a(f'v_readfirstlane_b32 s{t+4}, v{V_NONCE}')
        Lm4 = a.newlabel('AM')
        a(f's_cmp_lg_u32 s{t+4}, 0'); a(f's_cbranch_scc1 {Lm4}')
        a('s_sleep 8'); a(f'v_mov_b32 v2, 0')
        a(f'buffer_load_dword v{V_NONCE}, v2, {sr(S_DBG)}, 0 offen sc1')
        a('s_waitcnt vmcnt(0)')
        a(f's_add_u32 s{t+5}, s{t+5}, 1'); a(f's_cmp_lt_u32 s{t+5}, 20000'); a(f's_cbranch_scc1 {Lm3}')
        a.label(Lm4)
        a(f's_lshr_b32 s{t+4}, s2, 4'); a(xn_flag_addr(t+4, t+4))
        a(f's_and_b32 s{t+5}, s2, 15'); a(f's_lshl_b32 s{t+5}, s{t+5}, 2'); a(f's_add_u32 s{t+4}, s{t+4}, s{t+5}')
        a(f'buffer_store_dword v{V_NONCE}, v{V_SIG}, {sr(S_WS)}, s{t+4} offen sc1')
        a.label(Lm2)
        a(f's_cmp_lt_u32 s{S_CNT}, 6'); a(f's_cbranch_scc1 {Ll}')
        cpf = cpfB()
        kvs = [f's_lshl_b32 s{S_KVO}, s{S_H}, 21', f's_lshl_b32 s{t+4}, s{S_KT}, 18', f's_add_u32 s{S_KVO}, s{S_KVO}, s{t+4}',
               f's_and_b32 s{t+4}, s{S_WAVE}, 1', f's_lshl_b32 s{t+4}, s{t+4}, 17', f's_add_u32 s{S_KVO}, s{S_KVO}, s{t+4}',
               f's_lshr_b32 s{t+4}, s{S_WAVE}, 1', f's_lshl_b32 s{t+4}, s{t+4}, {13 if vtype else 12}', f's_add_u32 s{S_KVO}, s{S_KVO}, s{t+4}']
        if vtype: kvs.append(f's_add_u32 s{S_KVO}, s{S_KVO}, 16384')
        w_ = [32768, 65536, 1024, 2048] if vtype else [8192, 32768, 65536, 1024]
        for b in range(4): kvs.append(f's_mov_b32 s{S_DL+b}, {w_[b] - sum(w_[:b])}')
        xo = [f's_lshl_b32 s{t+4}, s{S_OWN}, 2', f's_add_u32 s{t+4}, s{t+4}, s{S_WAVE}', f's_mul_i32 s{t+4}, s{t+4}, {2*14336}',
              f's_add_u32 s{S_XO}, s{t+4}, {hex(WS_XN)}']
        bias = [f's_mul_i32 s{t+4}, s{S_H}, 224', 'v_lshrrev_b32 v200, 4, v1', 'v_lshlrev_b32 v200, 3, v200']
        bias += [f'buffer_load_dwordx2 {vr(B_TMP+2*fb,2)}, v200, {sr(S_B1)}, s{t+4} offen offset:{32*fb} ;@BIAS' for fb in range(7)]
        sw = Asm(); sw.nlab = a.nlab; spin_wait(sw, S_FP); a.nlab = sw.nlab
        chk = ['s_waitcnt vmcnt(@POLL)'] + [x.strip() + (' ;!' if x.strip().startswith('buffer_') else '') for x in sw.L]
        NW = OPT.get('nweave', 8); BH = OPT.get('bh', 0)
        ex = {25: [(kvs + xo, 46, 62)],
              26: [(xn_flag_addr(S_FP, S_OWN) + [poll_issue(S_FP)[0] + ' ;@POLL'], 5, 20)],
              28: [(pf + cpf, 0, 24)] + ([(B_dma_w(0, True), 32, 62)] if BH == 0 else []),
              29: [(B_dma_x(0) + [bias] + B_dma_w(1, True) + B_dma_x(1), 0, 60)] if BH == 0 else [],
              30: [(B_dma_w(2, True) + B_dma_x(2), 0, 50)] if BH == 0 else [(B_dma(0, True) + [bias] + B_dma(1, True) + B_dma(2, True), BH, 63)],
              31: [([x for k in range(NW) for x in pack_store(k, 208 + 8*(k & 1), True)], 10, 63)]}
        tail = []
        for k in (21, 22, 23): tail += [f'buffer_dummy ;@A{k}']*8
        tail.append('MARK')
        for u in range(24, 32):
            tail += A_kstep(u, vtype, u <= 27, u <= 26, f'@A{min(u-3, 27)}', last=(u == 31), extras=ex.get(u, ()), head=(chk if u == 29 else ()))
        tail.append('MARK2')
        hist = tail
        r = resolve_vm(tail)
        for x in r[r.index('MARK')+1:r.index('MARK2')]:
            if x.endswith(':'): a.raw(x)
            else: a(x)
        if vtype == 0: a(f's_branch {Lj}')
    a.label(Lj)
    stamp(a, 2)
    return hist

def pfB():
    t = S_T
    return [[f's_lshr_b32 s{t+4}, s2, 4', f's_mul_i32 s{t+4}, s{t+4}, 28', f's_mul_i32 s{t+5}, s{S_WAVE}, 7', f's_add_u32 s{t+4}, s{t+4}, s{t+5}'],
          ['v_lshrrev_b32 v200, 2, v1', 'v_min_u32 v200, 6, v200', f'v_add_u32 v200, s{t+4}, v200', 'v_and_b32 v201, 3, v1'],
          ['v_lshlrev_b32 v201, 7, v201', 'v_lshl_add_u32 v202, v200, 13, v201', f's_lshl_b32 s{t+4}, s{S_H}, 9',
           f'buffer_load_dword v31, v202, {sr(S_WQ)}, s{t+4} offen'],
          ['v_mul_u32_u24 v202, 3584, v200', 'v_add_u32 v202, v202, v201', f's_mul_i32 s{t+4}, s{S_H}, 224', f's_and_b32 s{t+4}, s{t+4}, 0xffffff80',
           f'buffer_load_dword v31, v202, {sr(S_W1)}, s{t+4} offen']]
def cpfB():
    t = S_T
    return [[f's_lshr_b32 s{t+4}, s2, 3', f's_mul_i32 s{t+4}, s{t+4}, 2560', f's_add_u32 s{t+4}, s{t+4}, 32768',
             'v_min_u32 v200, 19, v1', 'v_lshlrev_b32 v200, 7, v200', f'v_add_u32 v200, s{t+4}, v200',
             'v_min_u32 v200, M_CODE_END-M_CODE_START-4, v200', f'global_load_dword v31, v200, s[{S_PC}:{S_PC+1}]']]

def pfD_big(a):
    t = S_T
    L = a.newlabel('PD'); L7 = a.newlabel('PD'); La = a.newlabel('PD')
    a(f's_cmp_lt_u32 s{S_I}, 6'); a(f's_cbranch_scc1 {L}')
    a('v_lshlrev_b32 v2, 7, v0')
    a(f's_mul_i32 s{t+1}, s{S_H}, {256*896}'); a(f's_mul_i32 s{t+2}, s{S_H}, {112*896}')
    def wo(u): a(f's_add_u32 s{t}, s{t+1}, {u*32768}'); a(f'buffer_load_dword v31, v2, {sr(S_WO)}, s{t} offen')
    def w2(off): a(f's_add_u32 s{t}, s{t+2}, {off}'); a(f'buffer_load_dword v31, v2, {sr(S_W2)}, s{t} offen')
    n6 = OPT.get('pf_n6', 6)
    a(f's_cmp_eq_u32 s{S_ROLE}, 0'); a(f's_cbranch_scc1 {La}')
    a(f's_cmp_eq_u32 s{S_I}, 7'); a(f's_cbranch_scc1 {L7}')
    for u in range(n6): wo(u)
    a(f's_branch {L}')
    a.label(L7)
    for u in range(n6, 7): wo(u)
    for k in range(3): w2(k*32768)
    a(f's_branch {L}')
    a.label(La)
    a(f's_cmp_eq_u32 s{S_I}, 6'); a(f's_cbranch_scc1 {L}')
    a('v_min_u32 v3, 16256, v2')
    a(f's_add_u32 s{t}, s{t+2}, {3*32768}'); a(f'buffer_load_dword v31, v3, {sr(S_W2)}, s{t} offen')
    a('v_add_u32 v2, M_D_START-M_CODE_START-10240, v2'); a('v_min_u32 v2, M_CODE_END-M_CODE_START-4, v2')
    a(f'global_load_dword v31, v2, s[{S_PC}:{S_PC+1}]')
    a.label(L)

def pfD(v, code=True):
    t = S_T
    g = [[f's_lshr_b32 s{t+9}, s2, 4', f's_lshl_b32 s{t+9}, s{t+9}, 2', f's_add_u32 s{t+9}, s{t+9}, s{S_WAVE}',
          f's_lshl_b32 s{t+10}, s{S_H}, 6', f's_add_u32 s{t+10}, s{t+10}, s{t+9}', f's_mul_i32 s{t+10}, s{t+10}, {4*896}'],
         [f'v_lshlrev_b32 v{v}, 7, v1', f'v_min_u32 v{v}, 3580, v{v}', f'buffer_load_dword v31, v{v}, {sr(S_WO)}, s{t+10} offen'],
         [f's_mul_i32 s{t+10}, s{S_H}, {112*896}', f's_mul_i32 s{t+11}, s{t+9}, {2*896}', f's_add_u32 s{t+10}, s{t+10}, s{t+11}',
          f'v_min_u32 v{v}, 1788, v{v}', f'buffer_load_dword v31, v{v}, {sr(S_W2)}, s{t+10} offen']]
    if code:
        g += [[f's_lshl_b32 s{t+9}, s{t+9}, 9',
          f'v_min_u32 v{v}, 384, v{v}', f'v_add_u32 v{v}, s{t+9}, v{v}', f'v_add_u32 v{v}, M_D_START-M_CODE_START-10240, v{v}',
          f'v_min_u32 v{v}, M_CODE_END-M_CODE_START-4, v{v}', f'global_load_dword v31, v{v}, s[{S_PC}:{S_PC+1}]']]
    return g

def pack_store(k, tb, store):
    ops = [f'v_accvgpr_read_b32 v{tb+e}, a{8*k+e}' for e in range(8)]
    ops += [f'v_cvt_pk_bf16_f32 v{PEND+4*k+e}, v{tb+2*e}, v{tb+2*e+1}' for e in range(4)]
    if store:
        st = kv_store(k)
        ops = st[:-1] + ops + st[-1:]
    return ops

def kv_store(k):
    ops = []
    if k > 0:
        b = min((k & -k).bit_length() - 1, 3)
        ops.append(f's_add_u32 s{S_KVO}, s{S_KVO}, s{S_DL+b}')
    ops.append(f'buffer_store_dwordx4 {vr(PEND+4*k)}, v{V_L16}, {sr(S_WS)}, s{S_KVO} offen {OPT.get("kvf", "sc1")} ;@KVST')
    return ops

def w_voffsets(a, dst, t):
    a(f's_lshl_b32 s{t}, s{S_WAVE}, 16'); a(f's_lshl_b32 s{t+1}, s{S_H}, 9'); a(f's_add_u32 s{t}, s{t}, s{t+1}')
    a(f's_and_b32 s{t+1}, s{S_WAVE}, 1'); a(f's_lshl_b32 s{t+1}, s{t+1}, 2')
    a('v_lshrrev_b32 v200, 5, v1'); a('v_and_b32 v201, 31, v1'); a('v_lshrrev_b32 v202, 1, v201')
    a(f'v_xor_b32 v202, s{t+1}, v202'); a('v_and_b32 v203, 1, v201')
    for i in range(4):
        a(f'v_add_u32 v2, {(2*i)&3}, v200'); a('v_xor_b32 v2, v202, v2'); a('v_lshl_add_u32 v2, v2, 1, v203')
        a('v_lshlrev_b32 v2, 4, v2'); a('v_lshl_add_u32 v2, v200, 13, v2')
        a(f'v_add_u32 v2, {2*i*8192-1024*i}, v2'); a(f'v_add_u32 v{dst+i}, s{t}, v2')

B_VW, B_V1, B_VX1 = A_VW, 28, 255
B_WA, B_1A = 240, 248
B_XF = 160
B_WF, B_NB = 192, 8
B_TMP = 224
B_QS = 8
W1BASE = 98304

def B_setup(a):
    t = S_T
    a(f's_and_b32 s{t+1}, s{S_WAVE}, 1'); a(f's_lshl_b32 s{t+1}, s{t+1}, 2')
    a(f's_mul_i32 s{t}, s{S_WAVE}, {8*3584}'); a(f's_mul_i32 s{t+2}, s{S_H}, 224'); a(f's_add_u32 s{t}, s{t}, s{t+2}')
    a('v_lshrrev_b32 v200, 4, v1'); a('v_and_b32 v201, 15, v1'); a('v_lshrrev_b32 v202, 1, v201')
    a(f'v_xor_b32 v202, s{t+1}, v202'); a('v_xor_b32 v202, v200, v202'); a('v_and_b32 v203, 1, v201')
    a('v_lshl_add_u32 v2, v202, 1, v203'); a('v_lshlrev_b32 v2, 4, v2')
    a('v_mul_u32_u24 v3, 3584, v200'); a('v_add_u32 v2, v2, v3')
    a(f'v_add_u32 v{B_V1}, s{t}, v2'); a(f'v_add_u32 v{B_V1+1}, {4*3584-1024}, v{B_V1}')
    a(f'v_add_u32 v{B_VX1}, 14336, v{V_L16}')
    a('v_bfe_u32 v201, v1, 2, 2')
    a('v_lshl_add_u32 v202, v200, 3, v201')
    a('v_and_b32 v203, 3, v1'); a('v_lshlrev_b32 v203, 3, v203')
    a('v_and_b32 v2, 1, v200'); a('v_lshl_or_b32 v201, v2, 2, v201')
    a('v_lshl_add_u32 v204, v202, 9, v203')
    a('v_lshl_add_u32 v205, v202, 8, v203'); a(f'v_add_u32 v205, {W1BASE}, v205')
    for d in range(8):
        a(f'v_xor_b32 v2, {d}, v201')
        a(f'v_lshl_add_u32 v{B_WA+d}, v2, 5, v204')
        if d < 7: a(f'v_lshl_add_u32 v{B_1A+d}, v2, 5, v205')

def B_dma_w(u, ffn):
    sl = u % 4; t = S_T + 2
    g = [[f's_add_u32 m0, s{S_W4K}, {sl*16384}', f's_mov_b32 s{t}, {u*32*8192}',
          f'buffer_load_dwordx4 v{B_VW}, {sr(S_WQ)}, s{t} offen lds']]
    for i in range(1, 4): g.append([f'buffer_load_dwordx4 v{B_VW+i}, {sr(S_WQ)}, s{t} offen offset:{1024*i} lds'])
    if ffn:
        g.append([f's_add_u32 m0, s{S_W2K}, {W1BASE+sl*8192}', f's_mov_b32 s{t}, {u*32*3584}',
                  f'buffer_load_dwordx4 v{B_V1}, {sr(S_W1)}, s{t} offen lds'])
        g.append([f'buffer_load_dwordx4 v{B_V1+1}, {sr(S_W1)}, s{t} offen offset:1024 lds'])
    return tag(g, f'B{u}')

def B_dma_x(u):
    sl = u % 4; t = S_T + 3
    g = [[f's_add_u32 s{t}, s{S_XO}, {u*1024}',
          f'buffer_load_dwordx4 {vr(B_XF+sl*8)}, v{V_L16}, {sr(S_WS)}, s{t} offen'],
         [f'buffer_load_dwordx4 {vr(B_XF+sl*8+4)}, v{B_VX1}, {sr(S_WS)}, s{t} offen']]
    return tag(g, f'B{u}')

def B_dma(u, ffn): return B_dma_w(u, ffn) + B_dma_x(u)

def B_head(ffn):
    h = []
    for u in range(3): h += flat(B_dma(u, ffn))
    return h

def phaseB_begin_ext(a):
    t = S_T
    spin_wait(a, S_FP)
    a(f's_lshl_b32 s{t}, s{S_EXT}, 2'); a(f's_add_u32 s{t}, s{t}, s{S_WAVE}'); a(f's_mul_i32 s{t}, s{t}, {2*14336}')
    a(f's_add_u32 s{S_XO}, s{t}, {hex(WS_XN)}')
    a('s_barrier')
    a(resolve_vm(B_head(False)))

def phaseB_main(a, ffn, hist):
    pre = []
    NW = OPT.get('nweave', 8); NL = 23
    if ffn:
        pre.append('s_nop 7')
        nst_pre = OPT.get('nst_pre', 6)
        for k in range(NW, NL):
            pre += pack_store(k, 208 + 8*(k & 1), False)
            if (k - NW) % 2 == 1 and NW + (k - NW)//2 < NW + nst_pre: pre += kv_store(NW + (k - NW)//2)
        nsd = NW + min(nst_pre, (NL - NW)//2)
        pre.append('s_waitcnt vmcnt(@BIAS)')
        for fb in range(7):
            for k in range(2):
                pre += [f'v_lshlrev_b32 v2, 16, v{B_TMP+2*fb+k}', f'v_and_b32 v3, 0xffff0000, v{B_TMP+2*fb+k}']
                for qb in range(2):
                    pre += [f'v_accvgpr_write_b32 a{128+(fb*2+qb)*4+2*k}, v2', f'v_accvgpr_write_b32 a{128+(fb*2+qb)*4+2*k+1}, v3']
    pre += ['s_waitcnt vmcnt(@B0)', 's_barrier', 'STAMP']
    nf = 23 if ffn else 16
    steps = []
    for u in range(14):
        sl = u % 4
        for f in range(nf):
            buf = B_WF + (len(steps) % B_NB)*4
            if f < 16:
                rd = [f'ds_read_b64_tr_b16 {vr(buf+2*h,2)}, v{B_WA+(f&7)} offset:{sl*16384+2048*h+256*(f>>3)}' for h in range(2)]
                acc = f*8
            else:
                rd = [f'ds_read_b64_tr_b16 {vr(buf+2*h,2)}, v{B_1A+f-16} offset:{sl*8192+1024*h}' for h in range(2)]
                acc = 128 + (f-16)*8
            mf = []
            for qb in range(2):
                c = '0' if (u == 0 and f < 16) else ar(acc+4*qb)
                mf.append(f'{MF} {ar(acc+4*qb)}, {vr(buf)}, {vr(B_XF+sl*8+4*qb)}, {c}')
            steps.append(Step(mf, rd))
    LA = 6
    bp = {}
    for u in range(13):
        bp[u] = (u+1)*nf - LA - 1
        steps[bp[u]].pre += [f's_waitcnt vmcnt(@B{u+1})', 's_barrier']
        for f in range(nf): steps[(u+1)*nf+f].gate = bp[u]
    SIGU = OPT.get('sigu', 11)
    if ffn:
        steps[bp[SIGU]].pre.insert(0, 's_waitcnt vmcnt(@KVST)')
    sc = Sched(steps, LA=LA, wait_group=2)
    sc.place(B_dma(3, ffn), 0, bp[0]-2)
    for u in range(1, 11):
        sc.place(B_dma(u+3, ffn), bp[u], bp[u+1]-2)
    if ffn:
        st_ = []
        for k in range(nsd, 32):
            st_ += kv_store(k) if k < NL else pack_store(k, B_TMP + 8*(k & 1), True)
        sc.place(st_, 0, bp[OPT.get('st_end', 8)])
        sc.place([[f's_lshr_b32 s{S_T+7}, s2, 4', f's_lshl_b32 s{S_T+7}, s{S_T+7}, 2', f's_add_u32 s{S_T+7}, s{S_T+7}, s{S_FKV}',
                   f'buffer_store_dword v{V_NONCE}, v{V_SIG}, {sr(S_WS)}, s{S_T+7} offen sc1']], bp[SIGU], bp[SIGU]+3)
    pl = [f's_mov_b32 s{S_FP}, s{S_FKV}']
    sc.place([pl], len(steps)-9, len(steps)-5)
    print('phaseB overflow', sc.overflow(0, len(steps)-1))
    body = resolve_vm(hist + ['MARKB'] + pre + sc.pre + sc.text(0, len(steps)-1))
    for x in body[body.index('MARKB')+1:]:
        if x == 'STAMP': stamp(a, 3 if ffn else 6)
        else: a(x)
    stamp(a, 4 if ffn else 7)

def qx_base(a, d):
    a(f's_lshl_b32 s{d}, s{S_PAIR}, 16'); a(f's_lshl_b32 s{d+1}, s{S_WAVE}, 14'); a(f's_add_u32 s{d}, s{d}, s{d+1}')
    a(f's_add_u32 s{d}, s{d}, {hex(WS_QX)}')

def phaseB_epi(a):
    t = S_T
    a('s_nop 3')
    qx_base(a, t)
    a(f's_cmp_eq_u32 s{S_PUBQ}, 0'); a(f's_cselect_b32 s{t}, 0x70000000, s{t}')
    k = 0
    for s in range(8):
        for qb in range(2):
            d = A_QO + (s*2+qb)*4
            tb = B_TMP + 8 + 4*(k & 1)
            for half in range(2):
                src = ((2*s+half)*2+qb)*4
                for e in range(4): a(f'v_accvgpr_read_b32 v{B_TMP+4*half+e}, a{src+e}')
            for e in range(0, 8, 2): a(f'v_pk_mul_f32 {vr(B_TMP+e,2)}, {vr(B_TMP+e,2)}, {vr(B_QS,2)}')
            for e in range(4): a(f'v_cvt_pk_bf16_f32 v{tb+e}, v{B_TMP+2*e}, v{B_TMP+2*e+1}')
            if k % 4 == 0 and k: a(f's_add_u32 s{t}, s{t}, 4096')
            a(f'buffer_store_dwordx4 {vr(tb)}, v{V_L16}, {sr(S_WS)}, s{t} offen offset:{1024*(k%4)} sc1')
            for e in range(4): a(f'v_accvgpr_write_b32 a{d+e}, v{tb+e}')
            k += 1

def phaseB_epi_h(a):
    for ks in range(4):
        for qb in range(2):
            d = V_H + (ks*2+qb)*4
            for half in range(2):
                fb = 2*ks + half
                if fb == 7:
                    a(f'v_mov_b32 v{d+2}, 0'); a(f'v_mov_b32 v{d+3}, 0'); continue
                src = 128 + (fb*2+qb)*4
                for e in range(4): a(f'v_accvgpr_read_b32 v{B_TMP+e}, a{src+e}')
                for e in range(4): a(f'v_max_f32 v{B_TMP+e}, 0, v{B_TMP+e}')
                for e in range(0, 4, 2): a(f'v_pk_mul_f32 {vr(B_TMP+e,2)}, {vr(B_TMP+e,2)}, {vr(B_TMP+e,2)}')
                for e in range(2): a(f'v_cvt_pk_bf16_f32 v{d+2*half+e}, v{B_TMP+2*e}, v{B_TMP+2*e+1}')

def fetch_qx(a):
    t = S_T
    a(f's_lshl_b32 s{S_FP}, s{S_PAIR}, 8'); a(f's_add_u32 s{S_FP}, s{S_FP}, {hex(WS_FLG + 0x30000)}')
    a(poll_issue(S_FP))
    a('s_waitcnt vmcnt(0)')
    spin_wait(a, S_FP, mask=1)
    a('s_barrier')
    qx_base(a, t)
    for k in range(16):
        if k % 4 == 0 and k: a(f's_add_u32 s{t}, s{t}, 4096')
        a(f'buffer_load_dwordx4 {ar(A_QX+4*k)}, v{V_L16}, {sr(S_WS)}, s{t} offen offset:{1024*(k%4)} sc1')

C_KA, C_VA, C_VD, C_DV, C_DV0, C_TM, C_NINF, C_ONE = 8, 9, 10, 11, 12, 13, 14, 16
C_BP16, C_BP32 = 20, 21
C_T = 22
C_S = [32, 48]
C_P, C_NM, C_L = 64, 72, 80
C_F, C_NB = 88, 8
C_MRG = 128

def C_dma(kind, m0expr):
    so = S_KO if kind == 'K' else S_VO
    g = [[m0expr, f's_add_u32 s{so}, s{so}, 32768', f'buffer_load_dwordx4 v{C_VD}, {sr(S_WS)}, s{so} offen lds']]
    for i in range(1, 4): g.append([f'buffer_load_dwordx4 v{C_VD}, {sr(S_WS)}, s{so} offen offset:{1024*i} lds'])
    return g

def mask_ops(S):
    el = [(kb, qb, r) for kb in range(2) for qb in range(2) for r in range(4)]
    ops = []
    for i in range(0, 16, 4):
        for k in range(4):
            kb, qb, r = el[i+k]
            ops.append(f'v_cmp_gt_i32 s[{S_MK+2*k}:{S_MK+2*k+1}], {16*(kb-qb)+r}, v{C_DV}')
        for k in range(4):
            kb, qb, r = el[i+k]; reg = S + (kb*2+qb)*4 + r
            ops.append(f'v_cndmask_b32 v{reg}, v{reg}, v{C_NINF}, s[{S_MK+2*k}:{S_MK+2*k+1}]')
    return ops

def max_ops(S):
    ops = [f'v_max3_f32 v{C_TM}, v{S}, v{S+1}, v{S+2}']
    for i in range(3, 15, 2): ops.append(f'v_max3_f32 v{C_TM}, v{C_TM}, v{S+i}, v{S+i+1}')
    ops.append(f'v_max_f32 v{C_TM}, v{C_TM}, v{S+15}')
    return ops

def rowmax(a, S, qb, d):
    r = [S + (kb*2+qb)*4 + e for kb in range(2) for e in range(4)]
    a(f'v_max3_f32 v{d}, v{r[0]}, v{r[1]}, v{r[2]}')
    a(f'v_max3_f32 v{d}, v{d}, v{r[3]}, v{r[4]}')
    a(f'v_max3_f32 v{d}, v{d}, v{r[5]}, v{r[6]}')
    a(f'v_max_f32 v{d}, v{d}, v{r[7]}')
    for bp in (C_BP16, C_BP32):
        a(f'ds_bpermute_b32 v{C_T+7}, v{bp}, v{d}')
        a('s_waitcnt lgkmcnt(0)')
        a(f'v_max_f32 v{d}, v{d}, v{C_T+7}')

def rare_path(a, S, first):
    a('s_nop 7')
    for qb in range(2):
        d = C_T + qb
        rowmax(a, S, qb, d)
        if not first: a(f'v_max_f32 v{d}, 0, v{d}')
        for kb in range(2):
            for e in range(4):
                r = S + (kb*2+qb)*4 + e
                a(f'v_sub_f32 v{r}, v{r}, v{d}')
        for e in range(4): a(f'v_sub_f32 v{C_NM+4*qb+e}, v{C_NM+4*qb+e}, v{d}')
        if not first:
            al = C_T + 2 + qb
            a(f'v_exp_f32 v{al}, -v{d}')
            a('s_nop 0')
            for e in range(4): a(f'v_mul_f32 v{C_L+4*qb+e}, v{C_L+4*qb+e}, v{al}')
            for db in range(16):
                o = (db*2+qb)*4
                for e in range(3): a(f'v_accvgpr_read_b32 v{C_T+4+e}, a{o+e}')
                a(f'v_accvgpr_read_b32 v2, a{o+3}')
                for e in range(3): a(f'v_mul_f32 v{C_T+4+e}, v{C_T+4+e}, v{al}')
                a(f'v_mul_f32 v2, v2, v{al}')
                for e in range(3): a(f'v_accvgpr_write_b32 a{o+e}, v{C_T+4+e}')
                a(f'v_accvgpr_write_b32 a{o+3}, v2')
    a('s_nop 1')

def softmax_ops(S):
    ops = []
    for qb in range(2):
        for kb in range(2):
            b = S + (kb*2+qb)*4
            for e in range(4): ops.append(f'v_exp_f32 v{b+e}, v{b+e}')
        for kb in range(2):
            b = S + (kb*2+qb)*4
            for e in range(2): ops.append(f'v_cvt_pk_bf16_f32 v{C_P+4*qb+2*kb+e}, v{b+2*e}, v{b+2*e+1}')
    return ops

def phaseC_begin(a, part=3):
    t = S_T
    lst = [('K', 0), ('K', 1), ('V', 0), ('K', 2), ('V', 1), ('K', 3)]
    if part & 1:
        a('s_barrier')
        a(f's_lshl_b32 s{t}, s{S_H}, 21'); a(f's_lshl_b32 s{t+1}, s{S_TS}, 15'); a(f's_add_u32 s{S_KO}, s{t}, s{t+1}')
        a(f's_sub_u32 s{S_KO}, s{S_KO}, 32768')
        a(f's_add_u32 s{S_VO}, s{S_KO}, 16384')
        a(f'v_add_u32 v{C_VD}, s{S_W4K}, v{V_L16}')
    for kind, sl in (lst[:3] if part & 1 else []) + (lst[3:] if part & 2 else []):
        a(flat(C_dma(kind, f's_add_u32 m0, s{S_W4K}, {(0 if kind=="K" else 65536) + sl*16384}')))

def phaseC(a, own, rl, after_first_wait=None, tail_extra=None):
    t = S_T
    AQ = A_QO if own else A_QX
    NBUF = C_NB
    a(f's_mov_b32 s{S_PB}, s{S_W4K}'); a(f's_xor_b32 s{S_PO}, s{S_PB}, 0x8000')
    a(f'v_mov_b32 v{C_KA}, v{V_L16}'); a(f'v_add_u32 v{C_VA}, 0x18000, v{V_L16}')
    if own:
        a('v_and_b32 v2, 15, v1'); a('v_lshrrev_b32 v3, 4, v1'); a('v_lshlrev_b32 v3, 2, v3'); a(f'v_sub_u32 v{C_DV0}, v2, v3')
        a(f's_sub_u32 s{t}, s{S_RB}, s{S_TS}'); a(f's_lshl_b32 s{t}, s{t}, 5')
        a(f'v_add_u32 v{C_DV}, s{t}, v{C_DV0}')
        a(f'v_mov_b32 v{C_NINF}, 0xff800000')
        for r in range(32): a(f'v_accvgpr_write_b32 a{A_H+r}, v{V_H+r}')
    for e in range(4): a(f'v_mov_b32 v{C_ONE+e}, 0x3f803f80')
    a(f'v_xor_b32 v{C_BP16}, 16, v1'); a(f'v_lshlrev_b32 v{C_BP16}, 2, v{C_BP16}')
    a(f'v_xor_b32 v{C_BP32}, 32, v1'); a(f'v_lshlrev_b32 v{C_BP32}, 2, v{C_BP32}')
    for e in range(8): a(f'v_mov_b32 v{C_NM+e}, 0'); a(f'v_mov_b32 v{C_L+e}, 0')
    for r in range(128): a(f'v_accvgpr_write_b32 a{r}, 0')
    if own:
        Lw = a.newlabel('FW'); Lw2 = a.newlabel('FW')
        a(f's_cmp_eq_u32 s{S_HASX}, 0'); a(f's_cbranch_scc1 {Lw}')
        a('s_waitcnt vmcnt(45)'); a(f's_branch {Lw2}')
        a.label(Lw); a('s_waitcnt vmcnt(12)'); a.label(Lw2)
    else:
        fetch_qx(a)
        a('s_waitcnt vmcnt(0)')
    a('s_barrier')
    if after_first_wait: after_first_wait(a)
    n = 10
    NM2, NM3, NM4 = 7, 10, 10
    steps = []; start = {}; h2s = {}
    cnt = [0]
    def nbuf():
        b = C_F + (cnt[0] % OPT.get('c_nb', 8))*4; cnt[0] += 1; return b
    def ksteps(j, cinit):
        S = C_S[j & 1]
        for kb in range(2):
            for s in range(8):
                buf = nbuf()
                rd = f'ds_read_b128 {vr(buf)}, v{C_KA} offset:{(j&1)*16384 + (kb*8+s)*1024}'
                pv = f'v_xor_b32 v{C_KA}, 0x8000, v{C_KA}' if (kb == 0 and s == 0 and (j & 1) == 0 and j > 0) else None
                mf = []
                for qb in range(2):
                    d = vr(S + (kb*2+qb)*4)
                    c = d if s > 0 else (cinit if cinit is not None else vr(C_NM+4*qb))
                    mf.append(f'{MF} {d}, {vr(buf)}, {ar(AQ+(s*2+qb)*4)}, {c}')
                steps.append(Step(mf, [rd], prev=pv))
    def vsteps(j):
        for db in range(16):
            buf = nbuf()
            rd = f'ds_read_b128 {vr(buf)}, v{C_VA} offset:{(j&1)*16384 + db*1024}'
            pv = f'v_xor_b32 v{C_VA}, 0x8000, v{C_VA}' if (db == 0 and (j & 1) == 0) else None
            mf = [f'{MF} {ar((db*2+qb)*4)}, {vr(buf)}, {vr(C_P+4*qb)}, {ar((db*2+qb)*4)}' for qb in range(2)]
            if db == 15:
                mf += [f'{MF} {vr(C_L+4*qb)}, {vr(C_ONE)}, {vr(C_P+4*qb)}, {vr(C_L+4*qb)}' for qb in range(2)]
            steps.append(Step(mf, [rd], prev=pv))
    start[-1] = 0
    ksteps(0, '0')
    for j in range(n):
        start[j] = len(steps)
        if j < n-1: ksteps(j+1, None)
        h2s[j] = len(steps)
        vsteps(j)
        tail = j - (n-6)
        vm = {0: 12, 1: 12, 2: 8, 3: (4 + NM2 if own else 4), 4: (NM2 + NM3 if own else 0)}.get(max(tail, 0), None)
        if vm is not None: steps[h2s[j]+2].pre += [f's_waitcnt vmcnt({vm})', 's_barrier']
        if j == n-1: steps[h2s[j]].block += softmax_ops(C_S[j & 1]) + ['s_nop 1']
    start[n] = len(steps)
    sc = Sched(steps, LA=OPT.get('c_la', 7), wait_group=OPT.get('c_wg', 4), wait_first=True)
    for j in range(n):
        p = j & 1; h2 = h2s[j]; end = start[j+1] - 1; tail = j - (n-6)
        if j < n-1:
            S = C_S[p]
            regs = [S + (kb*2+qb)*4 + e for qb in range(2) for kb in range(2) for e in range(4)]
            for k in range(16):
                sc.put(start[j]+k, 0, f'v_exp_f32 v{regs[k]}, v{regs[k]}')
                if k & 1: sc.put(start[j]+k, 1, f'v_cvt_pk_bf16_f32 v{C_P+k//2}, v{regs[k-1]}, v{regs[k]}')
        dv = C_dma('V', f's_add_u32 m0, s{S_PO if p==0 else S_PB}, {65536 + (16384 if p==0 else 0)}') if tail <= 2 else None
        dk = C_dma('K', f's_add_u32 m0, s{S_PB if p==0 else S_PO}, {16384 if p==0 else 0}') if tail <= 0 else None
        if dv:
            dv = flat(dv)
            sc.put(h2, 0, dv[0]); sc.put(h2, 0, dv[1])
            for x, st_ in zip(dv[2:], (2, 4, 5, 6)): sc.put(h2+st_, 0, x)
        else: sc.put(h2, 0, 's_nop 0')
        if dk:
            dk = flat(dk)
            sc.put(h2+7, 0, dk[0]); sc.put(h2+7, 0, dk[1])
            for x, st_ in zip(dk[2:], (8, 9, 10, 12)): sc.put(h2+st_, 0, x)
        if own:
            ml = merge_loads()
            if tail == 2: sc.place(ml[:NM2], h2+7, end)
            if tail == 3: sc.place(ml[NM2:NM2+NM3], h2+2, end)
            if tail == 3: sc.place(D_setup(), start[j], h2-1)
            if tail == 4: sc.place(ml[NM2+NM3:NM2+NM3+NM4], h2+2, end)
            if tail == 5: sc.place(ml[NM2+NM3+NM4:] + flat(D_dma(0)), h2, end)
        if p == 1:
            e = [f's_xor_b32 s{S_PB}, s{S_PB}, 0x8000', f's_xor_b32 s{S_PO}, s{S_PO}, 0x8000']
            if j < 4: e += [f's_sub_u32 s{S_CNT}, s{S_CNT}, 2', f's_cmp_lg_u32 s{S_CNT}, 0']
            sc.place(e, end-2, end)
        if j < n-1:
            Sn = C_S[p ^ 1]; ops = []
            if own and tail >= 1: ops += [f'v_subrev_u32 v{C_DV}, 32, v{C_DV}'] + mask_ops(Sn)
            ops += max_ops(Sn) + [f'v_cmp_lt_f32 vcc, s{S_THR}, v{C_TM}']
            sc.place(ops, h2+3, end)
    def text(j0, j1): return sc.text(start[j0], start[j1+1]-1)
    def emit_iter(j):
        tx = resolve_vm(text(j, j))
        if own and j == n-6:
            a(f's_lshl_b32 s{S_FP}, s{S_PAIR}, 8'); a(f's_add_u32 s{S_FP}, s{S_FP}, {hex(WS_FLG + 0x20000)}')
            a(poll_issue(S_FP))
        if own and j == n-4:
            L = a.newlabel('NMC')
            for x in merge_setup(): a(x.split('\n'))
            a(f's_cmp_eq_u32 s{S_TS}, 0'); a(f's_cbranch_scc1 {L}')
            a('s_waitcnt vmcnt(12)')
            spin_wait(a, S_FP, mask=1)
            a.label(L)
        ab = OPT.get('ablate', '')
        if 'dma' in ab: tx = [x for x in tx if not (x.startswith('buffer_load') or 'vmcnt' in x)]
        if 'bar' in ab: tx = [x for x in tx if not x.startswith('s_barrier')]
        if 'exp' in ab: tx = [x for x in tx if not x.startswith('v_exp')]
        if 'max' in ab: tx = [x for x in tx if not x.startswith('v_max')]
        if 'read' in ab: tx = [x for x in tx if not (x.startswith('ds_read') or 'lgkmcnt' in x)]
        a(tx)
        if j < n-1 and not ab:
            Lb = a.newlabel('CB'); Ls = a.newlabel('CS')
            a(f's_cbranch_vccnz {Ls}')
            a.label(Lb)
            rl['stubs'].append((Ls, Lb, (j&1)^1))
    assert text(0, 1) == text(2, 3), 'not periodic'
    print('phaseC overflow per pair', sc.overflow(start[2], start[4]-1))
    if own: stamp(a, 14)
    a(sc.pre)
    a(text(-1, -1))
    if own: stamp(a, 15)
    if own: a('s_waitcnt vmcnt(12)')
    a('s_barrier')
    if own: publish_flag(a)
    a(flat(C_dma('V', f's_add_u32 m0, s{S_W4K}, {65536+2*16384}') + C_dma('K', f's_mov_b32 m0, s{S_W4K}')))
    if own: a(mask_ops(C_S[0]))
    rare_path(a, C_S[0], True)
    if own: stamp(a, 16)
    Ltail4 = a.newlabel('CT4'); Ltail = a.newlabel('CT6'); Lloop = a.newlabel('CL')
    if own:
        a(f's_add_u32 s{t}, s{S_TS}, s{S_N}'); a(f's_sub_u32 s{t}, s{S_RB}, s{t}'); a(f's_add_u32 s{t}, s{t}, 5'); a(f's_lshl_b32 s{t}, s{t}, 5')
        a(f's_cmp_eq_u32 s{S_N}, 4'); a(f's_cbranch_scc1 {Ltail4}')
        a(f'v_add_u32 v{C_DV}, s{t}, v{C_DV0}')
    a(f's_sub_u32 s{S_CNT}, s{S_N}, 6')
    a(f's_cmp_eq_u32 s{S_CNT}, 0'); a(f's_cbranch_scc1 {Ltail}')
    a.label(Lloop)
    emit_iter(2); emit_iter(3)
    a(f's_cbranch_scc1 {Lloop}')
    a.label(Ltail)
    if own: stamp(a, 17)
    emit_iter(4); emit_iter(5)
    if own: a.label(Ltail4)
    for j in range(6, 10): emit_iter(j)

def rare_subs(a, rl):
    for (Ls, Lb, p) in rl['stubs']:
        a.label(Ls)
        a(f's_cselect_b32 s{S_T+8}, 1, 0')
        a(f's_getpc_b64 s[{S_RET}:{S_RET+1}]')
        Lp = a.newlabel('CP'); a.label(Lp)
        a(f's_sub_u32 s{S_RET}, s{S_RET}, {Lp}-{Lb}'); a(f's_subb_u32 s{S_RET+1}, s{S_RET+1}, 0')
        a(f's_branch {rl[p]}')
    for p in range(2):
        a.label(rl[p])
        rare_path(a, C_S[p], False)
        a(f's_cmp_lg_u32 s{S_T+8}, 0')
        a(f's_setpc_b64 s[{S_RET}:{S_RET+1}]')

def op_base(a, d):
    a(f's_mul_i32 s{d}, s{S_PAIR}, {OP_PAIR}'); a(f's_mul_i32 s{d+1}, s{S_WAVE}, {OP_WAVE}')
    a(f's_add_u32 s{d}, s{d}, s{d+1}'); a(f's_add_u32 s{d}, s{d}, {hex(WS_OP)}')

def publish_stores(a):
    t = S_T
    a('s_nop 7')
    op_base(a, t)
    for k in range(32):
        if k % 4 == 0 and k: a(f's_add_u32 s{t}, s{t}, 4096')
        a(f'buffer_store_dwordx4 {ar(4*k)}, v{V_L16}, {sr(S_WS)}, s{t} offen offset:{1024*(k%4)} sc1')
    a(f's_add_u32 s{t}, s{t}, 4096')
    a(f'v_mov_b32 v{C_T}, v{C_NM}'); a(f'v_mov_b32 v{C_T+1}, v{C_NM+4}'); a(f'v_mov_b32 v{C_T+2}, v{C_L}'); a(f'v_mov_b32 v{C_T+3}, v{C_L+4}')
    a(f'buffer_store_dwordx4 {vr(C_T)}, v{V_L16}, {sr(S_WS)}, s{t} offen sc1')
    a('s_nop 1')

def publish_flag(a):
    L = a.newlabel('PF')
    a(f's_cmp_eq_u32 s{S_HASX}, 0'); a(f's_cbranch_scc1 {L}')
    a(f's_lshl_b32 s{S_T}, s{S_PAIR}, 8'); a(f's_add_u32 s{S_T}, s{S_T}, {hex(WS_FLG + 0x20000)}')
    a(f'buffer_store_dword v{V_NONCE}, v{V_SIG}, {sr(S_WS)}, s{S_T} offen sc1')
    a.label(L)

D_CTX = 32
D_WF, D_NB = 176, 8
D_ACC = 128
D_PK = 160
D_VO = 120
D_RA, D_RB = 20, 24
D_ST1 = 28
DSLOT = 49152
S_MB = 71
C_ML = 124

def merge_setup():
    t = S_T + 4
    return [f's_mul_i32 s{S_MB}, s{S_PAIR}, {OP_PAIR}', f's_mul_i32 s{t}, s{S_WAVE}, {OP_WAVE}',
            f's_add_u32 s{S_MB}, s{S_MB}, s{t}', f's_add_u32 s{S_MB}, s{S_MB}, {hex(WS_OP)}',
            f's_cmp_eq_u32 s{S_TS}, 0\ns_cselect_b32 s{S_MB}, 0x70000000, s{S_MB}']

def merge_loads():
    t = S_T + 4
    g = [[f's_add_u32 s{t}, s{S_MB}, 32768', f'buffer_load_dwordx4 {vr(C_ML)}, v{V_L16}, {sr(S_WS)}, s{t} offen sc1']]
    for k in range(32):
        pre = [f's_add_u32 s{S_MB}, s{S_MB}, 4096'] if (k % 4 == 0 and k) else []
        g.append(pre + [f'buffer_load_dwordx4 {vr(C_MRG+4*k)}, v{V_L16}, {sr(S_WS)}, s{S_MB} offen offset:{1024*(k%4)} sc1'])
    return g

def D_setup():
    t = S_T + 5
    r = ['v_lshrrev_b32 v2, 3, v1', 'v_mul_u32_u24 v3, 896, v2', 'v_bfe_u32 v2, v1, 4, 2', f'v_bfe_u32 v{D_VO}, v1, 1, 2', f'v_xor_b32 v2, v2, v{D_VO}',
         f'v_and_b32 v{D_VO}, 1, v1', f'v_lshl_add_u32 v2, v2, 1, v{D_VO}', 'v_lshl_add_u32 v3, v2, 4, v3']
    r += [f'v_add_u32 v{D_VO+i}, {i*(8*896-1024)}, v3' for i in range(4)]
    r += [f's_lshl_b32 s{t}, s{S_H}, 8', f's_lshl_b32 s{t+1}, s{S_WAVE}, 6', f's_add_u32 s{t}, s{t}, s{t+1}', f's_mul_i32 s{S_DO}, s{t}, 896',
          f's_mul_i32 s{t}, s{S_H}, 112', f's_lshl_b32 s{t+1}, s{S_WAVE}, 5', f's_add_u32 s{t}, s{t}, s{t+1}', f's_mul_i32 s{S_D2}, s{t}, 896']
    return r

def finalize(a):
    t = S_T
    Lno = a.newlabel('NOMRG'); Ldone = a.newlabel('FIN')
    a(f's_cmp_lg_u32 s{S_TS}, 0'); a(f's_cbranch_scc0 {Lno}')
    a('s_waitcnt vmcnt(24)')
    for qb in range(2):
        nm_a = C_NM + 4*qb; nm_b = C_ML + qb; l_a = C_L + 4*qb; l_b = C_ML + 2 + qb
        sa = 8 + 2*qb; sb = 16 + 2*qb
        a(f'v_min_f32 v2, v{nm_a}, v{nm_b}')
        a(f'v_sub_f32 v3, v2, v{nm_a}'); a(f'v_exp_f32 v{sa}, v3')
        a(f'v_sub_f32 v3, v2, v{nm_b}'); a(f'v_exp_f32 v{sb}, v3')
        a('s_nop 0')
        a(f'v_mul_f32 v2, v{sa}, v{l_a}'); a(f'v_fmac_f32 v2, v{sb}, v{l_b}')
        a('v_rcp_f32 v2, v2'); a('s_nop 0')
        a(f'v_mul_f32 v{sa}, v{sa}, v2'); a(f'v_mul_f32 v{sb}, v{sb}, v2')
        a(f'v_mov_b32 v{sa+1}, v{sa}'); a(f'v_mov_b32 v{sb+1}, v{sb}')
    k = 0
    for s in range(8):
        for qb in range(2):
            for half in range(2):
                o = ((2*s+half)*2+qb)*4; tb = 12 if k & 1 else 20; k += 1
                for e in range(4): a(f'v_accvgpr_read_b32 v{tb+e}, a{o+e}')
                for e in (0, 2): a(f'v_pk_mul_f32 {vr(C_MRG+o+e,2)}, {vr(C_MRG+o+e,2)}, {vr(16+2*qb,2)}')
                for e in (0, 2): a(f'v_pk_fma_f32 {vr(tb+e,2)}, {vr(tb+e,2)}, {vr(8+2*qb,2)}, {vr(C_MRG+o+e,2)}')
                for e in range(2): a(f'v_cvt_pk_bf16_f32 v{D_CTX+(s*2+qb)*4+2*half+e}, v{tb+2*e}, v{tb+2*e+1}')
    a(f's_branch {Ldone}')
    a.label(Lno)
    for qb in range(2): a(f'v_rcp_f32 v{8+2*qb}, v{C_L+4*qb}')
    a('s_nop 0')
    for qb in range(2): a(f'v_mov_b32 v{9+2*qb}, v{8+2*qb}')
    for s in range(8):
        for qb in range(2):
            for half in range(2):
                o = ((2*s+half)*2+qb)*4; tb = 12 if k & 1 else 20; k += 1
                for e in range(4): a(f'v_accvgpr_read_b32 v{tb+e}, a{o+e}')
                for e in (0, 2): a(f'v_pk_mul_f32 {vr(tb+e,2)}, {vr(tb+e,2)}, {vr(8+2*qb,2)}')
                for e in range(2): a(f'v_cvt_pk_bf16_f32 v{D_CTX+(s*2+qb)*4+2*half+e}, v{tb+2*e}, v{tb+2*e+1}')
    a.label(Ldone)

def D_dma(tile):
    t = S_T; sl = (tile % 3)*DSLOT
    g = []
    for half in range(2):
        first = [f's_lshl_b32 s{t}, s{S_W4K}, 1'] if half == 0 else []
        first += [f's_add_u32 m0, s{t}, {sl + 4096*half}', f's_add_u32 s{t+1}, s{S_DO}, {half*32*896 + tile*128}']
        for i in range(4):
            g.append((first if i == 0 else []) + [f'buffer_load_dwordx4 v{D_VO+i}, {sr(S_WO)}, s{t+1} offen offset:{1024*i} lds'])
    first = [f's_add_u32 m0, s{S_W4K}, {sl + 32768}', f's_add_u32 s{t+1}, s{S_D2}, {tile*128}']
    for i in range(4):
        g.append((first if i == 0 else []) + [f'buffer_load_dwordx4 v{D_VO+i}, {sr(S_W2)}, s{t+1} offen offset:{1024*i} lds'])
    return tag(g, f'T{tile}')

def phaseD_begin(a):
    a('s_barrier')
    a(resolve_vm(flat(D_dma(1))))

def phaseD(a):
    t = S_T
    a('v_lshrrev_b32 v2, 2, v1'); a('v_bfe_u32 v3, v1, 3, 2')
    a('v_and_b32 v8, 3, v1'); a('v_lshlrev_b32 v8, 3, v8'); a('v_lshl_add_u32 v8, v2, 7, v8')
    for c in range(4):
        a(f'v_xor_b32 v2, {c}, v3'); a(f'v_lshl_add_u32 v{D_RB+c}, v2, 5, v8')
    a(f's_lshl_b32 s{t}, s{S_H}, 7'); a(f's_lshl_b32 s{t+1}, s{S_OWN}, 3'); a(f's_add_u32 s{t}, s{t}, s{t+1}')
    a(f's_lshl_b32 s{t+1}, s{S_WAVE}, 1'); a(f's_add_u32 s{t}, s{t}, s{t+1}'); a(f's_mul_i32 s{t}, s{t}, 14336')
    a(f's_add_u32 s{S_PRT}, s{t}, {hex(WS_PART)}')
    a(f'v_add_u32 v{D_ST1}, 14336, v{V_L16}')
    steps = []
    for tile in range(7):
        sl = tile % 3
        for c in range(4):
            for ks in range(12):
                buf = D_WF + (len(steps) % D_NB)*4
                rd = [f'ds_read_b64_tr_b16 {vr(buf+2*h,2)}, v{D_RA+c} offset:{4096*ks+2048*h}' for h in range(2)]
                pv = f'v_add_u32 v{D_RA+c}, {sl*DSLOT}, v{D_RB+c}' if ks == 0 else None
                mf = []
                for qb in range(2):
                    d = vr(D_ACC + (c*2+qb)*4)
                    b = vr(D_CTX + (ks*2+qb)*4) if ks < 8 else ar(A_H + ((ks-8)*2+qb)*4)
                    mf.append(f'{MF} {d}, {vr(buf)}, {b}, {d if ks else "0"}')
                steps.append(Step(mf, rd, prev=pv))
    nst = 48; LA = 6
    bp = {}
    for tile in range(6):
        bp[tile] = (tile+1)*nst - LA - 1
        steps[bp[tile]].pre += [f's_waitcnt vmcnt(@T{tile+1})', 's_barrier']
        for f in range(nst): steps[(tile+1)*nst+f].gate = bp[tile]
    sc = Sched(steps, LA=LA, wait_group=2)
    sc.place(D_dma(2), 0, 24)
    for tile in range(1, 5): sc.place(D_dma(tile+2), bp[tile], bp[tile]+OPT.get('d_dw', 9))
    tail_ops = None
    for tile in range(7):
        for cp in range(2):
            v = tile*2 + cp
            endstep = (tile*4 + cp*2 + 2)*12
            ops = []
            for qb in range(2):
                pk = D_PK + (cp*2+qb)*4
                for half in range(2):
                    src = D_ACC + ((cp*2+half)*2+qb)*4
                    for e in range(2): ops.append(f'v_cvt_pk_bf16_f32 v{pk+2*half+e}, v{src+2*e}, v{src+2*e+1}')
                st = [f's_add_u32 s{t+4}, s{S_PRT}, {v*1024}'] if qb == 0 else []
                ops.append(st + [f'buffer_store_dwordx4 {vr(pk)}, v{V_L16 if qb==0 else D_ST1}, {sr(S_WS)}, s{t+4} offen sc1'])
            if endstep + 3 < len(steps): sc.place(ops, endstep+3, endstep+12)
            else: tail_ops = ops
    print('phaseD overflow', sc.overflow(0, len(steps)-1))
    head = flat(D_dma(0) + D_dma(1))
    body = resolve_vm(head + ['MARK', 's_waitcnt vmcnt(@T0)', 's_barrier'] + sc.pre + sc.text(0, len(steps)-1))
    a(body[body.index('MARK')+1:])
    a('s_nop 7')
    a(flat(tail_ops))

def build_srds(a):
    P = PTR
    srd(a, S_WS, P+26, WS_BYTES); srd(a, S_CKV, P+2, 2048*1024*2); srd(a, S_XIN, P+0, 2048*448*2)
    a(f's_cmp_eq_u32 s{S_KVT}, 0')
    a(f's_cselect_b32 s{P+6}, s{P+6}, s{P+8}'); a(f's_cselect_b32 s{P+7}, s{P+7}, s{P+9}')
    srd(a, S_W, P+6, 1024*4096*2)
    srd(a, S_WQ, P+4, 448*4096*2); srd(a, S_W1, P+14, 448*1792*2); srd(a, S_WO, P+10, 4096*448*2)
    srd(a, S_W2, P+18, 1792*448*2); srd(a, S_B1, P+16, 1792*2); srd(a, S_DBG, P+24, 256)

def gen_mega(a, name='m_kernel', dbg=False):
    DBG[0] = dbg
    kstart(a, name)
    a.label('M_CODE_START')
    Lend = a.newlabel('MEND')
    a('s_cmp_ge_u32 s2, 256'); a(f's_cbranch_scc1 {Lend}')
    a(f's_load_dwordx16 s[{PTR}:{PTR+15}], s[0:1], 0')
    a(f's_load_dwordx8 s[{PTR+16}:{PTR+23}], s[0:1], 64')
    a(f's_load_dwordx4 s[{PTR+24}:{PTR+27}], s[0:1], 96')
    Lp = a.newlabel('PC')
    a(f's_getpc_b64 s[{S_PC}:{S_PC+1}]')
    a.label(Lp)
    a(f's_sub_u32 s{S_PC}, s{S_PC}, {Lp}-M_CODE_START'); a(f's_subb_u32 s{S_PC+1}, s{S_PC+1}, 0')
    a(flat(code_pf(0, 1, 200)))
    a('v_and_b32 v1, 63, v0')
    a('v_lshrrev_b32 v2, 6, v0')
    a(f'v_lshlrev_b32 v{V_L16}, 4, v1')
    a(f'v_readfirstlane_b32 s{S_WAVE}, v2')
    t = 4
    a(f's_and_b32 s{t}, s2, 7'); a(f's_lshr_b32 s{t+1}, s2, 3'); a(f's_and_b32 s{t+2}, s{t+1}, 1')
    a(f's_lshl_b32 s{t}, s{t}, 1'); a(f's_add_u32 s{S_H}, s{t}, s{t+2}')
    a(f's_lshr_b32 s{t+1}, s{t+1}, 1'); a(f's_and_b32 s{S_ROLE}, s{t+1}, 1'); a(f's_lshr_b32 s{S_I}, s{t+1}, 1')
    a(f's_lshl_b32 s{S_W4K}, s{S_WAVE}, 12'); a(f's_lshl_b32 s{S_W2K}, s{S_WAVE}, 11')
    a(f's_lshl_b32 s{S_PAIR}, s{S_H}, 3'); a(f's_add_u32 s{S_PAIR}, s{S_PAIR}, s{S_I}')
    a(f's_lshl_b32 s{S_FKV}, s{S_H}, 12'); a(f's_add_u32 s{S_FKV}, s{S_FKV}, {hex(WS_FLG)}')
    lo = sum(T0[i] << (8*i) for i in range(4)); hi = sum(T0[4+i] << (8*i) for i in range(4))
    a(f's_mov_b32 s{t}, {hex(lo)}'); a(f's_mov_b32 s{t+1}, {hex(hi)}')
    a(f's_lshl_b32 s{t+2}, s{S_I}, 3'); a(f's_lshr_b64 s[{t}:{t+1}], s[{t}:{t+1}], s{t+2}'); a(f's_and_b32 s{S_T0}, s{t}, 0xff')
    a(f's_sub_u32 s{S_EXT}, 15, s{S_I}')
    a(f's_cmp_eq_u32 s{S_ROLE}, 0'); a(f's_cselect_b32 s{S_OWN}, s{S_EXT}, s{S_I}')
    a(f's_mul_i32 s{S_HASX}, s{S_ROLE}, s{S_T0}')
    a(f's_mov_b32 s{S_QSC}, {f32(1.4426950408889634/16)}')
    a(f's_mov_b32 s{S_THR}, {f32(16.0)}')
    a('v_mov_b32 v3, 0x7fffff00'); a('v_cmp_eq_u32 vcc, 0, v0'); a(f'v_mov_b32 v{V_NONCE}, 0')
    a('v_lshlrev_b32 v2, 2, v0')
    a(f'v_cndmask_b32 v{V_SIG}, v3, 0, vcc')
    a('v_cmp_gt_u32 vcc, 16, v0'); a('s_nop 1')
    a(f'v_cndmask_b32 v{V_SIG16}, v3, v2, vcc')
    hist = phaseA(a)
    phaseB_main(a, True, hist)
    Lown = a.newlabel('OWN'); Lown2 = a.newlabel('OWN2')
    rl = {0: a.newlabel('RARE'), 1: a.newlabel('RARE'), 'stubs': []}
    def qsc(): a(f'v_mov_b32 v{B_QS}, s{S_QSC}'); a(f'v_mov_b32 v{B_QS+1}, s{S_QSC}')
    def own_params():
        a(f's_lshl_b32 s{S_RB}, s{S_OWN}, 2'); a(f's_add_u32 s{S_N}, s{S_RB}, 4'); a(f's_add_u32 s{S_RB}, s{S_RB}, s{S_WAVE}')
        a(f's_cmp_eq_u32 s{S_ROLE}, 0'); a(f's_cselect_b32 s{S_TS}, s{S_T0}, 0')
        a(f's_sub_u32 s{S_N}, s{S_N}, s{S_TS}')
    qsc()
    a(f's_sub_u32 s{S_PUBQ}, s{S_T0}, s{S_HASX}')
    own_params()
    a(f's_cmp_lg_u32 s{S_HASX}, 0'); a(f's_cselect_b32 s{S_N}, s{S_T0}, s{S_N}')
    phaseB_epi(a)
    a(poll_issue(S_FP))
    a('s_waitcnt vmcnt(0)')
    spin_wait(a, S_FP)
    stamp(a, 8)
    phaseC_begin(a, 1)
    Lq = a.newlabel('QF')
    a(f's_cmp_eq_u32 s{S_PUBQ}, 0'); a(f's_cbranch_scc1 {Lq}')
    a(f's_lshl_b32 s{S_T}, s{S_PAIR}, 8'); a(f's_add_u32 s{S_T}, s{S_T}, {hex(WS_FLG + 0x30000)}')
    a(f'buffer_store_dword v{V_NONCE}, v{V_SIG}, {sr(S_WS)}, s{S_T} offen sc1')
    a.label(Lq)
    phaseB_epi_h(a)
    phaseC_begin(a, 2)
    stamp(a, 5)
    a(f's_cmp_eq_u32 s{S_HASX}, 0'); a(f's_cbranch_scc1 {Lown2}')
    phaseC(a, False, rl, after_first_wait=lambda a: stamp(a, 6))
    stamp(a, 9)
    own_params()
    phaseC_begin(a, 1)
    publish_stores(a)
    phaseC_begin(a, 2)
    a.label(Lown2)
    stamp(a, 10)
    t = S_T
    def afw(a):
        if OPT.get('pfd_c0'): a(flat(pfD(2)))
        if OPT.get('pfd_big', True): pfD_big(a)
    phaseC(a, True, rl, after_first_wait=afw)
    a.label('M_D_START')
    stamp(a, 11)
    phaseD_begin(a)
    finalize(a)
    stamp(a, 12)
    phaseD(a)
    if dbg:
        a('s_waitcnt vmcnt(0)')
        stamp(a, 13)
    a.label(Lend)
    a('s_endpgm')
    rare_subs(a, rl)
    a.label('M_CODE_END')
    kdesc(a, name, 512, 256, sgpr=102)
```

```python
import build, mega, layout, importlib, mega_v3
for name, o in [('p24', dict(pollat=24)), ('p12', dict(pollat=12)), ('p24s10', dict(pollat=24, sigu=10, st_end=7))]:
    build.build(f'ab_{name}.s', dbg=True, **o)
```

```python
import sys
from asmlib import *
import mega, k3
def build(path, dbg=False, plain=False, **opt):
    mega.OPT.update(opt)
    a = Asm()
    if plain: a.raw('; @launch grid=(256,1,1) block=(256,1,1) lds=163840')
    else: a.raw(f'; @launch kernel=m_kernel grid=(256,1,1) block=(256,1,1) lds=163840')
    fuse = mega.OPT.get('fuse_r', True)
    if not fuse: a.raw(f'; @launch kernel=k3_kernel grid=(256,1,1) block=(448,1,1) lds=0')
    a.raw('.amdgcn_target "amdgcn-amd-amdhsa--gfx950"')
    mega.gen_mega(a, name=(NAME + '_kernel' if plain else 'm_kernel'), dbg=dbg)
    if not fuse: k3.gen_k3(a, dbg=dbg)
    open(path, 'w').write(compact(a.text()))
if __name__ == '__main__':
    build('full_dbg.s', dbg=True)
    build('full_list.s', dbg=False)
    build('cdna_kernels/' + NAME + '.s', dbg=False, plain=True)
```

```python
from asmlib import *
from layout import *
def gen_k3(a, name='k3_kernel', dbg=False):
    kstart(a, name)
    Lend = a.newlabel('K3END')
    a('s_cmp_ge_u32 s2, 256'); a(f's_cbranch_scc1 {Lend}')
    if dbg: a('s_memrealtime s[32:33]')
    a('s_load_dwordx2 s[4:5], s[0:1], 0')
    a('s_load_dwordx4 s[20:23], s[0:1], 80')
    a('s_load_dwordx2 s[6:7], s[0:1], 104')
    a('v_and_b32 v1, 63, v0'); a('v_lshrrev_b32 v2, 6, v0')
    a('s_mul_i32 s3, s2, 7')
    a('v_readfirstlane_b32 s24, v2')
    a('v_lshlrev_b32 v3, 4, v1')
    a('s_add_u32 s24, s24, s3')
    a('s_mul_hi_u32 s25, s24, 0x1249249a')
    a('s_mul_i32 s26, s25, 14'); a('s_sub_u32 s26, s24, s26')
    a('s_lshl_b32 s27, s24, 14'); a(f's_add_u32 s27, s27, {hex(WS_PART)}')
    a('s_waitcnt lgkmcnt(0)')
    srd(a, 8, 6, WS_BYTES); srd(a, 12, 4, 2048*448*2); srd(a, 16, 20, 448*2); srd(a, 28, 22, 2048*448*2)
    for h in range(16):
        a(f'buffer_load_dwordx4 {vr(16+4*h)}, v3, s[8:11], s27 offen offset:{(h%4)*1024}')
        if h % 4 == 3 and h < 15: a(f's_add_u32 s27, s27, 4096')
    a('v_and_b32 v4, 15, v1'); a('v_mul_u32_u24 v4, 896, v4'); a('v_lshrrev_b32 v5, 4, v1'); a('v_lshlrev_b32 v5, 3, v5')
    a('v_add_u32 v4, v4, v5')
    a('s_mul_i32 s25, s25, 16*896'); a('s_lshl_b32 s26, s26, 6'); a('s_add_u32 s25, s25, s26')
    a('buffer_load_dwordx2 v[80:81], v4, s[12:15], s25 offen')
    a('buffer_load_dwordx2 v[82:83], v4, s[12:15], s25 offen offset:32')
    a('buffer_load_dwordx2 v[84:85], v5, s[16:19], s26 offen')
    a('buffer_load_dwordx2 v[86:87], v5, s[16:19], s26 offen offset:32')
    for h in range(18):
        a(f's_waitcnt vmcnt({max(19-h,0) if h < 16 else (2 if h == 16 else 0)})')
        src = 16 + 4*h
        for i in range(4):
            if h == 0:
                a(f'v_lshlrev_b32 v{8+2*i}, 16, v{src+i}'); a(f'v_and_b32 v{9+2*i}, 0xffff0000, v{src+i}')
            else:
                a(f'v_lshlrev_b32 v6, 16, v{src+i}'); a(f'v_and_b32 v7, 0xffff0000, v{src+i}')
                a(f'v_add_f32 v{8+2*i}, v{8+2*i}, v6'); a(f'v_add_f32 v{9+2*i}, v{9+2*i}, v7')
    for i in range(4): a(f'v_cvt_pk_bf16_f32 v{16+i}, v{8+2*i}, v{9+2*i}')
    a('buffer_store_dwordx2 v[16:17], v4, s[28:31], s25 offen')
    a('buffer_store_dwordx2 v[18:19], v4, s[28:31], s25 offen offset:32')
    if dbg:
        a('s_waitcnt vmcnt(0)')
        a('s_memrealtime s[34:35]'); a('s_waitcnt lgkmcnt(0)')
        a('v_mov_b32 v2, s32'); a('v_mov_b32 v3, s34'); a('s_lshl_b32 s36, s24, 3'); a(f's_add_u32 s36, s36, {hex(WS_DBG + 0x20000)}')
        a('v_mov_b32 v4, 0'); a('s_mov_b64 exec, 1')
        a('buffer_store_dwordx2 v[2:3], v4, s[8:11], s36 offen')
    a.label(Lend)
    a('s_endpgm')
    kdesc(a, name, 88, 88, sgpr=40)
```

```python
from asmlib import *
from layout import *
from sched import *
import struct

def f32(x): return hex(struct.unpack('<I', struct.pack('<f', x))[0])
MF = 'v_mfma_f32_16x16x32_bf16'
DBG = [False]
OPT = dict(kv_sc1=True, a_pf=0, tlb=False, cpf0=0, cpfs=8)

S_WS, S_CKV, S_W, S_WQ, S_W1, S_WO, S_W2, S_B1, S_XIN, S_DBG = 4, 8, 12, 16, 20, 24, 28, 32, 36, 40
S_WAVE, S_H, S_ROLE, S_I, S_OWN, S_EXT, S_T0, S_HASX, S_W4K, S_W2K, S_PAIR, S_QSC, S_THR = range(44, 57)
S_KVT, S_KT = S_ROLE, S_I
S_SOX, S_SOW, S_DX, S_RX, S_CNT = 57, 58, 59, 60, 61
S_XO, S_KVO = 71, 62
S_DL = 86
S_KO, S_VO, S_PB, S_PO, S_RB, S_TS, S_N = 57, 58, 59, 60, 62, 63, 64
S_DO, S_D2, S_DS, S_PRT = 57, 58, 59, 60
S_FKV = 65
S_FP = 70
S_PUBQ = 68
S_Q1 = 3
S_PC = 66
S_T = 72
S_RET = 84
S_MK = 86
S_ST = 94
PTR = 72
V_L16, V_SIG, V_NONCE, V_POLL = 4, 5, 6, 7
V_SIG16, V_DUM = 30, 31
V_H = 128
A_QX, A_QO, A_H = 128, 192, 128
CNT_KV, CNT_XN = 128, 192

def stamp(a, idx, dyn=None):
    if not DBG[0]: return
    L = a.newlabel('ST')
    a(f's_cmp_lg_u32 s{S_WAVE}, 0'); a(f's_cbranch_scc1 {L}')
    a(f's_memtime s[{S_ST}:{S_ST+1}]'); a(f's_memrealtime s[{S_ST+2}:{S_ST+3}]')
    a('s_waitcnt lgkmcnt(0)')
    a(f'v_mov_b32 v2, s{S_ST}'); a(f'v_mov_b32 v3, s{S_ST+2}')
    a(f's_lshl_b32 s{S_ST}, s2, 8'); a(f's_add_u32 s{S_ST}, s{S_ST}, {hex(WS_DBG + idx*8)}')
    if dyn is not None:
        a(f's_lshl_b32 s{S_ST+1}, s{dyn}, 3'); a(f's_add_u32 s{S_ST}, s{S_ST}, s{S_ST+1}')
    a(f'buffer_store_dwordx2 v[2:3], v{V_SIG}, {sr(S_WS)}, s{S_ST} offen')
    a('s_nop 1')
    a.label(L)

def code_pf(off, n, vt):
    g = []
    for i in range(n):
        g.append([f'v_lshlrev_b32 v{vt}, 7, v0', f'v_add_u32 v{vt}, {off + i*32768}, v{vt}',
                  f'v_min_u32 v{vt}, M_CODE_END-M_CODE_START-4, v{vt}',
                  f'global_load_dword v31, v{vt}, s[{S_PC}:{S_PC+1}]'])
    return g

def spin_wait(a, soff, mask=0xffff):
    t = S_T
    Lok = a.newlabel('WOK'); Ls = a.newlabel('WSP')
    a(f's_cmp_lg_u32 s{S_WAVE}, 0'); a(f's_cbranch_scc1 {Lok}')
    a(f's_mov_b32 s{t+1}, 0')
    a.label(Ls)
    a(f'v_cmp_eq_u32 vcc, v{V_POLL}, v{V_NONCE}')
    a(f's_and_b32 s{t}, vcc_lo, {hex(mask)}')
    a(f's_cmp_eq_u32 s{t}, {hex(mask)}'); a(f's_cbranch_scc1 {Lok}')
    a('s_sleep 8')
    a(poll_issue(soff))
    a('s_waitcnt vmcnt(0)')
    a(f's_add_u32 s{t+1}, s{t+1}, 1')
    a(f's_cmp_lt_u32 s{t+1}, 20000'); a(f's_cbranch_scc1 {Ls}')
    a.label(Lok)

def poll_issue(soff):
    return [f'buffer_load_dword v{V_POLL}, v{V_SIG16}, {sr(S_WS)}, s{soff} offen sc1']

def xn_flag_addr(dst, qb):
    return [f's_lshl_b32 s{dst}, s{qb}, 12', f's_add_u32 s{dst}, s{dst}, {hex(WS_FLG + 0x10000)}']

def wave_reduce_sum(a, v, sd):
    for mod in ['quad_perm:[1,0,3,2]', 'quad_perm:[2,3,0,1]', 'row_half_mirror', 'row_mirror']:
        a('s_nop 1')
        a(f'v_add_f32 v{v}, v{v}, v{v} {mod} row_mask:0xf bank_mask:0xf')
    a('s_nop 1')
    for i in range(4): a(f'v_readlane_b32 s{sd+i}, v{v}, {16*i}')
    a('s_nop 1')
    a(f'v_mov_b32 v{v}, s{sd}')
    for i in range(1, 4): a(f'v_add_f32 v{v}, s{sd+i}, v{v}')

def bf16_round(a, d, s):
    a(f'v_cvt_pk_bf16_f32 v{d}, v{s}, v{s}')
    a(f'v_and_b32 v{d}, 0xffff0000, v{d}')

def ln_row(a, xr, f, t, sd, out):
    for i in range(4):
        a(f'v_lshlrev_b32 v{f+2*i}, 16, v{xr+i}')
        a(f'v_and_b32 v{f+2*i+1}, 0xffff0000, v{xr+i}')
    a(f'v_add_f32 v{t}, v{f}, v{f+1}')
    for i in range(2, 8): a(f'v_add_f32 v{t}, v{t}, v{f+i}')
    wave_reduce_sum(a, t, sd)
    a(f'v_mul_f32 v{t}, 0x3b124925, v{t}')
    a(f'v_mov_b32 v{t+1}, 0')
    a(f's_mov_b32 exec_hi, 0x00ffffff')
    for i in range(8):
        a(f'v_sub_f32 v{t+2}, v{f+i}, v{t}')
        a(f'v_fmac_f32 v{t+1}, v{t+2}, v{t+2}')
    a(f's_mov_b32 exec_hi, -1')
    wave_reduce_sum(a, t+1, sd)
    a(f'v_mul_f32 v{t+1}, 0x3b124925, v{t+1}')
    bf16_round(a, t, t)
    bf16_round(a, t+1, t+1)
    a(f'v_add_f32 v{t+1}, 0x3727c5ac, v{t+1}')
    bf16_round(a, t+1, t+1)
    a(f'v_sqrt_f32 v{t+1}, v{t+1}')
    a('s_nop 0')
    bf16_round(a, t+1, t+1)
    a(f'v_rcp_f32 v{t+2}, v{t+1}')
    a('s_nop 0')
    a(f'v_fma_f32 v{t+3}, -v{t+1}, v{t+2}, 1.0')
    a(f'v_fmac_f32 v{t+2}, v{t+3}, v{t+2}')
    for i in range(8): a(f'v_sub_f32 v{f+i}, v{f+i}, v{t}')
    for i in range(4): a(f'v_cvt_pk_bf16_f32 v{out+i}, v{f+2*i}, v{f+2*i+1}')
    for i in range(4):
        a(f'v_lshlrev_b32 v{f+2*i}, 16, v{out+i}')
        a(f'v_and_b32 v{f+2*i+1}, 0xffff0000, v{out+i}')
    for i in range(8): a(f'v_mul_f32 v{f+i}, v{f+i}, v{t+2}')
    for i in range(4): a(f'v_cvt_pk_bf16_f32 v{out+i}, v{f+2*i}, v{f+2*i+1}')

WSLOT, NWS = 16384, 4
XBASE, XSLOT, NXS = 65536, 32768, 3
A_VX, A_VW, A_XAB, A_XA, A_WA = 8, 12, 16, 18, 20
AF = [dict(X=32, W=64), dict(X=96, W=128)]

def A_dma_w(wslot):
    g = [[f's_add_u32 m0, s{S_W4K}, {wslot*WSLOT}', f's_add_u32 s{S_SOW}, s{S_SOW}, {32*8192}',
          f'buffer_load_dwordx4 v{A_VW}, {sr(S_W)}, s{S_SOW} offen lds']]
    for i in range(1, 4):
        g.append([f'buffer_load_dwordx4 v{A_VW+i}, {sr(S_W)}, s{S_SOW} offen offset:{1024*i} lds'])
    return g

def A_dma_x(half):
    if half == 0:
        so = S_SOX
        g = [[f's_mov_b32 m0, s{S_DX}', f's_add_u32 s{S_SOX}, s{S_SOX}, 128', f'buffer_load_dwordx4 v{A_VX}, {sr(S_CKV)}, s{so} offen lds']]
    else:
        so = S_T + 1
        g = [[f's_add_u32 m0, s{S_DX}, 16384', f's_add_u32 s{so}, s{S_SOX}, {128*2048}',
              f'buffer_load_dwordx4 v{A_VX}, {sr(S_CKV)}, s{so} offen lds']]
    for i in range(1, 4):
        g.append([f'buffer_load_dwordx4 v{A_VX+i}, {sr(S_CKV)}, s{so} offen offset:{1024*i} lds'])
    if half == 1:
        g[-1] += [f's_add_u32 s{S_DX}, s{S_DX}, {XSLOT}',
                  f's_cmp_ge_u32 s{S_DX}, {XBASE+NXS*XSLOT}\ns_cselect_b32 s{S_T}, {NXS*XSLOT}, 0',
                  f's_sub_u32 s{S_DX}, s{S_DX}, s{S_T}']
    return g

def A_reads(u):
    f = AF[u & 1]; ks = u & 1; ws = u % NWS
    def wr(db): return [f'ds_read_b64_tr_b16 {vr(f["W"]+4*db+2*h,2)}, v{A_WA+db} offset:{ws*WSLOT+2048*h}' for h in range(2)]
    r = wr(0)
    for kb in range(8): r.append(f'ds_read_b128 {vr(f["X"]+4*kb)}, v{A_XA+ks} offset:{2048*kb}')
    for db in range(1, 8): r += wr(db)
    return r

def A_order(vtype):
    if vtype: return [(db, 2*tt+h) for db in range(8) for tt in range(4) for h in range(2)]
    return [(2*s_+h, kb) for s_ in range(4) for kb in range(8) for h in range(2)]

def A_kstep(u, vtype, dmaw, dmax, vm, last=False, extras=(), head=()):
    out = list(head)
    if not last: out += [f's_waitcnt vmcnt({vm}) lgkmcnt(0)', 's_barrier']
    else: out += ['s_waitcnt lgkmcnt(0)']
    f = AF[u & 1]
    steps = []
    for i, (db, kb) in enumerate(A_order(vtype)):
        acc = ar(i*4, 4); w = vr(f['W']+4*db); x = vr(f['X']+4*kb)
        steps.append(Step([f'{MF} {acc}, {x}, {w}, {acc}' if vtype else f'{MF} {acc}, {w}, {x}, {acc}']))
    sc = Sched(steps, LA=0, first_issued=0)
    d = []
    if dmaw: d += A_dma_w(u % NWS)
    if dmax: d += A_dma_x(0 if (u & 1) else 1)
    if d: sc.place(tag(d, f'A{u}'), 2, 58)
    if not last:
        r = []
        if (u & 1) == 1:
            r += [f's_add_u32 s{S_RX}, s{S_RX}, {XSLOT}', f's_cmp_ge_u32 s{S_RX}, {NXS*XSLOT}\ns_cselect_b32 s{S_RX}, 0, s{S_RX}']
            r += [f'v_add_u32 v{A_XA+i}, s{S_RX}, v{A_XAB+i}' for i in range(2)]
        sc.place(r + A_reads(u+1), 0, 44)
    for (items, lo, hi) in extras: sc.place(items, lo, hi)
    return out + sc.text(0, 63)

PEND = 32

def phaseA(a):
    t = 4
    S_ROW0, S_ROWO = 68, 69
    a(f's_lshl_b32 s{t}, s{S_KT}, 3'); a(f's_add_u32 s{t}, s{t}, s{S_WAVE}'); a(f's_lshl_b32 s{t}, s{t}, 16')
    a('v_lshrrev_b32 v2, 3, v1'); a('v_lshlrev_b32 v2, 11, v2')
    a('v_and_b32 v3, 7, v1'); a('v_lshrrev_b32 v200, 4, v1'); a('v_xor_b32 v3, v3, v200')
    a(f'v_add_u32 v2, s{t}, v2')
    for i in range(4):
        a(f'v_xor_b32 v201, {4*(i&1)}, v3'); a('v_lshl_add_u32 v201, v201, 4, v2')
        a(f'v_add_u32 v{A_VX+i}, {i*(8*2048-1024)}, v201')
    w_voffsets(a, A_VW, t)
    a(f's_mov_b32 s{S_SOX}, -128'); a(f's_mov_b32 s{S_SOW}, {-32*8192}')
    a(f's_add_u32 s{S_DX}, s{S_W4K}, {XBASE}')
    a(f's_lshl_b32 s{t}, s2, 3'); a(f's_lshl_b32 s{t+1}, s{S_WAVE}, 1'); a(f's_add_u32 s{S_ROW0}, s{t}, s{t+1}')
    a(f's_mul_i32 s{S_ROWO}, s{S_ROW0}, 896')
    a('v_cmp_gt_u32 vcc, 56, v1')
    a('s_waitcnt lgkmcnt(0)')
    build_srds(a)
    t = S_T
    Ln = a.newlabel('NON')
    a('s_cmp_lg_u32 s2, 0'); a(f's_cbranch_scc1 {Ln}')
    a(f's_memrealtime s[{t}:{t+1}]'); a('s_waitcnt lgkmcnt(0)')
    a(f's_or_b32 s{t+2}, s{t}, 1'); a(f'v_mov_b32 v2, s{t+2}')
    a(f'buffer_store_dword v2, v{V_SIG}, {sr(S_DBG)}, 0 offen sc1')
    a.label(Ln)
    stamp(a, 0)
    a('v_mov_b32 v3, 0x7fffffff')
    a(f'v_cndmask_b32 v2, v3, v{V_L16}, vcc')
    a(f'buffer_load_dwordx4 v[160:163], v2, {sr(S_XIN)}, s{S_ROWO} offen')
    a(f'buffer_load_dwordx4 v[164:167], v2, {sr(S_XIN)}, s{S_ROWO} offen offset:896')
    a(flat(A_dma_w(0) + A_dma_x(0) + A_dma_x(1) + A_dma_w(1)))
    if OPT.get('tlb', True):
        a('v_lshlrev_b32 v2, 16, v1')
        Ls = [a.newlabel('TW') for _ in range(4)]
        for w, sd in enumerate((S_WQ, S_W1, S_WO, S_W2)):
            a(f's_cmp_lg_u32 s{S_WAVE}, {w}'); a(f's_cbranch_scc1 {Ls[w]}')
            a(f'buffer_load_dword v31, v2, {sr(sd)}, 0 offen')
            a.label(Ls[w])
    a(f's_and_b32 s{t}, s{S_WAVE}, 1'); a(f's_lshr_b32 s{t+1}, s{S_WAVE}, 1')
    a(f's_lshl_b32 s{t+2}, s{t}, 14'); a(f's_add_u32 s{t+2}, s{t+2}, {XBASE}')
    a('v_and_b32 v201, 15, v1'); a('v_lshrrev_b32 v200, 4, v1'); a('v_lshrrev_b32 v2, 1, v201')
    for ks in range(2):
        a(f'v_add_u32 v3, {4*ks}, v200'); a('v_xor_b32 v3, v3, v2'); a('v_lshlrev_b32 v3, 4, v3')
        a('v_lshl_add_u32 v3, v201, 7, v3')
        a(f'v_add_u32 v{A_XAB+ks}, s{t+2}, v3'); a(f'v_mov_b32 v{A_XA+ks}, v{A_XAB+ks}')
    a('v_bfe_u32 v3, v1, 2, 2')
    a('v_lshlrev_b32 v202, 12, v200'); a('v_lshl_add_u32 v202, v3, 9, v202')
    a('v_and_b32 v2, 3, v1'); a('v_lshl_add_u32 v202, v2, 3, v202')
    a(f's_lshl_b32 s{t+2}, s{t+1}, 8'); a(f'v_add_u32 v202, s{t+2}, v202')
    a('v_and_b32 v2, 1, v200'); a('v_lshl_or_b32 v3, v2, 2, v3')
    for db in range(8):
        a(f'v_xor_b32 v2, {db}, v3'); a(f'v_lshl_add_u32 v{A_WA+db}, v2, 5, v202')
    a(f's_mov_b32 s{S_RX}, 0')
    B_setup(a)
    for r in range(256): a(f'v_accvgpr_write_b32 a{r}, 0')
    a(flat(A_dma_x(0) + A_dma_w(2) + A_dma_x(1)))
    a(f's_waitcnt vmcnt({29 if OPT.get("tlb", True) else 28})')
    ln_row(a, 160, 168, 176, S_MK, 184)
    ln_row(a, 164, 168, 176, S_MK, 188)
    a(f's_lshr_b32 s{t}, s{S_ROW0}, 4'); a(f's_mul_i32 s{t}, s{t}, 14*1024'); a(f's_and_b32 s{t+1}, s{S_ROW0}, 15'); a(f's_lshl_b32 s{t+1}, s{t+1}, 4')
    a(f's_add_u32 s{t}, s{t}, s{t+1}'); a(f's_add_u32 s{t}, s{t}, {hex(WS_XN)}')
    a('v_lshlrev_b32 v2, 8, v1')
    a('s_mov_b32 exec_hi, 0x00ffffff')
    a(f'buffer_store_dwordx4 v[184:187], v2, {sr(S_WS)}, s{t} offen sc1')
    a(f'buffer_store_dwordx4 v[188:191], v2, {sr(S_WS)}, s{t} offen offset:16 sc1')
    a('s_mov_b32 exec_hi, -1')
    a(f's_waitcnt vmcnt({19 if OPT.get("tlb", True) else 18})')
    a('s_barrier')
    a(A_reads(0))
    a(flat(A_dma_w(3) + A_dma_x(0)))
    if OPT.get('pfb_pro'): a(flat(pfB() + cpfB()))
    stamp(a, 1)
    if DBG[0]:
        a(f's_getreg_b32 s{S_ST}, hwreg(HW_REG_XCC_ID)'); a(f'v_mov_b32 v2, s{S_ST}'); a(f'v_mov_b32 v3, s{S_ST}')
        a(f's_lshl_b32 s{S_ST}, s2, 8'); a(f's_add_u32 s{S_ST}, s{S_ST}, {hex(WS_DBG + 19*8)}')
        a(f'buffer_store_dwordx2 v[2:3], v{V_SIG}, {sr(S_WS)}, s{S_ST} offen')
    Lv = a.newlabel('AV'); Lj = a.newlabel('AJ')
    a(f's_cmp_eq_u32 s{S_KVT}, 1'); a(f's_cbranch_scc1 {Lv}')
    pf = pfB()
    for vtype in range(2):
        if vtype: a.label(Lv)
        a(f's_mov_b32 s{S_CNT}, 0')
        Ll = a.newlabel('AL'); a.label(Ll)
        for u in range(4): a(resolve_vm(A_kstep(u, vtype, True, True, 16)))
        Lm1 = a.newlabel('AM'); Lm2 = a.newlabel('AM'); Lm3 = a.newlabel('AM')
        if OPT.get('astamp'): stamp(a, 16, S_CNT)
        a(f's_add_u32 s{S_CNT}, s{S_CNT}, 1')
        a(f's_cmp_lg_u32 s{S_WAVE}, 0'); a(f's_cbranch_scc1 {Lm2}')
        a(f's_cmp_lg_u32 s{S_CNT}, 1'); a(f's_cbranch_scc1 {Lm1}')
        a(f'v_mov_b32 v2, 0')
        a(f'buffer_load_dword v{V_NONCE}, v2, {sr(S_DBG)}, 0 offen' + (' sc1' if OPT.get('nonce_sc1') else ''))
        a.label(Lm1)
        a(f's_cmp_lg_u32 s{S_CNT}, 3'); a(f's_cbranch_scc1 {Lm2}')
        a(f's_mov_b32 s{t+5}, 0')
        a.label(Lm3)
        a(f'v_readfirstlane_b32 s{t+4}, v{V_NONCE}')
        Lm4 = a.newlabel('AM')
        a(f's_cmp_lg_u32 s{t+4}, 0'); a(f's_cbranch_scc1 {Lm4}')
        a('s_sleep 8'); a(f'v_mov_b32 v2, 0')
        a(f'buffer_load_dword v{V_NONCE}, v2, {sr(S_DBG)}, 0 offen sc1')
        a('s_waitcnt vmcnt(0)')
        a(f's_add_u32 s{t+5}, s{t+5}, 1'); a(f's_cmp_lt_u32 s{t+5}, 20000'); a(f's_cbranch_scc1 {Lm3}')
        a.label(Lm4)
        a(f's_lshr_b32 s{t+4}, s2, 4'); a(xn_flag_addr(t+4, t+4))
        a(f's_and_b32 s{t+5}, s2, 15'); a(f's_lshl_b32 s{t+5}, s{t+5}, 2'); a(f's_add_u32 s{t+4}, s{t+4}, s{t+5}')
        a(f'buffer_store_dword v{V_NONCE}, v{V_SIG}, {sr(S_WS)}, s{t+4} offen sc1')
        a(f's_cmp_lg_u32 s{S_H}, 0'); a(f's_cbranch_scc1 {Lm2}')
        a(f's_lshl_b32 s{t+4}, s{S_OWN}, 12'); a(f's_add_u32 s{t+4}, s{t+4}, {hex(WS_FLG + 0x50000)}')
        a('v_mov_b32 v2, 0')
        a(f'buffer_store_dword v2, v{V_SIG}, {sr(S_WS)}, s{t+4} offen sc1')
        a.label(Lm2)
        a(f's_cmp_lt_u32 s{S_CNT}, 6'); a(f's_cbranch_scc1 {Ll}')
        cpf = cpfB()
        kvs = [f's_lshl_b32 s{S_KVO}, s{S_H}, 21', f's_lshl_b32 s{t+4}, s{S_KT}, 18', f's_add_u32 s{S_KVO}, s{S_KVO}, s{t+4}',
               f's_and_b32 s{t+4}, s{S_WAVE}, 1', f's_lshl_b32 s{t+4}, s{t+4}, 17', f's_add_u32 s{S_KVO}, s{S_KVO}, s{t+4}',
               f's_lshr_b32 s{t+4}, s{S_WAVE}, 1', f's_lshl_b32 s{t+4}, s{t+4}, {13 if vtype else 12}', f's_add_u32 s{S_KVO}, s{S_KVO}, s{t+4}']
        if vtype: kvs.append(f's_add_u32 s{S_KVO}, s{S_KVO}, 16384')
        w_ = [32768, 65536, 1024, 2048] if vtype else [8192, 32768, 65536, 1024]
        for b in range(4): kvs.append(f's_mov_b32 s{S_DL+b}, {w_[b] - sum(w_[:b])}')
        xo = [f's_lshl_b32 s{t+4}, s{S_OWN}, 3', f's_add_u32 s{t+4}, s{t+4}, s{S_WAVE}', f's_mul_i32 s{t+4}, s{t+4}, 14336',
              f's_add_u32 s{S_XO}, s{t+4}, {hex(WS_XN)}']
        bias = [f's_mul_i32 s{t+4}, s{S_H}, 224', 'v_lshrrev_b32 v200, 4, v1', 'v_lshlrev_b32 v200, 3, v200']
        bias += [f'buffer_load_dwordx2 {vr(B_TMP+2*fb,2)}, v200, {sr(S_B1)}, s{t+4} offen offset:{32*fb} ;@BIAS' for fb in range(7)]
        sw = Asm(); sw.nlab = a.nlab; spin_wait(sw, S_FP); a.nlab = sw.nlab
        chk = ['s_waitcnt vmcnt(@POLL)'] + [x.strip() + (' ;!' if x.strip().startswith('buffer_') else '') for x in sw.L]
        NW = OPT.get('nweave', 8); BH = OPT.get('bh', 0)
        ex = {25: [(kvs + xo, 46, 62)],
              26: [(xn_flag_addr(S_FP, S_OWN) + [poll_issue(S_FP)[0] + ' ;@POLL'], 5, 20)],
              28: [(pf + cpf, 0, 24)] + ([(B_dma_w(0, True), 32, 62)] if BH == 0 else []),
              29: [(B_dma_x(0) + [bias] + B_dma_w(1, True) + B_dma_x(1), 0, 60)] if BH == 0 else [],
              30: [(B_dma_w(2, True) + B_dma_x(2), 0, 50)] if BH == 0 else [(B_dma(0, True) + [bias] + B_dma(1, True) + B_dma(2, True), BH, 63)],
              31: [([x for k in range(NW) for x in pack_store(k, 208 + 8*(k & 1), True)], 10, 63)]}
        tail = []
        for k in (21, 22, 23): tail += [f'buffer_dummy ;@A{k}']*8
        tail.append('MARK')
        for u in range(24, 32):
            tail += A_kstep(u, vtype, u <= 27, u <= 26, f'@A{min(u-3, 27)}', last=(u == 31), extras=ex.get(u, ()), head=(chk if u == 29 else ()))
        tail.append('MARK2')
        hist = tail
        r = resolve_vm(tail)
        for x in r[r.index('MARK')+1:r.index('MARK2')]:
            if x.endswith(':'): a.raw(x)
            else: a(x)
        if vtype == 0: a(f's_branch {Lj}')
    a.label(Lj)
    stamp(a, 2)
    return hist

def pfB():
    t = S_T
    return [[f's_lshr_b32 s{t+4}, s2, 4', f's_mul_i32 s{t+4}, s{t+4}, 28', f's_mul_i32 s{t+5}, s{S_WAVE}, 7', f's_add_u32 s{t+4}, s{t+4}, s{t+5}'],
          ['v_lshrrev_b32 v200, 2, v1', 'v_min_u32 v200, 6, v200', f'v_add_u32 v200, s{t+4}, v200', 'v_and_b32 v201, 3, v1'],
          ['v_lshlrev_b32 v201, 7, v201', 'v_lshl_add_u32 v202, v200, 13, v201', f's_lshl_b32 s{t+4}, s{S_H}, 9',
           f'buffer_load_dword v31, v202, {sr(S_WQ)}, s{t+4} offen'],
          ['v_mul_u32_u24 v202, 3584, v200', 'v_add_u32 v202, v202, v201', f's_mul_i32 s{t+4}, s{S_H}, 224', f's_and_b32 s{t+4}, s{t+4}, 0xffffff80',
           f'buffer_load_dword v31, v202, {sr(S_W1)}, s{t+4} offen']]
def cpfB():
    t = S_T
    return [[f's_lshr_b32 s{t+4}, s2, 3', f's_mul_i32 s{t+4}, s{t+4}, 2560', f's_add_u32 s{t+4}, s{t+4}, 32768',
             'v_min_u32 v200, 19, v1', 'v_lshlrev_b32 v200, 7, v200', f'v_add_u32 v200, s{t+4}, v200',
             'v_min_u32 v200, M_CODE_END-M_CODE_START-4, v200', f'global_load_dword v31, v200, s[{S_PC}:{S_PC+1}]']]

def pfD_big(a):
    t = S_T
    L = a.newlabel('PD'); L7 = a.newlabel('PD'); La = a.newlabel('PD')
    a(f's_cmp_lt_u32 s{S_I}, 6'); a(f's_cbranch_scc1 {L}')
    a('v_lshlrev_b32 v2, 7, v0')
    a(f's_mul_i32 s{t+1}, s{S_H}, {256*896}'); a(f's_mul_i32 s{t+2}, s{S_H}, {112*896}')
    def wo(u): a(f's_add_u32 s{t}, s{t+1}, {u*32768}'); a(f'buffer_load_dword v31, v2, {sr(S_WO)}, s{t} offen')
    def w2(off): a(f's_add_u32 s{t}, s{t+2}, {off}'); a(f'buffer_load_dword v31, v2, {sr(S_W2)}, s{t} offen')
    n6 = OPT.get('pf_n6', 6)
    a(f's_cmp_eq_u32 s{S_ROLE}, 0'); a(f's_cbranch_scc1 {La}')
    a(f's_cmp_eq_u32 s{S_I}, 7'); a(f's_cbranch_scc1 {L7}')
    for u in range(n6): wo(u)
    a(f's_branch {L}')
    a.label(L7)
    for u in range(n6, 7): wo(u)
    for k in range(3): w2(k*32768)
    a(f's_branch {L}')
    a.label(La)
    a(f's_cmp_eq_u32 s{S_I}, 6'); a(f's_cbranch_scc1 {L}')
    a('v_min_u32 v3, 16256, v2')
    a(f's_add_u32 s{t}, s{t+2}, {3*32768}'); a(f'buffer_load_dword v31, v3, {sr(S_W2)}, s{t} offen')
    a('v_add_u32 v2, M_D_START-M_CODE_START-10240, v2'); a('v_min_u32 v2, M_CODE_END-M_CODE_START-4, v2')
    a(f'global_load_dword v31, v2, s[{S_PC}:{S_PC+1}]')
    a.label(L)

def pfD(v, code=True):
    t = S_T
    g = [[f's_lshr_b32 s{t+9}, s2, 4', f's_lshl_b32 s{t+9}, s{t+9}, 2', f's_add_u32 s{t+9}, s{t+9}, s{S_WAVE}',
          f's_lshl_b32 s{t+10}, s{S_H}, 6', f's_add_u32 s{t+10}, s{t+10}, s{t+9}', f's_mul_i32 s{t+10}, s{t+10}, {4*896}'],
         [f'v_lshlrev_b32 v{v}, 7, v1', f'v_min_u32 v{v}, 3580, v{v}', f'buffer_load_dword v31, v{v}, {sr(S_WO)}, s{t+10} offen'],
         [f's_mul_i32 s{t+10}, s{S_H}, {112*896}', f's_mul_i32 s{t+11}, s{t+9}, {2*896}', f's_add_u32 s{t+10}, s{t+10}, s{t+11}',
          f'v_min_u32 v{v}, 1788, v{v}', f'buffer_load_dword v31, v{v}, {sr(S_W2)}, s{t+10} offen']]
    if code:
        g += [[f's_lshl_b32 s{t+9}, s{t+9}, 9',
          f'v_min_u32 v{v}, 384, v{v}', f'v_add_u32 v{v}, s{t+9}, v{v}', f'v_add_u32 v{v}, M_D_START-M_CODE_START-10240, v{v}',
          f'v_min_u32 v{v}, M_CODE_END-M_CODE_START-4, v{v}', f'global_load_dword v31, v{v}, s[{S_PC}:{S_PC+1}]']]
    return g

def pack_store(k, tb, store):
    ops = [f'v_accvgpr_read_b32 v{tb+e}, a{8*k+e}' for e in range(8)]
    ops += [f'v_cvt_pk_bf16_f32 v{PEND+4*k+e}, v{tb+2*e}, v{tb+2*e+1}' for e in range(4)]
    if store:
        st = kv_store(k)
        ops = st[:-1] + ops + st[-1:]
    return ops

def kv_store(k):
    ops = []
    if k > 0:
        b = min((k & -k).bit_length() - 1, 3)
        ops.append(f's_add_u32 s{S_KVO}, s{S_KVO}, s{S_DL+b}')
    ops.append(f'buffer_store_dwordx4 {vr(PEND+4*k)}, v{V_L16}, {sr(S_WS)}, s{S_KVO} offen {OPT.get("kvf", "sc1")} ;@KVST')
    return ops

def w_voffsets(a, dst, t):
    a(f's_lshl_b32 s{t}, s{S_WAVE}, 16'); a(f's_lshl_b32 s{t+1}, s{S_H}, 9'); a(f's_add_u32 s{t}, s{t}, s{t+1}')
    a(f's_and_b32 s{t+1}, s{S_WAVE}, 1'); a(f's_lshl_b32 s{t+1}, s{t+1}, 2')
    a('v_lshrrev_b32 v200, 5, v1'); a('v_and_b32 v201, 31, v1'); a('v_lshrrev_b32 v202, 1, v201')
    a(f'v_xor_b32 v202, s{t+1}, v202'); a('v_and_b32 v203, 1, v201')
    for i in range(4):
        a(f'v_add_u32 v2, {(2*i)&3}, v200'); a('v_xor_b32 v2, v202, v2'); a('v_lshl_add_u32 v2, v2, 1, v203')
        a('v_lshlrev_b32 v2, 4, v2'); a('v_lshl_add_u32 v2, v200, 13, v2')
        a(f'v_add_u32 v2, {2*i*8192-1024*i}, v2'); a(f'v_add_u32 v{dst+i}, s{t}, v2')

B_VW, B_V1, B_VX1 = A_VW, 28, 255
B_WA, B_1A = 240, 248
B_XF = 160
B_WF, B_NB = 192, 8
B_TMP = 224
B_QS = 8
W1BASE = 98304

def B_setup(a):
    t = S_T
    a(f's_and_b32 s{t+1}, s{S_WAVE}, 1'); a(f's_lshl_b32 s{t+1}, s{t+1}, 2')
    a(f's_mul_i32 s{t}, s{S_WAVE}, {8*3584}'); a(f's_mul_i32 s{t+2}, s{S_H}, 224'); a(f's_add_u32 s{t}, s{t}, s{t+2}')
    a('v_lshrrev_b32 v200, 4, v1'); a('v_and_b32 v201, 15, v1'); a('v_lshrrev_b32 v202, 1, v201')
    a(f'v_xor_b32 v202, s{t+1}, v202'); a('v_xor_b32 v202, v200, v202'); a('v_and_b32 v203, 1, v201')
    a('v_lshl_add_u32 v2, v202, 1, v203'); a('v_lshlrev_b32 v2, 4, v2')
    a('v_mul_u32_u24 v3, 3584, v200'); a('v_add_u32 v2, v2, v3')
    a(f'v_add_u32 v{B_V1}, s{t}, v2'); a(f'v_add_u32 v{B_V1+1}, {4*3584-1024}, v{B_V1}')
    a(f's_lshl_b32 s{t}, s{S_WAVE}, 1'); a(f's_sub_u32 s{S_Q1}, 7, s{t}'); a(f's_mul_i32 s{t}, s{S_Q1}, 14336')
    a(f'v_add_u32 v{B_VX1}, s{t}, v{V_L16}')
    a('v_bfe_u32 v201, v1, 2, 2')
    a('v_lshl_add_u32 v202, v200, 3, v201')
    a('v_and_b32 v203, 3, v1'); a('v_lshlrev_b32 v203, 3, v203')
    a('v_and_b32 v2, 1, v200'); a('v_lshl_or_b32 v201, v2, 2, v201')
    a('v_lshl_add_u32 v204, v202, 9, v203')
    a('v_lshl_add_u32 v205, v202, 8, v203'); a(f'v_add_u32 v205, {W1BASE}, v205')
    for d in range(8):
        a(f'v_xor_b32 v2, {d}, v201')
        a(f'v_lshl_add_u32 v{B_WA+d}, v2, 5, v204')
        if d < 7: a(f'v_lshl_add_u32 v{B_1A+d}, v2, 5, v205')

def B_dma_w(u, ffn):
    sl = u % 4; t = S_T + 2
    g = [[f's_add_u32 m0, s{S_W4K}, {sl*16384}', f's_mov_b32 s{t}, {u*32*8192}',
          f'buffer_load_dwordx4 v{B_VW}, {sr(S_WQ)}, s{t} offen lds']]
    for i in range(1, 4): g.append([f'buffer_load_dwordx4 v{B_VW+i}, {sr(S_WQ)}, s{t} offen offset:{1024*i} lds'])
    if ffn:
        g.append([f's_add_u32 m0, s{S_W2K}, {W1BASE+sl*8192}', f's_mov_b32 s{t}, {u*32*3584}',
                  f'buffer_load_dwordx4 v{B_V1}, {sr(S_W1)}, s{t} offen lds'])
        g.append([f'buffer_load_dwordx4 v{B_V1+1}, {sr(S_W1)}, s{t} offen offset:1024 lds'])
    return tag(g, f'B{u}')

def B_dma_x(u):
    sl = u % 4; t = S_T + 3
    g = [[f's_add_u32 s{t}, s{S_XO}, {u*1024}',
          f'buffer_load_dwordx4 {vr(B_XF+sl*8)}, v{V_L16}, {sr(S_WS)}, s{t} offen'],
         [f'buffer_load_dwordx4 {vr(B_XF+sl*8+4)}, v{B_VX1}, {sr(S_WS)}, s{t} offen']]
    return tag(g, f'B{u}')

def B_dma(u, ffn): return B_dma_w(u, ffn) + B_dma_x(u)

def B_head(ffn):
    h = []
    for u in range(3): h += flat(B_dma(u, ffn))
    return h

def phaseB_begin_ext(a):
    t = S_T
    spin_wait(a, S_FP)
    a(f's_lshl_b32 s{t}, s{S_EXT}, 2'); a(f's_add_u32 s{t}, s{t}, s{S_WAVE}'); a(f's_mul_i32 s{t}, s{t}, {2*14336}')
    a(f's_add_u32 s{S_XO}, s{t}, {hex(WS_XN)}')
    a('s_barrier')
    a(resolve_vm(B_head(False)))

def phaseB_main(a, ffn, hist):
    pre = []
    NW = OPT.get('nweave', 8); NL = 23
    if ffn:
        pre.append('s_nop 7')
        nst_pre = OPT.get('nst_pre', 6)
        for k in range(NW, NL):
            pre += pack_store(k, 208 + 8*(k & 1), False)
            if (k - NW) % 2 == 1 and NW + (k - NW)//2 < NW + nst_pre: pre += kv_store(NW + (k - NW)//2)
        nsd = NW + min(nst_pre, (NL - NW)//2)
        pre.append('s_waitcnt vmcnt(@BIAS)')
        for fb in range(7):
            for k in range(2):
                pre += [f'v_lshlrev_b32 v2, 16, v{B_TMP+2*fb+k}', f'v_and_b32 v3, 0xffff0000, v{B_TMP+2*fb+k}']
                for qb in range(2):
                    pre += [f'v_accvgpr_write_b32 a{128+(fb*2+qb)*4+2*k}, v2', f'v_accvgpr_write_b32 a{128+(fb*2+qb)*4+2*k+1}, v3']
    pre += ['s_waitcnt vmcnt(@B0)', 's_barrier', 'STAMP']
    nf = 23 if ffn else 16
    steps = []
    for u in range(14):
        sl = u % 4
        for f in range(nf):
            buf = B_WF + (len(steps) % B_NB)*4
            if f < 16:
                rd = [f'ds_read_b64_tr_b16 {vr(buf+2*h,2)}, v{B_WA+(f&7)} offset:{sl*16384+2048*h+256*(f>>3)}' for h in range(2)]
                acc = f*8
            else:
                rd = [f'ds_read_b64_tr_b16 {vr(buf+2*h,2)}, v{B_1A+f-16} offset:{sl*8192+1024*h}' for h in range(2)]
                acc = 128 + (f-16)*8
            mf = []
            for qb in range(2):
                c = '0' if (u == 0 and f < 16) else ar(acc+4*qb)
                mf.append(f'{MF} {ar(acc+4*qb)}, {vr(buf)}, {vr(B_XF+sl*8+4*qb)}, {c}')
            steps.append(Step(mf, rd))
    LA = 6
    bp = {}
    for u in range(13):
        bp[u] = (u+1)*nf - LA - 1
        steps[bp[u]].pre += [f's_waitcnt vmcnt(@B{u+1})', 's_barrier']
        for f in range(nf): steps[(u+1)*nf+f].gate = bp[u]
    SIGU = OPT.get('sigu', 10)
    if ffn:
        steps[bp[SIGU]].pre.insert(0, 's_waitcnt vmcnt(@KVST)')
    sc = Sched(steps, LA=LA, wait_group=2)
    sc.place(B_dma(3, ffn), 0, bp[0]-2)
    for u in range(1, 11):
        sc.place(B_dma(u+3, ffn), bp[u], min(bp[u+1]-2, bp[u]+OPT.get('b_dw', 30)))
    if ffn:
        st_ = []
        for k in range(nsd, 32):
            st_ += kv_store(k) if k < NL else pack_store(k, B_TMP + 8*(k & 1), True)
        sc.place(st_, 0, bp[OPT.get('st_end', 7)])
        sc.place([[f's_lshr_b32 s{S_T+7}, s2, 4', f's_lshl_b32 s{S_T+7}, s{S_T+7}, 2', f's_add_u32 s{S_T+7}, s{S_T+7}, s{S_FKV}',
                   f'buffer_store_dword v{V_NONCE}, v{V_SIG}, {sr(S_WS)}, s{S_T+7} offen sc1']], bp[SIGU], bp[SIGU]+3)
    pl = [f's_mov_b32 s{S_FP}, s{S_FKV}'] + poll_issue(S_FP)
    sc.place([pl], len(steps)-OPT.get('pollat', 6), len(steps)-OPT.get('pollat', 6)+4)
    print('phaseB overflow', sc.overflow(0, len(steps)-1))
    body = resolve_vm(hist + ['MARKB'] + pre + sc.pre + sc.text(0, len(steps)-1))
    for x in body[body.index('MARKB')+1:]:
        if x == 'STAMP': stamp(a, 3 if ffn else 6)
        else: a(x)
    stamp(a, 4 if ffn else 7)

def qx_base(a, d):
    a(f's_lshl_b32 s{d}, s{S_PAIR}, 16'); a(f's_lshl_b32 s{d+1}, s{S_WAVE}, 14'); a(f's_add_u32 s{d}, s{d}, s{d+1}')
    a(f's_add_u32 s{d}, s{d}, {hex(WS_QX)}')

def phaseB_epi(a):
    t = S_T
    a('s_nop 3')
    qx_base(a, t)
    a(f's_cmp_eq_u32 s{S_PUBQ}, 0'); a(f's_cselect_b32 s{t}, 0x70000000, s{t}')
    k = 0
    for s in range(8):
        for qb in range(2):
            d = A_QO + (s*2+qb)*4
            tb = B_TMP + 8 + 4*(k & 1)
            for half in range(2):
                src = ((2*s+half)*2+qb)*4
                for e in range(4): a(f'v_accvgpr_read_b32 v{B_TMP+4*half+e}, a{src+e}')
            for e in range(0, 8, 2): a(f'v_pk_mul_f32 {vr(B_TMP+e,2)}, {vr(B_TMP+e,2)}, {vr(B_QS,2)}')
            for e in range(4): a(f'v_cvt_pk_bf16_f32 v{tb+e}, v{B_TMP+2*e}, v{B_TMP+2*e+1}')
            if k % 4 == 0 and k: a(f's_add_u32 s{t}, s{t}, 4096')
            a(f'buffer_store_dwordx4 {vr(tb)}, v{V_L16}, {sr(S_WS)}, s{t} offen offset:{1024*(k%4)} sc1')
            for e in range(4): a(f'v_accvgpr_write_b32 a{d+e}, v{tb+e}')
            k += 1

def phaseB_epi_h(a):
    for ks in range(4):
        for qb in range(2):
            d = V_H + (ks*2+qb)*4
            for half in range(2):
                fb = 2*ks + half
                if fb == 7:
                    a(f'v_mov_b32 v{d+2}, 0'); a(f'v_mov_b32 v{d+3}, 0'); continue
                src = 128 + (fb*2+qb)*4
                for e in range(4): a(f'v_accvgpr_read_b32 v{B_TMP+e}, a{src+e}')
                for e in range(4): a(f'v_max_f32 v{B_TMP+e}, 0, v{B_TMP+e}')
                for e in range(0, 4, 2): a(f'v_pk_mul_f32 {vr(B_TMP+e,2)}, {vr(B_TMP+e,2)}, {vr(B_TMP+e,2)}')
                for e in range(2): a(f'v_cvt_pk_bf16_f32 v{d+2*half+e}, v{B_TMP+2*e}, v{B_TMP+2*e+1}')

def fetch_qx(a):
    t = S_T
    a(f's_lshl_b32 s{S_FP}, s{S_PAIR}, 8'); a(f's_add_u32 s{S_FP}, s{S_FP}, {hex(WS_FLG + 0x30000)}')
    a(poll_issue(S_FP))
    a('s_waitcnt vmcnt(0)')
    spin_wait(a, S_FP, mask=1)
    a('s_barrier')
    qx_base(a, t)
    for k in range(16):
        if k % 4 == 0 and k: a(f's_add_u32 s{t}, s{t}, 4096')
        a(f'buffer_load_dwordx4 {ar(A_QX+4*k)}, v{V_L16}, {sr(S_WS)}, s{t} offen offset:{1024*(k%4)} sc1')

C_KA, C_VA, C_VD, C_DV, C_DV0, C_TM, C_NINF, C_ONE = 8, 9, 10, 11, 12, 13, 14, 16
C_BP16, C_BP32 = 20, 21
C_T = 22
C_S = [32, 48]
C_P, C_NM, C_L = 64, 72, 80
C_F, C_NB = 88, 8
C_MRG = 128

def C_dma(kind, m0expr):
    so = S_KO if kind == 'K' else S_VO
    g = [[m0expr, f's_add_u32 s{so}, s{so}, 32768', f'buffer_load_dwordx4 v{C_VD}, {sr(S_WS)}, s{so} offen lds']]
    for i in range(1, 4): g.append([f'buffer_load_dwordx4 v{C_VD}, {sr(S_WS)}, s{so} offen offset:{1024*i} lds'])
    return g

def mask_ops(S, qb):
    ops = []
    for kb in range(2):
        for r in range(4): ops.append(f'v_cmp_gt_i32 s[{S_MK+2*r}:{S_MK+2*r+1}], {16*kb+r}, v{C_DV}')
        for r in range(4):
            reg = S + (kb*2+qb)*4 + r
            ops.append(f'v_cndmask_b32 v{reg}, v{reg}, v{C_NINF}, s[{S_MK+2*r}:{S_MK+2*r+1}]')
    return ops

def max_ops(S, half=False):
    r = [S + (kb*2+1)*4 + e for kb in range(2) for e in range(4)] if half else list(range(S, S+16))
    ops = [f'v_max3_f32 v{C_TM}, v{r[0]}, v{r[1]}, v{r[2]}']
    for i in range(3, len(r)-1, 2): ops.append(f'v_max3_f32 v{C_TM}, v{C_TM}, v{r[i]}, v{r[i+1]}')
    ops.append(f'v_max_f32 v{C_TM}, v{C_TM}, v{r[-1]}')
    return ops

def rowmax(a, S, qb, d):
    r = [S + (kb*2+qb)*4 + e for kb in range(2) for e in range(4)]
    a(f'v_max3_f32 v{d}, v{r[0]}, v{r[1]}, v{r[2]}')
    a(f'v_max3_f32 v{d}, v{d}, v{r[3]}, v{r[4]}')
    a(f'v_max3_f32 v{d}, v{d}, v{r[5]}, v{r[6]}')
    a(f'v_max_f32 v{d}, v{d}, v{r[7]}')
    for bp in (C_BP16, C_BP32):
        a(f'ds_bpermute_b32 v{C_T+7}, v{bp}, v{d}')
        a('s_waitcnt lgkmcnt(0)')
        a(f'v_max_f32 v{d}, v{d}, v{C_T+7}')

def rare_path(a, S, first):
    a('s_nop 7')
    for qb in range(2):
        d = C_T + qb
        rowmax(a, S, qb, d)
        if not first: a(f'v_max_f32 v{d}, 0, v{d}')
        for kb in range(2):
            for e in range(4):
                r = S + (kb*2+qb)*4 + e
                a(f'v_sub_f32 v{r}, v{r}, v{d}')
        for e in range(4): a(f'v_sub_f32 v{C_NM+4*qb+e}, v{C_NM+4*qb+e}, v{d}')
        if not first:
            al = C_T + 2 + qb
            a(f'v_exp_f32 v{al}, -v{d}')
            a('s_nop 0')
            for e in range(4): a(f'v_mul_f32 v{C_L+4*qb+e}, v{C_L+4*qb+e}, v{al}')
            for db in range(16):
                o = (db*2+qb)*4
                for e in range(3): a(f'v_accvgpr_read_b32 v{C_T+4+e}, a{o+e}')
                a(f'v_accvgpr_read_b32 v2, a{o+3}')
                for e in range(3): a(f'v_mul_f32 v{C_T+4+e}, v{C_T+4+e}, v{al}')
                a(f'v_mul_f32 v2, v2, v{al}')
                for e in range(3): a(f'v_accvgpr_write_b32 a{o+e}, v{C_T+4+e}')
                a(f'v_accvgpr_write_b32 a{o+3}, v2')
    a('s_nop 1')

def softmax_ops(S, qbs=(0, 1)):
    ops = []
    for qb in qbs:
        for kb in range(2):
            b = S + (kb*2+qb)*4
            for e in range(4): ops.append(f'v_exp_f32 v{b+e}, v{b+e}')
        for kb in range(2):
            b = S + (kb*2+qb)*4
            for e in range(2): ops.append(f'v_cvt_pk_bf16_f32 v{C_P+4*qb+2*kb+e}, v{b+2*e}, v{b+2*e+1}')
    return ops

def phaseC_begin(a, part=3):
    t = S_T
    lst = [('K', 0), ('K', 1), ('V', 0), ('K', 2), ('V', 1), ('K', 3)]
    if part & 1:
        a('s_barrier')
        a(f's_lshl_b32 s{t}, s{S_H}, 21'); a(f's_lshl_b32 s{t+1}, s{S_TS}, 15'); a(f's_add_u32 s{S_KO}, s{t}, s{t+1}')
        a(f's_sub_u32 s{S_KO}, s{S_KO}, 32768')
        a(f's_add_u32 s{S_VO}, s{S_KO}, 16384')
        a(f'v_add_u32 v{C_VD}, s{S_W4K}, v{V_L16}')
    for kind, sl in (lst[:3] if part & 1 else []) + (lst[3:] if part & 2 else []):
        a(flat(C_dma(kind, f's_add_u32 m0, s{S_W4K}, {(0 if kind=="K" else 65536) + sl*16384}')))

def phaseC(a, own, rl, after_first_wait=None, tail_extra=None):
    t = S_T
    AQ = A_QO if own else A_QX
    NBUF = C_NB
    a(f's_mov_b32 s{S_PB}, s{S_W4K}'); a(f's_xor_b32 s{S_PO}, s{S_PB}, 0x8000')
    a(f'v_mov_b32 v{C_KA}, v{V_L16}'); a(f'v_add_u32 v{C_VA}, 0x18000, v{V_L16}')
    if own:
        a('v_and_b32 v2, 15, v1'); a('v_lshrrev_b32 v3, 4, v1'); a('v_lshlrev_b32 v3, 2, v3'); a(f'v_sub_u32 v{C_DV0}, v2, v3')
        a(f's_lshl_b32 s{t}, s{S_WAVE}, 4'); a(f'v_add_u32 v{C_DV0}, s{t}, v{C_DV0}')
        a(f's_sub_u32 s{t}, s{S_N}, 4'); a(f's_lshl_b32 s{t}, s{t}, 5')
        a(f'v_add_u32 v{C_DV}, s{t}, v{C_DV0}')
        a(f's_lshl_b32 s{S_RB}, s{S_Q1}, 4'); a(f's_sub_u32 s{S_RB}, s{S_RB}, 64')
        a(f'v_mov_b32 v{C_NINF}, 0xff800000')
        for r in range(32): a(f'v_accvgpr_write_b32 a{A_H+r}, v{V_H+r}')
    for e in range(4): a(f'v_mov_b32 v{C_ONE+e}, 0x3f803f80')
    a(f'v_xor_b32 v{C_BP16}, 16, v1'); a(f'v_lshlrev_b32 v{C_BP16}, 2, v{C_BP16}')
    a(f'v_xor_b32 v{C_BP32}, 32, v1'); a(f'v_lshlrev_b32 v{C_BP32}, 2, v{C_BP32}')
    for e in range(8): a(f'v_mov_b32 v{C_NM+e}, {f32(OPT.get("nm0", -6.0))}'); a(f'v_mov_b32 v{C_L+e}, 0')
    NZ = OPT.get('nz', 40)
    for r in range(128-NZ): a(f'v_accvgpr_write_b32 a{r}, 0')
    if own: phaseC_begin(a, 2)
    if own:
        Lw = a.newlabel('FW'); Lw2 = a.newlabel('FW')
        a(f's_cmp_eq_u32 s{S_HASX}, 0'); a(f's_cbranch_scc1 {Lw}')
        a('s_waitcnt vmcnt(29)'); a(f's_branch {Lw2}')
        a.label(Lw); a('s_waitcnt vmcnt(12)'); a.label(Lw2)
    else:
        fetch_qx(a)
        phaseC_begin(a, 2)
        a('s_waitcnt vmcnt(12)')
    a('s_barrier')
    if after_first_wait: after_first_wait(a)
    n = 10
    NM2, NM3, NM4 = 7, 10, 0
    steps = []; start = {}; h2s = {}
    def hf(j): return own and j >= n-2
    cnt = [0]
    def nbuf():
        b = C_F + (cnt[0] % OPT.get('c_nb', 8))*4; cnt[0] += 1; return b
    def ksteps(j, cinit):
        S = C_S[j & 1]
        for kb in range(2):
            for s in range(8):
                buf = nbuf()
                rd = f'ds_read_b128 {vr(buf)}, v{C_KA} offset:{(j&1)*16384 + (kb*8+s)*1024}'
                pv = f'v_xor_b32 v{C_KA}, 0x8000, v{C_KA}' if (kb == 0 and s == 0 and (j & 1) == 0 and j > 0) else None
                mf = []
                for qb in ((1,) if hf(j) else (0, 1)):
                    d = vr(S + (kb*2+qb)*4)
                    c = d if s > 0 else (cinit if cinit is not None else vr(C_NM+4*qb))
                    mf.append(f'{MF} {d}, {vr(buf)}, {ar(AQ+(s*2+qb)*4)}, {c}')
                steps.append(Step(mf, [rd], prev=pv))
                if hf(j): steps[-1].wg = 2
    def vsteps(j):
        for db in range(16):
            buf = nbuf()
            rd = f'ds_read_b128 {vr(buf)}, v{C_VA} offset:{(j&1)*16384 + db*1024}'
            pv = f'v_xor_b32 v{C_VA}, 0x8000, v{C_VA}' if (db == 0 and (j & 1) == 0) else None
            qbs = (1,) if hf(j) else (0, 1)
            mf = [f'{MF} {ar((db*2+qb)*4)}, {vr(buf)}, {vr(C_P+4*qb)}, {ar((db*2+qb)*4)}' for qb in qbs]
            if db == 15:
                mf += [f'{MF} {vr(C_L+4*qb)}, {vr(C_ONE)}, {vr(C_P+4*qb)}, {vr(C_L+4*qb)}' for qb in qbs]
            steps.append(Step(mf, [rd], prev=pv))
            if hf(j): steps[-1].wg = 2
    start[-1] = 0
    ksteps(0, None)
    for j in range(n):
        start[j] = len(steps)
        if j < n-1: ksteps(j+1, None)
        h2s[j] = len(steps)
        vsteps(j)
        tail = j - (n-6)
        vm = {0: 12, 1: 12, 2: 8, 3: (4 + NM2 if own else 4), 4: (NM2 + NM3 if own else 0)}.get(max(tail, 0), None)
        if vm is not None: steps[h2s[j]+2].pre += [f's_waitcnt vmcnt({vm})', 's_barrier']
        if j == n-1: steps[h2s[j]].block += softmax_ops(C_S[j & 1], (1,) if hf(j) else (0, 1)) + ['s_nop 1']
    start[n] = len(steps)
    sc = Sched(steps, LA=OPT.get('c_la', 7), wait_group=OPT.get('c_wg', 4), wait_first=True)
    for j in range(n):
        p = j & 1; h2 = h2s[j]; end = start[j+1] - 1; tail = j - (n-6)
        if j < n-1 and not hf(j+1):
            S = C_S[p]
            regs = [S + (kb*2+qb)*4 + e for qb in range(2) for kb in range(2) for e in range(4)]
            for k in range(16):
                sc.put(start[j]+k, 0, f'v_exp_f32 v{regs[k]}, v{regs[k]}')
                if k & 1: sc.put(start[j]+k, 1, f'v_cvt_pk_bf16_f32 v{C_P+k//2}, v{regs[k-1]}, v{regs[k]}')
        elif j < n-1:
            S = C_S[p]
            regs = [S + (kb*2+qb)*4 + e for qb in ((1,) if hf(j) else (0, 1)) for kb in range(2) for e in range(4)]
            o = []
            for k in range(len(regs)):
                o.append(f'v_exp_f32 v{regs[k]}, v{regs[k]}')
                if k >= 2 and k % 2 == 0: o.append(f'v_cvt_pk_bf16_f32 v{C_P+(4 if hf(j) else 0)+(k-2)//2}, v{regs[k-2]}, v{regs[k-1]}')
            o += ['s_nop 0', f'v_cvt_pk_bf16_f32 v{C_P+7}, v{regs[-2]}, v{regs[-1]}']
            sc.place(o, start[j], h2-3)
        dv = C_dma('V', f's_add_u32 m0, s{S_PO if p==0 else S_PB}, {65536 + (16384 if p==0 else 0)}') if tail <= 2 else None
        dk = C_dma('K', f's_add_u32 m0, s{S_PB if p==0 else S_PO}, {16384 if p==0 else 0}') if tail <= 0 else None
        if dv:
            dv = flat(dv)
            sc.put(h2, 0, dv[0]); sc.put(h2, 0, dv[1])
            for x, st_ in zip(dv[2:], (2, 4, 5, 6)): sc.put(h2+st_, 0, x)
        else: sc.put(h2, 0, 's_nop 0')
        if dk:
            dk = flat(dk)
            sc.put(h2+7, 0, dk[0]); sc.put(h2+7, 0, dk[1])
            for x, st_ in zip(dk[2:], (8, 9, 10, 12)): sc.put(h2+st_, 0, x)
        if own:
            ml = merge_loads()
            if tail == 2: sc.place(ml[:NM2], h2+7, end)
            if tail == 3: sc.place(ml[NM2:NM2+NM3], h2+2, end)
            if tail == 2: sc.place(D_setup_v(), start[j], h2-1)
            if tail == 3: sc.place(D_setup_s(), h2+2, end)
            d0 = D_dma(0)
            if tail == 4: sc.place(d0[:6], h2+2, end)
            if tail == 5: sc.place(d0[6:], h2, end)
        if p == 1:
            e = [f's_xor_b32 s{S_PB}, s{S_PB}, 0x8000', f's_xor_b32 s{S_PO}, s{S_PO}, 0x8000']
            if j < 4: e += [f's_sub_u32 s{S_CNT}, s{S_CNT}, 2', f's_cmp_lg_u32 s{S_CNT}, 0']
            sc.place(e, end-2, end)
        if j < n-1:
            Sn = C_S[p ^ 1]; ops = []
            if own and tail == 1: ops += [f'v_mov_b32 v{C_DV}, v{C_DV0}'] + mask_ops(Sn, 0)
            if own and tail == 2: ops += [f'v_subrev_u32 v{C_DV}, 32, v{C_DV0}'] + mask_ops(Sn, 0)
            if own and tail == 3: ops += [f'v_add_u32 v{C_DV}, s{S_RB}, v{C_DV0}'] + mask_ops(Sn, 1)
            if own and tail == 4: ops += [f'v_subrev_u32 v{C_DV}, 32, v{C_DV}'] + mask_ops(Sn, 1)
            if hf(j+1): ops = [f'v_mov_b32 v{Sn+kb*8+e}, 0' for kb in range(2) for e in range(4)] + ops
            ops += max_ops(Sn, hf(j+1)) + [f'v_cmp_lt_f32 vcc, s{S_THR}, v{C_TM}']
            sc.place(ops, h2+(5 if hf(j) else 3), end)
    if NZ: sc.place([f'v_accvgpr_write_b32 a{r}, 0' for r in range(128-NZ, 128)], 0, 15)
    def text(j0, j1): return sc.text(start[j0], start[j1+1]-1)
    def emit_iter(j):
        tx = resolve_vm(text(j, j))
        if own and j == n-6:
            a(f's_lshl_b32 s{S_FP}, s{S_PAIR}, 8'); a(f's_add_u32 s{S_FP}, s{S_FP}, {hex(WS_FLG + 0x20000)}')
            a(poll_issue(S_FP))
        if own and j == n-4:
            L = a.newlabel('NMC')
            for x in merge_setup(): a(x.split('\n'))
            a(f's_cmp_eq_u32 s{S_TS}, 0'); a(f's_cbranch_scc1 {L}')
            a('s_waitcnt vmcnt(12)')
            spin_wait(a, S_FP, mask=1)
            a.label(L)
        ab = OPT.get('ablate', '')
        if 'dma' in ab: tx = [x for x in tx if not (x.startswith('buffer_load') or 'vmcnt' in x)]
        if 'bar' in ab: tx = [x for x in tx if not x.startswith('s_barrier')]
        if 'exp' in ab: tx = [x for x in tx if not x.startswith('v_exp')]
        if 'max' in ab: tx = [x for x in tx if not x.startswith('v_max')]
        if 'read' in ab: tx = [x for x in tx if not (x.startswith('ds_read') or 'lgkmcnt' in x)]
        a(tx)
        if j < n-1 and not ab:
            Lb = a.newlabel('CB'); Ls = a.newlabel('CS')
            a(f's_cbranch_vccnz {Ls}')
            a.label(Lb)
            rl['stubs'].append((Ls, Lb, (j&1)^1))
    assert text(0, 1) == text(2, 3), 'not periodic'
    print('phaseC overflow per pair', sc.overflow(start[2], start[4]-1))
    if own: stamp(a, 14)
    a(sc.pre)
    a(text(-1, -1))
    if own: stamp(a, 15)
    if own:
        Lx = a.newlabel('FX')
        a(f's_cmp_eq_u32 s{S_HASX}, 0'); a(f's_cbranch_scc1 {Lx}')
        a('s_waitcnt vmcnt(12)')
        a.label(Lx)
    a('s_barrier')
    if own: publish_flag(a)
    a(flat(C_dma('V', f's_add_u32 m0, s{S_W4K}, {65536+2*16384}') + C_dma('K', f's_mov_b32 m0, s{S_W4K}')))
    if own: a(mask_ops(C_S[0], 0))
    S0 = C_S[0]
    for qb in range(2):
        r = [S0 + (kb*2+qb)*4 + e for kb in range(2) for e in range(4)]
        d = C_T + qb
        a(f'v_max3_f32 v{d}, v{r[0]}, v{r[1]}, v{r[2]}'); a(f'v_max3_f32 v{d}, v{d}, v{r[3]}, v{r[4]}')
        a(f'v_max3_f32 v{d}, v{d}, v{r[5]}, v{r[6]}'); a(f'v_max_f32 v{d}, v{d}, v{r[7]}')
    a(f'v_max_f32 v{C_T}, abs(v{C_T}), abs(v{C_T+1})')
    a(f'v_cmp_nge_f32 vcc, s{S_THR}, v{C_T}')
    Lb = a.newlabel('CB'); Ls = a.newlabel('CS')
    a(f's_cbranch_vccnz {Ls}')
    a.label(Lb)
    rl['stubs'].append((Ls, Lb, 'first'))
    if own: stamp(a, 16)
    Ltail4 = a.newlabel('CT4'); Ltail = a.newlabel('CT6'); Lloop = a.newlabel('CL')
    if own:
        a(f's_cmp_eq_u32 s{S_N}, 4'); a(f's_cbranch_scc1 {Ltail4}')
    a(f's_sub_u32 s{S_CNT}, s{S_N}, 6')
    a(f's_cmp_eq_u32 s{S_CNT}, 0'); a(f's_cbranch_scc1 {Ltail}')
    a.label(Lloop)
    emit_iter(2); emit_iter(3)
    a(f's_cbranch_scc1 {Lloop}')
    a.label(Ltail)
    if own: stamp(a, 17)
    emit_iter(4); emit_iter(5)
    if own: a.label(Ltail4)
    for j in range(6, 10): emit_iter(j)

def rare_subs(a, rl):
    for (Ls, Lb, p) in rl['stubs']:
        a.label(Ls)
        a(f's_cselect_b32 s{S_T+8}, 1, 0')
        a(f's_getpc_b64 s[{S_RET}:{S_RET+1}]')
        Lp = a.newlabel('CP'); a.label(Lp)
        a(f's_sub_u32 s{S_RET}, s{S_RET}, {Lp}-{Lb}'); a(f's_subb_u32 s{S_RET+1}, s{S_RET+1}, 0')
        a(f's_branch {rl[p]}')
    a.label(rl['first'])
    rare_path(a, C_S[0], True)
    a(f's_setpc_b64 s[{S_RET}:{S_RET+1}]')
    for p in range(2):
        a.label(rl[p])
        rare_path(a, C_S[p], False)
        a(f's_cmp_lg_u32 s{S_T+8}, 0')
        a(f's_setpc_b64 s[{S_RET}:{S_RET+1}]')

def op_base(a, d):
    a(f's_mul_i32 s{d}, s{S_PAIR}, {OP_PAIR}'); a(f's_mul_i32 s{d+1}, s{S_WAVE}, {OP_WAVE}')
    a(f's_add_u32 s{d}, s{d}, s{d+1}'); a(f's_add_u32 s{d}, s{d}, {hex(WS_OP)}')

def publish_stores(a):
    t = S_T
    a('s_nop 7')
    op_base(a, t)
    a(f's_add_u32 s{t+1}, s{t}, 32768')
    a(f'v_mov_b32 v{C_T}, v{C_NM}'); a(f'v_mov_b32 v{C_T+1}, v{C_NM+4}'); a(f'v_mov_b32 v{C_T+2}, v{C_L}'); a(f'v_mov_b32 v{C_T+3}, v{C_L+4}')
    a(f'buffer_store_dwordx4 {vr(C_T)}, v{V_L16}, {sr(S_WS)}, s{t+1} offen sc1')
    for k in range(16):
        if k % 4 == 0 and k: a(f's_add_u32 s{t}, s{t}, 4096')
        tb = 32 + 16*(k & 1)
        for e in range(8): a(f'v_accvgpr_read_b32 v{tb+e}, a{8*k+e}')
        for e in range(4): a(f'v_cvt_pk_bf16_f32 v{tb+8+e}, v{tb+2*e}, v{tb+2*e+1}')
        a(f'buffer_store_dwordx4 {vr(tb+8)}, v{V_L16}, {sr(S_WS)}, s{t} offen offset:{1024*(k%4)} sc1')
    a('s_nop 1')

def publish_flag(a):
    L = a.newlabel('PF')
    a(f's_cmp_eq_u32 s{S_HASX}, 0'); a(f's_cbranch_scc1 {L}')
    a(f's_lshl_b32 s{S_T}, s{S_PAIR}, 8'); a(f's_add_u32 s{S_T}, s{S_T}, {hex(WS_FLG + 0x20000)}')
    a(f'buffer_store_dword v{V_NONCE}, v{V_SIG}, {sr(S_WS)}, s{S_T} offen sc1')
    a.label(L)

D_CTX = 32
D_WF, D_NB = 176, 8
D_ACC = 128
D_PK = 160
D_VO = 120
D_RA, D_RB = 20, 24
D_ST1 = 28
DSLOT = 49152
S_MB = 71
C_ML = 124

def merge_setup():
    t = S_T + 4
    return [f's_mul_i32 s{S_MB}, s{S_PAIR}, {OP_PAIR}', f's_mul_i32 s{t}, s{S_WAVE}, {OP_WAVE}',
            f's_add_u32 s{S_MB}, s{S_MB}, s{t}', f's_add_u32 s{S_MB}, s{S_MB}, {hex(WS_OP)}',
            f's_cmp_eq_u32 s{S_TS}, 0\ns_cselect_b32 s{S_MB}, 0x70000000, s{S_MB}']

def merge_loads():
    t = S_T + 4
    g = [[f's_add_u32 s{t}, s{S_MB}, 32768', f'buffer_load_dwordx4 {vr(C_ML)}, v{V_L16}, {sr(S_WS)}, s{t} offen sc1']]
    for k in range(16):
        pre = [f's_add_u32 s{S_MB}, s{S_MB}, 4096'] if (k % 4 == 0 and k) else []
        g.append(pre + [f'buffer_load_dwordx4 {vr(C_MRG+4*k)}, v{V_L16}, {sr(S_WS)}, s{S_MB} offen offset:{1024*(k%4)} sc1'])
    return g

def D_setup_v(): return D_setup()[:12]
def D_setup_s(): return D_setup()[12:]
def D_setup():
    t = S_T + 5
    r = ['v_lshrrev_b32 v2, 3, v1', 'v_mul_u32_u24 v3, 896, v2', 'v_bfe_u32 v2, v1, 4, 2', f'v_bfe_u32 v{D_VO}, v1, 1, 2', f'v_xor_b32 v2, v2, v{D_VO}',
         f'v_and_b32 v{D_VO}, 1, v1', f'v_lshl_add_u32 v2, v2, 1, v{D_VO}', 'v_lshl_add_u32 v3, v2, 4, v3']
    r += [f'v_add_u32 v{D_VO+i}, {i*(8*896-1024)}, v3' for i in range(4)]
    r += [f's_lshl_b32 s{t}, s{S_H}, 8', f's_lshl_b32 s{t+1}, s{S_WAVE}, 6', f's_add_u32 s{t}, s{t}, s{t+1}', f's_mul_i32 s{S_DO}, s{t}, 896',
          f's_mul_i32 s{t}, s{S_H}, 112', f's_lshl_b32 s{t+1}, s{S_WAVE}, 5', f's_add_u32 s{t}, s{t}, s{t+1}', f's_mul_i32 s{S_D2}, s{t}, 896']
    return r

def finalize(a):
    t = S_T
    Lno = a.newlabel('NOMRG'); Ldone = a.newlabel('FIN')
    a(f's_cmp_lg_u32 s{S_TS}, 0'); a(f's_cbranch_scc0 {Lno}')
    a('s_waitcnt vmcnt(24)')
    a(f's_mov_b32 s{t}, 0xffff0000')
    for qb in range(2):
        nm_a = C_NM + 4*qb; nm_b = C_ML + qb; l_a = C_L + 4*qb; l_b = C_ML + 2 + qb
        sa = 8 + 2*qb; sb = 16 + 2*qb
        a(f'v_min_f32 v2, v{nm_a}, v{nm_b}')
        a(f'v_sub_f32 v3, v2, v{nm_a}'); a(f'v_exp_f32 v{sa}, v3')
        a(f'v_sub_f32 v3, v2, v{nm_b}'); a(f'v_exp_f32 v{sb}, v3')
        a('s_nop 0')
        a(f'v_mul_f32 v2, v{sa}, v{l_a}'); a(f'v_fmac_f32 v2, v{sb}, v{l_b}')
        a('v_rcp_f32 v2, v2'); a('s_nop 0')
        a(f'v_mul_f32 v{sa}, v{sa}, v2'); a(f'v_mul_f32 v{sb}, v{sb}, v2')
        a(f'v_mov_b32 v{sa+1}, v{sa}'); a(f'v_mov_b32 v{sb+1}, v{sb}')
    k = 0
    for s in range(8):
        for qb in range(2):
            for half in range(2):
                o = ((2*s+half)*2+qb)*4; tb = 12 if k & 1 else 20; k += 1
                for e in range(4): a(f'v_accvgpr_read_b32 v{tb+e}, a{o+e}')
                for e in range(2):
                    a(f'v_lshlrev_b32 v{24+2*e}, 16, v{C_MRG+o//2+e}'); a(f'v_and_b32 v{25+2*e}, s{t}, v{C_MRG+o//2+e}')
                for e in (0, 2): a(f'v_pk_mul_f32 {vr(tb+e,2)}, {vr(tb+e,2)}, {vr(8+2*qb,2)}')
                for e in (0, 2): a(f'v_pk_fma_f32 {vr(tb+e,2)}, {vr(24+e,2)}, {vr(16+2*qb,2)}, {vr(tb+e,2)}')
                for e in range(2): a(f'v_cvt_pk_bf16_f32 v{D_CTX+(s*2+qb)*4+2*half+e}, v{tb+2*e}, v{tb+2*e+1}')
    a(f's_branch {Ldone}')
    a.label(Lno)
    for qb in range(2): a(f'v_rcp_f32 v{8+2*qb}, v{C_L+4*qb}')
    a('s_nop 0')
    for qb in range(2): a(f'v_mov_b32 v{9+2*qb}, v{8+2*qb}')
    for s in range(8):
        for qb in range(2):
            for half in range(2):
                o = ((2*s+half)*2+qb)*4; tb = 12 if k & 1 else 20; k += 1
                for e in range(4): a(f'v_accvgpr_read_b32 v{tb+e}, a{o+e}')
                for e in (0, 2): a(f'v_pk_mul_f32 {vr(tb+e,2)}, {vr(tb+e,2)}, {vr(8+2*qb,2)}')
                for e in range(2): a(f'v_cvt_pk_bf16_f32 v{D_CTX+(s*2+qb)*4+2*half+e}, v{tb+2*e}, v{tb+2*e+1}')
    a.label(Ldone)

def D_dma(tile):
    t = S_T; sl = (tile % 3)*DSLOT
    g = []
    for half in range(2):
        first = [f's_lshl_b32 s{t}, s{S_W4K}, 1'] if half == 0 else []
        first += [f's_add_u32 m0, s{t}, {sl + 4096*half}', f's_add_u32 s{t+1}, s{S_DO}, {half*32*896 + tile*128}']
        for i in range(4):
            g.append((first if i == 0 else []) + [f'buffer_load_dwordx4 v{D_VO+i}, {sr(S_WO)}, s{t+1} offen offset:{1024*i} lds'])
    first = [f's_add_u32 m0, s{S_W4K}, {sl + 32768}', f's_add_u32 s{t+1}, s{S_D2}, {tile*128}']
    for i in range(4):
        g.append((first if i == 0 else []) + [f'buffer_load_dwordx4 v{D_VO+i}, {sr(S_W2)}, s{t+1} offen offset:{1024*i} lds'])
    return tag(g, f'T{tile}')

def phaseD_begin(a):
    a('s_barrier')
    a(resolve_vm(flat(D_dma(1))))

def phaseD(a):
    t = S_T
    a('v_lshrrev_b32 v2, 2, v1'); a('v_bfe_u32 v3, v1, 3, 2')
    a('v_and_b32 v8, 3, v1'); a('v_lshlrev_b32 v8, 3, v8'); a('v_lshl_add_u32 v8, v2, 7, v8')
    for c in range(4):
        a(f'v_xor_b32 v2, {c}, v3'); a(f'v_lshl_add_u32 v{D_RB+c}, v2, 5, v8')
    a(f's_lshl_b32 s{t}, s{S_OWN}, 3'); a(f's_add_u32 s{t}, s{t}, s{S_WAVE}'); a(f's_mul_i32 s{t}, s{t}, {14*16384}')
    a(f's_lshl_b32 s{t+1}, s{S_H}, 10'); a(f's_add_u32 s{t}, s{t}, s{t+1}')
    a(f's_add_u32 s{S_PRT}, s{t}, {hex(WS_PART)}')
    a(f's_mul_i32 s{t}, s{S_Q1}, {14*16384}'); a(f'v_add_u32 v{D_ST1}, s{t}, v{V_L16}')
    steps = []
    for tile in range(7):
        sl = tile % 3
        for c in range(4):
            for ks in range(12):
                buf = D_WF + (len(steps) % D_NB)*4
                rd = [f'ds_read_b64_tr_b16 {vr(buf+2*h,2)}, v{D_RA+c} offset:{4096*ks+2048*h}' for h in range(2)]
                pv = f'v_add_u32 v{D_RA+c}, {sl*DSLOT}, v{D_RB+c}' if ks == 0 else None
                mf = []
                for qb in range(2):
                    d = vr(D_ACC + (c*2+qb)*4)
                    b = vr(D_CTX + (ks*2+qb)*4) if ks < 8 else ar(A_H + ((ks-8)*2+qb)*4)
                    mf.append(f'{MF} {d}, {vr(buf)}, {b}, {d if ks else "0"}')
                steps.append(Step(mf, rd, prev=pv))
    nst = 48; LA = 6
    bp = {}
    for tile in range(6):
        bp[tile] = (tile+1)*nst - LA - 1
        steps[bp[tile]].pre += [f's_waitcnt vmcnt(@T{tile+1})', 's_barrier']
        for f in range(nst): steps[(tile+1)*nst+f].gate = bp[tile]
    FUSE = OPT.get('fuse_r', True)
    if FUSE:
        bp[6] = 7*nst - LA - 1
        steps[bp[6]].pre += ['s_barrier']
        for tile in range(1, 7): steps[bp[tile]].pre.insert(0, f's_waitcnt vmcnt(@P{2*tile-1-OPT.get("plag", 0)})')
        a(f's_lshl_b32 s{S_FP}, s{S_OWN}, 12'); a(f's_add_u32 s{S_FP}, s{S_FP}, {hex(WS_FLG + 0x40000)}')
        a(f's_lshl_b32 s{S_MB}, s{S_H}, 2'); a(f's_add_u32 s{S_MB}, s{S_MB}, s{S_FP}')
    sc = Sched(steps, LA=LA, wait_group=2)
    if FUSE:
        for tile in range(1, 7):
            sc.place([f'v_add_u32 v{8+(tile&1)}, {2*tile-OPT.get("plag", 0)}, v{V_NONCE}', f'buffer_store_dword v{8+(tile&1)}, v{V_SIG}, {sr(S_WS)}, s{S_MB} offen sc1'], bp[tile], bp[tile]+1)
    sc.place(D_dma(2), 0, 24)
    for tile in range(1, 5): sc.place(D_dma(tile+2), bp[tile], bp[tile]+OPT.get('d_dw', 16))
    tail_ops = None
    for tile in range(7):
        for cp in range(2):
            v = tile*2 + cp
            endstep = (tile*4 + cp*2 + 2)*12
            ops = []
            for qb in range(2):
                pk = D_PK + (cp*2+qb)*4
                for half in range(2):
                    src = D_ACC + ((cp*2+half)*2+qb)*4
                    for e in range(2): ops.append(f'v_cvt_pk_bf16_f32 v{pk+2*half+e}, v{src+2*e}, v{src+2*e+1}')
                st = [f's_add_u32 s{t+4}, s{S_PRT}, {v*16384}'] if qb == 0 else []
                ops.append(st + [f'buffer_store_dwordx4 {vr(pk)}, v{V_L16 if qb==0 else D_ST1}, {sr(S_WS)}, s{t+4} offen sc1 ;@P{v}'])
            if endstep + 3 < len(steps): sc.place(ops, endstep+3, endstep+12)
            else: tail_ops = ops
    print('phaseD overflow', sc.overflow(0, len(steps)-1))
    head = flat(D_dma(0) + D_dma(1))
    body = resolve_vm(head + ['MARK', 's_waitcnt vmcnt(@T0)', 's_barrier'] + sc.pre + sc.text(0, len(steps)-1))
    a(body[body.index('MARK')+1:])
    a('s_nop 7')
    a(resolve_vm(flat(tail_ops)))

def phaseR(a, Lend):
    t = S_T
    S_OUT, S_B2 = S_CKV, S_W
    S_CT, S_U, S_IT, S_MSK = 57, 58, 59, 60
    a(f's_load_dwordx4 s[{t+4}:{t+7}], s[0:1], 80')
    a('s_waitcnt vmcnt(0)')
    a('s_barrier')
    a(f'v_add_u32 v8, 14, v{V_NONCE}')
    a(f'buffer_store_dword v8, v{V_SIG}, {sr(S_WS)}, s{S_MB} offen sc1')
    stamp(a, 13)
    a('s_waitcnt lgkmcnt(0)')
    srd(a, S_B2, t+4, 448*2); srd(a, S_OUT, t+6, 2048*448*2)
    a(f's_add_u32 s{S_CT}, s{S_FP}, 0x10000')
    a(f's_mov_b32 s{S_IT}, 0'); a(f's_mov_b32 s{S_MSK}, 0xffff0000')
    a('v_and_b32 v10, 15, v1'); a('v_mul_u32_u24 v10, 896, v10'); a('v_lshrrev_b32 v11, 4, v1'); a('v_lshlrev_b32 v11, 3, v11')
    a('v_add_u32 v10, v10, v11')
    def wait_prog(need_sgpr):
        Ls = a.newlabel('RP'); Lo = a.newlabel('RP')
        a(f's_mov_b32 s{t+1}, 0')
        a(f's_sub_u32 s{t+2}, 14, s{need_sgpr}')
        a.label(Ls)
        a(poll_issue(S_FP))
        a('s_waitcnt vmcnt(0)')
        a(f'v_sub_u32 v2, v{V_POLL}, v{V_NONCE}'); a(f'v_subrev_u32 v2, s{need_sgpr}, v2')
        a(f'v_cmp_ge_u32 vcc, s{t+2}, v2')
        a(f's_and_b32 s{t}, vcc_lo, 0xffff')
        a(f's_cmp_eq_u32 s{t}, 0xffff'); a(f's_cbranch_scc1 {Lo}')
        a(f's_sleep {OPT.get("rsleep", 3)}')
        a(f's_add_u32 s{t+1}, s{t+1}, 1')
        a(f's_cmp_lt_u32 s{t+1}, 20000'); a(f's_cbranch_scc1 {Ls}')
        a.label(Lo)
    Lloop = a.newlabel('RL'); Lsk = a.newlabel('RS'); Lw = a.newlabel('RW'); Lf = a.newlabel('RF')
    a(f's_cmp_lg_u32 s{S_WAVE}, 0'); a(f's_cbranch_scc1 {Lloop}')
    a(f's_mov_b32 s{t+3}, 1')
    wait_prog(t+3)
    a.label(Lloop)
    a(f'v_mov_b32 v12, s{S_IT}')
    a(f's_cmp_lg_u32 s{S_WAVE}, 0'); a(f's_cbranch_scc1 {Lsk}')
    a('v_mov_b32 v3, 1')
    a(f'buffer_atomic_add v3, v{V_SIG}, {sr(S_WS)}, s{S_CT} offen sc0 sc1')
    a('s_waitcnt vmcnt(0)')
    a(f'v_readfirstlane_b32 s{S_U}, v3')
    a(f's_cmp_ge_u32 s{S_U}, 28'); a(f's_cbranch_scc1 {Lw}')
    a(f's_lshr_b32 s{t+3}, s{S_U}, 1'); a(f's_add_u32 s{t+3}, s{t+3}, 1')
    wait_prog(t+3)
    a.label(Lw)
    a(f'v_mov_b32 v3, s{S_U}')
    a('ds_write_b32 v12, v3')
    a('s_waitcnt lgkmcnt(0)')
    a.label(Lsk)
    a('s_barrier')
    a('ds_read_b32 v3, v12')
    a('s_waitcnt lgkmcnt(0)')
    a(f'v_readfirstlane_b32 s{S_U}, v3')
    a(f's_xor_b32 s{S_IT}, s{S_IT}, 4')
    a(f's_cmp_ge_u32 s{S_U}, 28'); a(f's_cbranch_scc1 {Lf}')
    a(f's_and_b32 s{t}, s{S_U}, 1'); a(f's_lshl_b32 s{t}, s{t}, 2'); a(f's_add_u32 s{t}, s{t}, s{S_WAVE}')
    a(f's_lshl_b32 s{t+1}, s{S_OWN}, 3'); a(f's_add_u32 s{t}, s{t}, s{t+1}')
    a(f's_lshr_b32 s{t+1}, s{S_U}, 1')
    a(f's_mul_i32 s{t+2}, s{t}, 14'); a(f's_add_u32 s{t+2}, s{t+2}, s{t+1}'); a(f's_lshl_b32 s{t+2}, s{t+2}, 14')
    a(f's_add_u32 s{t+2}, s{t+2}, {hex(WS_PART)}')
    for h in range(16):
        a(f'buffer_load_dwordx4 {vr(32+4*h)}, v{V_L16}, {sr(S_WS)}, s{t+2} offen offset:{(h%4)*1024} sc1')
        if h % 4 == 3 and h < 15: a(f's_add_u32 s{t+2}, s{t+2}, 4096')
    a(f's_mul_i32 s{t}, s{t}, {16*896}'); a(f's_lshl_b32 s{t+1}, s{t+1}, 6'); a(f's_add_u32 s{t}, s{t}, s{t+1}')
    a(f'buffer_load_dwordx2 v[96:97], v10, {sr(S_XIN)}, s{t} offen')
    a(f'buffer_load_dwordx2 v[98:99], v10, {sr(S_XIN)}, s{t} offen offset:32')
    a(f'buffer_load_dwordx2 v[100:101], v11, {sr(S_B2)}, s{t+1} offen')
    a(f'buffer_load_dwordx2 v[102:103], v11, {sr(S_B2)}, s{t+1} offen offset:32')
    for h in range(18):
        a(f's_waitcnt vmcnt({19-h if h < 16 else (2 if h == 16 else 0)})')
        src = 32 + 4*h
        for i in range(4):
            if h == 0:
                a(f'v_lshlrev_b32 v{16+2*i}, 16, v{src+i}'); a(f'v_and_b32 v{17+2*i}, s{S_MSK}, v{src+i}')
            else:
                a(f'v_lshlrev_b32 v14, 16, v{src+i}'); a(f'v_and_b32 v15, s{S_MSK}, v{src+i}')
                a(f'v_add_f32 v{16+2*i}, v{16+2*i}, v14'); a(f'v_add_f32 v{17+2*i}, v{17+2*i}, v15')
    for i in range(4): a(f'v_cvt_pk_bf16_f32 v{24+i}, v{16+2*i}, v{17+2*i}')
    a(f'buffer_store_dwordx2 v[24:25], v10, {sr(S_OUT)}, s{t} offen')
    a(f'buffer_store_dwordx2 v[26:27], v10, {sr(S_OUT)}, s{t} offen offset:32')
    a(f's_cmp_lt_u32 s{S_U}, {OPT.get("u0", 20)}'); a(f's_cbranch_scc1 {Lloop}')
    a.label(Lf)
    if DBG[0]:
        a('s_waitcnt vmcnt(0)')
        stamp(a, 18)

def build_srds(a):
    P = PTR
    srd(a, S_WS, P+26, WS_BYTES); srd(a, S_CKV, P+2, 2048*1024*2); srd(a, S_XIN, P+0, 2048*448*2)
    a(f's_cmp_eq_u32 s{S_KVT}, 0')
    a(f's_cselect_b32 s{P+6}, s{P+6}, s{P+8}'); a(f's_cselect_b32 s{P+7}, s{P+7}, s{P+9}')
    srd(a, S_W, P+6, 1024*4096*2)
    srd(a, S_WQ, P+4, 448*4096*2); srd(a, S_W1, P+14, 448*1792*2); srd(a, S_WO, P+10, 4096*448*2)
    srd(a, S_W2, P+18, 1792*448*2); srd(a, S_B1, P+16, 1792*2); srd(a, S_DBG, P+24, 256)

def gen_mega(a, name='m_kernel', dbg=False):
    DBG[0] = dbg
    kstart(a, name)
    a.label('M_CODE_START')
    Lend = a.newlabel('MEND')
    a('s_cmp_ge_u32 s2, 256'); a(f's_cbranch_scc1 {Lend}')
    a(f's_load_dwordx16 s[{PTR}:{PTR+15}], s[0:1], 0')
    a(f's_load_dwordx8 s[{PTR+16}:{PTR+23}], s[0:1], 64')
    a(f's_load_dwordx4 s[{PTR+24}:{PTR+27}], s[0:1], 96')
    Lp = a.newlabel('PC')
    a(f's_getpc_b64 s[{S_PC}:{S_PC+1}]')
    a.label(Lp)
    a(f's_sub_u32 s{S_PC}, s{S_PC}, {Lp}-M_CODE_START'); a(f's_subb_u32 s{S_PC+1}, s{S_PC+1}, 0')
    a(flat(code_pf(0, OPT.get('cpf0', 1), 200)))
    if OPT.get('cpfs'):
        ns = OPT['cpfs']; per = (104*1024 // ns) // 128
        a('s_lshr_b32 s4, s2, 3'); a(f's_and_b32 s4, s4, {ns-1}'); a(f's_mul_i32 s4, s4, {per*128}')
        a(f'v_min_u32 v200, {per-1}, v0'); a('v_lshlrev_b32 v200, 7, v200'); a('v_add_u32 v200, s4, v200')
        a('v_min_u32 v200, M_CODE_END-M_CODE_START-4, v200')
        a(f'global_load_dword v31, v200, s[{S_PC}:{S_PC+1}]')
    a('v_and_b32 v1, 63, v0')
    a('v_lshrrev_b32 v2, 6, v0')
    a(f'v_lshlrev_b32 v{V_L16}, 4, v1')
    a(f'v_readfirstlane_b32 s{S_WAVE}, v2')
    t = 4
    a(f's_and_b32 s{t}, s2, 7'); a(f's_lshr_b32 s{t+1}, s2, 3'); a(f's_and_b32 s{t+2}, s{t+1}, 1')
    if OPT.get('xswap'): a(f's_xor_b32 s{t}, s{t}, {OPT["xswap"]}')
    a(f's_lshl_b32 s{t}, s{t}, 1'); a(f's_add_u32 s{S_H}, s{t}, s{t+2}')
    a(f's_lshr_b32 s{t+1}, s{t+1}, 1'); a(f's_and_b32 s{S_ROLE}, s{t+1}, 1'); a(f's_lshr_b32 s{S_I}, s{t+1}, 1')
    a(f's_lshl_b32 s{S_W4K}, s{S_WAVE}, 12'); a(f's_lshl_b32 s{S_W2K}, s{S_WAVE}, 11')
    a(f's_lshl_b32 s{S_PAIR}, s{S_H}, 3'); a(f's_add_u32 s{S_PAIR}, s{S_PAIR}, s{S_I}')
    a(f's_lshl_b32 s{S_FKV}, s{S_H}, 12'); a(f's_add_u32 s{S_FKV}, s{S_FKV}, {hex(WS_FLG)}')
    lo = sum(T0[i] << (8*i) for i in range(4)); hi = sum(T0[4+i] << (8*i) for i in range(4))
    a(f's_mov_b32 s{t}, {hex(lo)}'); a(f's_mov_b32 s{t+1}, {hex(hi)}')
    a(f's_lshl_b32 s{t+2}, s{S_I}, 3'); a(f's_lshr_b64 s[{t}:{t+1}], s[{t}:{t+1}], s{t+2}'); a(f's_and_b32 s{S_T0}, s{t}, 0xff')
    a(f's_sub_u32 s{S_EXT}, 15, s{S_I}')
    a(f's_cmp_eq_u32 s{S_ROLE}, 0'); a(f's_cselect_b32 s{S_OWN}, s{S_EXT}, s{S_I}')
    a(f's_mul_i32 s{S_HASX}, s{S_ROLE}, s{S_T0}')
    a(f's_mov_b32 s{S_QSC}, {f32(1.4426950408889634/16)}')
    a(f's_mov_b32 s{S_THR}, {f32(16.0)}')
    a('v_mov_b32 v3, 0x7fffff00'); a('v_cmp_eq_u32 vcc, 0, v0'); a(f'v_mov_b32 v{V_NONCE}, 0')
    a('v_lshlrev_b32 v2, 2, v0')
    a(f'v_cndmask_b32 v{V_SIG}, v3, 0, vcc')
    a('v_cmp_gt_u32 vcc, 16, v0'); a('s_nop 1')
    a(f'v_cndmask_b32 v{V_SIG16}, v3, v2, vcc')
    hist = phaseA(a)
    phaseB_main(a, True, hist)
    Lown = a.newlabel('OWN'); Lown2 = a.newlabel('OWN2')
    rl = {0: a.newlabel('RARE'), 1: a.newlabel('RARE'), 'first': a.newlabel('RARE'), 'stubs': []}
    def qsc(): a(f'v_mov_b32 v{B_QS}, s{S_QSC}'); a(f'v_mov_b32 v{B_QS+1}, s{S_QSC}')
    def own_params():
        a(f's_lshl_b32 s{S_RB}, s{S_OWN}, 2'); a(f's_add_u32 s{S_N}, s{S_RB}, 4'); a(f's_add_u32 s{S_RB}, s{S_RB}, s{S_WAVE}')
        a(f's_cmp_eq_u32 s{S_ROLE}, 0'); a(f's_cselect_b32 s{S_TS}, s{S_T0}, 0')
        a(f's_sub_u32 s{S_N}, s{S_N}, s{S_TS}')
    qsc()
    a(f's_sub_u32 s{S_PUBQ}, s{S_T0}, s{S_HASX}')
    own_params()
    a(f's_cmp_lg_u32 s{S_HASX}, 0'); a(f's_cselect_b32 s{S_N}, s{S_T0}, s{S_N}')
    phaseB_epi(a)
    a('s_waitcnt vmcnt(16)')
    spin_wait(a, S_FP)
    stamp(a, 8)
    phaseC_begin(a, 1)
    phaseB_epi_h(a)
    Lq = a.newlabel('QF')
    a(f's_cmp_eq_u32 s{S_PUBQ}, 0'); a(f's_cbranch_scc1 {Lq}')
    a('s_waitcnt vmcnt(12)')
    a('s_barrier')
    a(f's_lshl_b32 s{S_T}, s{S_PAIR}, 8'); a(f's_add_u32 s{S_T}, s{S_T}, {hex(WS_FLG + 0x30000)}')
    a(f'buffer_store_dword v{V_NONCE}, v{V_SIG}, {sr(S_WS)}, s{S_T} offen sc1')
    a.label(Lq)
    stamp(a, 5)
    a(f's_cmp_eq_u32 s{S_HASX}, 0'); a(f's_cbranch_scc1 {Lown2}')
    phaseC(a, False, rl, after_first_wait=lambda a: stamp(a, 6))
    stamp(a, 9)
    own_params()
    phaseC_begin(a, 1)
    publish_stores(a)
    a.label(Lown2)
    stamp(a, 10)
    t = S_T
    def afw(a):
        if OPT.get('pfd_c0'): a(flat(pfD(2)))
        if OPT.get('pfd_big', True): pfD_big(a)
    phaseC(a, True, rl, after_first_wait=afw)
    a.label('M_D_START')
    stamp(a, 11)
    phaseD_begin(a)
    finalize(a)
    stamp(a, 12)
    phaseD(a)
    if OPT.get('fuse_r', True): phaseR(a, Lend)
    elif dbg:
        a('s_waitcnt vmcnt(0)')
        stamp(a, 13)
    a.label(Lend)
    a('s_endpgm')
    rare_subs(a, rl)
    a.label('M_CODE_END')
    kdesc(a, name, 512, 256, sgpr=102)
```

```python
from asmlib import *
from layout import *
from sched import *
import struct

def f32(x): return hex(struct.unpack('<I', struct.pack('<f', x))[0])
MF = 'v_mfma_f32_16x16x32_bf16'
DBG = [False]
def KT_(): return OPT.get('kvtile', 32768)
def KH_(): return 64*KT_() + OPT.get('kvhpad', 0)
OPT = dict(kv_sc1=True, a_pf=0, tlb=False, cpf0=0, cpfs=8)

S_WS, S_CKV, S_W, S_WQ, S_W1, S_WO, S_W2, S_B1, S_XIN, S_DBG = 4, 8, 12, 16, 20, 24, 28, 32, 36, 40
S_WAVE, S_H, S_ROLE, S_I, S_OWN, S_EXT, S_T0, S_HASX, S_W4K, S_W2K, S_PAIR, S_QSC, S_THR = range(44, 57)
S_KVT, S_KT = S_ROLE, S_I
S_SOX, S_SOW, S_DX, S_RX, S_CNT = 57, 58, 59, 60, 61
S_XO, S_KVO = 71, 62
S_DL = 86
S_KO, S_VO, S_PB, S_PO, S_RB, S_TS, S_N = 57, 58, 59, 60, 62, 63, 64
S_DO, S_D2, S_DS, S_PRT = 57, 58, 59, 60
S_FKV = 65
S_FP = 70
S_PUBQ = 68
S_F0, S_ODD = 98, 99
S_Q1 = 3
S_PC = 66
S_T = 72
S_RET = 84
S_MK = 86
S_ST = 94
PTR = 72
V_L16, V_SIG, V_NONCE, V_POLL = 4, 5, 6, 7
V_SIG16, V_DUM = 30, 31
V_H = 128
A_QX, A_H = 128, 192
V_QO = 128
CNT_KV, CNT_XN = 128, 192

def stamp(a, idx, dyn=None):
    if not DBG[0]: return
    L = a.newlabel('ST')
    a(f's_cmp_lg_u32 s{S_WAVE}, 0'); a(f's_cbranch_scc1 {L}')
    a(f's_memtime s[{S_ST}:{S_ST+1}]'); a(f's_memrealtime s[{S_ST+2}:{S_ST+3}]')
    a('s_waitcnt lgkmcnt(0)')
    a(f'v_mov_b32 v2, s{S_ST}'); a(f'v_mov_b32 v3, s{S_ST+2}')
    a(f's_lshl_b32 s{S_ST}, s2, 8'); a(f's_add_u32 s{S_ST}, s{S_ST}, {hex(WS_DBG + idx*8)}')
    if dyn is not None:
        a(f's_lshl_b32 s{S_ST+1}, s{dyn}, 3'); a(f's_add_u32 s{S_ST}, s{S_ST}, s{S_ST+1}')
    a(f'buffer_store_dwordx2 v[2:3], v{V_SIG}, {sr(S_WS)}, s{S_ST} offen')
    a('s_nop 1')
    a.label(L)

def code_pf(off, n, vt):
    g = []
    for i in range(n):
        g.append([f'v_lshlrev_b32 v{vt}, 7, v0', f'v_add_u32 v{vt}, {off + i*32768}, v{vt}',
                  f'v_min_u32 v{vt}, M_CODE_END-M_CODE_START-4, v{vt}',
                  f'global_load_dword v31, v{vt}, s[{S_PC}:{S_PC+1}]'])
    return g

def spin_wait(a, soff, mask=0xffff):
    t = S_T
    Lok = a.newlabel('WOK'); Ls = a.newlabel('WSP')
    a(f's_cmp_lg_u32 s{S_WAVE}, 0'); a(f's_cbranch_scc1 {Lok}')
    a(f's_mov_b32 s{t+1}, 0')
    a.label(Ls)
    a(f'v_cmp_eq_u32 vcc, v{V_POLL}, v{V_NONCE}')
    a(f's_and_b32 s{t}, vcc_lo, {hex(mask)}')
    a(f's_cmp_eq_u32 s{t}, {hex(mask)}'); a(f's_cbranch_scc1 {Lok}')
    a('s_sleep 8')
    a(poll_issue(soff))
    a('s_waitcnt vmcnt(0)')
    a(f's_add_u32 s{t+1}, s{t+1}, 1')
    a(f's_cmp_lt_u32 s{t+1}, 20000'); a(f's_cbranch_scc1 {Ls}')
    a.label(Lok)

def poll_issue(soff):
    return [f'buffer_load_dword v{V_POLL}, v{V_SIG16}, {sr(S_WS)}, s{soff} offen sc1']

def xn_flag_addr(dst, qb):
    return [f's_lshl_b32 s{dst}, s{qb}, 12', f's_add_u32 s{dst}, s{dst}, {hex(WS_FLG + 0x10000)}']

def row2_reduce(a, v, t, sd, sm):
    for mod in ['quad_perm:[1,0,3,2]', 'quad_perm:[2,3,0,1]', 'row_ror:8']:
        a('s_nop 1')
        a(f'v_add_f32 v{v}, v{v}, v{v} {mod} row_mask:0xf bank_mask:0xf')
    a('s_nop 1')
    for i in range(4): a(f'v_readlane_b32 s{sd+i}, v{v}, {16*i}')
    for i in range(4): a(f'v_readlane_b32 s{sd+4+i}, v{v}, {16*i+4}')
    a('s_nop 1')
    a(f'v_mov_b32 v{v}, s{sd}'); a(f'v_mov_b32 v{t}, s{sd+4}')
    for i in range(1, 4):
        a(f'v_add_f32 v{v}, s{sd+i}, v{v}'); a(f'v_add_f32 v{t}, s{sd+4+i}, v{t}')
    a(f'v_cndmask_b32 v{v}, v{v}, v{t}, s[{sm}:{sm+1}]')

def bf16_round(a, d, s):
    a(f'v_cvt_pk_bf16_f32 v{d}, v{s}, v{s}')
    a(f'v_and_b32 v{d}, 0xffff0000, v{d}')

def ln_rows(a, xr, f, t, sd, sm, out):
    a(f's_mov_b32 s{sm}, 0xf0f0f0f0'); a(f's_mov_b32 s{sm+1}, 0xf0f0f0f0')
    for i in range(8):
        a(f'v_lshlrev_b32 v{f+2*i}, 16, v{xr+i}')
        a(f'v_and_b32 v{f+2*i+1}, 0xffff0000, v{xr+i}')
    a(f'v_add_f32 v{t}, v{f}, v{f+1}')
    for i in range(2, 16): a(f'v_add_f32 v{t}, v{t}, v{f+i}')
    row2_reduce(a, t, t+3, sd, sm)
    a(f'v_mul_f32 v{t}, 0x3b124925, v{t}')
    a(f'v_mov_b32 v{t+1}, 0')
    for i in range(16):
        a(f'v_sub_f32 v{t+2}, v{f+i}, v{t}')
        a(f'v_fmac_f32 v{t+1}, v{t+2}, v{t+2}')
    a(f'v_cndmask_b32 v{t+1}, 0, v{t+1}, vcc')
    row2_reduce(a, t+1, t+3, sd, sm)
    a(f'v_mul_f32 v{t+1}, 0x3b124925, v{t+1}')
    bf16_round(a, t, t)
    bf16_round(a, t+1, t+1)
    a(f'v_add_f32 v{t+1}, 0x3727c5ac, v{t+1}')
    bf16_round(a, t+1, t+1)
    a(f'v_sqrt_f32 v{t+1}, v{t+1}')
    a('s_nop 0')
    bf16_round(a, t+1, t+1)
    a(f'v_rcp_f32 v{t+2}, v{t+1}')
    a('s_nop 0')
    a(f'v_fma_f32 v{t+3}, -v{t+1}, v{t+2}, 1.0')
    a(f'v_fmac_f32 v{t+2}, v{t+3}, v{t+2}')
    for i in range(16): a(f'v_sub_f32 v{f+i}, v{f+i}, v{t}')
    for i in range(8): a(f'v_cvt_pk_bf16_f32 v{out+i}, v{f+2*i}, v{f+2*i+1}')
    for i in range(8):
        a(f'v_lshlrev_b32 v{f+2*i}, 16, v{out+i}')
        a(f'v_and_b32 v{f+2*i+1}, 0xffff0000, v{out+i}')
    for i in range(16): a(f'v_mul_f32 v{f+i}, v{f+i}, v{t+2}')
    for i in range(8): a(f'v_cvt_pk_bf16_f32 v{out+i}, v{f+2*i}, v{f+2*i+1}')

WSLOT, NWS = 16384, 4
XBASE, XSLOT, NXS = 65536, 32768, 3
A_VX, A_VW, A_XAB, A_XA, A_WA = 8, 12, 16, 18, 20
AF = [dict(X=32, W=64), dict(X=96, W=128)]

def A_dma_w(wslot):
    g = [[f's_add_u32 m0, s{S_W4K}, {wslot*WSLOT}', f's_add_u32 s{S_SOW}, s{S_SOW}, {32*8192}',
          f'buffer_load_dwordx4 v{A_VW}, {sr(S_W)}, s{S_SOW} offen lds']]
    for i in range(1, 4):
        g.append([f'buffer_load_dwordx4 v{A_VW+i}, {sr(S_W)}, s{S_SOW} offen offset:{1024*i} lds'])
    return g

def A_dma_x(half):
    if half == 0:
        so = S_SOX
        g = [[f's_mov_b32 m0, s{S_DX}', f's_add_u32 s{S_SOX}, s{S_SOX}, 128', f'buffer_load_dwordx4 v{A_VX}, {sr(S_CKV)}, s{so} offen lds']]
    else:
        so = S_T + 1
        g = [[f's_add_u32 m0, s{S_DX}, 16384', f's_add_u32 s{so}, s{S_SOX}, {128*2048}',
              f'buffer_load_dwordx4 v{A_VX}, {sr(S_CKV)}, s{so} offen lds']]
    for i in range(1, 4):
        g.append([f'buffer_load_dwordx4 v{A_VX+i}, {sr(S_CKV)}, s{so} offen offset:{1024*i} lds'])
    if half == 1:
        g[-1] += [f's_add_u32 s{S_DX}, s{S_DX}, {XSLOT}',
                  f's_cmp_ge_u32 s{S_DX}, {XBASE+NXS*XSLOT}\ns_cselect_b32 s{S_T}, {NXS*XSLOT}, 0',
                  f's_sub_u32 s{S_DX}, s{S_DX}, s{S_T}']
    return g

def A_reads(u):
    f = AF[u & 1]; ks = u & 1; ws = u % NWS
    def wr(db): return [f'ds_read_b64_tr_b16 {vr(f["W"]+4*db+2*h,2)}, v{A_WA+db} offset:{ws*WSLOT+2048*h}' for h in range(2)]
    r = wr(0)
    for kb in range(8): r.append(f'ds_read_b128 {vr(f["X"]+4*kb)}, v{A_XA+ks} offset:{2048*kb}')
    for db in range(1, 8): r += wr(db)
    return r

def A_order(vtype):
    if vtype: return [(db, 2*tt+h) for db in range(8) for tt in range(4) for h in range(2)]
    return [(2*s_+h, kb) for s_ in range(4) for kb in range(8) for h in range(2)]

def A_kstep(u, vtype, dmaw, dmax, vm, last=False, extras=(), head=(), czero=False):
    out = list(head)
    if not last: out += [f's_waitcnt vmcnt({vm}) lgkmcnt(0)', 's_barrier']
    else: out += ['s_waitcnt lgkmcnt(0)']
    f = AF[u & 1]
    steps = []
    for i, (db, kb) in enumerate(A_order(vtype)):
        acc = ar(i*4, 4); w = vr(f['W']+4*db); x = vr(f['X']+4*kb)
        c = '0' if czero else acc
        steps.append(Step([f'{MF} {acc}, {x}, {w}, {c}' if vtype else f'{MF} {acc}, {w}, {x}, {c}']))
    sc = Sched(steps, LA=0, first_issued=0)
    d = []
    if dmaw: d += A_dma_w(u % NWS)
    if dmax: d += A_dma_x(0 if (u & 1) else 1)
    if d: sc.place(tag(d, f'A{u}'), 2, 58)
    if not last:
        r = []
        if (u & 1) == 1:
            r += [f's_add_u32 s{S_RX}, s{S_RX}, {XSLOT}', f's_cmp_ge_u32 s{S_RX}, {NXS*XSLOT}\ns_cselect_b32 s{S_RX}, 0, s{S_RX}']
            r += [f'v_add_u32 v{A_XA+i}, s{S_RX}, v{A_XAB+i}' for i in range(2)]
        sc.place(r + A_reads(u+1), 0, 44)
    for (items, lo, hi) in extras: sc.place(items, lo, hi)
    return out + sc.text(0, 63)

PEND = 32

def phaseA(a):
    t = 4
    S_ROW0, S_ROWO = 68, 69
    a(f's_lshl_b32 s{t}, s{S_KT}, 3'); a(f's_add_u32 s{t}, s{t}, s{S_WAVE}'); a(f's_lshl_b32 s{t}, s{t}, 16')
    a('v_lshrrev_b32 v2, 3, v1'); a('v_lshlrev_b32 v2, 11, v2')
    a('v_and_b32 v3, 7, v1'); a('v_lshrrev_b32 v200, 4, v1'); a('v_xor_b32 v3, v3, v200')
    a(f'v_add_u32 v2, s{t}, v2')
    for i in range(4):
        a(f'v_xor_b32 v201, {4*(i&1)}, v3'); a('v_lshl_add_u32 v201, v201, 4, v2')
        a(f'v_add_u32 v{A_VX+i}, {i*(8*2048-1024)}, v201')
    w_voffsets(a, A_VW, t)
    a(f's_mov_b32 s{S_SOX}, -128'); a(f's_mov_b32 s{S_SOW}, {-32*8192}')
    a(f's_add_u32 s{S_DX}, s{S_W4K}, {XBASE}')
    a(f's_lshl_b32 s{t}, s2, 3'); a(f's_lshl_b32 s{t+1}, s{S_WAVE}, 1'); a(f's_add_u32 s{S_ROW0}, s{t}, s{t+1}')
    a(f's_mul_i32 s{S_ROWO}, s{S_ROW0}, 896')
    a(f's_and_b32 s{t}, s{S_WAVE}, 1'); a(f's_lshr_b32 s{t+1}, s{S_WAVE}, 1')
    a(f's_lshl_b32 s{t+2}, s{t}, 14'); a(f's_add_u32 s{t+2}, s{t+2}, {XBASE}')
    a('v_and_b32 v201, 15, v1'); a('v_lshrrev_b32 v200, 4, v1'); a('v_lshrrev_b32 v2, 1, v201')
    for ks in range(2):
        a(f'v_add_u32 v3, {4*ks}, v200'); a('v_xor_b32 v3, v3, v2'); a('v_lshlrev_b32 v3, 4, v3')
        a('v_lshl_add_u32 v3, v201, 7, v3')
        a(f'v_add_u32 v{A_XAB+ks}, s{t+2}, v3'); a(f'v_mov_b32 v{A_XA+ks}, v{A_XAB+ks}')
    a('v_bfe_u32 v3, v1, 2, 2')
    a('v_lshlrev_b32 v202, 12, v200'); a('v_lshl_add_u32 v202, v3, 9, v202')
    a('v_and_b32 v2, 3, v1'); a('v_lshl_add_u32 v202, v2, 3, v202')
    a(f's_lshl_b32 s{t+2}, s{t+1}, 8'); a(f'v_add_u32 v202, s{t+2}, v202')
    a('v_and_b32 v2, 1, v200'); a('v_lshl_or_b32 v3, v2, 2, v3')
    for db in range(8):
        a(f'v_xor_b32 v2, {db}, v3'); a(f'v_lshl_add_u32 v{A_WA+db}, v2, 5, v202')
    a(f's_mov_b32 s{S_RX}, 0')
    a('v_cmp_gt_u32 vcc, 56, v1')
    a('v_lshrrev_b32 v200, 3, v1'); a('v_bfe_u32 v201, v1, 2, 1'); a('v_and_b32 v202, 3, v1'); a('v_lshlrev_b32 v202, 4, v202')
    a('v_mul_u32_u24 v2, 896, v201'); a('v_lshl_add_u32 v2, v200, 6, v2'); a('v_add_u32 v2, v2, v202')
    a('v_mov_b32 v3, 0x7fffff00')
    a('v_cndmask_b32 v192, v3, v2, vcc')
    a('v_lshlrev_b32 v2, 10, v200'); a('v_lshl_add_u32 v2, v201, 6, v2'); a('v_add_u32 v2, v2, v202')
    a('v_cndmask_b32 v193, v3, v2, vcc')
    a('s_waitcnt lgkmcnt(0)')
    build_srds(a)
    t = S_T
    if OPT.get('fsplit', False):
        a(f's_lshr_b32 s{t}, s{S_H}, 2'); a(f's_mul_i32 s{S_F0}, s{t}, 448')
        a(f's_and_b32 s{t}, s{S_H}, 3'); a(f's_lshl_b32 s{t+1}, s{t}, 7'); a(f's_add_u32 s{S_F0}, s{S_F0}, s{t+1}')
        a(f's_cmp_eq_u32 s{t}, 3'); a(f's_cselect_b32 s{t+1}, 32, 0'); a(f's_sub_u32 s{S_F0}, s{S_F0}, s{t+1}')
        a(f's_lshr_b32 s{S_ODD}, s{t}, 1')
    else:
        a(f's_mul_i32 s{S_F0}, s{S_H}, 112'); a(f's_mov_b32 s{S_ODD}, 0')
    Ln = a.newlabel('NON')
    a('s_cmp_lg_u32 s2, 0'); a(f's_cbranch_scc1 {Ln}')
    a(f's_memrealtime s[{t}:{t+1}]'); a('s_waitcnt lgkmcnt(0)')
    a(f's_or_b32 s{t+2}, s{t}, 1'); a(f'v_mov_b32 v2, s{t+2}')
    a(f'buffer_store_dword v2, v{V_SIG}, {sr(S_DBG)}, 0 offen sc1')
    a.label(Ln)
    stamp(a, 0)
    pro = flat(tag(A_dma_w(0) + A_dma_x(0) + A_dma_x(1), 'G0') + tag(A_dma_w(1), 'G1') + tag(A_dma_x(0) + A_dma_w(2) + A_dma_x(1), 'G2'))
    pro += [f'buffer_load_dwordx4 v[160:163], v192, {sr(S_XIN)}, s{S_ROWO} offen ;@XL',
            f'buffer_load_dwordx4 v[164:167], v192, {sr(S_XIN)}, s{S_ROWO} offen offset:448 ;@XL']
    pro += ['s_waitcnt vmcnt(@G0)', 's_barrier'] + A_reads(0)
    a(resolve_vm(pro))
    stamp(a, 1)
    if DBG[0]:
        a(f's_getreg_b32 s{S_ST}, hwreg(HW_REG_XCC_ID)'); a(f'v_mov_b32 v2, s{S_ST}'); a(f'v_mov_b32 v3, s{S_ST}')
        a(f's_lshl_b32 s{S_ST}, s2, 8'); a(f's_add_u32 s{S_ST}, s{S_ST}, {hex(WS_DBG + 19*8)}')
        a(f'buffer_store_dwordx2 v[2:3], v{V_SIG}, {sr(S_WS)}, s{S_ST} offen')
    def cap(fn):
        x = Asm(); fn(x); return [l.strip() for l in x.L]
    u_ = t + 4
    ln = ['s_waitcnt vmcnt(@XL)'] + cap(lambda x: ln_rows(x, 160, 168, 184, S_MK, S_RET, 208))
    ln += [f's_lshr_b32 s{u_}, s{S_ROW0}, 4', f's_mul_i32 s{u_}, s{u_}, 14*1024', f's_and_b32 s{u_+1}, s{S_ROW0}, 15', f's_lshl_b32 s{u_+1}, s{u_+1}, 6',
           f's_add_u32 s{u_}, s{u_}, s{u_+1}', f's_add_u32 s{u_}, s{u_}, {hex(WS_XN)}', f's_add_u32 s{u_+1}, s{u_}, 7168',
           f'buffer_store_dwordx4 v[208:211], v193, {sr(S_WS)}, s{u_} offen sc1',
           f'buffer_store_dwordx4 v[212:215], v193, {sr(S_WS)}, s{u_+1} offen sc1']
    ln1 = ln[:75]; ln2 = ln[75:]
    bs = cap(lambda x: B_setup(x, S_T + 8))
    Lv = a.newlabel('AV'); Lj = a.newlabel('AJ')
    a(f's_cmp_eq_u32 s{S_KVT}, 1'); a(f's_cbranch_scc1 {Lv}')
    pf = pfB()
    for vtype in range(2):
        if vtype: a.label(Lv)
        first = []
        first += A_kstep(0, vtype, False, False, '@G1', czero=True, extras=[(tag(A_dma_w(3) + A_dma_x(0), 'G3'), 24, 62), (bs, 0, 40)])
        first += A_kstep(1, vtype, False, False, '@G2', extras=[(tag(A_dma_w(0) + A_dma_x(1), 'G4') + tag(A_dma_w(1), 'G5'), 2, 60), (ln1, 4, 63)])
        first += A_kstep(2, vtype, False, False, '@G3', extras=[(flat(A_dma_x(0) + A_dma_w(2) + A_dma_x(1)), 2, 60), (ln2[:75], 0, 63)])
        first += A_kstep(3, vtype, True, True, '@G4', extras=[(ln2[75:], 0, 45)])
        r = resolve_vm(pro + ['MARK'] + first)
        a(r[r.index('MARK')+1:])
        if OPT.get('astamp'): stamp(a, 20)
        a(f's_mov_b32 s{S_CNT}, 1')
        Ll = a.newlabel('AL'); a.label(Ll)
        for u in range(4): a(resolve_vm(A_kstep(u, vtype, True, True, 16)))
        Lm1 = a.newlabel('AM'); Lm2 = a.newlabel('AM'); Lm3 = a.newlabel('AM')
        if OPT.get('astamp'): stamp(a, 20, S_CNT)
        a(f's_add_u32 s{S_CNT}, s{S_CNT}, 1')
        a(f's_cmp_lg_u32 s{S_WAVE}, 0'); a(f's_cbranch_scc1 {Lm2}')
        a(f's_cmp_lg_u32 s{S_CNT}, 2'); a(f's_cbranch_scc1 {Lm1}')
        a(f'v_mov_b32 v2, 0')
        a(f'buffer_load_dword v{V_NONCE}, v2, {sr(S_DBG)}, 0 offen' + (' sc1' if OPT.get('nonce_sc1') else ''))
        a.label(Lm1)
        a(f's_cmp_lg_u32 s{S_CNT}, 4'); a(f's_cbranch_scc1 {Lm2}')
        a(f's_mov_b32 s{t+5}, 0')
        a.label(Lm3)
        a(f'v_readfirstlane_b32 s{t+4}, v{V_NONCE}')
        Lm4 = a.newlabel('AM')
        a(f's_cmp_lg_u32 s{t+4}, 0'); a(f's_cbranch_scc1 {Lm4}')
        a('s_sleep 8'); a(f'v_mov_b32 v2, 0')
        a(f'buffer_load_dword v{V_NONCE}, v2, {sr(S_DBG)}, 0 offen sc1')
        a('s_waitcnt vmcnt(0)')
        a(f's_add_u32 s{t+5}, s{t+5}, 1'); a(f's_cmp_lt_u32 s{t+5}, 20000'); a(f's_cbranch_scc1 {Lm3}')
        a.label(Lm4)
        a(f's_lshr_b32 s{t+4}, s2, 4'); a(xn_flag_addr(t+4, t+4))
        a(f's_and_b32 s{t+5}, s2, 15'); a(f's_lshl_b32 s{t+5}, s{t+5}, 2'); a(f's_add_u32 s{t+4}, s{t+4}, s{t+5}')
        a(f'buffer_store_dword v{V_NONCE}, v{V_SIG}, {sr(S_WS)}, s{t+4} offen sc1')
        a(f's_cmp_lg_u32 s{S_H}, 0'); a(f's_cbranch_scc1 {Lm2}')
        a(f's_lshl_b32 s{t+4}, s{S_OWN}, 12'); a(f's_add_u32 s{t+4}, s{t+4}, {hex(WS_FLG + 0x50000)}')
        a('v_mov_b32 v2, 0')
        a(f'buffer_store_dword v2, v{V_SIG}, {sr(S_WS)}, s{t+4} offen sc1')
        a.label(Lm2)
        a(f's_cmp_lt_u32 s{S_CNT}, 6'); a(f's_cbranch_scc1 {Ll}')
        cpf = cpfB()
        kvs = [f's_mul_i32 s{S_KVO}, s{S_H}, {KH_()}', f's_add_u32 s{S_KVO}, s{S_KVO}, {hex(WS_KV)}', f's_mul_i32 s{t+4}, s{S_KT}, {8*KT_()}', f's_add_u32 s{S_KVO}, s{S_KVO}, s{t+4}',
               f's_and_b32 s{t+4}, s{S_WAVE}, 1', f's_mul_i32 s{t+4}, s{t+4}, {4*KT_()}', f's_add_u32 s{S_KVO}, s{S_KVO}, s{t+4}',
               f's_lshr_b32 s{t+4}, s{S_WAVE}, 1', f's_lshl_b32 s{t+4}, s{t+4}, {13 if vtype else 12}', f's_add_u32 s{S_KVO}, s{S_KVO}, s{t+4}']
        if vtype: kvs.append(f's_add_u32 s{S_KVO}, s{S_KVO}, 16384')
        w_ = [KT_(), 2*KT_(), 1024, 2048] if vtype else [8192, KT_(), 2*KT_(), 1024]
        for b in range(4): kvs.append(f's_mov_b32 s{S_DL+b}, {w_[b] - sum(w_[:b])}')
        xo = [f's_lshl_b32 s{t+4}, s{S_OWN}, 3', f's_add_u32 s{t+4}, s{t+4}, s{S_WAVE}', f's_mul_i32 s{t+4}, s{t+4}, 14336',
              f's_add_u32 s{S_XO}, s{t+4}, {hex(WS_XN)}']
        bias = [f's_lshl_b32 s{t+4}, s{S_F0}, 1', 'v_lshrrev_b32 v200, 4, v1', 'v_lshlrev_b32 v200, 3, v200']
        bias += [f'buffer_load_dwordx2 {vr(B_TMP+2*fb,2)}, v200, {sr(S_B1)}, s{t+4} offen offset:{32*fb} ;@BIAS' for fb in range(8)]
        sw = Asm(); sw.nlab = a.nlab; spin_wait(sw, S_FP); a.nlab = sw.nlab
        chk = ['s_waitcnt vmcnt(@POLL)'] + [x.strip() + (' ;!' if x.strip().startswith('buffer_') else '') for x in sw.L]
        NW = OPT.get('nweave', 8); BH = OPT.get('bh', 0)
        xpf = [['v_lshlrev_b32 v200, 7, v1', f's_add_u32 s{t+4}, s{S_XO}, 4096', f'buffer_load_dword v31, v200, {sr(S_WS)}, s{t+4} offen'],
               [f's_add_u32 s{t+5}, s{t+4}, s{t+6}', f'buffer_load_dword v31, v200, {sr(S_WS)}, s{t+5} offen'],
               ['v_and_b32 v201, 15, v1', 'v_lshlrev_b32 v201, 7, v201', f'v_mov_b32 v202, s{t+6}', 'v_cmp_gt_u32 vcc, 16, v1', f's_add_u32 s{t+4}, s{t+4}, 8192',
                's_nop 0', 'v_cndmask_b32 v202, v202, 0, vcc', 'v_add_u32 v201, v201, v202', f'buffer_load_dword v31, v201, {sr(S_WS)}, s{t+4} offen']]
        ex = {25: [(kvs + xo, 46, 62)],
              26: [(xn_flag_addr(S_FP, S_OWN) + [poll_issue(S_FP)[0] + ' ;@POLL'], 5, 20)],
              28: [([f's_mul_i32 s{t+6}, s{S_Q1}, 14336', f'v_and_b32 v{B_VX0}, 15, v1', f'v_lshlrev_b32 v{B_VX0}, 6, v{B_VX0}', f'v_and_b32 v{B_VX1}, 48, v1',
                   f'v_add_u32 v{B_VX0}, v{B_VX0}, v{B_VX1}', f'v_add_u32 v{B_VX1}, s{t+6}, v{B_VX0}'] + flat(pf + cpf), 0, 24)] + ([(B_dma_w(0, True), 32, 62)] if BH == 0 else []),
              29: [(tag(B_dma_xp(0), 'B0') + [bias] + B_dma(1, True), 0, 60)],
              30: [(B_dma(2, True) + (xpf if OPT.get('xpf', False) else []), 0, 60)],
              31: [([x for k in range(NW) for x in pack_store(k, 208 + 8*(k & 1), True)], 10, 63)]}
        tail = []
        for k in (21, 22, 23): tail += [f'buffer_dummy ;@A{k}']*8
        tail.append('MARK')
        for u in range(24, 32):
            tail += A_kstep(u, vtype, u <= 27, u <= 26, f'@A{min(u-3, 27)}', last=(u == 31), extras=ex.get(u, ()), head=(chk if u == 29 else ()))
            if OPT.get('astamp') and u in (27, 29): tail.append(f'STAMP{u}')
        tail.append('MARK2')
        hist = tail
        r = resolve_vm(tail)
        for x in r[r.index('MARK')+1:r.index('MARK2')]:
            if x.endswith(':'): a.raw(x)
            elif x.startswith('STAMP'): stamp(a, 26 if x == 'STAMP27' else 27)
            else: a(x)
        if vtype == 0: a(f's_branch {Lj}')
    a.label(Lj)
    stamp(a, 2)
    return hist

def pfB():
    t = S_T
    return [[f's_lshr_b32 s{t+4}, s2, 4', f's_mul_i32 s{t+4}, s{t+4}, 28', f's_mul_i32 s{t+5}, s{S_WAVE}, 7', f's_add_u32 s{t+4}, s{t+4}, s{t+5}'],
          ['v_lshrrev_b32 v200, 2, v1', 'v_min_u32 v200, 6, v200', f'v_add_u32 v200, s{t+4}, v200', 'v_and_b32 v201, 3, v1'],
          ['v_lshlrev_b32 v201, 7, v201', 'v_lshl_add_u32 v202, v200, 13, v201', f's_lshl_b32 s{t+4}, s{S_H}, 9',
           f'buffer_load_dword v31, v202, {sr(S_WQ)}, s{t+4} offen'],
          ['v_mul_u32_u24 v202, 3584, v200', 'v_add_u32 v202, v202, v201', f's_lshl_b32 s{t+4}, s{S_F0}, 1', f's_and_b32 s{t+4}, s{t+4}, 0xffffff80',
           f'buffer_load_dword v31, v202, {sr(S_W1)}, s{t+4} offen']]
def cpfB():
    t = S_T
    return [[f's_lshr_b32 s{t+4}, s2, 3', f's_mul_i32 s{t+4}, s{t+4}, 3328', f's_add_u32 s{t+4}, s{t+4}, 36864',
             'v_min_u32 v200, 25, v1', 'v_lshlrev_b32 v200, 7, v200', f'v_add_u32 v200, s{t+4}, v200',
             'v_min_u32 v200, M_CODE_END-M_CODE_START-4, v200', f'global_load_dword v31, v200, s[{S_PC}:{S_PC+1}]']]

def pfD_big(a):
    t = S_T
    L = a.newlabel('PD'); L7 = a.newlabel('PD'); La = a.newlabel('PD')
    a(f's_cmp_lt_u32 s{S_I}, 6'); a(f's_cbranch_scc1 {L}')
    a('v_lshlrev_b32 v2, 7, v0')
    a(f's_mul_i32 s{t+1}, s{S_H}, {256*896}'); a(f's_mul_i32 s{t+2}, s{S_F0}, 896')
    def wo(u): a(f's_add_u32 s{t}, s{t+1}, {u*32768}'); a(f'buffer_load_dword v31, v2, {sr(S_WO)}, s{t} offen')
    def w2(off): a(f's_add_u32 s{t}, s{t+2}, {off}'); a(f'buffer_load_dword v31, v2, {sr(S_W2)}, s{t} offen')
    n6 = OPT.get('pf_n6', 6)
    a(f's_cmp_eq_u32 s{S_ROLE}, 0'); a(f's_cbranch_scc1 {La}')
    a(f's_cmp_eq_u32 s{S_I}, 7'); a(f's_cbranch_scc1 {L7}')
    for u in range(n6): wo(u)
    a(f's_branch {L}')
    a.label(L7)
    for u in range(n6, 7): wo(u)
    for k in range(3): w2(k*32768)
    a(f's_branch {L}')
    a.label(La)
    a(f's_cmp_eq_u32 s{S_I}, 6'); a(f's_cbranch_scc1 {L}')
    a('v_min_u32 v3, 16256, v2')
    a(f's_add_u32 s{t}, s{t+2}, {3*32768}'); a(f'buffer_load_dword v31, v3, {sr(S_W2)}, s{t} offen')
    a('v_add_u32 v2, M_D_START-M_CODE_START-10240, v2')
    a(f's_mul_i32 s{t}, s{S_ODD}, 13056'); a(f's_cmp_ge_u32 s{S_WAVE}, 2'); a(f's_cselect_b32 s{t}, s{t}, 0'); a(f'v_add_u32 v2, s{t}, v2')
    a('v_min_u32 v2, M_CODE_END-M_CODE_START-4, v2')
    a(f'global_load_dword v31, v2, s[{S_PC}:{S_PC+1}]')
    a.label(L)

def pfD(v, code=True):
    t = S_T
    g = [[f's_lshr_b32 s{t+9}, s2, 4', f's_lshl_b32 s{t+9}, s{t+9}, 2', f's_add_u32 s{t+9}, s{t+9}, s{S_WAVE}',
          f's_lshl_b32 s{t+10}, s{S_H}, 6', f's_add_u32 s{t+10}, s{t+10}, s{t+9}', f's_mul_i32 s{t+10}, s{t+10}, {4*896}'],
         [f'v_lshlrev_b32 v{v}, 7, v1', f'v_min_u32 v{v}, 3580, v{v}', f'buffer_load_dword v31, v{v}, {sr(S_WO)}, s{t+10} offen'],
         [f's_mul_i32 s{t+10}, s{S_H}, {112*896}', f's_mul_i32 s{t+11}, s{t+9}, {2*896}', f's_add_u32 s{t+10}, s{t+10}, s{t+11}',
          f'v_min_u32 v{v}, 1788, v{v}', f'buffer_load_dword v31, v{v}, {sr(S_W2)}, s{t+10} offen']]
    if code:
        g += [[f's_lshl_b32 s{t+9}, s{t+9}, 9',
          f'v_min_u32 v{v}, 384, v{v}', f'v_add_u32 v{v}, s{t+9}, v{v}', f'v_add_u32 v{v}, M_D_START-M_CODE_START-10240, v{v}',
          f'v_min_u32 v{v}, M_CODE_END-M_CODE_START-4, v{v}', f'global_load_dword v31, v{v}, s[{S_PC}:{S_PC+1}]']]
    return g

def pack_store(k, tb, store):
    ops = [f'v_accvgpr_read_b32 v{tb+e}, a{8*k+e}' for e in range(8)]
    ops += [f'v_cvt_pk_bf16_f32 v{PEND+4*k+e}, v{tb+2*e}, v{tb+2*e+1}' for e in range(4)]
    if store:
        st = kv_store(k)
        ops = st[:-1] + ops + st[-1:]
    return ops

def kv_store(k):
    ops = []
    if k > 0:
        b = min((k & -k).bit_length() - 1, 3)
        ops.append(f's_add_u32 s{S_KVO}, s{S_KVO}, s{S_DL+b}')
    ops.append(f'buffer_store_dwordx4 {vr(PEND+4*k)}, v{V_L16}, {sr(S_WS)}, s{S_KVO} offen {OPT.get("kvf", "sc1")} ;@KVST')
    return ops

def w_voffsets(a, dst, t):
    a(f's_lshl_b32 s{t}, s{S_WAVE}, 16'); a(f's_lshl_b32 s{t+1}, s{S_H}, 9'); a(f's_add_u32 s{t}, s{t}, s{t+1}')
    a(f's_and_b32 s{t+1}, s{S_WAVE}, 1'); a(f's_lshl_b32 s{t+1}, s{t+1}, 2')
    a('v_lshrrev_b32 v200, 5, v1'); a('v_and_b32 v201, 31, v1'); a('v_lshrrev_b32 v202, 1, v201')
    a(f'v_xor_b32 v202, s{t+1}, v202'); a('v_and_b32 v203, 1, v201')
    for i in range(4):
        a(f'v_add_u32 v2, {(2*i)&3}, v200'); a('v_xor_b32 v2, v202, v2'); a('v_lshl_add_u32 v2, v2, 1, v203')
        a('v_lshlrev_b32 v2, 4, v2'); a('v_lshl_add_u32 v2, v200, 13, v2')
        a(f'v_add_u32 v2, {2*i*8192-1024*i}, v2'); a(f'v_add_u32 v{dst+i}, s{t}, v2')

B_VW, B_V1, B_VX1, B_VX0 = A_VW, 28, 11, 10
B_WA, B_1A = 240, 248
B_XF = 160
B_WF, B_NB = 192, 8
B_TMP = 224
B_QS = 8
W1BASE = 98304

def B_setup(a, t):
    a(f's_and_b32 s{t+1}, s{S_WAVE}, 1'); a(f's_lshl_b32 s{t+1}, s{t+1}, 2')
    a(f's_mul_i32 s{t}, s{S_WAVE}, {8*3584}'); a(f's_lshl_b32 s{t+2}, s{S_F0}, 1'); a(f's_add_u32 s{t}, s{t}, s{t+2}')
    a('v_lshrrev_b32 v200, 4, v1'); a('v_and_b32 v201, 15, v1'); a('v_lshrrev_b32 v202, 1, v201')
    a(f'v_xor_b32 v202, s{t+1}, v202'); a('v_xor_b32 v202, v200, v202'); a('v_and_b32 v203, 1, v201')
    a('v_lshl_add_u32 v2, v202, 1, v203'); a('v_lshlrev_b32 v2, 4, v2')
    a('v_mul_u32_u24 v3, 3584, v200'); a('v_add_u32 v2, v2, v3')
    a(f'v_add_u32 v{B_V1}, s{t}, v2'); a(f'v_add_u32 v{B_V1+1}, {4*3584-1024}, v{B_V1}')
    a(f's_lshl_b32 s{t}, s{S_WAVE}, 1'); a(f's_sub_u32 s{S_Q1}, 7, s{t}');
    a('v_bfe_u32 v201, v1, 2, 2')
    a('v_lshl_add_u32 v202, v200, 3, v201')
    a('v_and_b32 v203, 3, v1'); a('v_lshlrev_b32 v203, 3, v203')
    a('v_and_b32 v2, 1, v200'); a('v_lshl_or_b32 v201, v2, 2, v201')
    a('v_lshl_add_u32 v204, v202, 9, v203')
    a('v_lshl_add_u32 v205, v202, 8, v203'); a(f'v_add_u32 v205, {W1BASE}, v205')
    for d in range(8):
        a(f'v_xor_b32 v2, {d}, v201')
        a(f'v_lshl_add_u32 v{B_WA+d}, v2, 5, v204')
        a(f'v_lshl_add_u32 v{B_1A+d}, v2, 5, v205')

def B_dma_w(u, ffn):
    sl = u % 4; t = S_T + 2
    g = [[f's_add_u32 m0, s{S_W4K}, {sl*16384}', f's_mov_b32 s{t}, {u*32*8192}',
          f'buffer_load_dwordx4 v{B_VW}, {sr(S_WQ)}, s{t} offen lds']]
    for i in range(1, 4): g.append([f'buffer_load_dwordx4 v{B_VW+i}, {sr(S_WQ)}, s{t} offen offset:{1024*i} lds'])
    if ffn:
        g.append([f's_add_u32 m0, s{S_W2K}, {W1BASE+sl*8192}', f's_mov_b32 s{t}, {u*32*3584}',
                  f'buffer_load_dwordx4 v{B_V1}, {sr(S_W1)}, s{t} offen lds'])
        g.append([f'buffer_load_dwordx4 v{B_V1+1}, {sr(S_W1)}, s{t} offen offset:1024 lds'])
    return tag(g, f'B{u}')

def xr(u):
    sl = u % 6
    return B_XF + sl*8 if sl < 4 else PEND + (sl-4)*8
def B_dma_xp(p):
    g = []
    t = S_T + 3
    g.append([f's_add_u32 s{t}, s{S_XO}, {2*p*1024}'])
    for k in range(2):
        for qb, v in ((0, B_VX0), (1, B_VX1)):
            g.append([f'buffer_load_dwordx4 {vr(xr(2*p+k)+4*qb)}, v{v}, {sr(S_WS)}, s{t} offen offset:{k*1024}'])
    return g

def B_dma(u, ffn):
    return (B_dma_xp((u+1)//2) if (u & 1) and (u+1)//2 <= 6 else []) + B_dma_w(u, ffn)

def B_head(ffn):
    h = []
    for u in range(3): h += flat(B_dma(u, ffn))
    return h

def phaseB_begin_ext(a):
    t = S_T
    spin_wait(a, S_FP)
    a(f's_lshl_b32 s{t}, s{S_EXT}, 2'); a(f's_add_u32 s{t}, s{t}, s{S_WAVE}'); a(f's_mul_i32 s{t}, s{t}, {2*14336}')
    a(f's_add_u32 s{S_XO}, s{t}, {hex(WS_XN)}')
    a('s_barrier')
    a(resolve_vm(B_head(False)))

def phaseB_main(a, ffn, hist, nfb):
    pre = []
    NW = OPT.get('nweave', 8); NL = 16 + nfb
    if ffn:
        pre.append('s_nop 7')
        nst_pre = OPT.get('nst_pre', 6)
        for k in range(NW, NL):
            pre += pack_store(k, 208 + 8*(k & 1), False)
            if (k - NW) % 2 == 1 and NW + (k - NW)//2 < NW + nst_pre: pre += kv_store(NW + (k - NW)//2)
        nsd = NW + min(nst_pre, (NL - NW)//2)
        pre.append('s_waitcnt vmcnt(@BIAS)')
        for fb in range(nfb):
            for k in range(2):
                pre += [f'v_lshlrev_b32 v2, 16, v{B_TMP+2*fb+k}', f'v_and_b32 v3, 0xffff0000, v{B_TMP+2*fb+k}']
                for qb in range(2):
                    pre += [f'v_accvgpr_write_b32 a{128+(fb*2+qb)*4+2*k}, v2', f'v_accvgpr_write_b32 a{128+(fb*2+qb)*4+2*k+1}, v3']
    pre += ['s_waitcnt vmcnt(@B0)', 's_barrier', 'STAMP']
    nf = 16 + nfb
    steps = []
    for u in range(14):
        sl = u % 4
        for f in range(nf):
            buf = B_WF + (len(steps) % B_NB)*4
            if f < 16:
                rd = [f'ds_read_b64_tr_b16 {vr(buf+2*h,2)}, v{B_WA+(f&7)} offset:{sl*16384+2048*h+256*(f>>3)}' for h in range(2)]
                acc = f*8
            else:
                rd = [f'ds_read_b64_tr_b16 {vr(buf+2*h,2)}, v{B_1A+f-16} offset:{sl*8192+1024*h}' for h in range(2)]
                acc = 128 + (f-16)*8
            mf = []
            for qb in range(2):
                c = '0' if (u == 0 and f < 16) else ar(acc+4*qb)
                mf.append(f'{MF} {ar(acc+4*qb)}, {vr(buf)}, {vr(xr(u)+4*qb)}, {c}')
            steps.append(Step(mf, rd))
    LA = 6
    bp = {}
    for u in range(13):
        bp[u] = (u+1)*nf - LA - 1
        steps[bp[u]].pre += [f's_waitcnt vmcnt(@B{u+1})', 's_barrier']
        for f in range(nf): steps[(u+1)*nf+f].gate = bp[u]
    SIGU = OPT.get('sigu', 10)
    if ffn:
        steps[bp[SIGU]].pre.insert(0, 's_waitcnt vmcnt(@KVST)')
    sc = Sched(steps, LA=LA, wait_group=2)
    sc.place(B_dma(3, ffn), 0, bp[0]-2)
    for u in range(1, 11):
        sc.place(B_dma(u+3, ffn), bp[u], min(bp[u+1]-2, bp[u]+OPT.get('b_dw', 30)))
    if ffn:
        st_ = []
        for k in range(nsd, 32):
            st_ += kv_store(k) if k < NL else pack_store(k, B_TMP + 8*(k & 1), True)
        sc.place(st_, 0, bp[OPT.get('st_end', 7)])
        sc.place([[f's_lshr_b32 s{S_T+7}, s2, 4', f's_lshl_b32 s{S_T+7}, s{S_T+7}, 2', f's_add_u32 s{S_T+7}, s{S_T+7}, s{S_FKV}',
                   f'buffer_store_dword v{V_NONCE}, v{V_SIG}, {sr(S_WS)}, s{S_T+7} offen sc1']], bp[SIGU], bp[SIGU]+3)
    pl = [f's_mov_b32 s{S_FP}, s{S_FKV}'] + poll_issue(S_FP)
    sc.place([pl], len(steps)-OPT.get('pollat', 6), len(steps)-OPT.get('pollat', 6)+4)
    print('phaseB overflow', sc.overflow(0, len(steps)-1))
    body = resolve_vm(hist + ['MARKB'] + pre + sc.pre + sc.text(0, len(steps)-1))
    for x in body[body.index('MARKB')+1:]:
        if x == 'STAMP': stamp(a, 3 if ffn else 6)
        else: a(x)
    stamp(a, 4 if ffn else 7)

def qx_base(a, d):
    a(f's_lshl_b32 s{d}, s{S_PAIR}, 16'); a(f's_lshl_b32 s{d+1}, s{S_WAVE}, 14'); a(f's_add_u32 s{d}, s{d}, s{d+1}')
    a(f's_add_u32 s{d}, s{d}, {hex(WS_QX)}')

def phaseB_epi(a):
    t = S_T
    a('s_nop 3')
    qx_base(a, t)
    a(f's_cmp_eq_u32 s{S_PUBQ}, 0'); a(f's_cselect_b32 s{t}, 0x70000000, s{t}')
    k = 0
    for s in range(8):
        for qb in range(2):
            tb = V_QO + (s*2+qb)*4
            tm = B_TMP + 8*(k & 1)
            for half in range(2):
                src = ((2*s+half)*2+qb)*4
                for e in range(4): a(f'v_accvgpr_read_b32 v{tm+4*half+e}, a{src+e}')
            for e in range(0, 8, 2): a(f'v_pk_mul_f32 {vr(tm+e,2)}, {vr(tm+e,2)}, {vr(B_QS,2)}')
            for e in range(4): a(f'v_cvt_pk_bf16_f32 v{tb+e}, v{tm+2*e}, v{tm+2*e+1}')
            if k % 4 == 0 and k: a(f's_add_u32 s{t}, s{t}, 4096')
            a(f'buffer_store_dwordx4 {vr(tb)}, v{V_L16}, {sr(S_WS)}, s{t} offen offset:{1024*(k%4)} sc1')
            k += 1

def phaseB_epi_h(a, nfb):
    for ks in range((nfb+1)//2):
        for qb in range(2):
            d = A_H + (ks*2+qb)*4
            for half in range(2):
                fb = 2*ks + half
                if fb >= nfb:
                    a(f'v_accvgpr_write_b32 a{d+2}, 0'); a(f'v_accvgpr_write_b32 a{d+3}, 0'); continue
                src = 128 + (fb*2+qb)*4
                tm = B_TMP + 8*half
                for e in range(4): a(f'v_accvgpr_read_b32 v{tm+e}, a{src+e}')
                for e in range(4): a(f'v_max_f32 v{tm+e}, 0, v{tm+e}')
                for e in range(0, 4, 2): a(f'v_pk_mul_f32 {vr(tm+e,2)}, {vr(tm+e,2)}, {vr(tm+e,2)}')
                for e in range(2): a(f'v_cvt_pk_bf16_f32 v{tm+4+e}, v{tm+2*e}, v{tm+2*e+1}')
                for e in range(2): a(f'v_accvgpr_write_b32 a{d+2*half+e}, v{tm+4+e}')

def fetch_qx(a):
    t = S_T
    a(f's_lshl_b32 s{S_FP}, s{S_PAIR}, 8'); a(f's_add_u32 s{S_FP}, s{S_FP}, {hex(WS_FLG + 0x30000)}')
    a(poll_issue(S_FP))
    a('s_waitcnt vmcnt(0)')
    spin_wait(a, S_FP, mask=1)
    a('s_barrier')
    qx_base(a, t)
    for k in range(16):
        if k % 4 == 0 and k: a(f's_add_u32 s{t}, s{t}, 4096')
        a(f'buffer_load_dwordx4 {ar(A_QX+4*k)}, v{V_L16}, {sr(S_WS)}, s{t} offen offset:{1024*(k%4)} sc1')

C_KA, C_VA, C_VD, C_DV, C_DV0, C_TM, C_NINF, C_ONE = 8, 9, 10, 11, 12, 13, 14, 16
C_BP16, C_BP32 = 20, 21
C_T = 22
C_S = [32, 48]
C_P, C_NM, C_L = 64, 72, 80
C_F, C_NB = 88, 8
C_MRG = 192

def C_dma(kind, m0expr):
    so = S_KO if kind == 'K' else S_VO
    g = [[m0expr, f's_add_u32 s{so}, s{so}, {KT_()}', f'buffer_load_dwordx4 v{C_VD}, {sr(S_WS)}, s{so} offen lds']]
    for i in range(1, 4): g.append([f'buffer_load_dwordx4 v{C_VD}, {sr(S_WS)}, s{so} offen offset:{1024*i} lds'])
    return g

def mask_ops(S, qb):
    ops = []
    for kb in range(2):
        for r in range(4): ops.append(f'v_cmp_gt_i32 s[{S_MK+2*r}:{S_MK+2*r+1}], {16*kb+r}, v{C_DV}')
        for r in range(4):
            reg = S + (kb*2+qb)*4 + r
            ops.append(f'v_cndmask_b32 v{reg}, v{reg}, v{C_NINF}, s[{S_MK+2*r}:{S_MK+2*r+1}]')
    return ops

def max_ops(S, half=False):
    r = [S + (kb*2+1)*4 + e for kb in range(2) for e in range(4)] if half else list(range(S, S+16))
    ops = [f'v_max3_f32 v{C_TM}, v{r[0]}, v{r[1]}, v{r[2]}']
    for i in range(3, len(r)-1, 2): ops.append(f'v_max3_f32 v{C_TM}, v{C_TM}, v{r[i]}, v{r[i+1]}')
    ops.append(f'v_max_f32 v{C_TM}, v{C_TM}, v{r[-1]}')
    return ops

def rowmax(a, S, qb, d):
    r = [S + (kb*2+qb)*4 + e for kb in range(2) for e in range(4)]
    a(f'v_max3_f32 v{d}, v{r[0]}, v{r[1]}, v{r[2]}')
    a(f'v_max3_f32 v{d}, v{d}, v{r[3]}, v{r[4]}')
    a(f'v_max3_f32 v{d}, v{d}, v{r[5]}, v{r[6]}')
    a(f'v_max_f32 v{d}, v{d}, v{r[7]}')
    for bp in (C_BP16, C_BP32):
        a(f'ds_bpermute_b32 v{C_T+7}, v{bp}, v{d}')
        a('s_waitcnt lgkmcnt(0)')
        a(f'v_max_f32 v{d}, v{d}, v{C_T+7}')

def rare_path(a, S, first):
    a('s_nop 7')
    for qb in range(2):
        d = C_T + qb
        rowmax(a, S, qb, d)
        if not first: a(f'v_max_f32 v{d}, 0, v{d}')
        for kb in range(2):
            for e in range(4):
                r = S + (kb*2+qb)*4 + e
                a(f'v_sub_f32 v{r}, v{r}, v{d}')
        for e in range(4): a(f'v_sub_f32 v{C_NM+4*qb+e}, v{C_NM+4*qb+e}, v{d}')
        if not first:
            al = C_T + 2 + qb
            a(f'v_exp_f32 v{al}, -v{d}')
            a('s_nop 0')
            for e in range(4): a(f'v_mul_f32 v{C_L+4*qb+e}, v{C_L+4*qb+e}, v{al}')
            for db in range(16):
                o = (db*2+qb)*4
                for e in range(3): a(f'v_accvgpr_read_b32 v{C_T+4+e}, a{o+e}')
                a(f'v_accvgpr_read_b32 v2, a{o+3}')
                for e in range(3): a(f'v_mul_f32 v{C_T+4+e}, v{C_T+4+e}, v{al}')
                a(f'v_mul_f32 v2, v2, v{al}')
                for e in range(3): a(f'v_accvgpr_write_b32 a{o+e}, v{C_T+4+e}')
                a(f'v_accvgpr_write_b32 a{o+3}, v2')
    a('s_nop 1')

def softmax_ops(S, qbs=(0, 1)):
    ops = []
    for qb in qbs:
        for kb in range(2):
            b = S + (kb*2+qb)*4
            for e in range(4): ops.append(f'v_exp_f32 v{b+e}, v{b+e}')
        for kb in range(2):
            b = S + (kb*2+qb)*4
            for e in range(2): ops.append(f'v_cvt_pk_bf16_f32 v{C_P+4*qb+2*kb+e}, v{b+2*e}, v{b+2*e+1}')
    return ops

def phaseC_begin(a, part=3):
    t = S_T
    lst = [('K', 0), ('K', 1), ('V', 0), ('K', 2), ('V', 1), ('K', 3)]
    if part & 1:
        a('s_barrier')
        a(f's_mul_i32 s{t}, s{S_H}, {KH_()}'); a(f's_mul_i32 s{t+1}, s{S_TS}, {KT_()}'); a(f's_add_u32 s{S_KO}, s{t}, s{t+1}')
        a(f's_add_u32 s{S_KO}, s{S_KO}, {hex(WS_KV - KT_())}')
        a(f's_add_u32 s{S_VO}, s{S_KO}, 16384')
        a(f'v_add_u32 v{C_VD}, s{S_W4K}, v{V_L16}')
    for kind, sl in (lst[:3] if part & 1 else []) + (lst[3:] if part & 2 else []):
        a(flat(C_dma(kind, f's_add_u32 m0, s{S_W4K}, {(0 if kind=="K" else 65536) + sl*16384}')))

def phaseC(a, own, rl, after_first_wait=None, tail_extra=None):
    t = S_T
    def AQ(i): return vr(V_QO+i) if own else ar(A_QX+i)
    NBUF = C_NB
    a(f's_mov_b32 s{S_PB}, s{S_W4K}'); a(f's_xor_b32 s{S_PO}, s{S_PB}, 0x8000')
    a(f'v_mov_b32 v{C_KA}, v{V_L16}'); a(f'v_add_u32 v{C_VA}, 0x18000, v{V_L16}')
    if own:
        a('v_and_b32 v2, 15, v1'); a('v_lshrrev_b32 v3, 4, v1'); a('v_lshlrev_b32 v3, 2, v3'); a(f'v_sub_u32 v{C_DV0}, v2, v3')
        a(f's_lshl_b32 s{t}, s{S_WAVE}, 4'); a(f'v_add_u32 v{C_DV0}, s{t}, v{C_DV0}')
        a(f's_sub_u32 s{t}, s{S_N}, 4'); a(f's_lshl_b32 s{t}, s{t}, 5')
        a(f'v_add_u32 v{C_DV}, s{t}, v{C_DV0}')
        a(f's_lshl_b32 s{S_RB}, s{S_Q1}, 4'); a(f's_sub_u32 s{S_RB}, s{S_RB}, 64')
        a(f'v_mov_b32 v{C_NINF}, 0xff800000')
    for e in range(4): a(f'v_mov_b32 v{C_ONE+e}, 0x3f803f80')
    a(f'v_xor_b32 v{C_BP16}, 16, v1'); a(f'v_lshlrev_b32 v{C_BP16}, 2, v{C_BP16}')
    a(f'v_xor_b32 v{C_BP32}, 32, v1'); a(f'v_lshlrev_b32 v{C_BP32}, 2, v{C_BP32}')
    for e in range(8): a(f'v_mov_b32 v{C_NM+e}, {f32(OPT.get("nm0", -8.0))}'); a(f'v_mov_b32 v{C_L+e}, 0')
    NZ = OPT.get('nz', 40)
    for r in range(128-NZ): a(f'v_accvgpr_write_b32 a{r}, 0')
    if own: phaseC_begin(a, 2)
    if own:
        Lw = a.newlabel('FW'); Lw2 = a.newlabel('FW')
        a(f's_cmp_eq_u32 s{S_HASX}, 0'); a(f's_cbranch_scc1 {Lw}')
        a('s_waitcnt vmcnt(29)'); a(f's_branch {Lw2}')
        a.label(Lw); a('s_waitcnt vmcnt(12)'); a.label(Lw2)
    else:
        fetch_qx(a)
        phaseC_begin(a, 2)
        a('s_waitcnt vmcnt(12)')
    a('s_barrier')
    if after_first_wait: after_first_wait(a)
    n = 10
    NM2, NM3, NM4 = 7, 10, 0
    steps = []; start = {}; h2s = {}
    def hf(j): return own and j >= n-2
    LV = OPT.get('lvalu', False)
    cnt = [0]
    def nbuf():
        b = C_F + (cnt[0] % OPT.get('c_nb', 8))*4; cnt[0] += 1; return b
    def ksteps(j, cinit):
        S = C_S[j & 1]
        for kb in range(2):
            for s in range(8):
                buf = nbuf()
                rd = f'ds_read_b128 {vr(buf)}, v{C_KA} offset:{(j&1)*16384 + (kb*8+s)*1024}'
                pv = f'v_xor_b32 v{C_KA}, 0x8000, v{C_KA}' if (kb == 0 and s == 0 and (j & 1) == 0 and j > 0) else None
                mf = []
                for qb in ((1,) if hf(j) else (0, 1)):
                    d = vr(S + (kb*2+qb)*4)
                    c = d if s > 0 else (cinit if cinit is not None else vr(C_NM+4*qb))
                    mf.append(f'{MF} {d}, {vr(buf)}, {AQ((s*2+qb)*4)}, {c}')
                steps.append(Step(mf, [rd], prev=pv))
                if hf(j): steps[-1].wg = 2
    def vsteps(j):
        for db in range(16):
            buf = nbuf()
            rd = f'ds_read_b128 {vr(buf)}, v{C_VA} offset:{(j&1)*16384 + db*1024}'
            pv = f'v_xor_b32 v{C_VA}, 0x8000, v{C_VA}' if (db == 0 and (j & 1) == 0) else None
            qbs = (1,) if hf(j) else (0, 1)
            mf = [f'{MF} {ar((db*2+qb)*4)}, {vr(buf)}, {vr(C_P+4*qb)}, {ar((db*2+qb)*4)}' for qb in qbs]
            if db == 15 and not LV:
                mf += [f'{MF} {vr(C_L+4*qb)}, {vr(C_ONE)}, {vr(C_P+4*qb)}, {vr(C_L+4*qb)}' for qb in qbs]
            steps.append(Step(mf, [rd], prev=pv))
            if hf(j): steps[-1].wg = 2
    start[-1] = 0
    ksteps(0, None)
    for j in range(n):
        start[j] = len(steps)
        if j < n-1: ksteps(j+1, None)
        h2s[j] = len(steps)
        vsteps(j)
        tail = j - (n-6)
        vm = {0: 12, 1: 12, 2: 8, 3: (4 + NM2 if own else 4), 4: (NM2 + NM3 if own else 0)}.get(max(tail, 0), None)
        if vm is not None: steps[h2s[j]+2].pre += [f's_waitcnt vmcnt({vm})', 's_barrier']
        if j == n-1: steps[h2s[j]].block += softmax_ops(C_S[j & 1], (1,) if hf(j) else (0, 1)) + ['s_nop 1']
    start[n] = len(steps)
    sc = Sched(steps, LA=OPT.get('c_la', 7), wait_group=OPT.get('c_wg', 4), wait_first=True)
    for j in range(n):
        p = j & 1; h2 = h2s[j]; end = start[j+1] - 1; tail = j - (n-6)
        if j < n-1 and not hf(j+1):
            S = C_S[p]
            regs = [S + (kb*2+qb)*4 + e for qb in range(2) for kb in range(2) for e in range(4)]
            for k in range(16):
                sc.put(start[j]+k, 0, f'v_exp_f32 v{regs[k]}, v{regs[k]}')
                if k & 1: sc.put(start[j]+k, 1, f'v_cvt_pk_bf16_f32 v{C_P+k//2}, v{regs[k-1]}, v{regs[k]}')
            adds = [f'v_add_f32 v{C_L+4*(k//8)}, v{C_L+4*(k//8)}, v{regs[k]}' for k in range(16)] if LV else []
        elif j < n-1:
            S = C_S[p]
            regs = [S + (kb*2+qb)*4 + e for qb in ((1,) if hf(j) else (0, 1)) for kb in range(2) for e in range(4)]
            o = []
            for k in range(len(regs)):
                o.append(f'v_exp_f32 v{regs[k]}, v{regs[k]}')
                if k >= 2 and k % 2 == 0: o.append(f'v_cvt_pk_bf16_f32 v{C_P+(4 if hf(j) else 0)+(k-2)//2}, v{regs[k-2]}, v{regs[k-1]}')
            o += ['s_nop 0', f'v_cvt_pk_bf16_f32 v{C_P+7}, v{regs[-2]}, v{regs[-1]}']
            sc.place(o, start[j], h2-3)
            adds = [f'v_add_f32 v{C_L+(4 if hf(j) else 4*(k//8))}, v{C_L+(4 if hf(j) else 4*(k//8))}, v{regs[k]}' for k in range(len(regs))] if LV else []
        else:
            S = C_S[p]
            regs = [S + (kb*2+qb)*4 + e for qb in ((1,) if hf(j) else (0, 1)) for kb in range(2) for e in range(4)]
            adds = [f'v_add_f32 v{C_L+(4 if hf(j) else 4*(k//8))}, v{C_L+(4 if hf(j) else 4*(k//8))}, v{regs[k]}' for k in range(len(regs))] if LV else []
        dv = C_dma('V', f's_add_u32 m0, s{S_PO if p==0 else S_PB}, {65536 + (16384 if p==0 else 0)}') if tail <= 2 else None
        dk = C_dma('K', f's_add_u32 m0, s{S_PB if p==0 else S_PO}, {16384 if p==0 else 0}') if tail <= 0 else None
        if dv:
            dv = flat(dv)
            sc.put(h2, 0, dv[0]); sc.put(h2, 0, dv[1])
            for x, st_ in zip(dv[2:], (2, 4, 5, 6)): sc.put(h2+st_, 0, x)
        else: sc.put(h2, 0, 's_nop 0')
        if dk:
            dk = flat(dk)
            sc.put(h2+7, 0, dk[0]); sc.put(h2+7, 0, dk[1])
            for x, st_ in zip(dk[2:], (8, 9, 10, 12)): sc.put(h2+st_, 0, x)
        if own:
            ml = merge_loads()
            if tail == 2: sc.place(ml[:NM2], h2+7, end)
            if tail == 3: sc.place(ml[NM2:NM2+NM3], h2+2, end)
            if tail == 2: sc.place(D_setup_v(), start[j], h2-1)
            if tail == 3: sc.place(D_setup_s(), h2+2, end)
            d0 = D_dma(0)
            if tail == 4: sc.place(d0[:6], h2+2, end)
            if tail == 5: sc.place(d0[6:], h2, end)
        if p == 1:
            e = [f's_xor_b32 s{S_PB}, s{S_PB}, 0x8000', f's_xor_b32 s{S_PO}, s{S_PO}, 0x8000']
            if j < 4: e += [f's_sub_u32 s{S_CNT}, s{S_CNT}, 2', f's_cmp_lg_u32 s{S_CNT}, 0']
            sc.place(e, end-2, end)
        if j < n-1:
            Sn = C_S[p ^ 1]; ops = []
            if own and tail == 1: ops += [f'v_mov_b32 v{C_DV}, v{C_DV0}'] + mask_ops(Sn, 0)
            if own and tail == 2: ops += [f'v_subrev_u32 v{C_DV}, 32, v{C_DV0}'] + mask_ops(Sn, 0)
            if own and tail == 3: ops += [f'v_add_u32 v{C_DV}, s{S_RB}, v{C_DV0}'] + mask_ops(Sn, 1)
            if own and tail == 4: ops += [f'v_subrev_u32 v{C_DV}, 32, v{C_DV}'] + mask_ops(Sn, 1)
            if hf(j+1): ops = [f'v_mov_b32 v{Sn+kb*8+e}, 0' for kb in range(2) for e in range(4)] + ops
            ops += max_ops(Sn, hf(j+1)) + [f'v_cmp_lt_f32 vcc, s{S_THR}, v{C_TM}']
            sc.place(ops, h2+(5 if hf(j) else 3), end)
        if adds:
            if j < n-1 and not hf(j+1):
                k0 = 0
                for st_ in range(2, 16, 2):
                    g = sc.gidx[start[j]+st_] + 1
                    if len(sc.gaps[g]) == 1: sc.put(start[j]+st_, 1, adds[k0]); k0 += 1
                sc.place(adds[k0:], h2, end)
            else: sc.place(adds, h2, end)
    if NZ: sc.place([f'v_accvgpr_write_b32 a{r}, 0' for r in range(128-NZ, 128)], 0, 15)
    def text(j0, j1): return sc.text(start[j0], start[j1+1]-1)
    def emit_iter(j):
        tx = resolve_vm(text(j, j))
        if own and j == n-6:
            a(f's_lshl_b32 s{S_FP}, s{S_PAIR}, 8'); a(f's_add_u32 s{S_FP}, s{S_FP}, {hex(WS_FLG + 0x20000)}')
            a(poll_issue(S_FP))
        if own and j == n-4:
            L = a.newlabel('NMC')
            for x in merge_setup(): a(x.split('\n'))
            a(f's_cmp_eq_u32 s{S_TS}, 0'); a(f's_cbranch_scc1 {L}')
            a('s_waitcnt vmcnt(12)')
            spin_wait(a, S_FP, mask=1)
            a.label(L)
        ab = OPT.get('ablate', '')
        if 'dma' in ab: tx = [x for x in tx if not (x.startswith('buffer_load') or 'vmcnt' in x)]
        if 'bar' in ab: tx = [x for x in tx if not x.startswith('s_barrier')]
        if 'exp' in ab: tx = [x for x in tx if not x.startswith('v_exp')]
        if 'max' in ab: tx = [x for x in tx if not x.startswith('v_max')]
        if 'read' in ab: tx = [x for x in tx if not (x.startswith('ds_read') or 'lgkmcnt' in x)]
        a(tx)
        if j < n-1 and not ab:
            Lb = a.newlabel('CB'); Ls = a.newlabel('CS')
            a(f's_cbranch_vccnz {Ls}')
            a.label(Lb)
            rl['stubs'].append((Ls, Lb, (j&1)^1))
    assert text(0, 1) == text(2, 3), 'not periodic'
    print('phaseC overflow per pair', sc.overflow(start[2], start[4]-1))
    if own: stamp(a, 14)
    a(sc.pre)
    a(text(-1, -1))
    if own: stamp(a, 15)
    if own:
        Lx = a.newlabel('FX')
        a(f's_cmp_eq_u32 s{S_HASX}, 0'); a(f's_cbranch_scc1 {Lx}')
        a('s_waitcnt vmcnt(12)')
        a.label(Lx)
    a('s_barrier')
    if own: publish_flag(a)
    a(flat(C_dma('V', f's_add_u32 m0, s{S_W4K}, {65536+2*16384}') + C_dma('K', f's_mov_b32 m0, s{S_W4K}')))
    if own: a(mask_ops(C_S[0], 0))
    S0 = C_S[0]
    for qb in range(2):
        r = [S0 + (kb*2+qb)*4 + e for kb in range(2) for e in range(4)]
        d = C_T + qb
        a(f'v_max3_f32 v{d}, v{r[0]}, v{r[1]}, v{r[2]}'); a(f'v_max3_f32 v{d}, v{d}, v{r[3]}, v{r[4]}')
        a(f'v_max3_f32 v{d}, v{d}, v{r[5]}, v{r[6]}'); a(f'v_max_f32 v{d}, v{d}, v{r[7]}')
    a(f'v_max_f32 v{C_T}, abs(v{C_T}), abs(v{C_T+1})')
    a(f'v_cmp_nge_f32 vcc, s{S_THR}, v{C_T}')
    Lb = a.newlabel('CB'); Ls = a.newlabel('CS')
    a(f's_cbranch_vccnz {Ls}')
    a.label(Lb)
    rl['stubs'].append((Ls, Lb, 'first'))
    if own: stamp(a, 16)
    Ltail4 = a.newlabel('CT4'); Ltail = a.newlabel('CT6'); Lloop = a.newlabel('CL')
    if own:
        a(f's_cmp_eq_u32 s{S_N}, 4'); a(f's_cbranch_scc1 {Ltail4}')
    a(f's_sub_u32 s{S_CNT}, s{S_N}, 6')
    a(f's_cmp_eq_u32 s{S_CNT}, 0'); a(f's_cbranch_scc1 {Ltail}')
    a.label(Lloop)
    emit_iter(2); emit_iter(3)
    a(f's_cbranch_scc1 {Lloop}')
    a.label(Ltail)
    if own: stamp(a, 17)
    emit_iter(4); emit_iter(5)
    if own: a.label(Ltail4)
    for j in range(6, 10): emit_iter(j)

def rare_subs(a, rl):
    for (Ls, Lb, p) in rl['stubs']:
        a.label(Ls)
        a(f's_cselect_b32 s{S_T+8}, 1, 0')
        a(f's_getpc_b64 s[{S_RET}:{S_RET+1}]')
        Lp = a.newlabel('CP'); a.label(Lp)
        a(f's_sub_u32 s{S_RET}, s{S_RET}, {Lp}-{Lb}'); a(f's_subb_u32 s{S_RET+1}, s{S_RET+1}, 0')
        a(f's_branch {rl[p]}')
    a.label(rl['first'])
    rare_path(a, C_S[0], True)
    a(f's_setpc_b64 s[{S_RET}:{S_RET+1}]')
    for p in range(2):
        a.label(rl[p])
        rare_path(a, C_S[p], False)
        a(f's_cmp_lg_u32 s{S_T+8}, 0')
        a(f's_setpc_b64 s[{S_RET}:{S_RET+1}]')

def op_base(a, d):
    a(f's_mul_i32 s{d}, s{S_PAIR}, {OP_PAIR}'); a(f's_mul_i32 s{d+1}, s{S_WAVE}, {OP_WAVE}')
    a(f's_add_u32 s{d}, s{d}, s{d+1}'); a(f's_add_u32 s{d}, s{d}, {hex(WS_OP)}')

def l_reduce(a):
    if not OPT.get('lvalu', False): return
    for bp in (C_BP16, C_BP32):
        for qb in range(2): a(f'ds_bpermute_b32 v{C_L+4*qb+1}, v{bp}, v{C_L+4*qb}')
        a('s_waitcnt lgkmcnt(0)')
        for qb in range(2): a(f'v_add_f32 v{C_L+4*qb}, v{C_L+4*qb}, v{C_L+4*qb+1}')

def publish_stores(a):
    t = S_T
    a('s_nop 7')
    l_reduce(a)
    op_base(a, t)
    a(f's_add_u32 s{t+1}, s{t}, 32768')
    a(f'v_mov_b32 v{C_T}, v{C_NM}'); a(f'v_mov_b32 v{C_T+1}, v{C_NM+4}'); a(f'v_mov_b32 v{C_T+2}, v{C_L}'); a(f'v_mov_b32 v{C_T+3}, v{C_L+4}')
    a(f'buffer_store_dwordx4 {vr(C_T)}, v{V_L16}, {sr(S_WS)}, s{t+1} offen sc1')
    for k in range(16):
        if k % 4 == 0 and k: a(f's_add_u32 s{t}, s{t}, 4096')
        tb = 32 + 16*(k & 1)
        for e in range(8): a(f'v_accvgpr_read_b32 v{tb+e}, a{8*k+e}')
        for e in range(4): a(f'v_cvt_pk_bf16_f32 v{tb+8+e}, v{tb+2*e}, v{tb+2*e+1}')
        a(f'buffer_store_dwordx4 {vr(tb+8)}, v{V_L16}, {sr(S_WS)}, s{t} offen offset:{1024*(k%4)} sc1')
    a('s_nop 1')

def publish_flag(a):
    L = a.newlabel('PF')
    a(f's_cmp_eq_u32 s{S_HASX}, 0'); a(f's_cbranch_scc1 {L}')
    a(f's_lshl_b32 s{S_T}, s{S_PAIR}, 8'); a(f's_add_u32 s{S_T}, s{S_T}, {hex(WS_FLG + 0x20000)}')
    a(f'buffer_store_dword v{V_NONCE}, v{V_SIG}, {sr(S_WS)}, s{S_T} offen sc1')
    a.label(L)

D_CTX = 32
D_WF, D_NB = 176, 8
D_ACC = 128
D_PK = 160
D_VO = 120
D_RA, D_RB = 20, 24
D_ST1 = 28
DSLOT = 49152
S_MB = 71
C_ML = 124

def merge_setup():
    t = S_T + 4
    return [f's_mul_i32 s{S_MB}, s{S_PAIR}, {OP_PAIR}', f's_mul_i32 s{t}, s{S_WAVE}, {OP_WAVE}',
            f's_add_u32 s{S_MB}, s{S_MB}, s{t}', f's_add_u32 s{S_MB}, s{S_MB}, {hex(WS_OP)}',
            f's_cmp_eq_u32 s{S_TS}, 0\ns_cselect_b32 s{S_MB}, 0x70000000, s{S_MB}']

def merge_loads():
    t = S_T + 4
    g = [[f's_add_u32 s{t}, s{S_MB}, 32768', f'buffer_load_dwordx4 {vr(C_ML)}, v{V_L16}, {sr(S_WS)}, s{t} offen sc1']]
    for k in range(16):
        pre = [f's_add_u32 s{S_MB}, s{S_MB}, 4096'] if (k % 4 == 0 and k) else []
        g.append(pre + [f'buffer_load_dwordx4 {vr(C_MRG+4*k)}, v{V_L16}, {sr(S_WS)}, s{S_MB} offen offset:{1024*(k%4)} sc1'])
    return g

def D_setup_v(): return D_setup()[:12]
def D_setup_s(): return D_setup()[12:]
def D_setup():
    t = S_T + 5
    r = ['v_lshrrev_b32 v2, 3, v1', 'v_mul_u32_u24 v3, 896, v2', 'v_bfe_u32 v2, v1, 4, 2', f'v_bfe_u32 v{D_VO}, v1, 1, 2', f'v_xor_b32 v2, v2, v{D_VO}',
         f'v_and_b32 v{D_VO}, 1, v1', f'v_lshl_add_u32 v2, v2, 1, v{D_VO}', 'v_lshl_add_u32 v3, v2, 4, v3']
    r += [f'v_add_u32 v{D_VO+i}, {i*(8*896-1024)}, v3' for i in range(4)]
    r += [f's_lshl_b32 s{t}, s{S_H}, 8', f's_lshl_b32 s{t+1}, s{S_WAVE}, 6', f's_add_u32 s{t}, s{t}, s{t+1}', f's_mul_i32 s{S_DO}, s{t}, 896',
          f's_lshl_b32 s{t+1}, s{S_WAVE}, 5', f's_add_u32 s{t}, s{S_F0}, s{t+1}', f's_mul_i32 s{S_D2}, s{t}, 896']
    return r

def finalize(a):
    t = S_T
    Lno = a.newlabel('NOMRG'); Ldone = a.newlabel('FIN')
    l_reduce(a)
    a(f's_cmp_lg_u32 s{S_TS}, 0'); a(f's_cbranch_scc0 {Lno}')
    a('s_waitcnt vmcnt(24)')
    a(f's_mov_b32 s{t}, 0xffff0000')
    for qb in range(2):
        nm_a = C_NM + 4*qb; nm_b = C_ML + qb; l_a = C_L + 4*qb; l_b = C_ML + 2 + qb
        sa = 8 + 2*qb; sb = 16 + 2*qb
        a(f'v_min_f32 v2, v{nm_a}, v{nm_b}')
        a(f'v_sub_f32 v3, v2, v{nm_a}'); a(f'v_exp_f32 v{sa}, v3')
        a(f'v_sub_f32 v3, v2, v{nm_b}'); a(f'v_exp_f32 v{sb}, v3')
        a('s_nop 0')
        a(f'v_mul_f32 v2, v{sa}, v{l_a}'); a(f'v_fmac_f32 v2, v{sb}, v{l_b}')
        a('v_rcp_f32 v2, v2'); a('s_nop 0')
        a(f'v_mul_f32 v{sa}, v{sa}, v2'); a(f'v_mul_f32 v{sb}, v{sb}, v2')
        a(f'v_mov_b32 v{sa+1}, v{sa}'); a(f'v_mov_b32 v{sb+1}, v{sb}')
    k = 0
    for s in range(8):
        for qb in range(2):
            for half in range(2):
                o = ((2*s+half)*2+qb)*4; tb = 12 if k & 1 else 20; k += 1
                for e in range(4): a(f'v_accvgpr_read_b32 v{tb+e}, a{o+e}')
                for e in range(2):
                    a(f'v_lshlrev_b32 v{24+2*e}, 16, v{C_MRG+o//2+e}'); a(f'v_and_b32 v{25+2*e}, s{t}, v{C_MRG+o//2+e}')
                for e in (0, 2): a(f'v_pk_mul_f32 {vr(tb+e,2)}, {vr(tb+e,2)}, {vr(8+2*qb,2)}')
                for e in (0, 2): a(f'v_pk_fma_f32 {vr(tb+e,2)}, {vr(24+e,2)}, {vr(16+2*qb,2)}, {vr(tb+e,2)}')
                for e in range(2): a(f'v_cvt_pk_bf16_f32 v{D_CTX+(s*2+qb)*4+2*half+e}, v{tb+2*e}, v{tb+2*e+1}')
    a(f's_branch {Ldone}')
    a.label(Lno)
    for qb in range(2): a(f'v_rcp_f32 v{8+2*qb}, v{C_L+4*qb}')
    a('s_nop 0')
    for qb in range(2): a(f'v_mov_b32 v{9+2*qb}, v{8+2*qb}')
    for s in range(8):
        for qb in range(2):
            for half in range(2):
                o = ((2*s+half)*2+qb)*4; tb = 12 if k & 1 else 20; k += 1
                for e in range(4): a(f'v_accvgpr_read_b32 v{tb+e}, a{o+e}')
                for e in (0, 2): a(f'v_pk_mul_f32 {vr(tb+e,2)}, {vr(tb+e,2)}, {vr(8+2*qb,2)}')
                for e in range(2): a(f'v_cvt_pk_bf16_f32 v{D_CTX+(s*2+qb)*4+2*half+e}, v{tb+2*e}, v{tb+2*e+1}')
    a.label(Ldone)

def D_dma(tile):
    t = S_T; sl = (tile % 3)*DSLOT
    g = []
    for half in range(2):
        first = [f's_lshl_b32 s{t}, s{S_W4K}, 1'] if half == 0 else []
        first += [f's_add_u32 m0, s{t}, {sl + 4096*half}', f's_add_u32 s{t+1}, s{S_DO}, {half*32*896 + tile*128}']
        for i in range(4):
            g.append((first if i == 0 else []) + [f'buffer_load_dwordx4 v{D_VO+i}, {sr(S_WO)}, s{t+1} offen offset:{1024*i} lds'])
    first = [f's_add_u32 m0, s{S_W4K}, {sl + 32768}', f's_add_u32 s{t+1}, s{S_D2}, {tile*128}']
    for i in range(4):
        g.append((first if i == 0 else []) + [f'buffer_load_dwordx4 v{D_VO+i}, {sr(S_W2)}, s{t+1} offen offset:{1024*i} lds'])
    return tag(g, f'T{tile}')

def phaseD_begin(a):
    a('s_barrier')
    a(resolve_vm(flat(D_dma(1))))

def phaseD(a, nks):
    t = S_T
    a('v_lshrrev_b32 v2, 2, v1'); a('v_bfe_u32 v3, v1, 3, 2')
    a('v_and_b32 v8, 3, v1'); a('v_lshlrev_b32 v8, 3, v8'); a('v_lshl_add_u32 v8, v2, 7, v8')
    for c in range(4):
        a(f'v_xor_b32 v2, {c}, v3'); a(f'v_lshl_add_u32 v{D_RB+c}, v2, 5, v8')
    a(f's_lshl_b32 s{t}, s{S_OWN}, 3'); a(f's_add_u32 s{t}, s{t}, s{S_WAVE}'); a(f's_mul_i32 s{t}, s{t}, {14*16384}')
    a(f's_lshl_b32 s{t+1}, s{S_H}, 10'); a(f's_add_u32 s{t}, s{t}, s{t+1}')
    a(f's_add_u32 s{S_PRT}, s{t}, {hex(WS_PART)}')
    a(f's_mul_i32 s{t}, s{S_Q1}, {14*16384}'); a(f'v_add_u32 v{D_ST1}, s{t}, v{V_L16}')
    steps = []
    for tile in range(7):
        sl = tile % 3
        for c in range(4):
            for ks in range(nks):
                buf = D_WF + (len(steps) % D_NB)*4
                rd = [f'ds_read_b64_tr_b16 {vr(buf+2*h,2)}, v{D_RA+c} offset:{4096*ks+2048*h}' for h in range(2)]
                pv = f'v_add_u32 v{D_RA+c}, {sl*DSLOT}, v{D_RB+c}' if ks == 0 else None
                mf = []
                for qb in range(2):
                    d = vr(D_ACC + (c*2+qb)*4)
                    b = vr(D_CTX + (ks*2+qb)*4) if ks < 8 else ar(A_H + ((ks-8)*2+qb)*4)
                    mf.append(f'{MF} {d}, {vr(buf)}, {b}, {d if ks else "0"}')
                steps.append(Step(mf, rd, prev=pv))
    nst = 4*nks; LA = 6
    bp = {}
    for tile in range(6):
        bp[tile] = (tile+1)*nst - LA - 1
        steps[bp[tile]].pre += [f's_waitcnt vmcnt(@T{tile+1})', 's_barrier']
        for f in range(nst): steps[(tile+1)*nst+f].gate = bp[tile]
    FUSE = OPT.get('fuse_r', True)
    if FUSE:
        bp[6] = 7*nst - LA - 1
        steps[bp[6]].pre += ['s_barrier']
        for tile in range(1, 7): steps[bp[tile]].pre.insert(0, f's_waitcnt vmcnt(@P{2*tile-1-OPT.get("plag", 0)})')
        a(f's_lshl_b32 s{S_FP}, s{S_OWN}, 12'); a(f's_add_u32 s{S_FP}, s{S_FP}, {hex(WS_FLG + 0x40000)}')
        a(f's_lshl_b32 s{S_MB}, s{S_H}, 2'); a(f's_add_u32 s{S_MB}, s{S_MB}, s{S_FP}')
    sc = Sched(steps, LA=LA, wait_group=2)
    if FUSE:
        for tile in range(1, 7):
            sc.place([f'v_add_u32 v{8+(tile&1)}, {2*tile-OPT.get("plag", 0)}, v{V_NONCE}', f'buffer_store_dword v{8+(tile&1)}, v{V_SIG}, {sr(S_WS)}, s{S_MB} offen sc1'], bp[tile], bp[tile]+1)
    sc.place(D_dma(2), 0, 24)
    for tile in range(1, 5): sc.place(D_dma(tile+2), bp[tile], bp[tile]+OPT.get('d_dw', 16))
    tail_ops = None
    for tile in range(7):
        for cp in range(2):
            v = tile*2 + cp
            endstep = (tile*4 + cp*2 + 2)*nks
            ops = []
            for qb in range(2):
                pk = D_PK + (cp*2+qb)*4
                for half in range(2):
                    src = D_ACC + ((cp*2+half)*2+qb)*4
                    for e in range(2): ops.append(f'v_cvt_pk_bf16_f32 v{pk+2*half+e}, v{src+2*e}, v{src+2*e+1}')
                st = [f's_add_u32 s{t+4}, s{S_PRT}, {v*16384}'] if qb == 0 else []
                ops.append(st + [f'buffer_store_dwordx4 {vr(pk)}, v{V_L16 if qb==0 else D_ST1}, {sr(S_WS)}, s{t+4} offen sc1 ;@P{v}'])
            if endstep + 3 < len(steps): sc.place(ops, endstep+3, endstep+12)
            else: tail_ops = ops
    print('phaseD overflow', sc.overflow(0, len(steps)-1))
    head = flat(D_dma(0) + D_dma(1))
    body = resolve_vm(head + ['MARK', 's_waitcnt vmcnt(@T0)', 's_barrier'] + sc.pre + sc.text(0, len(steps)-1))
    a(body[body.index('MARK')+1:])
    a('s_nop 7')
    a(resolve_vm(flat(tail_ops)))

def phaseR(a, Lend):
    t = S_T
    S_OUT, S_B2 = S_CKV, S_W
    S_CT, S_U, S_IT, S_MSK = 57, 58, 59, 60
    a(f's_load_dwordx4 s[{t+4}:{t+7}], s[0:1], 80')
    a('s_waitcnt vmcnt(0)')
    a('s_barrier')
    a(f'v_add_u32 v8, 14, v{V_NONCE}')
    a(f'buffer_store_dword v8, v{V_SIG}, {sr(S_WS)}, s{S_MB} offen sc1')
    stamp(a, 13)
    a('s_waitcnt lgkmcnt(0)')
    srd(a, S_B2, t+4, 448*2); srd(a, S_OUT, t+6, 2048*448*2)
    a(f's_add_u32 s{S_CT}, s{S_FP}, 0x10000')
    a(f's_mov_b32 s{S_IT}, 0'); a(f's_mov_b32 s{S_MSK}, 0xffff0000')
    a('v_and_b32 v10, 15, v1'); a('v_mul_u32_u24 v10, 896, v10'); a('v_lshrrev_b32 v11, 4, v1'); a('v_lshlrev_b32 v11, 3, v11')
    a('v_add_u32 v10, v10, v11')
    def wait_prog(need_sgpr):
        Ls = a.newlabel('RP'); Lo = a.newlabel('RP')
        a(f's_mov_b32 s{t+1}, 0')
        a(f's_sub_u32 s{t+2}, 14, s{need_sgpr}')
        a.label(Ls)
        a(poll_issue(S_FP))
        a('s_waitcnt vmcnt(0)')
        a(f'v_sub_u32 v2, v{V_POLL}, v{V_NONCE}'); a(f'v_subrev_u32 v2, s{need_sgpr}, v2')
        a(f'v_cmp_ge_u32 vcc, s{t+2}, v2')
        a(f's_and_b32 s{t}, vcc_lo, 0xffff')
        a(f's_cmp_eq_u32 s{t}, 0xffff'); a(f's_cbranch_scc1 {Lo}')
        a(f's_sleep {OPT.get("rsleep", 3)}')
        a(f's_add_u32 s{t+1}, s{t+1}, 1')
        a(f's_cmp_lt_u32 s{t+1}, 20000'); a(f's_cbranch_scc1 {Ls}')
        a.label(Lo)
    Lloop = a.newlabel('RL'); Lsk = a.newlabel('RS'); Lw = a.newlabel('RW'); Lf = a.newlabel('RF')
    a(f's_cmp_lg_u32 s{S_WAVE}, 0'); a(f's_cbranch_scc1 {Lloop}')
    a(f's_mov_b32 s{t+3}, 1')
    wait_prog(t+3)
    a.label(Lloop)
    a(f'v_mov_b32 v12, s{S_IT}')
    a(f's_cmp_lg_u32 s{S_WAVE}, 0'); a(f's_cbranch_scc1 {Lsk}')
    a('v_mov_b32 v3, 1')
    a(f'buffer_atomic_add v3, v{V_SIG}, {sr(S_WS)}, s{S_CT} offen sc0 sc1')
    a('s_waitcnt vmcnt(0)')
    a(f'v_readfirstlane_b32 s{S_U}, v3')
    a(f's_cmp_ge_u32 s{S_U}, 28'); a(f's_cbranch_scc1 {Lw}')
    a(f's_lshr_b32 s{t+3}, s{S_U}, 1'); a(f's_add_u32 s{t+3}, s{t+3}, 1')
    wait_prog(t+3)
    a.label(Lw)
    a(f'v_mov_b32 v3, s{S_U}')
    a('ds_write_b32 v12, v3')
    a('s_waitcnt lgkmcnt(0)')
    a.label(Lsk)
    a('s_barrier')
    a('ds_read_b32 v3, v12')
    a('s_waitcnt lgkmcnt(0)')
    a(f'v_readfirstlane_b32 s{S_U}, v3')
    a(f's_xor_b32 s{S_IT}, s{S_IT}, 4')
    a(f's_cmp_ge_u32 s{S_U}, 28'); a(f's_cbranch_scc1 {Lf}')
    a(f's_and_b32 s{t}, s{S_U}, 1'); a(f's_lshl_b32 s{t}, s{t}, 2'); a(f's_add_u32 s{t}, s{t}, s{S_WAVE}')
    a(f's_lshl_b32 s{t+1}, s{S_OWN}, 3'); a(f's_add_u32 s{t}, s{t}, s{t+1}')
    a(f's_lshr_b32 s{t+1}, s{S_U}, 1')
    a(f's_mul_i32 s{t+2}, s{t}, 14'); a(f's_add_u32 s{t+2}, s{t+2}, s{t+1}'); a(f's_lshl_b32 s{t+2}, s{t+2}, 14')
    a(f's_add_u32 s{t+2}, s{t+2}, {hex(WS_PART)}')
    for h in range(16):
        a(f'buffer_load_dwordx4 {vr(32+4*h)}, v{V_L16}, {sr(S_WS)}, s{t+2} offen offset:{(h%4)*1024} sc1')
        if h % 4 == 3 and h < 15: a(f's_add_u32 s{t+2}, s{t+2}, 4096')
    a(f's_mul_i32 s{t}, s{t}, {16*896}'); a(f's_lshl_b32 s{t+1}, s{t+1}, 6'); a(f's_add_u32 s{t}, s{t}, s{t+1}')
    a(f'buffer_load_dwordx2 v[96:97], v10, {sr(S_XIN)}, s{t} offen')
    a(f'buffer_load_dwordx2 v[98:99], v10, {sr(S_XIN)}, s{t} offen offset:32')
    a(f'buffer_load_dwordx2 v[100:101], v11, {sr(S_B2)}, s{t+1} offen')
    a(f'buffer_load_dwordx2 v[102:103], v11, {sr(S_B2)}, s{t+1} offen offset:32')
    for h in range(18):
        a(f's_waitcnt vmcnt({19-h if h < 16 else (2 if h == 16 else 0)})')
        src = 32 + 4*h
        for i in range(4):
            if h == 0:
                a(f'v_lshlrev_b32 v{16+2*i}, 16, v{src+i}'); a(f'v_and_b32 v{17+2*i}, s{S_MSK}, v{src+i}')
            else:
                a(f'v_lshlrev_b32 v14, 16, v{src+i}'); a(f'v_and_b32 v15, s{S_MSK}, v{src+i}')
                a(f'v_add_f32 v{16+2*i}, v{16+2*i}, v14'); a(f'v_add_f32 v{17+2*i}, v{17+2*i}, v15')
    for i in range(4): a(f'v_cvt_pk_bf16_f32 v{24+i}, v{16+2*i}, v{17+2*i}')
    a(f'buffer_store_dwordx2 v[24:25], v10, {sr(S_OUT)}, s{t} offen')
    a(f'buffer_store_dwordx2 v[26:27], v10, {sr(S_OUT)}, s{t} offen offset:32')
    a(f's_cmp_lt_u32 s{S_U}, {OPT.get("u0", 20)}'); a(f's_cbranch_scc1 {Lloop}')
    a.label(Lf)
    if DBG[0]:
        a('s_waitcnt vmcnt(0)')
        stamp(a, 18)

def build_srds(a):
    P = PTR
    srd(a, S_WS, P+26, WS_BYTES); srd(a, S_CKV, P+2, 2048*1024*2); srd(a, S_XIN, P+0, 2048*448*2)
    a(f's_cmp_eq_u32 s{S_KVT}, 0')
    a(f's_cselect_b32 s{P+6}, s{P+6}, s{P+8}'); a(f's_cselect_b32 s{P+7}, s{P+7}, s{P+9}')
    srd(a, S_W, P+6, 1024*4096*2)
    srd(a, S_WQ, P+4, 448*4096*2); srd(a, S_W1, P+14, 448*1792*2); srd(a, S_WO, P+10, 4096*448*2)
    srd(a, S_W2, P+18, 1792*448*2); srd(a, S_B1, P+16, 1792*2); srd(a, S_DBG, P+24, 256)

def gen_mega(a, name='m_kernel', dbg=False):
    DBG[0] = dbg
    kstart(a, name)
    a.label('M_CODE_START')
    Lend = a.newlabel('MEND')
    Lgo = a.newlabel('GO')
    a('s_cmp_lt_u32 s2, 256'); a(f's_cbranch_scc1 {Lgo}')
    a('s_endpgm')
    a.label(Lgo)
    a(f's_load_dwordx16 s[{PTR}:{PTR+15}], s[0:1], 0')
    a(f's_load_dwordx8 s[{PTR+16}:{PTR+23}], s[0:1], 64')
    a(f's_load_dwordx4 s[{PTR+24}:{PTR+27}], s[0:1], 96')
    Lp = a.newlabel('PC')
    a(f's_getpc_b64 s[{S_PC}:{S_PC+1}]')
    a.label(Lp)
    a(f's_sub_u32 s{S_PC}, s{S_PC}, {Lp}-M_CODE_START'); a(f's_subb_u32 s{S_PC+1}, s{S_PC+1}, 0')
    a(flat(code_pf(0, OPT.get('cpf0', 1), 200)))
    if OPT.get('cpfs'):
        ns = OPT['cpfs']; per = (OPT.get('codekb', 112)*1024 // ns) // 128
        a('s_lshr_b32 s4, s2, 3'); a(f's_and_b32 s4, s4, {ns-1}'); a(f's_mul_i32 s4, s4, {per*128}')
        a(f'v_min_u32 v200, {per-1}, v0'); a('v_lshlrev_b32 v200, 7, v200'); a('v_add_u32 v200, s4, v200')
        a('v_min_u32 v200, M_CODE_END-M_CODE_START-4, v200')
        a(f'global_load_dword v31, v200, s[{S_PC}:{S_PC+1}]')
    a('v_and_b32 v1, 63, v0')
    a('v_lshrrev_b32 v2, 6, v0')
    a(f'v_lshlrev_b32 v{V_L16}, 4, v1')
    a(f'v_readfirstlane_b32 s{S_WAVE}, v2')
    t = 4
    a(f's_and_b32 s{t}, s2, 7'); a(f's_lshr_b32 s{t+1}, s2, 3'); a(f's_and_b32 s{t+2}, s{t+1}, 1')
    if OPT.get('xswap'): a(f's_xor_b32 s{t}, s{t}, {OPT["xswap"]}')
    a(f's_lshl_b32 s{t}, s{t}, 1'); a(f's_add_u32 s{S_H}, s{t}, s{t+2}')
    a(f's_lshr_b32 s{t+1}, s{t+1}, 1'); a(f's_and_b32 s{S_ROLE}, s{t+1}, 1'); a(f's_lshr_b32 s{S_I}, s{t+1}, 1')
    a(f's_lshl_b32 s{S_W4K}, s{S_WAVE}, 12'); a(f's_lshl_b32 s{S_W2K}, s{S_WAVE}, 11')
    a(f's_lshl_b32 s{S_PAIR}, s{S_H}, 3'); a(f's_add_u32 s{S_PAIR}, s{S_PAIR}, s{S_I}')
    a(f's_lshl_b32 s{S_FKV}, s{S_H}, 12'); a(f's_add_u32 s{S_FKV}, s{S_FKV}, {hex(WS_FLG)}')
    lo = sum(T0[i] << (8*i) for i in range(4)); hi = sum(T0[4+i] << (8*i) for i in range(4))
    a(f's_mov_b32 s{t}, {hex(lo)}'); a(f's_mov_b32 s{t+1}, {hex(hi)}')
    a(f's_lshl_b32 s{t+2}, s{S_I}, 3'); a(f's_lshr_b64 s[{t}:{t+1}], s[{t}:{t+1}], s{t+2}'); a(f's_and_b32 s{S_T0}, s{t}, 0xff')
    a(f's_sub_u32 s{S_EXT}, 15, s{S_I}')
    a(f's_cmp_eq_u32 s{S_ROLE}, 0'); a(f's_cselect_b32 s{S_OWN}, s{S_EXT}, s{S_I}')
    a(f's_mul_i32 s{S_HASX}, s{S_ROLE}, s{S_T0}')
    a(f's_mov_b32 s{S_QSC}, {f32(1.4426950408889634/16)}')
    a(f's_mov_b32 s{S_THR}, {f32(16.0)}')
    a('v_mov_b32 v3, 0x7fffff00'); a('v_cmp_eq_u32 vcc, 0, v0'); a(f'v_mov_b32 v{V_NONCE}, 0')
    a('v_lshlrev_b32 v2, 2, v0')
    a(f'v_cndmask_b32 v{V_SIG}, v3, 0, vcc')
    a('v_cmp_gt_u32 vcc, 16, v0'); a('s_nop 1')
    a(f'v_cndmask_b32 v{V_SIG16}, v3, v2, vcc')
    hist = phaseA(a)
    SPLIT = OPT.get('fsplit', False)
    def two(fn_even, fn_odd):
        if not SPLIT: fn_even(); return
        Lo = a.newlabel('OD'); Le = a.newlabel('EV')
        a(f's_cmp_lg_u32 s{S_ODD}, 0'); a(f's_cbranch_scc1 {Lo}')
        fn_even(); a(f's_branch {Le}')
        a.label(Lo); fn_odd(); a.label(Le)
    two(lambda: phaseB_main(a, True, hist, 8 if SPLIT else 7), lambda: phaseB_main(a, True, hist, 6))
    Lown = a.newlabel('OWN'); Lown2 = a.newlabel('OWN2')
    rl = {0: a.newlabel('RARE'), 1: a.newlabel('RARE'), 'first': a.newlabel('RARE'), 'stubs': []}
    def qsc(): a(f'v_mov_b32 v{B_QS}, s{S_QSC}'); a(f'v_mov_b32 v{B_QS+1}, s{S_QSC}')
    def own_params():
        a(f's_lshl_b32 s{S_RB}, s{S_OWN}, 2'); a(f's_add_u32 s{S_N}, s{S_RB}, 4'); a(f's_add_u32 s{S_RB}, s{S_RB}, s{S_WAVE}')
        a(f's_cmp_eq_u32 s{S_ROLE}, 0'); a(f's_cselect_b32 s{S_TS}, s{S_T0}, 0')
        a(f's_sub_u32 s{S_N}, s{S_N}, s{S_TS}')
    qsc()
    a(f's_sub_u32 s{S_PUBQ}, s{S_T0}, s{S_HASX}')
    own_params()
    a(f's_cmp_lg_u32 s{S_HASX}, 0'); a(f's_cselect_b32 s{S_N}, s{S_T0}, s{S_N}')
    phaseB_epi(a)
    a('s_waitcnt vmcnt(16)')
    spin_wait(a, S_FP)
    stamp(a, 8)
    phaseC_begin(a, 1)
    two(lambda: phaseB_epi_h(a, 8 if SPLIT else 7), lambda: phaseB_epi_h(a, 6))
    Lq = a.newlabel('QF')
    a(f's_cmp_eq_u32 s{S_PUBQ}, 0'); a(f's_cbranch_scc1 {Lq}')
    a('s_waitcnt vmcnt(12)')
    a('s_barrier')
    a(f's_lshl_b32 s{S_T}, s{S_PAIR}, 8'); a(f's_add_u32 s{S_T}, s{S_T}, {hex(WS_FLG + 0x30000)}')
    a(f'buffer_store_dword v{V_NONCE}, v{V_SIG}, {sr(S_WS)}, s{S_T} offen sc1')
    a.label(Lq)
    stamp(a, 5)
    a(f's_cmp_eq_u32 s{S_HASX}, 0'); a(f's_cbranch_scc1 {Lown2}')
    phaseC(a, False, rl, after_first_wait=lambda a: stamp(a, 6))
    stamp(a, 9)
    own_params()
    phaseC_begin(a, 1)
    publish_stores(a)
    a.label(Lown2)
    stamp(a, 10)
    t = S_T
    def afw(a):
        if OPT.get('pfd_c0'): a(flat(pfD(2)))
        if OPT.get('pfd_big', True): pfD_big(a)
    phaseC(a, True, rl, after_first_wait=afw)
    a.label('M_D_START')
    stamp(a, 11)
    phaseD_begin(a)
    finalize(a)
    stamp(a, 12)
    two(lambda: phaseD(a, 12), lambda: phaseD(a, 11))
    if OPT.get('fuse_r', True): phaseR(a, Lend)
    elif dbg:
        a('s_waitcnt vmcnt(0)')
        stamp(a, 13)
    a.label(Lend)
    a('s_endpgm')
    rare_subs(a, rl)
    a.label('M_CODE_END')
    kdesc(a, name, 512, 256, sgpr=102)
```

```python
import build, mega
base = dict(xpf=True, st_end=7, sigu=10)
for name, o in [('x1', dict()), ('x0', dict(xpf=False)), ('x1s9', dict(st_end=6, sigu=9)), ('x1s8', dict(st_end=5, sigu=8))]:
    b = dict(base); b.update(o)
    build.build(f'ab_{name}.s', dbg=True, **b)
```

```python
from asmlib import *
from layout import *
from sched import *
import struct

def f32(x): return hex(struct.unpack('<I', struct.pack('<f', x))[0])
MF = 'v_mfma_f32_16x16x32_bf16'
DBG = [False]
def KT_(): return OPT.get('kvtile', 32768)
def KH_(): return 64*KT_() + OPT.get('kvhpad', 0)
OPT = dict(kv_sc1=True, a_pf=0, tlb=False, cpf0=0, cpfs=8)

S_WS, S_CKV, S_W, S_WQ, S_W1, S_WO, S_W2, S_B1, S_XIN, S_DBG = 4, 8, 12, 16, 20, 24, 28, 32, 36, 40
S_WAVE, S_H, S_ROLE, S_I, S_OWN, S_EXT, S_T0, S_HASX, S_W4K, S_W2K, S_PAIR, S_QSC, S_THR = range(44, 57)
S_KVT, S_KT = S_ROLE, S_I
S_SOX, S_SOW, S_DX, S_RX, S_CNT = 57, 58, 59, 60, 61
S_XO, S_KVO = 71, 62
S_DL = 86
S_KO, S_VO, S_PB, S_PO, S_RB, S_TS, S_N = 57, 58, 59, 60, 62, 63, 64
S_DO, S_D2, S_DS, S_PRT = 57, 58, 59, 60
S_FKV = 65
S_FP = 70
S_PUBQ = 68
S_F0, S_ODD = 98, 99
S_Q1 = 3
S_PC = 66
S_T = 72
S_RET = 84
S_MK = 86
S_ST = 94
PTR = 72
V_L16, V_SIG, V_NONCE, V_POLL = 4, 5, 6, 7
V_SIG16, V_DUM = 30, 31
V_H = 128
A_QX, A_H = 128, 192
V_QO = 128
CNT_KV, CNT_XN = 128, 192

def stamp(a, idx, dyn=None):
    if not DBG[0]: return
    L = a.newlabel('ST')
    a(f's_cmp_lg_u32 s{S_WAVE}, 0'); a(f's_cbranch_scc1 {L}')
    a(f's_memtime s[{S_ST}:{S_ST+1}]'); a(f's_memrealtime s[{S_ST+2}:{S_ST+3}]')
    a('s_waitcnt lgkmcnt(0)')
    a(f'v_mov_b32 v2, s{S_ST}'); a(f'v_mov_b32 v3, s{S_ST+2}')
    a(f's_lshl_b32 s{S_ST}, s2, 8'); a(f's_add_u32 s{S_ST}, s{S_ST}, {hex(WS_DBG + idx*8)}')
    if dyn is not None:
        a(f's_lshl_b32 s{S_ST+1}, s{dyn}, 3'); a(f's_add_u32 s{S_ST}, s{S_ST}, s{S_ST+1}')
    a(f'buffer_store_dwordx2 v[2:3], v{V_SIG}, {sr(S_WS)}, s{S_ST} offen')
    a('s_nop 1')
    a.label(L)

def code_pf(off, n, vt):
    g = []
    for i in range(n):
        g.append([f'v_lshlrev_b32 v{vt}, 7, v0', f'v_add_u32 v{vt}, {off + i*32768}, v{vt}',
                  f'v_min_u32 v{vt}, M_CODE_END-M_CODE_START-4, v{vt}',
                  f'global_load_dword v31, v{vt}, s[{S_PC}:{S_PC+1}]'])
    return g

def spin_wait(a, soff, mask=0xffff):
    t = S_T
    Lok = a.newlabel('WOK'); Ls = a.newlabel('WSP')
    a(f's_cmp_lg_u32 s{S_WAVE}, 0'); a(f's_cbranch_scc1 {Lok}')
    a(f's_mov_b32 s{t+1}, 0')
    a.label(Ls)
    a(f'v_cmp_eq_u32 vcc, v{V_POLL}, v{V_NONCE}')
    a(f's_and_b32 s{t}, vcc_lo, {hex(mask)}')
    a(f's_cmp_eq_u32 s{t}, {hex(mask)}'); a(f's_cbranch_scc1 {Lok}')
    a('s_sleep 8')
    a(poll_issue(soff))
    a('s_waitcnt vmcnt(0)')
    a(f's_add_u32 s{t+1}, s{t+1}, 1')
    a(f's_cmp_lt_u32 s{t+1}, 20000'); a(f's_cbranch_scc1 {Ls}')
    a.label(Lok)

def poll_issue(soff):
    return [f'buffer_load_dword v{V_POLL}, v{V_SIG16}, {sr(S_WS)}, s{soff} offen sc1']

def xn_flag_addr(dst, qb):
    return [f's_lshl_b32 s{dst}, s{qb}, 12', f's_add_u32 s{dst}, s{dst}, {hex(WS_FLG + 0x10000)}']

def row2_reduce(a, v, t, sd, sm):
    for mod in ['quad_perm:[1,0,3,2]', 'quad_perm:[2,3,0,1]', 'row_ror:8']:
        a('s_nop 1')
        a(f'v_add_f32 v{v}, v{v}, v{v} {mod} row_mask:0xf bank_mask:0xf')
    a('s_nop 1')
    for i in range(4): a(f'v_readlane_b32 s{sd+i}, v{v}, {16*i}')
    for i in range(4): a(f'v_readlane_b32 s{sd+4+i}, v{v}, {16*i+4}')
    a('s_nop 1')
    a(f'v_mov_b32 v{v}, s{sd}'); a(f'v_mov_b32 v{t}, s{sd+4}')
    for i in range(1, 4):
        a(f'v_add_f32 v{v}, s{sd+i}, v{v}'); a(f'v_add_f32 v{t}, s{sd+4+i}, v{t}')
    a(f'v_cndmask_b32 v{v}, v{v}, v{t}, s[{sm}:{sm+1}]')

def bf16_round(a, d, s):
    a(f'v_cvt_pk_bf16_f32 v{d}, v{s}, v{s}')
    a(f'v_and_b32 v{d}, 0xffff0000, v{d}')

def ln_rows(a, xr, f, t, sd, sm, out):
    a(f's_mov_b32 s{sm}, 0xf0f0f0f0'); a(f's_mov_b32 s{sm+1}, 0xf0f0f0f0')
    for i in range(8):
        a(f'v_lshlrev_b32 v{f+2*i}, 16, v{xr+i}')
        a(f'v_and_b32 v{f+2*i+1}, 0xffff0000, v{xr+i}')
    a(f'v_add_f32 v{t}, v{f}, v{f+1}')
    for i in range(2, 16): a(f'v_add_f32 v{t}, v{t}, v{f+i}')
    row2_reduce(a, t, t+3, sd, sm)
    a(f'v_mul_f32 v{t}, 0x3b124925, v{t}')
    a(f'v_mov_b32 v{t+1}, 0')
    for i in range(16):
        a(f'v_sub_f32 v{t+2}, v{f+i}, v{t}')
        a(f'v_fmac_f32 v{t+1}, v{t+2}, v{t+2}')
    a(f'v_cndmask_b32 v{t+1}, 0, v{t+1}, vcc')
    row2_reduce(a, t+1, t+3, sd, sm)
    a(f'v_mul_f32 v{t+1}, 0x3b124925, v{t+1}')
    bf16_round(a, t, t)
    bf16_round(a, t+1, t+1)
    a(f'v_add_f32 v{t+1}, 0x3727c5ac, v{t+1}')
    bf16_round(a, t+1, t+1)
    a(f'v_sqrt_f32 v{t+1}, v{t+1}')
    a('s_nop 0')
    bf16_round(a, t+1, t+1)
    a(f'v_rcp_f32 v{t+2}, v{t+1}')
    a('s_nop 0')
    a(f'v_fma_f32 v{t+3}, -v{t+1}, v{t+2}, 1.0')
    a(f'v_fmac_f32 v{t+2}, v{t+3}, v{t+2}')
    for i in range(16): a(f'v_sub_f32 v{f+i}, v{f+i}, v{t}')
    for i in range(8): a(f'v_cvt_pk_bf16_f32 v{out+i}, v{f+2*i}, v{f+2*i+1}')
    for i in range(8):
        a(f'v_lshlrev_b32 v{f+2*i}, 16, v{out+i}')
        a(f'v_and_b32 v{f+2*i+1}, 0xffff0000, v{out+i}')
    for i in range(16): a(f'v_mul_f32 v{f+i}, v{f+i}, v{t+2}')
    for i in range(8): a(f'v_cvt_pk_bf16_f32 v{out+i}, v{f+2*i}, v{f+2*i+1}')

WSLOT, NWS = 16384, 4
XBASE, XSLOT, NXS = 65536, 32768, 3
A_VX, A_VW, A_XAB, A_XA, A_WA = 8, 12, 16, 18, 20
AF = [dict(X=32, W=64), dict(X=96, W=128)]

def A_dma_w(wslot):
    g = [[f's_add_u32 m0, s{S_W4K}, {wslot*WSLOT}', f's_add_u32 s{S_SOW}, s{S_SOW}, {32*8192}',
          f'buffer_load_dwordx4 v{A_VW}, {sr(S_W)}, s{S_SOW} offen lds']]
    for i in range(1, 4):
        g.append([f'buffer_load_dwordx4 v{A_VW+i}, {sr(S_W)}, s{S_SOW} offen offset:{1024*i} lds'])
    return g

def A_dma_x(half):
    if half == 0:
        so = S_SOX
        g = [[f's_mov_b32 m0, s{S_DX}', f's_add_u32 s{S_SOX}, s{S_SOX}, 128', f'buffer_load_dwordx4 v{A_VX}, {sr(S_CKV)}, s{so} offen lds']]
    else:
        so = S_T + 1
        g = [[f's_add_u32 m0, s{S_DX}, 16384', f's_add_u32 s{so}, s{S_SOX}, {128*2048}',
              f'buffer_load_dwordx4 v{A_VX}, {sr(S_CKV)}, s{so} offen lds']]
    for i in range(1, 4):
        g.append([f'buffer_load_dwordx4 v{A_VX+i}, {sr(S_CKV)}, s{so} offen offset:{1024*i} lds'])
    if half == 1:
        g[-1] += [f's_add_u32 s{S_DX}, s{S_DX}, {XSLOT}',
                  f's_cmp_ge_u32 s{S_DX}, {XBASE+NXS*XSLOT}\ns_cselect_b32 s{S_T}, {NXS*XSLOT}, 0',
                  f's_sub_u32 s{S_DX}, s{S_DX}, s{S_T}']
    return g

def A_reads(u):
    f = AF[u & 1]; ks = u & 1; ws = u % NWS
    def wr(db): return [f'ds_read_b64_tr_b16 {vr(f["W"]+4*db+2*h,2)}, v{A_WA+db} offset:{ws*WSLOT+2048*h}' for h in range(2)]
    r = wr(0)
    for kb in range(8): r.append(f'ds_read_b128 {vr(f["X"]+4*kb)}, v{A_XA+ks} offset:{2048*kb}')
    for db in range(1, 8): r += wr(db)
    return r

def A_order(vtype):
    if vtype: return [(db, 2*tt+h) for db in range(8) for tt in range(4) for h in range(2)]
    return [(2*s_+h, kb) for s_ in range(4) for kb in range(8) for h in range(2)]

def A_kstep(u, vtype, dmaw, dmax, vm, last=False, extras=(), head=(), czero=False):
    out = list(head)
    if not last: out += [f's_waitcnt vmcnt({vm}) lgkmcnt(0)', 's_barrier']
    else: out += ['s_waitcnt lgkmcnt(0)']
    f = AF[u & 1]
    steps = []
    for i, (db, kb) in enumerate(A_order(vtype)):
        acc = ar(i*4, 4); w = vr(f['W']+4*db); x = vr(f['X']+4*kb)
        c = '0' if czero else acc
        steps.append(Step([f'{MF} {acc}, {x}, {w}, {c}' if vtype else f'{MF} {acc}, {w}, {x}, {c}']))
    sc = Sched(steps, LA=0, first_issued=0)
    d = []
    if dmaw: d += A_dma_w(u % NWS)
    if dmax: d += A_dma_x(0 if (u & 1) else 1)
    if d: sc.place(tag(d, f'A{u}'), 2, 58)
    if not last:
        r = []
        if (u & 1) == 1:
            r += [f's_add_u32 s{S_RX}, s{S_RX}, {XSLOT}', f's_cmp_ge_u32 s{S_RX}, {NXS*XSLOT}\ns_cselect_b32 s{S_RX}, 0, s{S_RX}']
            r += [f'v_add_u32 v{A_XA+i}, s{S_RX}, v{A_XAB+i}' for i in range(2)]
        sc.place(r + A_reads(u+1), 0, 44)
    for (items, lo, hi) in extras: sc.place(items, lo, hi)
    return out + sc.text(0, 63)

PEND = 32

def phaseA(a):
    t = 4
    S_ROW0, S_ROWO = 68, 69
    a(f's_lshl_b32 s{t}, s{S_KT}, 3'); a(f's_add_u32 s{t}, s{t}, s{S_WAVE}'); a(f's_lshl_b32 s{t}, s{t}, 16')
    a('v_lshrrev_b32 v2, 3, v1'); a('v_lshlrev_b32 v2, 11, v2')
    a('v_and_b32 v3, 7, v1'); a('v_lshrrev_b32 v200, 4, v1'); a('v_xor_b32 v3, v3, v200')
    a(f'v_add_u32 v2, s{t}, v2')
    for i in range(4):
        a(f'v_xor_b32 v201, {4*(i&1)}, v3'); a('v_lshl_add_u32 v201, v201, 4, v2')
        a(f'v_add_u32 v{A_VX+i}, {i*(8*2048-1024)}, v201')
    w_voffsets(a, A_VW, t)
    a(f's_mov_b32 s{S_SOX}, -128'); a(f's_mov_b32 s{S_SOW}, {-32*8192}')
    a(f's_add_u32 s{S_DX}, s{S_W4K}, {XBASE}')
    a(f's_lshl_b32 s{t}, s2, 3'); a(f's_lshl_b32 s{t+1}, s{S_WAVE}, 1'); a(f's_add_u32 s{S_ROW0}, s{t}, s{t+1}')
    a(f's_mul_i32 s{S_ROWO}, s{S_ROW0}, 896')
    a(f's_and_b32 s{t}, s{S_WAVE}, 1'); a(f's_lshr_b32 s{t+1}, s{S_WAVE}, 1')
    a(f's_lshl_b32 s{t+2}, s{t}, 14'); a(f's_add_u32 s{t+2}, s{t+2}, {XBASE}')
    a('v_and_b32 v201, 15, v1'); a('v_lshrrev_b32 v200, 4, v1'); a('v_lshrrev_b32 v2, 1, v201')
    for ks in range(2):
        a(f'v_add_u32 v3, {4*ks}, v200'); a('v_xor_b32 v3, v3, v2'); a('v_lshlrev_b32 v3, 4, v3')
        a('v_lshl_add_u32 v3, v201, 7, v3')
        a(f'v_add_u32 v{A_XAB+ks}, s{t+2}, v3'); a(f'v_mov_b32 v{A_XA+ks}, v{A_XAB+ks}')
    a('v_bfe_u32 v3, v1, 2, 2')
    a('v_lshlrev_b32 v202, 12, v200'); a('v_lshl_add_u32 v202, v3, 9, v202')
    a('v_and_b32 v2, 3, v1'); a('v_lshl_add_u32 v202, v2, 3, v202')
    a(f's_lshl_b32 s{t+2}, s{t+1}, 8'); a(f'v_add_u32 v202, s{t+2}, v202')
    a('v_and_b32 v2, 1, v200'); a('v_lshl_or_b32 v3, v2, 2, v3')
    for db in range(8):
        a(f'v_xor_b32 v2, {db}, v3'); a(f'v_lshl_add_u32 v{A_WA+db}, v2, 5, v202')
    a(f's_mov_b32 s{S_RX}, 0')
    a('v_cmp_gt_u32 vcc, 56, v1')
    a('v_lshrrev_b32 v200, 3, v1'); a('v_bfe_u32 v201, v1, 2, 1'); a('v_and_b32 v202, 3, v1'); a('v_lshlrev_b32 v202, 4, v202')
    a('v_mul_u32_u24 v2, 896, v201'); a('v_lshl_add_u32 v2, v200, 6, v2'); a('v_add_u32 v2, v2, v202')
    a('v_mov_b32 v3, 0x7fffff00')
    a('v_cndmask_b32 v192, v3, v2, vcc')
    a('v_lshlrev_b32 v2, 10, v200'); a('v_lshl_add_u32 v2, v201, 6, v2'); a('v_add_u32 v2, v2, v202')
    a('v_cndmask_b32 v193, v3, v2, vcc')
    a('s_waitcnt lgkmcnt(0)')
    build_srds(a)
    t = S_T
    if OPT.get('fsplit', False):
        a(f's_lshr_b32 s{t}, s{S_H}, 2'); a(f's_mul_i32 s{S_F0}, s{t}, 448')
        a(f's_and_b32 s{t}, s{S_H}, 3'); a(f's_lshl_b32 s{t+1}, s{t}, 7'); a(f's_add_u32 s{S_F0}, s{S_F0}, s{t+1}')
        a(f's_cmp_eq_u32 s{t}, 3'); a(f's_cselect_b32 s{t+1}, 32, 0'); a(f's_sub_u32 s{S_F0}, s{S_F0}, s{t+1}')
        a(f's_lshr_b32 s{S_ODD}, s{t}, 1')
    else:
        a(f's_mul_i32 s{S_F0}, s{S_H}, 112'); a(f's_mov_b32 s{S_ODD}, 0')
    Ln = a.newlabel('NON')
    a('s_cmp_lg_u32 s2, 0'); a(f's_cbranch_scc1 {Ln}')
    a(f's_memrealtime s[{t}:{t+1}]'); a('s_waitcnt lgkmcnt(0)')
    a(f's_or_b32 s{t+2}, s{t}, 1'); a(f'v_mov_b32 v2, s{t+2}')
    a(f'buffer_store_dword v2, v{V_SIG}, {sr(S_DBG)}, 0 offen sc1')
    a.label(Ln)
    stamp(a, 0)
    pro = flat(tag(A_dma_w(0) + A_dma_x(0) + A_dma_x(1), 'G0') + tag(A_dma_w(1), 'G1') + tag(A_dma_x(0) + A_dma_w(2) + A_dma_x(1), 'G2'))
    pro += [f'buffer_load_dwordx4 v[160:163], v192, {sr(S_XIN)}, s{S_ROWO} offen ;@XL',
            f'buffer_load_dwordx4 v[164:167], v192, {sr(S_XIN)}, s{S_ROWO} offen offset:448 ;@XL']
    pro += ['s_waitcnt vmcnt(@G0)', 's_barrier'] + A_reads(0)
    a(resolve_vm(pro))
    stamp(a, 1)
    if DBG[0]:
        a(f's_getreg_b32 s{S_ST}, hwreg(HW_REG_XCC_ID)'); a(f'v_mov_b32 v2, s{S_ST}'); a(f'v_mov_b32 v3, s{S_ST}')
        a(f's_lshl_b32 s{S_ST}, s2, 8'); a(f's_add_u32 s{S_ST}, s{S_ST}, {hex(WS_DBG + 19*8)}')
        a(f'buffer_store_dwordx2 v[2:3], v{V_SIG}, {sr(S_WS)}, s{S_ST} offen')
    def cap(fn):
        x = Asm(); fn(x); return [l.strip() for l in x.L]
    u_ = t + 4
    ln = ['s_waitcnt vmcnt(@XL)'] + cap(lambda x: ln_rows(x, 160, 168, 184, S_MK, S_RET, 208))
    ln += [f's_lshr_b32 s{u_}, s{S_ROW0}, 4', f's_mul_i32 s{u_}, s{u_}, 14*1024', f's_and_b32 s{u_+1}, s{S_ROW0}, 15', f's_lshl_b32 s{u_+1}, s{u_+1}, 6',
           f's_add_u32 s{u_}, s{u_}, s{u_+1}', f's_add_u32 s{u_}, s{u_}, {hex(WS_XN)}', f's_add_u32 s{u_+1}, s{u_}, 7168',
           f'buffer_store_dwordx4 v[208:211], v193, {sr(S_WS)}, s{u_} offen sc1',
           f'buffer_store_dwordx4 v[212:215], v193, {sr(S_WS)}, s{u_+1} offen sc1']
    ln1 = ln[:75]; ln2 = ln[75:]
    bs = cap(lambda x: B_setup(x, S_T + 8))
    Lv = a.newlabel('AV'); Lj = a.newlabel('AJ')
    a(f's_cmp_eq_u32 s{S_KVT}, 1'); a(f's_cbranch_scc1 {Lv}')
    pf = pfB()
    for vtype in range(2):
        if vtype: a.label(Lv)
        first = []
        first += A_kstep(0, vtype, False, False, '@G1', czero=True, extras=[(tag(A_dma_w(3) + A_dma_x(0), 'G3'), 24, 62), (bs, 0, 40)])
        first += A_kstep(1, vtype, False, False, '@G2', extras=[(tag(A_dma_w(0) + A_dma_x(1), 'G4') + tag(A_dma_w(1), 'G5'), 2, 60), (ln1, 4, 63)])
        first += A_kstep(2, vtype, False, False, '@G3', extras=[(flat(A_dma_x(0) + A_dma_w(2) + A_dma_x(1)), 2, 60), (ln2[:75], 0, 63)])
        first += A_kstep(3, vtype, True, True, '@G4', extras=[(ln2[75:], 0, 45)])
        r = resolve_vm(pro + ['MARK'] + first)
        a(r[r.index('MARK')+1:])
        if OPT.get('astamp'): stamp(a, 20)
        a(f's_mov_b32 s{S_CNT}, 1')
        Ll = a.newlabel('AL'); a.label(Ll)
        for u in range(4): a(resolve_vm(A_kstep(u, vtype, True, True, 16)))
        Lm1 = a.newlabel('AM'); Lm2 = a.newlabel('AM'); Lm3 = a.newlabel('AM')
        if OPT.get('astamp'): stamp(a, 20, S_CNT)
        a(f's_add_u32 s{S_CNT}, s{S_CNT}, 1')
        a(f's_cmp_lg_u32 s{S_WAVE}, 0'); a(f's_cbranch_scc1 {Lm2}')
        a(f's_cmp_lg_u32 s{S_CNT}, 2'); a(f's_cbranch_scc1 {Lm1}')
        a(f'v_mov_b32 v2, 0')
        a(f'buffer_load_dword v{V_NONCE}, v2, {sr(S_DBG)}, 0 offen' + (' sc1' if OPT.get('nonce_sc1') else ''))
        a.label(Lm1)
        a(f's_cmp_lg_u32 s{S_CNT}, 4'); a(f's_cbranch_scc1 {Lm2}')
        a(f's_mov_b32 s{t+5}, 0')
        a.label(Lm3)
        a(f'v_readfirstlane_b32 s{t+4}, v{V_NONCE}')
        Lm4 = a.newlabel('AM')
        a(f's_cmp_lg_u32 s{t+4}, 0'); a(f's_cbranch_scc1 {Lm4}')
        a('s_sleep 8'); a(f'v_mov_b32 v2, 0')
        a(f'buffer_load_dword v{V_NONCE}, v2, {sr(S_DBG)}, 0 offen sc1')
        a('s_waitcnt vmcnt(0)')
        a(f's_add_u32 s{t+5}, s{t+5}, 1'); a(f's_cmp_lt_u32 s{t+5}, 20000'); a(f's_cbranch_scc1 {Lm3}')
        a.label(Lm4)
        a(f's_lshr_b32 s{t+4}, s2, 4'); a(xn_flag_addr(t+4, t+4))
        a(f's_and_b32 s{t+5}, s2, 15'); a(f's_lshl_b32 s{t+5}, s{t+5}, 2'); a(f's_add_u32 s{t+4}, s{t+4}, s{t+5}')
        a(f'buffer_store_dword v{V_NONCE}, v{V_SIG}, {sr(S_WS)}, s{t+4} offen sc1')
        a(f's_cmp_lg_u32 s{S_H}, 0'); a(f's_cbranch_scc1 {Lm2}')
        a(f's_lshl_b32 s{t+4}, s{S_OWN}, 12'); a(f's_add_u32 s{t+4}, s{t+4}, {hex(WS_FLG + 0x50000)}')
        a('v_mov_b32 v2, 0')
        a(f'buffer_store_dword v2, v{V_SIG}, {sr(S_WS)}, s{t+4} offen sc1')
        a.label(Lm2)
        a(f's_cmp_lt_u32 s{S_CNT}, 6'); a(f's_cbranch_scc1 {Ll}')
        cpf = cpfB()
        kvs = [f's_mul_i32 s{S_KVO}, s{S_H}, {KH_()}', f's_add_u32 s{S_KVO}, s{S_KVO}, {hex(WS_KV)}', f's_mul_i32 s{t+4}, s{S_KT}, {8*KT_()}', f's_add_u32 s{S_KVO}, s{S_KVO}, s{t+4}',
               f's_and_b32 s{t+4}, s{S_WAVE}, 1', f's_mul_i32 s{t+4}, s{t+4}, {4*KT_()}', f's_add_u32 s{S_KVO}, s{S_KVO}, s{t+4}',
               f's_lshr_b32 s{t+4}, s{S_WAVE}, 1', f's_lshl_b32 s{t+4}, s{t+4}, {13 if vtype else 12}', f's_add_u32 s{S_KVO}, s{S_KVO}, s{t+4}']
        if vtype: kvs.append(f's_add_u32 s{S_KVO}, s{S_KVO}, 16384')
        w_ = [KT_(), 2*KT_(), 1024, 2048] if vtype else [8192, KT_(), 2*KT_(), 1024]
        for b in range(4): kvs.append(f's_mov_b32 s{S_DL+b}, {w_[b] - sum(w_[:b])}')
        xo = [f's_lshl_b32 s{t+4}, s{S_OWN}, 3', f's_add_u32 s{t+4}, s{t+4}, s{S_WAVE}', f's_mul_i32 s{t+4}, s{t+4}, 14336',
              f's_add_u32 s{S_XO}, s{t+4}, {hex(WS_XN)}']
        bias = [f's_lshl_b32 s{t+4}, s{S_F0}, 1', 'v_lshrrev_b32 v200, 4, v1', 'v_lshlrev_b32 v200, 3, v200']
        bias += [f'buffer_load_dwordx2 {vr(B_TMP+2*fb,2)}, v200, {sr(S_B1)}, s{t+4} offen offset:{32*fb} ;@BIAS' for fb in range(8)]
        sw = Asm(); sw.nlab = a.nlab; spin_wait(sw, S_FP); a.nlab = sw.nlab
        chk = ['s_waitcnt vmcnt(@POLL)'] + [x.strip() + (' ;!' if x.strip().startswith('buffer_') else '') for x in sw.L]
        NW = OPT.get('nweave', 8); BH = OPT.get('bh', 0)
        xpf = [['v_lshlrev_b32 v200, 7, v1', f's_add_u32 s{t+4}, s{S_XO}, 4096', f'buffer_load_dword v31, v200, {sr(S_WS)}, s{t+4} offen'],
               [f's_add_u32 s{t+5}, s{t+4}, s{t+6}', f'buffer_load_dword v31, v200, {sr(S_WS)}, s{t+5} offen'],
               ['v_and_b32 v201, 15, v1', 'v_lshlrev_b32 v201, 7, v201', f'v_mov_b32 v202, s{t+6}', 'v_cmp_gt_u32 vcc, 16, v1', f's_add_u32 s{t+4}, s{t+4}, 8192',
                's_nop 0', 'v_cndmask_b32 v202, v202, 0, vcc', 'v_add_u32 v201, v201, v202', f'buffer_load_dword v31, v201, {sr(S_WS)}, s{t+4} offen']]
        ex = {25: [(kvs + xo, 46, 62)],
              26: [(xn_flag_addr(S_FP, S_OWN) + [poll_issue(S_FP)[0] + ' ;@POLL'], 5, 20)],
              28: [([f's_mul_i32 s{t+6}, s{S_Q1}, 14336', f'v_and_b32 v{B_VX0}, 15, v1', f'v_lshlrev_b32 v{B_VX0}, 6, v{B_VX0}', f'v_and_b32 v{B_VX1}, 48, v1',
                   f'v_add_u32 v{B_VX0}, v{B_VX0}, v{B_VX1}', f'v_add_u32 v{B_VX1}, s{t+6}, v{B_VX0}'] + flat(pf + cpf), 0, 24)] + ([(B_dma_w(0, True), 32, 62)] if BH == 0 else []),
              29: [(tag(B_dma_xp(0), 'B0') + [bias] + B_dma(1, True), 0, 60)],
              30: [(B_dma(2, True) + (xpf if OPT.get('xpf', False) else []), 0, 60)],
              31: [([x for k in range(NW) for x in pack_store(k, 208 + 8*(k & 1), True)], 10, 63)]}
        tail = []
        for k in (21, 22, 23): tail += [f'buffer_dummy ;@A{k}']*8
        tail.append('MARK')
        for u in range(24, 32):
            tail += A_kstep(u, vtype, u <= 27, u <= 26, f'@A{min(u-3, 27)}', last=(u == 31), extras=ex.get(u, ()), head=(chk if u == 29 else ()))
            if OPT.get('astamp') and u in (27, 29): tail.append(f'STAMP{u}')
        tail.append('MARK2')
        hist = tail
        r = resolve_vm(tail)
        for x in r[r.index('MARK')+1:r.index('MARK2')]:
            if x.endswith(':'): a.raw(x)
            elif x.startswith('STAMP'): stamp(a, 26 if x == 'STAMP27' else 27)
            else: a(x)
        if vtype == 0: a(f's_branch {Lj}')
    a.label(Lj)
    stamp(a, 2)
    return hist

def pfB():
    t = S_T
    return [[f's_lshr_b32 s{t+4}, s2, 4', f's_mul_i32 s{t+4}, s{t+4}, 28', f's_mul_i32 s{t+5}, s{S_WAVE}, 7', f's_add_u32 s{t+4}, s{t+4}, s{t+5}'],
          ['v_lshrrev_b32 v200, 2, v1', 'v_min_u32 v200, 6, v200', f'v_add_u32 v200, s{t+4}, v200', 'v_and_b32 v201, 3, v1'],
          ['v_lshlrev_b32 v201, 7, v201', 'v_lshl_add_u32 v202, v200, 13, v201', f's_lshl_b32 s{t+4}, s{S_H}, 9',
           f'buffer_load_dword v31, v202, {sr(S_WQ)}, s{t+4} offen'],
          ['v_mul_u32_u24 v202, 3584, v200', 'v_add_u32 v202, v202, v201', f's_lshl_b32 s{t+4}, s{S_F0}, 1', f's_and_b32 s{t+4}, s{t+4}, 0xffffff80',
           f'buffer_load_dword v31, v202, {sr(S_W1)}, s{t+4} offen']]
def cpfB():
    t = S_T
    CPN, CP0 = (36, 0) if OPT.get('fsplit', False) else (20, 32768)
    return [[f's_lshr_b32 s{t+4}, s2, 3', f's_mul_i32 s{t+4}, s{t+4}, {CPN*128}', f's_add_u32 s{t+4}, s{t+4}, {CP0}',
             f'v_min_u32 v200, {CPN-1}, v1', 'v_lshlrev_b32 v200, 7, v200', f'v_add_u32 v200, s{t+4}, v200',
             'v_min_u32 v200, M_CODE_END-M_CODE_START-4, v200', f'global_load_dword v31, v200, s[{S_PC}:{S_PC+1}]']]

def pfD_big(a):
    t = S_T
    L = a.newlabel('PD'); L7 = a.newlabel('PD'); La = a.newlabel('PD')
    a(f's_cmp_lt_u32 s{S_I}, 6'); a(f's_cbranch_scc1 {L}')
    a('v_lshlrev_b32 v2, 7, v0')
    a(f's_mul_i32 s{t+1}, s{S_H}, {256*896}'); a(f's_mul_i32 s{t+2}, s{S_F0}, 896')
    def wo(u): a(f's_add_u32 s{t}, s{t+1}, {u*32768}'); a(f'buffer_load_dword v31, v2, {sr(S_WO)}, s{t} offen')
    def w2(off): a(f's_add_u32 s{t}, s{t+2}, {off}'); a(f'buffer_load_dword v31, v2, {sr(S_W2)}, s{t} offen')
    n6 = OPT.get('pf_n6', 6)
    a(f's_cmp_eq_u32 s{S_ROLE}, 0'); a(f's_cbranch_scc1 {La}')
    a(f's_cmp_eq_u32 s{S_I}, 7'); a(f's_cbranch_scc1 {L7}')
    for u in range(n6): wo(u)
    a(f's_branch {L}')
    a.label(L7)
    for u in range(n6, 7): wo(u)
    for k in range(3): w2(k*32768)
    a(f's_branch {L}')
    a.label(La)
    a(f's_cmp_eq_u32 s{S_I}, 6'); a(f's_cbranch_scc1 {L}')
    a('v_min_u32 v3, 16256, v2')
    a(f's_add_u32 s{t}, s{t+2}, {3*32768}'); a(f'buffer_load_dword v31, v3, {sr(S_W2)}, s{t} offen')
    a('v_add_u32 v2, M_D_START-M_CODE_START-10240, v2')
    a(f's_mul_i32 s{t}, s{S_ODD}, 13056'); a(f's_cmp_ge_u32 s{S_WAVE}, 2'); a(f's_cselect_b32 s{t}, s{t}, 0'); a(f'v_add_u32 v2, s{t}, v2')
    a('v_min_u32 v2, M_CODE_END-M_CODE_START-4, v2')
    a(f'global_load_dword v31, v2, s[{S_PC}:{S_PC+1}]')
    a.label(L)

def pfD(v, code=True):
    t = S_T
    g = [[f's_lshr_b32 s{t+9}, s2, 4', f's_lshl_b32 s{t+9}, s{t+9}, 2', f's_add_u32 s{t+9}, s{t+9}, s{S_WAVE}',
          f's_lshl_b32 s{t+10}, s{S_H}, 6', f's_add_u32 s{t+10}, s{t+10}, s{t+9}', f's_mul_i32 s{t+10}, s{t+10}, {4*896}'],
         [f'v_lshlrev_b32 v{v}, 7, v1', f'v_min_u32 v{v}, 3580, v{v}', f'buffer_load_dword v31, v{v}, {sr(S_WO)}, s{t+10} offen'],
         [f's_mul_i32 s{t+10}, s{S_H}, {112*896}', f's_mul_i32 s{t+11}, s{t+9}, {2*896}', f's_add_u32 s{t+10}, s{t+10}, s{t+11}',
          f'v_min_u32 v{v}, 1788, v{v}', f'buffer_load_dword v31, v{v}, {sr(S_W2)}, s{t+10} offen']]
    if code:
        g += [[f's_lshl_b32 s{t+9}, s{t+9}, 9',
          f'v_min_u32 v{v}, 384, v{v}', f'v_add_u32 v{v}, s{t+9}, v{v}', f'v_add_u32 v{v}, M_D_START-M_CODE_START-10240, v{v}',
          f'v_min_u32 v{v}, M_CODE_END-M_CODE_START-4, v{v}', f'global_load_dword v31, v{v}, s[{S_PC}:{S_PC+1}]']]
    return g

def pack_store(k, tb, store):
    ops = [f'v_accvgpr_read_b32 v{tb+e}, a{8*k+e}' for e in range(8)]
    ops += [f'v_cvt_pk_bf16_f32 v{PEND+4*k+e}, v{tb+2*e}, v{tb+2*e+1}' for e in range(4)]
    if store:
        st = kv_store(k)
        ops = st[:-1] + ops + st[-1:]
    return ops

def kv_store(k):
    ops = []
    if k > 0:
        b = min((k & -k).bit_length() - 1, 3)
        ops.append(f's_add_u32 s{S_KVO}, s{S_KVO}, s{S_DL+b}')
    ops.append(f'buffer_store_dwordx4 {vr(PEND+4*k)}, v{V_L16}, {sr(S_WS)}, s{S_KVO} offen {OPT.get("kvf", "sc1")} ;@KVST')
    return ops

def w_voffsets(a, dst, t):
    a(f's_lshl_b32 s{t}, s{S_WAVE}, 16'); a(f's_lshl_b32 s{t+1}, s{S_H}, 9'); a(f's_add_u32 s{t}, s{t}, s{t+1}')
    a(f's_and_b32 s{t+1}, s{S_WAVE}, 1'); a(f's_lshl_b32 s{t+1}, s{t+1}, 2')
    a('v_lshrrev_b32 v200, 5, v1'); a('v_and_b32 v201, 31, v1'); a('v_lshrrev_b32 v202, 1, v201')
    a(f'v_xor_b32 v202, s{t+1}, v202'); a('v_and_b32 v203, 1, v201')
    for i in range(4):
        a(f'v_add_u32 v2, {(2*i)&3}, v200'); a('v_xor_b32 v2, v202, v2'); a('v_lshl_add_u32 v2, v2, 1, v203')
        a('v_lshlrev_b32 v2, 4, v2'); a('v_lshl_add_u32 v2, v200, 13, v2')
        a(f'v_add_u32 v2, {2*i*8192-1024*i}, v2'); a(f'v_add_u32 v{dst+i}, s{t}, v2')

B_VW, B_V1, B_VX1, B_VX0 = A_VW, 28, 11, 10
B_WA, B_1A = 240, 248
B_XF = 160
B_WF, B_NB = 192, 8
B_TMP = 224
B_QS = 8
W1BASE = 98304

def B_setup(a, t):
    a(f's_and_b32 s{t+1}, s{S_WAVE}, 1'); a(f's_lshl_b32 s{t+1}, s{t+1}, 2')
    a(f's_mul_i32 s{t}, s{S_WAVE}, {8*3584}'); a(f's_lshl_b32 s{t+2}, s{S_F0}, 1'); a(f's_add_u32 s{t}, s{t}, s{t+2}')
    a('v_lshrrev_b32 v200, 4, v1'); a('v_and_b32 v201, 15, v1'); a('v_lshrrev_b32 v202, 1, v201')
    a(f'v_xor_b32 v202, s{t+1}, v202'); a('v_xor_b32 v202, v200, v202'); a('v_and_b32 v203, 1, v201')
    a('v_lshl_add_u32 v2, v202, 1, v203'); a('v_lshlrev_b32 v2, 4, v2')
    a('v_mul_u32_u24 v3, 3584, v200'); a('v_add_u32 v2, v2, v3')
    a(f'v_add_u32 v{B_V1}, s{t}, v2'); a(f'v_add_u32 v{B_V1+1}, {4*3584-1024}, v{B_V1}')
    a(f's_lshl_b32 s{t}, s{S_WAVE}, 1'); a(f's_sub_u32 s{S_Q1}, 7, s{t}');
    a('v_bfe_u32 v201, v1, 2, 2')
    a('v_lshl_add_u32 v202, v200, 3, v201')
    a('v_and_b32 v203, 3, v1'); a('v_lshlrev_b32 v203, 3, v203')
    a('v_and_b32 v2, 1, v200'); a('v_lshl_or_b32 v201, v2, 2, v201')
    a('v_lshl_add_u32 v204, v202, 9, v203')
    a('v_lshl_add_u32 v205, v202, 8, v203'); a(f'v_add_u32 v205, {W1BASE}, v205')
    for d in range(8):
        a(f'v_xor_b32 v2, {d}, v201')
        a(f'v_lshl_add_u32 v{B_WA+d}, v2, 5, v204')
        a(f'v_lshl_add_u32 v{B_1A+d}, v2, 5, v205')

def B_dma_w(u, ffn):
    sl = u % 4; t = S_T + 2
    g = [[f's_add_u32 m0, s{S_W4K}, {sl*16384}', f's_mov_b32 s{t}, {u*32*8192}',
          f'buffer_load_dwordx4 v{B_VW}, {sr(S_WQ)}, s{t} offen lds']]
    for i in range(1, 4): g.append([f'buffer_load_dwordx4 v{B_VW+i}, {sr(S_WQ)}, s{t} offen offset:{1024*i} lds'])
    if ffn:
        g.append([f's_add_u32 m0, s{S_W2K}, {W1BASE+sl*8192}', f's_mov_b32 s{t}, {u*32*3584}',
                  f'buffer_load_dwordx4 v{B_V1}, {sr(S_W1)}, s{t} offen lds'])
        g.append([f'buffer_load_dwordx4 v{B_V1+1}, {sr(S_W1)}, s{t} offen offset:1024 lds'])
    return tag(g, f'B{u}')

def xr(u):
    sl = u % 6
    return B_XF + sl*8 if sl < 4 else PEND + (sl-4)*8
def B_dma_xp(p):
    g = []
    t = S_T + 3
    g.append([f's_add_u32 s{t}, s{S_XO}, {2*p*1024}'])
    for k in range(2):
        for qb, v in ((0, B_VX0), (1, B_VX1)):
            g.append([f'buffer_load_dwordx4 {vr(xr(2*p+k)+4*qb)}, v{v}, {sr(S_WS)}, s{t} offen offset:{k*1024} sc1'])
    return g

def B_dma(u, ffn):
    return (B_dma_xp((u+1)//2) if (u & 1) and (u+1)//2 <= 6 else []) + B_dma_w(u, ffn)

def B_head(ffn):
    h = []
    for u in range(3): h += flat(B_dma(u, ffn))
    return h

def phaseB_begin_ext(a):
    t = S_T
    spin_wait(a, S_FP)
    a(f's_lshl_b32 s{t}, s{S_EXT}, 2'); a(f's_add_u32 s{t}, s{t}, s{S_WAVE}'); a(f's_mul_i32 s{t}, s{t}, {2*14336}')
    a(f's_add_u32 s{S_XO}, s{t}, {hex(WS_XN)}')
    a('s_barrier')
    a(resolve_vm(B_head(False)))

def phaseB_main(a, ffn, hist, nfb):
    pre = []
    NW = OPT.get('nweave', 8); NL = 16 + nfb
    if ffn:
        pre.append('s_nop 7')
        nst_pre = OPT.get('nst_pre', 6)
        for k in range(NW, NL):
            pre += pack_store(k, 208 + 8*(k & 1), False)
            if (k - NW) % 2 == 1 and NW + (k - NW)//2 < NW + nst_pre: pre += kv_store(NW + (k - NW)//2)
        nsd = NW + min(nst_pre, (NL - NW)//2)
        pre.append('s_waitcnt vmcnt(@BIAS)')
        for fb in range(nfb):
            for k in range(2):
                pre += [f'v_lshlrev_b32 v2, 16, v{B_TMP+2*fb+k}', f'v_and_b32 v3, 0xffff0000, v{B_TMP+2*fb+k}']
                for qb in range(2):
                    pre += [f'v_accvgpr_write_b32 a{128+(fb*2+qb)*4+2*k}, v2', f'v_accvgpr_write_b32 a{128+(fb*2+qb)*4+2*k+1}, v3']
    pre += ['s_waitcnt vmcnt(@B0)', 's_barrier', 'STAMP']
    nf = 16 + nfb
    steps = []
    for u in range(14):
        sl = u % 4
        for f in range(nf):
            buf = B_WF + (len(steps) % B_NB)*4
            if f < 16:
                rd = [f'ds_read_b64_tr_b16 {vr(buf+2*h,2)}, v{B_WA+(f&7)} offset:{sl*16384+2048*h+256*(f>>3)}' for h in range(2)]
                acc = f*8
            else:
                rd = [f'ds_read_b64_tr_b16 {vr(buf+2*h,2)}, v{B_1A+f-16} offset:{sl*8192+1024*h}' for h in range(2)]
                acc = 128 + (f-16)*8
            mf = []
            for qb in range(2):
                c = '0' if (u == 0 and f < 16) else ar(acc+4*qb)
                mf.append(f'{MF} {ar(acc+4*qb)}, {vr(buf)}, {vr(xr(u)+4*qb)}, {c}')
            steps.append(Step(mf, rd))
    LA = OPT.get('bd_la', 6)
    bp = {}
    for u in range(13):
        bp[u] = (u+1)*nf - LA - 1
        steps[bp[u]].pre += [f's_waitcnt vmcnt(@B{u+1})', 's_barrier']
        for f in range(nf): steps[(u+1)*nf+f].gate = bp[u]
    SIGU = OPT.get('sigu', 10)
    if ffn:
        steps[bp[SIGU]].pre.insert(0, 's_waitcnt vmcnt(@KVST)')
    B2 = OPT.get('b2bar', True)
    if B2:
        for u in range(1, 11): steps[u*nf+1].pre += ['s_barrier']
    sc = Sched(steps, LA=LA, wait_group=OPT.get('bd_wg', 2))
    sc.place(B_dma(3, ffn), 0, bp[0]-2)
    for u in range(1, 11):
        if B2: sc.place(B_dma(u+3, ffn), u*nf+1, (u+1)*nf-1)
        else: sc.place(B_dma(u+3, ffn), bp[u], min(bp[u+1]-2, bp[u]+OPT.get('b_dw', 30)))
    if ffn:
        st_ = []
        for k in range(nsd, 32):
            st_ += kv_store(k) if k < NL else pack_store(k, B_TMP + 8*(k & 1), True)
        sc.place(st_, 0, bp[OPT.get('st_end', 7)])
        sc.place([[f's_lshr_b32 s{S_T+7}, s2, 4', f's_lshl_b32 s{S_T+7}, s{S_T+7}, 2', f's_add_u32 s{S_T+7}, s{S_T+7}, s{S_FKV}',
                   f'buffer_store_dword v{V_NONCE}, v{V_SIG}, {sr(S_WS)}, s{S_T+7} offen sc1']], bp[SIGU], bp[SIGU]+3)
    pl = [f's_mov_b32 s{S_FP}, s{S_FKV}'] + poll_issue(S_FP)
    sc.place([pl], len(steps)-OPT.get('pollat', 6), len(steps)-OPT.get('pollat', 6)+4)
    print('phaseB overflow', sc.overflow(0, len(steps)-1))
    body = resolve_vm(hist + ['MARKB'] + pre + sc.pre + sc.text(0, len(steps)-1))
    for x in body[body.index('MARKB')+1:]:
        if x == 'STAMP': stamp(a, 3 if ffn else 6)
        else: a(x)
    stamp(a, 4 if ffn else 7)

def qx_base(a, d):
    a(f's_lshl_b32 s{d}, s{S_PAIR}, 16'); a(f's_lshl_b32 s{d+1}, s{S_WAVE}, 14'); a(f's_add_u32 s{d}, s{d}, s{d+1}')
    a(f's_add_u32 s{d}, s{d}, {hex(WS_QX)}')

def phaseB_epi(a):
    t = S_T
    a('s_nop 3')
    qx_base(a, t)
    a(f's_cmp_eq_u32 s{S_PUBQ}, 0'); a(f's_cselect_b32 s{t}, 0x70000000, s{t}')
    k = 0
    for s in range(8):
        for qb in range(2):
            tb = V_QO + (s*2+qb)*4
            tm = B_TMP + 8*(k & 1)
            for half in range(2):
                src = ((2*s+half)*2+qb)*4
                for e in range(4): a(f'v_accvgpr_read_b32 v{tm+4*half+e}, a{src+e}')
            for e in range(0, 8, 2): a(f'v_pk_mul_f32 {vr(tm+e,2)}, {vr(tm+e,2)}, {vr(B_QS,2)}')
            for e in range(4): a(f'v_cvt_pk_bf16_f32 v{tb+e}, v{tm+2*e}, v{tm+2*e+1}')
            if k % 4 == 0 and k: a(f's_add_u32 s{t}, s{t}, 4096')
            a(f'buffer_store_dwordx4 {vr(tb)}, v{V_L16}, {sr(S_WS)}, s{t} offen offset:{1024*(k%4)} sc1')
            k += 1

def phaseB_epi_h(a, nfb):
    for ks in range((nfb+1)//2):
        for qb in range(2):
            d = A_H + (ks*2+qb)*4
            for half in range(2):
                fb = 2*ks + half
                if fb >= nfb:
                    a(f'v_accvgpr_write_b32 a{d+2}, 0'); a(f'v_accvgpr_write_b32 a{d+3}, 0'); continue
                src = 128 + (fb*2+qb)*4
                tm = B_TMP + 8*half
                for e in range(4): a(f'v_accvgpr_read_b32 v{tm+e}, a{src+e}')
                for e in range(4): a(f'v_max_f32 v{tm+e}, 0, v{tm+e}')
                for e in range(0, 4, 2): a(f'v_pk_mul_f32 {vr(tm+e,2)}, {vr(tm+e,2)}, {vr(tm+e,2)}')
                for e in range(2): a(f'v_cvt_pk_bf16_f32 v{tm+4+e}, v{tm+2*e}, v{tm+2*e+1}')
                for e in range(2): a(f'v_accvgpr_write_b32 a{d+2*half+e}, v{tm+4+e}')

def fetch_qx(a):
    t = S_T
    a(f's_lshl_b32 s{S_FP}, s{S_PAIR}, 8'); a(f's_add_u32 s{S_FP}, s{S_FP}, {hex(WS_FLG + 0x30000)}')
    a(poll_issue(S_FP))
    a('s_waitcnt vmcnt(0)')
    spin_wait(a, S_FP, mask=1)
    a('s_barrier')
    qx_base(a, t)
    for k in range(16):
        if k % 4 == 0 and k: a(f's_add_u32 s{t}, s{t}, 4096')
        a(f'buffer_load_dwordx4 {ar(A_QX+4*k)}, v{V_L16}, {sr(S_WS)}, s{t} offen offset:{1024*(k%4)} sc1')

C_KA, C_VA, C_VD, C_DV, C_DV0, C_TM, C_NINF, C_ONE = 8, 9, 10, 11, 12, 13, 14, 16
C_BP16, C_BP32 = 20, 21
C_T = 22
C_S = [32, 48]
C_P, C_NM, C_L = 64, 72, 80
C_F, C_NB = 88, 8
C_MRG = 192

def C_dma(kind, m0expr):
    so = S_KO if kind == 'K' else S_VO
    g = [[m0expr, f's_add_u32 s{so}, s{so}, {KT_()}', f'buffer_load_dwordx4 v{C_VD}, {sr(S_WS)}, s{so} offen sc1 lds']]
    for i in range(1, 4): g.append([f'buffer_load_dwordx4 v{C_VD}, {sr(S_WS)}, s{so} offen offset:{1024*i} sc1 lds'])
    return g

def mask_ops(S, qb):
    ops = []
    for kb in range(2):
        for r in range(4): ops.append(f'v_cmp_gt_i32 s[{S_MK+2*r}:{S_MK+2*r+1}], {16*kb+r}, v{C_DV}')
        for r in range(4):
            reg = S + (kb*2+qb)*4 + r
            ops.append(f'v_cndmask_b32 v{reg}, v{reg}, v{C_NINF}, s[{S_MK+2*r}:{S_MK+2*r+1}]')
    return ops

def max_ops(S, half=False):
    r = [S + (kb*2+1)*4 + e for kb in range(2) for e in range(4)] if half else list(range(S, S+16))
    ops = [f'v_max3_f32 v{C_TM}, v{r[0]}, v{r[1]}, v{r[2]}']
    for i in range(3, len(r)-1, 2): ops.append(f'v_max3_f32 v{C_TM}, v{C_TM}, v{r[i]}, v{r[i+1]}')
    ops.append(f'v_max_f32 v{C_TM}, v{C_TM}, v{r[-1]}')
    return ops

def rowmax(a, S, qb, d):
    r = [S + (kb*2+qb)*4 + e for kb in range(2) for e in range(4)]
    a(f'v_max3_f32 v{d}, v{r[0]}, v{r[1]}, v{r[2]}')
    a(f'v_max3_f32 v{d}, v{d}, v{r[3]}, v{r[4]}')
    a(f'v_max3_f32 v{d}, v{d}, v{r[5]}, v{r[6]}')
    a(f'v_max_f32 v{d}, v{d}, v{r[7]}')
    for bp in (C_BP16, C_BP32):
        a(f'ds_bpermute_b32 v{C_T+7}, v{bp}, v{d}')
        a('s_waitcnt lgkmcnt(0)')
        a(f'v_max_f32 v{d}, v{d}, v{C_T+7}')

def rare_path(a, S, first):
    a('s_nop 7')
    for qb in range(2):
        d = C_T + qb
        rowmax(a, S, qb, d)
        if not first: a(f'v_max_f32 v{d}, 0, v{d}')
        for kb in range(2):
            for e in range(4):
                r = S + (kb*2+qb)*4 + e
                a(f'v_sub_f32 v{r}, v{r}, v{d}')
        for e in range(4): a(f'v_sub_f32 v{C_NM+4*qb+e}, v{C_NM+4*qb+e}, v{d}')
        if not first:
            al = C_T + 2 + qb
            a(f'v_exp_f32 v{al}, -v{d}')
            a('s_nop 0')
            for e in range(4): a(f'v_mul_f32 v{C_L+4*qb+e}, v{C_L+4*qb+e}, v{al}')
            for db in range(16):
                o = (db*2+qb)*4
                for e in range(3): a(f'v_accvgpr_read_b32 v{C_T+4+e}, a{o+e}')
                a(f'v_accvgpr_read_b32 v2, a{o+3}')
                for e in range(3): a(f'v_mul_f32 v{C_T+4+e}, v{C_T+4+e}, v{al}')
                a(f'v_mul_f32 v2, v2, v{al}')
                for e in range(3): a(f'v_accvgpr_write_b32 a{o+e}, v{C_T+4+e}')
                a(f'v_accvgpr_write_b32 a{o+3}, v2')
    a('s_nop 1')

def softmax_ops(S, qbs=(0, 1)):
    ops = []
    for qb in qbs:
        for kb in range(2):
            b = S + (kb*2+qb)*4
            for e in range(4): ops.append(f'v_exp_f32 v{b+e}, v{b+e}')
        for kb in range(2):
            b = S + (kb*2+qb)*4
            for e in range(2): ops.append(f'v_cvt_pk_bf16_f32 v{C_P+4*qb+2*kb+e}, v{b+2*e}, v{b+2*e+1}')
    return ops

def phaseC_begin(a, part=3):
    t = S_T
    lst = [('K', 0), ('K', 1), ('V', 0), ('K', 2), ('V', 1), ('K', 3)]
    if part & 1:
        a('s_barrier')
        a(f's_mul_i32 s{t}, s{S_H}, {KH_()}'); a(f's_mul_i32 s{t+1}, s{S_TS}, {KT_()}'); a(f's_add_u32 s{S_KO}, s{t}, s{t+1}')
        a(f's_add_u32 s{S_KO}, s{S_KO}, {hex(WS_KV - KT_())}')
        a(f's_add_u32 s{S_VO}, s{S_KO}, 16384')
        a(f'v_add_u32 v{C_VD}, s{S_W4K}, v{V_L16}')
    for kind, sl in (lst[:3] if part & 1 else []) + (lst[3:] if part & 2 else []):
        a(flat(C_dma(kind, f's_add_u32 m0, s{S_W4K}, {(0 if kind=="K" else 65536) + sl*16384}')))

def phaseC(a, own, rl, after_first_wait=None, tail_extra=None):
    t = S_T
    def AQ(i): return vr(V_QO+i) if own else ar(A_QX+i)
    NBUF = C_NB
    a(f's_mov_b32 s{S_PB}, s{S_W4K}'); a(f's_xor_b32 s{S_PO}, s{S_PB}, 0x8000')
    a(f'v_mov_b32 v{C_KA}, v{V_L16}'); a(f'v_add_u32 v{C_VA}, 0x18000, v{V_L16}')
    if own:
        a('v_and_b32 v2, 15, v1'); a('v_lshrrev_b32 v3, 4, v1'); a('v_lshlrev_b32 v3, 2, v3'); a(f'v_sub_u32 v{C_DV0}, v2, v3')
        a(f's_lshl_b32 s{t}, s{S_WAVE}, 4'); a(f'v_add_u32 v{C_DV0}, s{t}, v{C_DV0}')
        a(f's_sub_u32 s{t}, s{S_N}, 4'); a(f's_lshl_b32 s{t}, s{t}, 5')
        a(f'v_add_u32 v{C_DV}, s{t}, v{C_DV0}')
        a(f's_lshl_b32 s{S_RB}, s{S_Q1}, 4'); a(f's_sub_u32 s{S_RB}, s{S_RB}, 64')
        a(f'v_mov_b32 v{C_NINF}, 0xff800000')
    for e in range(4): a(f'v_mov_b32 v{C_ONE+e}, 0x3f803f80')
    a(f'v_xor_b32 v{C_BP16}, 16, v1'); a(f'v_lshlrev_b32 v{C_BP16}, 2, v{C_BP16}')
    a(f'v_xor_b32 v{C_BP32}, 32, v1'); a(f'v_lshlrev_b32 v{C_BP32}, 2, v{C_BP32}')
    for e in range(8): a(f'v_mov_b32 v{C_NM+e}, {f32(OPT.get("nm0", -8.0))}'); a(f'v_mov_b32 v{C_L+e}, 0')
    NZ = OPT.get('nz', 40)
    for r in range(128-NZ): a(f'v_accvgpr_write_b32 a{r}, 0')
    if own: phaseC_begin(a, 2)
    if own:
        Lw = a.newlabel('FW'); Lw2 = a.newlabel('FW')
        a(f's_cmp_eq_u32 s{S_HASX}, 0'); a(f's_cbranch_scc1 {Lw}')
        a('s_waitcnt vmcnt(29)'); a(f's_branch {Lw2}')
        a.label(Lw); a('s_waitcnt vmcnt(12)'); a.label(Lw2)
    else:
        fetch_qx(a)
        phaseC_begin(a, 2)
        a('s_waitcnt vmcnt(12)')
    a('s_barrier')
    if after_first_wait: after_first_wait(a)
    n = 10
    NM2, NM3, NM4 = 7, 10, 0
    steps = []; start = {}; h2s = {}
    def hf(j): return own and j >= n-2
    LV = OPT.get('lvalu', False)
    cnt = [0]
    def nbuf():
        b = C_F + (cnt[0] % OPT.get('c_nb', 8))*4; cnt[0] += 1; return b
    def ksteps(j, cinit):
        S = C_S[j & 1]
        for kb in range(2):
            for s in range(8):
                buf = nbuf()
                rd = f'ds_read_b128 {vr(buf)}, v{C_KA} offset:{(j&1)*16384 + (kb*8+s)*1024}'
                pv = f'v_xor_b32 v{C_KA}, 0x8000, v{C_KA}' if (kb == 0 and s == 0 and (j & 1) == 0 and j > 0) else None
                mf = []
                for qb in ((1,) if hf(j) else (0, 1)):
                    d = vr(S + (kb*2+qb)*4)
                    c = d if s > 0 else (cinit if cinit is not None else vr(C_NM+4*qb))
                    mf.append(f'{MF} {d}, {vr(buf)}, {AQ((s*2+qb)*4)}, {c}')
                steps.append(Step(mf, [rd], prev=pv))
                if hf(j): steps[-1].wg = 2
    def vsteps(j):
        for db in range(16):
            buf = nbuf()
            rd = f'ds_read_b128 {vr(buf)}, v{C_VA} offset:{(j&1)*16384 + db*1024}'
            pv = f'v_xor_b32 v{C_VA}, 0x8000, v{C_VA}' if (db == 0 and (j & 1) == 0) else None
            qbs = (1,) if hf(j) else (0, 1)
            mf = [f'{MF} {ar((db*2+qb)*4)}, {vr(buf)}, {vr(C_P+4*qb)}, {ar((db*2+qb)*4)}' for qb in qbs]
            if db == 15 and not LV:
                mf += [f'{MF} {vr(C_L+4*qb)}, {vr(C_ONE)}, {vr(C_P+4*qb)}, {vr(C_L+4*qb)}' for qb in qbs]
            steps.append(Step(mf, [rd], prev=pv))
            if hf(j): steps[-1].wg = 2
    start[-1] = 0
    ksteps(0, None)
    for j in range(n):
        start[j] = len(steps)
        if j < n-1: ksteps(j+1, None)
        h2s[j] = len(steps)
        vsteps(j)
        tail = j - (n-6)
        vm = {0: 12, 1: 12, 2: 8, 3: (4 + NM2 if own else 4), 4: (NM2 + NM3 if own else 0)}.get(max(tail, 0), None)
        if vm is not None: steps[h2s[j]+2].pre += [f's_waitcnt vmcnt({vm})', 's_barrier']
        if j == n-1: steps[h2s[j]].block += softmax_ops(C_S[j & 1], (1,) if hf(j) else (0, 1)) + ['s_nop 1']
    start[n] = len(steps)
    sc = Sched(steps, LA=OPT.get('c_la', 7), wait_group=OPT.get('c_wg', 4), wait_first=True)
    for j in range(n):
        p = j & 1; h2 = h2s[j]; end = start[j+1] - 1; tail = j - (n-6)
        if j < n-1 and not hf(j+1):
            S = C_S[p]
            regs = [S + (kb*2+qb)*4 + e for qb in range(2) for kb in range(2) for e in range(4)]
            for k in range(16):
                sc.put(start[j]+k, 0, f'v_exp_f32 v{regs[k]}, v{regs[k]}')
                if k & 1: sc.put(start[j]+k, 1, f'v_cvt_pk_bf16_f32 v{C_P+k//2}, v{regs[k-1]}, v{regs[k]}')
            adds = [f'v_add_f32 v{C_L+4*(k//8)}, v{C_L+4*(k//8)}, v{regs[k]}' for k in range(16)] if LV else []
        elif j < n-1:
            S = C_S[p]
            regs = [S + (kb*2+qb)*4 + e for qb in ((1,) if hf(j) else (0, 1)) for kb in range(2) for e in range(4)]
            o = []
            for k in range(len(regs)):
                o.append(f'v_exp_f32 v{regs[k]}, v{regs[k]}')
                if k >= 2 and k % 2 == 0: o.append(f'v_cvt_pk_bf16_f32 v{C_P+(4 if hf(j) else 0)+(k-2)//2}, v{regs[k-2]}, v{regs[k-1]}')
            o += ['s_nop 0', f'v_cvt_pk_bf16_f32 v{C_P+7}, v{regs[-2]}, v{regs[-1]}']
            sc.place(o, start[j], h2-3)
            adds = [f'v_add_f32 v{C_L+(4 if hf(j) else 4*(k//8))}, v{C_L+(4 if hf(j) else 4*(k//8))}, v{regs[k]}' for k in range(len(regs))] if LV else []
        else:
            S = C_S[p]
            regs = [S + (kb*2+qb)*4 + e for qb in ((1,) if hf(j) else (0, 1)) for kb in range(2) for e in range(4)]
            adds = [f'v_add_f32 v{C_L+(4 if hf(j) else 4*(k//8))}, v{C_L+(4 if hf(j) else 4*(k//8))}, v{regs[k]}' for k in range(len(regs))] if LV else []
        dv = C_dma('V', f's_add_u32 m0, s{S_PO if p==0 else S_PB}, {65536 + (16384 if p==0 else 0)}') if tail <= 2 else None
        dk = C_dma('K', f's_add_u32 m0, s{S_PB if p==0 else S_PO}, {16384 if p==0 else 0}') if tail <= 0 else None
        if dv:
            dv = flat(dv)
            sc.put(h2, 0, dv[0]); sc.put(h2, 0, dv[1])
            for x, st_ in zip(dv[2:], (2, 4, 5, 6)): sc.put(h2+st_, 0, x)
        else: sc.put(h2, 0, 's_nop 0')
        if dk:
            dk = flat(dk)
            sc.put(h2+7, 0, dk[0]); sc.put(h2+7, 0, dk[1])
            for x, st_ in zip(dk[2:], (8, 9, 10, 12)): sc.put(h2+st_, 0, x)
        if own:
            ml = merge_loads()
            if tail == 2: sc.place(ml[:NM2], h2+7, end)
            if tail == 3: sc.place(ml[NM2:NM2+NM3], h2+2, end)
            if tail == 2: sc.place(D_setup_v(), start[j], h2-1)
            if tail == 3: sc.place(D_setup_s(), h2+2, end)
            d0 = D_dma(0)
            if tail == 4: sc.place(d0[:6], h2+2, end)
            if tail == 5: sc.place(d0[6:], h2, end)
        if p == 1:
            e = [f's_xor_b32 s{S_PB}, s{S_PB}, 0x8000', f's_xor_b32 s{S_PO}, s{S_PO}, 0x8000']
            if j < 4: e += [f's_sub_u32 s{S_CNT}, s{S_CNT}, 2', f's_cmp_lg_u32 s{S_CNT}, 0']
            sc.place(e, end-2, end)
        if j < n-1:
            Sn = C_S[p ^ 1]; ops = []
            if own and tail == 1: ops += [f'v_mov_b32 v{C_DV}, v{C_DV0}'] + mask_ops(Sn, 0)
            if own and tail == 2: ops += [f'v_subrev_u32 v{C_DV}, 32, v{C_DV0}'] + mask_ops(Sn, 0)
            if own and tail == 3: ops += [f'v_add_u32 v{C_DV}, s{S_RB}, v{C_DV0}'] + mask_ops(Sn, 1)
            if own and tail == 4: ops += [f'v_subrev_u32 v{C_DV}, 32, v{C_DV}'] + mask_ops(Sn, 1)
            if hf(j+1): ops = [f'v_mov_b32 v{Sn+kb*8+e}, 0' for kb in range(2) for e in range(4)] + ops
            ops += max_ops(Sn, hf(j+1)) + [f'v_cmp_lt_f32 vcc, s{S_THR}, v{C_TM}']
            sc.place(ops, h2+(5 if hf(j) else 3), end)
        if adds:
            if j < n-1 and not hf(j+1):
                k0 = 0
                for st_ in range(2, 16, 2):
                    g = sc.gidx[start[j]+st_] + 1
                    if len(sc.gaps[g]) == 1: sc.put(start[j]+st_, 1, adds[k0]); k0 += 1
                sc.place(adds[k0:], h2, end)
            else: sc.place(adds, h2, end)
    if NZ: sc.place([f'v_accvgpr_write_b32 a{r}, 0' for r in range(128-NZ, 128)], 0, 15)
    def text(j0, j1): return sc.text(start[j0], start[j1+1]-1)
    def emit_iter(j):
        tx = resolve_vm(text(j, j))
        if own and j == n-6:
            a(f's_lshl_b32 s{S_FP}, s{S_PAIR}, 8'); a(f's_add_u32 s{S_FP}, s{S_FP}, {hex(WS_FLG + 0x20000)}')
            a(poll_issue(S_FP))
        if own and j == n-4:
            L = a.newlabel('NMC')
            for x in merge_setup(): a(x.split('\n'))
            a(f's_cmp_eq_u32 s{S_TS}, 0'); a(f's_cbranch_scc1 {L}')
            a('s_waitcnt vmcnt(12)')
            spin_wait(a, S_FP, mask=1)
            a.label(L)
        ab = OPT.get('ablate', '')
        if 'dma' in ab: tx = [x for x in tx if not (x.startswith('buffer_load') or 'vmcnt' in x)]
        if 'bar' in ab: tx = [x for x in tx if not x.startswith('s_barrier')]
        if 'exp' in ab: tx = [x for x in tx if not x.startswith('v_exp')]
        if 'max' in ab: tx = [x for x in tx if not x.startswith('v_max')]
        if 'read' in ab: tx = [x for x in tx if not (x.startswith('ds_read') or 'lgkmcnt' in x)]
        a(tx)
        if j < n-1 and not ab:
            Lb = a.newlabel('CB'); Ls = a.newlabel('CS')
            a(f's_cbranch_vccnz {Ls}')
            a.label(Lb)
            rl['stubs'].append((Ls, Lb, (j&1)^1))
    assert text(0, 1) == text(2, 3), 'not periodic'
    print('phaseC overflow per pair', sc.overflow(start[2], start[4]-1))
    if own: stamp(a, 14)
    a(sc.pre)
    a(text(-1, -1))
    if own: stamp(a, 15)
    if own:
        Lx = a.newlabel('FX')
        a(f's_cmp_eq_u32 s{S_HASX}, 0'); a(f's_cbranch_scc1 {Lx}')
        a('s_waitcnt vmcnt(12)')
        a.label(Lx)
    a('s_barrier')
    if own: publish_flag(a)
    a(flat(C_dma('V', f's_add_u32 m0, s{S_W4K}, {65536+2*16384}') + C_dma('K', f's_mov_b32 m0, s{S_W4K}')))
    if own: a(mask_ops(C_S[0], 0))
    S0 = C_S[0]
    for qb in range(2):
        r = [S0 + (kb*2+qb)*4 + e for kb in range(2) for e in range(4)]
        d = C_T + qb
        a(f'v_max3_f32 v{d}, v{r[0]}, v{r[1]}, v{r[2]}'); a(f'v_max3_f32 v{d}, v{d}, v{r[3]}, v{r[4]}')
        a(f'v_max3_f32 v{d}, v{d}, v{r[5]}, v{r[6]}'); a(f'v_max_f32 v{d}, v{d}, v{r[7]}')
    a(f'v_max_f32 v{C_T}, abs(v{C_T}), abs(v{C_T+1})')
    a(f'v_cmp_nge_f32 vcc, s{S_THR}, v{C_T}')
    Lb = a.newlabel('CB'); Ls = a.newlabel('CS')
    a(f's_cbranch_vccnz {Ls}')
    a.label(Lb)
    rl['stubs'].append((Ls, Lb, 'first'))
    if own: stamp(a, 16)
    Ltail4 = a.newlabel('CT4'); Ltail = a.newlabel('CT6'); Lloop = a.newlabel('CL')
    if own:
        a(f's_cmp_eq_u32 s{S_N}, 4'); a(f's_cbranch_scc1 {Ltail4}')
    a(f's_sub_u32 s{S_CNT}, s{S_N}, 6')
    a(f's_cmp_eq_u32 s{S_CNT}, 0'); a(f's_cbranch_scc1 {Ltail}')
    a.label(Lloop)
    emit_iter(2); emit_iter(3)
    a(f's_cbranch_scc1 {Lloop}')
    a.label(Ltail)
    if own: stamp(a, 17)
    emit_iter(4); emit_iter(5)
    if own: a.label(Ltail4)
    for j in range(6, 10): emit_iter(j)

def rare_subs(a, rl):
    for (Ls, Lb, p) in rl['stubs']:
        a.label(Ls)
        a(f's_cselect_b32 s{S_T+8}, 1, 0')
        a(f's_getpc_b64 s[{S_RET}:{S_RET+1}]')
        Lp = a.newlabel('CP'); a.label(Lp)
        a(f's_sub_u32 s{S_RET}, s{S_RET}, {Lp}-{Lb}'); a(f's_subb_u32 s{S_RET+1}, s{S_RET+1}, 0')
        a(f's_branch {rl[p]}')
    a.label(rl['first'])
    rare_path(a, C_S[0], True)
    a(f's_setpc_b64 s[{S_RET}:{S_RET+1}]')
    for p in range(2):
        a.label(rl[p])
        rare_path(a, C_S[p], False)
        a(f's_cmp_lg_u32 s{S_T+8}, 0')
        a(f's_setpc_b64 s[{S_RET}:{S_RET+1}]')

def op_base(a, d):
    a(f's_mul_i32 s{d}, s{S_PAIR}, {OP_PAIR}'); a(f's_mul_i32 s{d+1}, s{S_WAVE}, {OP_WAVE}')
    a(f's_add_u32 s{d}, s{d}, s{d+1}'); a(f's_add_u32 s{d}, s{d}, {hex(WS_OP)}')

def l_reduce(a):
    if not OPT.get('lvalu', False): return
    for bp in (C_BP16, C_BP32):
        for qb in range(2): a(f'ds_bpermute_b32 v{C_L+4*qb+1}, v{bp}, v{C_L+4*qb}')
        a('s_waitcnt lgkmcnt(0)')
        for qb in range(2): a(f'v_add_f32 v{C_L+4*qb}, v{C_L+4*qb}, v{C_L+4*qb+1}')

def publish_stores(a):
    t = S_T
    a('s_nop 7')
    l_reduce(a)
    op_base(a, t)
    a(f's_add_u32 s{t+1}, s{t}, 32768')
    a(f'v_mov_b32 v{C_T}, v{C_NM}'); a(f'v_mov_b32 v{C_T+1}, v{C_NM+4}'); a(f'v_mov_b32 v{C_T+2}, v{C_L}'); a(f'v_mov_b32 v{C_T+3}, v{C_L+4}')
    a(f'buffer_store_dwordx4 {vr(C_T)}, v{V_L16}, {sr(S_WS)}, s{t+1} offen sc1')
    for k in range(16):
        if k % 4 == 0 and k: a(f's_add_u32 s{t}, s{t}, 4096')
        tb = 32 + 16*(k & 1)
        for e in range(8): a(f'v_accvgpr_read_b32 v{tb+e}, a{8*k+e}')
        for e in range(4): a(f'v_cvt_pk_bf16_f32 v{tb+8+e}, v{tb+2*e}, v{tb+2*e+1}')
        a(f'buffer_store_dwordx4 {vr(tb+8)}, v{V_L16}, {sr(S_WS)}, s{t} offen offset:{1024*(k%4)} sc1')
    a('s_nop 1')

def publish_flag(a):
    L = a.newlabel('PF')
    a(f's_cmp_eq_u32 s{S_HASX}, 0'); a(f's_cbranch_scc1 {L}')
    a(f's_lshl_b32 s{S_T}, s{S_PAIR}, 8'); a(f's_add_u32 s{S_T}, s{S_T}, {hex(WS_FLG + 0x20000)}')
    a(f'buffer_store_dword v{V_NONCE}, v{V_SIG}, {sr(S_WS)}, s{S_T} offen sc1')
    a.label(L)

D_CTX = 32
D_WF, D_NB = 176, 8
D_ACC = 128
D_PK = 160
D_VO = 120
D_RA, D_RB = 20, 24
D_ST1 = 28
DSLOT = 49152
S_MB = 71
C_ML = 124

def merge_setup():
    t = S_T + 4
    return [f's_mul_i32 s{S_MB}, s{S_PAIR}, {OP_PAIR}', f's_mul_i32 s{t}, s{S_WAVE}, {OP_WAVE}',
            f's_add_u32 s{S_MB}, s{S_MB}, s{t}', f's_add_u32 s{S_MB}, s{S_MB}, {hex(WS_OP)}',
            f's_cmp_eq_u32 s{S_TS}, 0\ns_cselect_b32 s{S_MB}, 0x70000000, s{S_MB}']

def merge_loads():
    t = S_T + 4
    g = [[f's_add_u32 s{t}, s{S_MB}, 32768', f'buffer_load_dwordx4 {vr(C_ML)}, v{V_L16}, {sr(S_WS)}, s{t} offen sc1']]
    for k in range(16):
        pre = [f's_add_u32 s{S_MB}, s{S_MB}, 4096'] if (k % 4 == 0 and k) else []
        g.append(pre + [f'buffer_load_dwordx4 {vr(C_MRG+4*k)}, v{V_L16}, {sr(S_WS)}, s{S_MB} offen offset:{1024*(k%4)} sc1'])
    return g

def D_setup_v(): return D_setup()[:12]
def D_setup_s(): return D_setup()[12:]
def D_setup():
    t = S_T + 5
    r = ['v_lshrrev_b32 v2, 3, v1', 'v_mul_u32_u24 v3, 896, v2', 'v_bfe_u32 v2, v1, 4, 2', f'v_bfe_u32 v{D_VO}, v1, 1, 2', f'v_xor_b32 v2, v2, v{D_VO}',
         f'v_and_b32 v{D_VO}, 1, v1', f'v_lshl_add_u32 v2, v2, 1, v{D_VO}', 'v_lshl_add_u32 v3, v2, 4, v3']
    r += [f'v_add_u32 v{D_VO+i}, {i*(8*896-1024)}, v3' for i in range(4)]
    r += [f's_lshl_b32 s{t}, s{S_H}, 8', f's_lshl_b32 s{t+1}, s{S_WAVE}, 6', f's_add_u32 s{t}, s{t}, s{t+1}', f's_mul_i32 s{S_DO}, s{t}, 896',
          f's_lshl_b32 s{t+1}, s{S_WAVE}, 5', f's_add_u32 s{t}, s{S_F0}, s{t+1}', f's_mul_i32 s{S_D2}, s{t}, 896']
    return r

def finalize(a):
    t = S_T
    Lno = a.newlabel('NOMRG'); Ldone = a.newlabel('FIN')
    l_reduce(a)
    a(f's_cmp_lg_u32 s{S_TS}, 0'); a(f's_cbranch_scc0 {Lno}')
    a('s_waitcnt vmcnt(24)')
    a(f's_mov_b32 s{t}, 0xffff0000')
    for qb in range(2):
        nm_a = C_NM + 4*qb; nm_b = C_ML + qb; l_a = C_L + 4*qb; l_b = C_ML + 2 + qb
        sa = 8 + 2*qb; sb = 16 + 2*qb
        a(f'v_min_f32 v2, v{nm_a}, v{nm_b}')
        a(f'v_sub_f32 v3, v2, v{nm_a}'); a(f'v_exp_f32 v{sa}, v3')
        a(f'v_sub_f32 v3, v2, v{nm_b}'); a(f'v_exp_f32 v{sb}, v3')
        a('s_nop 0')
        a(f'v_mul_f32 v2, v{sa}, v{l_a}'); a(f'v_fmac_f32 v2, v{sb}, v{l_b}')
        a('v_rcp_f32 v2, v2'); a('s_nop 0')
        a(f'v_mul_f32 v{sa}, v{sa}, v2'); a(f'v_mul_f32 v{sb}, v{sb}, v2')
        a(f'v_mov_b32 v{sa+1}, v{sa}'); a(f'v_mov_b32 v{sb+1}, v{sb}')
    k = 0
    for s in range(8):
        for qb in range(2):
            for half in range(2):
                o = ((2*s+half)*2+qb)*4; tb = 12 if k & 1 else 20; k += 1
                for e in range(4): a(f'v_accvgpr_read_b32 v{tb+e}, a{o+e}')
                for e in range(2):
                    a(f'v_lshlrev_b32 v{24+2*e}, 16, v{C_MRG+o//2+e}'); a(f'v_and_b32 v{25+2*e}, s{t}, v{C_MRG+o//2+e}')
                for e in (0, 2): a(f'v_pk_mul_f32 {vr(tb+e,2)}, {vr(tb+e,2)}, {vr(8+2*qb,2)}')
                for e in (0, 2): a(f'v_pk_fma_f32 {vr(tb+e,2)}, {vr(24+e,2)}, {vr(16+2*qb,2)}, {vr(tb+e,2)}')
                for e in range(2): a(f'v_cvt_pk_bf16_f32 v{D_CTX+(s*2+qb)*4+2*half+e}, v{tb+2*e}, v{tb+2*e+1}')
    a(f's_branch {Ldone}')
    a.label(Lno)
    for qb in range(2): a(f'v_rcp_f32 v{8+2*qb}, v{C_L+4*qb}')
    a('s_nop 0')
    for qb in range(2): a(f'v_mov_b32 v{9+2*qb}, v{8+2*qb}')
    for s in range(8):
        for qb in range(2):
            for half in range(2):
                o = ((2*s+half)*2+qb)*4; tb = 12 if k & 1 else 20; k += 1
                for e in range(4): a(f'v_accvgpr_read_b32 v{tb+e}, a{o+e}')
                for e in (0, 2): a(f'v_pk_mul_f32 {vr(tb+e,2)}, {vr(tb+e,2)}, {vr(8+2*qb,2)}')
                for e in range(2): a(f'v_cvt_pk_bf16_f32 v{D_CTX+(s*2+qb)*4+2*half+e}, v{tb+2*e}, v{tb+2*e+1}')
    a.label(Ldone)

def D_dma(tile):
    t = S_T; sl = (tile % 3)*DSLOT
    g = []
    for half in range(2):
        first = [f's_lshl_b32 s{t}, s{S_W4K}, 1'] if half == 0 else []
        first += [f's_add_u32 m0, s{t}, {sl + 4096*half}', f's_add_u32 s{t+1}, s{S_DO}, {half*32*896 + tile*128}']
        for i in range(4):
            g.append((first if i == 0 else []) + [f'buffer_load_dwordx4 v{D_VO+i}, {sr(S_WO)}, s{t+1} offen offset:{1024*i} lds'])
    first = [f's_add_u32 m0, s{S_W4K}, {sl + 32768}', f's_add_u32 s{t+1}, s{S_D2}, {tile*128}']
    for i in range(4):
        g.append((first if i == 0 else []) + [f'buffer_load_dwordx4 v{D_VO+i}, {sr(S_W2)}, s{t+1} offen offset:{1024*i} lds'])
    return tag(g, f'T{tile}')

def phaseD_begin(a):
    a('s_barrier')
    a(resolve_vm(flat(D_dma(1))))

def phaseD(a, nks):
    t = S_T
    a('v_lshrrev_b32 v2, 2, v1'); a('v_bfe_u32 v3, v1, 3, 2')
    a('v_and_b32 v8, 3, v1'); a('v_lshlrev_b32 v8, 3, v8'); a('v_lshl_add_u32 v8, v2, 7, v8')
    for c in range(4):
        a(f'v_xor_b32 v2, {c}, v3'); a(f'v_lshl_add_u32 v{D_RB+c}, v2, 5, v8')
    a(f's_lshl_b32 s{t}, s{S_OWN}, 3'); a(f's_add_u32 s{t}, s{t}, s{S_WAVE}'); a(f's_mul_i32 s{t}, s{t}, {14*16384}')
    a(f's_lshl_b32 s{t+1}, s{S_H}, 10'); a(f's_add_u32 s{t}, s{t}, s{t+1}')
    a(f's_add_u32 s{S_PRT}, s{t}, {hex(WS_PART)}')
    a(f's_mul_i32 s{t}, s{S_Q1}, {14*16384}'); a(f'v_add_u32 v{D_ST1}, s{t}, v{V_L16}')
    steps = []
    for tile in range(7):
        sl = tile % 3
        for c in range(4):
            for ks in range(nks):
                buf = D_WF + (len(steps) % D_NB)*4
                rd = [f'ds_read_b64_tr_b16 {vr(buf+2*h,2)}, v{D_RA+c} offset:{4096*ks+2048*h}' for h in range(2)]
                pv = f'v_add_u32 v{D_RA+c}, {sl*DSLOT}, v{D_RB+c}' if ks == 0 else None
                mf = []
                for qb in range(2):
                    d = vr(D_ACC + (c*2+qb)*4)
                    b = vr(D_CTX + (ks*2+qb)*4) if ks < 8 else ar(A_H + ((ks-8)*2+qb)*4)
                    mf.append(f'{MF} {d}, {vr(buf)}, {b}, {d if ks else "0"}')
                steps.append(Step(mf, rd, prev=pv))
    nst = 4*nks; LA = OPT.get('bd_la', 6)
    bp = {}
    for tile in range(6):
        bp[tile] = (tile+1)*nst - LA - 1
        steps[bp[tile]].pre += [f's_waitcnt vmcnt(@T{tile+1})', 's_barrier']
        for f in range(nst): steps[(tile+1)*nst+f].gate = bp[tile]
    FUSE = OPT.get('fuse_r', True)
    if FUSE:
        bp[6] = 7*nst - LA - 1
        steps[bp[6]].pre += ['s_barrier']
        for tile in range(1, 7): steps[bp[tile]].pre.insert(0, f's_waitcnt vmcnt(@P{2*tile-1-OPT.get("plag", 0)})')
        a(f's_lshl_b32 s{S_FP}, s{S_OWN}, 12'); a(f's_add_u32 s{S_FP}, s{S_FP}, {hex(WS_FLG + 0x40000)}')
        a(f's_lshl_b32 s{S_MB}, s{S_H}, 2'); a(f's_add_u32 s{S_MB}, s{S_MB}, s{S_FP}')
    D2 = OPT.get('d2bar', True)
    if D2:
        for tile in range(1, 5): steps[tile*nst+1].pre += ['s_barrier']
    sc = Sched(steps, LA=LA, wait_group=OPT.get('bd_wg', 2))
    if FUSE:
        for tile in range(1, 7):
            sc.place([f'v_add_u32 v{8+(tile&1)}, {2*tile-OPT.get("plag", 0)}, v{V_NONCE}', f'buffer_store_dword v{8+(tile&1)}, v{V_SIG}, {sr(S_WS)}, s{S_MB} offen sc1'], bp[tile], bp[tile]+1)
    sc.place(D_dma(2), 0, 24)
    for tile in range(1, 5):
        if D2: sc.place(D_dma(tile+2), tile*nst+1, tile*nst+1+OPT.get('d_dw2', 30))
        else: sc.place(D_dma(tile+2), bp[tile], bp[tile]+OPT.get('d_dw', 16))
    tail_ops = None
    for tile in range(7):
        for cp in range(2):
            v = tile*2 + cp
            endstep = (tile*4 + cp*2 + 2)*nks
            ops = []
            for qb in range(2):
                pk = D_PK + (cp*2+qb)*4
                for half in range(2):
                    src = D_ACC + ((cp*2+half)*2+qb)*4
                    for e in range(2): ops.append(f'v_cvt_pk_bf16_f32 v{pk+2*half+e}, v{src+2*e}, v{src+2*e+1}')
                st = [f's_add_u32 s{t+4}, s{S_PRT}, {v*16384}'] if qb == 0 else []
                ops.append(st + [f'buffer_store_dwordx4 {vr(pk)}, v{V_L16 if qb==0 else D_ST1}, {sr(S_WS)}, s{t+4} offen sc1 ;@P{v}'])
            if endstep + 3 < len(steps): sc.place(ops, endstep+3, endstep+12)
            else: tail_ops = ops
    print('phaseD overflow', sc.overflow(0, len(steps)-1))
    head = flat(D_dma(0) + D_dma(1))
    tx = []
    for tile in range(7):
        if OPT.get('dstamp'): tx.append(f'STAMP{20+tile}')
        tx += sc.text(tile*nst, (tile+1)*nst-1)
    if OPT.get('dstamp'): tx.append('STAMP27')
    body = resolve_vm(head + ['MARK', 's_waitcnt vmcnt(@T0)', 's_barrier'] + sc.pre + tx)
    for x in body[body.index('MARK')+1:]:
        if x.startswith('STAMP'): stamp(a, int(x[5:]))
        else: a(x)
    a('s_nop 7')
    a(resolve_vm(flat(tail_ops)))

def phaseR(a, Lend):
    t = S_T
    S_OUT, S_B2 = S_CKV, S_W
    S_CT, S_U, S_IT, S_MSK = 57, 58, 59, 60
    a(f's_load_dwordx4 s[{t+4}:{t+7}], s[0:1], 80')
    a('s_waitcnt vmcnt(0)')
    a('s_barrier')
    a(f'v_add_u32 v8, 14, v{V_NONCE}')
    a(f'buffer_store_dword v8, v{V_SIG}, {sr(S_WS)}, s{S_MB} offen sc1')
    stamp(a, 13)
    a('s_waitcnt lgkmcnt(0)')
    srd(a, S_B2, t+4, 448*2); srd(a, S_OUT, t+6, 2048*448*2)
    a(f's_add_u32 s{S_CT}, s{S_FP}, 0x10000')
    a(f's_mov_b32 s{S_IT}, 0'); a(f's_mov_b32 s{S_MSK}, 0xffff0000')
    a('v_and_b32 v10, 15, v1'); a('v_mul_u32_u24 v10, 896, v10'); a('v_lshrrev_b32 v11, 4, v1'); a('v_lshlrev_b32 v11, 3, v11')
    a('v_add_u32 v10, v10, v11')
    def wait_prog(need_sgpr):
        Ls = a.newlabel('RP'); Lo = a.newlabel('RP')
        a(f's_mov_b32 s{t+1}, 0')
        a(f's_sub_u32 s{t+2}, 14, s{need_sgpr}')
        a.label(Ls)
        a(poll_issue(S_FP))
        a('s_waitcnt vmcnt(0)')
        a(f'v_sub_u32 v2, v{V_POLL}, v{V_NONCE}'); a(f'v_subrev_u32 v2, s{need_sgpr}, v2')
        a(f'v_cmp_ge_u32 vcc, s{t+2}, v2')
        a(f's_and_b32 s{t}, vcc_lo, 0xffff')
        a(f's_cmp_eq_u32 s{t}, 0xffff'); a(f's_cbranch_scc1 {Lo}')
        a(f's_sleep {OPT.get("rsleep", 3)}')
        a(f's_add_u32 s{t+1}, s{t+1}, 1')
        a(f's_cmp_lt_u32 s{t+1}, 20000'); a(f's_cbranch_scc1 {Ls}')
        a.label(Lo)
    Lloop = a.newlabel('RL'); Lsk = a.newlabel('RS'); Lw = a.newlabel('RW'); Lf = a.newlabel('RF')
    a(f's_cmp_lg_u32 s{S_WAVE}, 0'); a(f's_cbranch_scc1 {Lloop}')
    a(f's_mov_b32 s{t+3}, 1')
    wait_prog(t+3)
    a.label(Lloop)
    a(f'v_mov_b32 v12, s{S_IT}')
    a(f's_cmp_lg_u32 s{S_WAVE}, 0'); a(f's_cbranch_scc1 {Lsk}')
    a('v_mov_b32 v3, 1')
    a(f'buffer_atomic_add v3, v{V_SIG}, {sr(S_WS)}, s{S_CT} offen sc0 sc1')
    a('s_waitcnt vmcnt(0)')
    a(f'v_readfirstlane_b32 s{S_U}, v3')
    a(f's_cmp_ge_u32 s{S_U}, 28'); a(f's_cbranch_scc1 {Lw}')
    a(f's_lshr_b32 s{t+3}, s{S_U}, 1'); a(f's_add_u32 s{t+3}, s{t+3}, 1')
    wait_prog(t+3)
    a.label(Lw)
    a(f'v_mov_b32 v3, s{S_U}')
    a('ds_write_b32 v12, v3')
    a('s_waitcnt lgkmcnt(0)')
    a.label(Lsk)
    a('s_barrier')
    a('ds_read_b32 v3, v12')
    a('s_waitcnt lgkmcnt(0)')
    a(f'v_readfirstlane_b32 s{S_U}, v3')
    a(f's_xor_b32 s{S_IT}, s{S_IT}, 4')
    a(f's_cmp_ge_u32 s{S_U}, 28'); a(f's_cbranch_scc1 {Lf}')
    a(f's_and_b32 s{t}, s{S_U}, 1'); a(f's_lshl_b32 s{t}, s{t}, 2'); a(f's_add_u32 s{t}, s{t}, s{S_WAVE}')
    a(f's_lshl_b32 s{t+1}, s{S_OWN}, 3'); a(f's_add_u32 s{t}, s{t}, s{t+1}')
    a(f's_lshr_b32 s{t+1}, s{S_U}, 1')
    a(f's_mul_i32 s{t+2}, s{t}, 14'); a(f's_add_u32 s{t+2}, s{t+2}, s{t+1}'); a(f's_lshl_b32 s{t+2}, s{t+2}, 14')
    a(f's_add_u32 s{t+2}, s{t+2}, {hex(WS_PART)}')
    for h in range(16):
        a(f'buffer_load_dwordx4 {vr(32+4*h)}, v{V_L16}, {sr(S_WS)}, s{t+2} offen offset:{(h%4)*1024} sc1')
        if h % 4 == 3 and h < 15: a(f's_add_u32 s{t+2}, s{t+2}, 4096')
    a(f's_mul_i32 s{t}, s{t}, {16*896}'); a(f's_lshl_b32 s{t+1}, s{t+1}, 6'); a(f's_add_u32 s{t}, s{t}, s{t+1}')
    a(f'buffer_load_dwordx2 v[96:97], v10, {sr(S_XIN)}, s{t} offen')
    a(f'buffer_load_dwordx2 v[98:99], v10, {sr(S_XIN)}, s{t} offen offset:32')
    a(f'buffer_load_dwordx2 v[100:101], v11, {sr(S_B2)}, s{t+1} offen')
    a(f'buffer_load_dwordx2 v[102:103], v11, {sr(S_B2)}, s{t+1} offen offset:32')
    for h in range(18):
        a(f's_waitcnt vmcnt({19-h if h < 16 else (2 if h == 16 else 0)})')
        src = 32 + 4*h
        for i in range(4):
            if h == 0:
                a(f'v_lshlrev_b32 v{16+2*i}, 16, v{src+i}'); a(f'v_and_b32 v{17+2*i}, s{S_MSK}, v{src+i}')
            else:
                a(f'v_lshlrev_b32 v14, 16, v{src+i}'); a(f'v_and_b32 v15, s{S_MSK}, v{src+i}')
                a(f'v_add_f32 v{16+2*i}, v{16+2*i}, v14'); a(f'v_add_f32 v{17+2*i}, v{17+2*i}, v15')
    for i in range(4): a(f'v_cvt_pk_bf16_f32 v{24+i}, v{16+2*i}, v{17+2*i}')
    a(f'buffer_store_dwordx2 v[24:25], v10, {sr(S_OUT)}, s{t} offen')
    a(f'buffer_store_dwordx2 v[26:27], v10, {sr(S_OUT)}, s{t} offen offset:32')
    a(f's_cmp_lt_u32 s{S_U}, {OPT.get("u0", 20)}'); a(f's_cbranch_scc1 {Lloop}')
    a.label(Lf)
    if DBG[0]:
        a('s_waitcnt vmcnt(0)')
        stamp(a, 18)

def build_srds(a):
    P = PTR
    srd(a, S_WS, P+26, WS_BYTES); srd(a, S_CKV, P+2, 2048*1024*2); srd(a, S_XIN, P+0, 2048*448*2)
    a(f's_cmp_eq_u32 s{S_KVT}, 0')
    a(f's_cselect_b32 s{P+6}, s{P+6}, s{P+8}'); a(f's_cselect_b32 s{P+7}, s{P+7}, s{P+9}')
    srd(a, S_W, P+6, 1024*4096*2)
    srd(a, S_WQ, P+4, 448*4096*2); srd(a, S_W1, P+14, 448*1792*2); srd(a, S_WO, P+10, 4096*448*2)
    srd(a, S_W2, P+18, 1792*448*2); srd(a, S_B1, P+16, 1792*2); srd(a, S_DBG, P+24, 256)

def gen_mega(a, name='m_kernel', dbg=False):
    DBG[0] = dbg
    a.raw('.text'); a.raw('.p2align 8')
    a.label('M_CODE_START')
    front_pos = len(a.L)
    kstart(a, name)
    Lend = a.newlabel('MEND')
    Lgo = a.newlabel('GO')
    a('s_cmp_lt_u32 s2, 256'); a(f's_cbranch_scc1 {Lgo}')
    a('s_endpgm')
    a.label(Lgo)
    a(f's_load_dwordx16 s[{PTR}:{PTR+15}], s[0:1], 0')
    a(f's_load_dwordx8 s[{PTR+16}:{PTR+23}], s[0:1], 64')
    a(f's_load_dwordx4 s[{PTR+24}:{PTR+27}], s[0:1], 96')
    Lp = a.newlabel('PC')
    a(f's_getpc_b64 s[{S_PC}:{S_PC+1}]')
    a.label(Lp)
    a(f's_sub_u32 s{S_PC}, s{S_PC}, {Lp}-M_CODE_START'); a(f's_subb_u32 s{S_PC+1}, s{S_PC+1}, 0')
    a(flat(code_pf(0, OPT.get('cpf0', 1), 200)))
    if OPT.get('cpfs'):
        ns = OPT['cpfs']; per = (OPT.get('codekb', 112)*1024 // ns) // 128
        a('s_lshr_b32 s4, s2, 3'); a(f's_and_b32 s4, s4, {ns-1}'); a(f's_mul_i32 s4, s4, {per*128}')
        a(f'v_min_u32 v200, {per-1}, v0'); a('v_lshlrev_b32 v200, 7, v200'); a('v_add_u32 v200, s4, v200')
        a('v_min_u32 v200, M_CODE_END-M_CODE_START-4, v200')
        a(f'global_load_dword v31, v200, s[{S_PC}:{S_PC+1}]')
    a('v_and_b32 v1, 63, v0')
    a('v_lshrrev_b32 v2, 6, v0')
    a(f'v_lshlrev_b32 v{V_L16}, 4, v1')
    a(f'v_readfirstlane_b32 s{S_WAVE}, v2')
    t = 4
    a(f's_and_b32 s{t}, s2, 7'); a(f's_lshr_b32 s{t+1}, s2, 3'); a(f's_and_b32 s{t+2}, s{t+1}, 1')
    if OPT.get('xswap'): a(f's_xor_b32 s{t}, s{t}, {OPT["xswap"]}')
    a(f's_lshl_b32 s{t}, s{t}, 1'); a(f's_add_u32 s{S_H}, s{t}, s{t+2}')
    a(f's_lshr_b32 s{t+1}, s{t+1}, 1'); a(f's_and_b32 s{S_ROLE}, s{t+1}, 1'); a(f's_lshr_b32 s{S_I}, s{t+1}, 1')
    a(f's_lshl_b32 s{S_W4K}, s{S_WAVE}, 12'); a(f's_lshl_b32 s{S_W2K}, s{S_WAVE}, 11')
    a(f's_lshl_b32 s{S_PAIR}, s{S_H}, 3'); a(f's_add_u32 s{S_PAIR}, s{S_PAIR}, s{S_I}')
    a(f's_lshl_b32 s{S_FKV}, s{S_H}, 12'); a(f's_add_u32 s{S_FKV}, s{S_FKV}, {hex(WS_FLG)}')
    lo = sum(T0[i] << (8*i) for i in range(4)); hi = sum(T0[4+i] << (8*i) for i in range(4))
    a(f's_mov_b32 s{t}, {hex(lo)}'); a(f's_mov_b32 s{t+1}, {hex(hi)}')
    a(f's_lshl_b32 s{t+2}, s{S_I}, 3'); a(f's_lshr_b64 s[{t}:{t+1}], s[{t}:{t+1}], s{t+2}'); a(f's_and_b32 s{S_T0}, s{t}, 0xff')
    a(f's_sub_u32 s{S_EXT}, 15, s{S_I}')
    a(f's_cmp_eq_u32 s{S_ROLE}, 0'); a(f's_cselect_b32 s{S_OWN}, s{S_EXT}, s{S_I}')
    a(f's_mul_i32 s{S_HASX}, s{S_ROLE}, s{S_T0}')
    a(f's_mov_b32 s{S_QSC}, {f32(1.4426950408889634/16)}')
    a(f's_mov_b32 s{S_THR}, {f32(16.0)}')
    a('v_mov_b32 v3, 0x7fffff00'); a('v_cmp_eq_u32 vcc, 0, v0'); a(f'v_mov_b32 v{V_NONCE}, 0')
    a('v_lshlrev_b32 v2, 2, v0')
    a(f'v_cndmask_b32 v{V_SIG}, v3, 0, vcc')
    a('v_cmp_gt_u32 vcc, 16, v0'); a('s_nop 1')
    a(f'v_cndmask_b32 v{V_SIG16}, v3, v2, vcc')
    hist = phaseA(a)
    SPLIT = OPT.get('fsplit', False)
    def two(fn_even, fn_odd, front=False):
        if not SPLIT: fn_even(); return
        Lo = a.newlabel('OD'); Le = a.newlabel('EV')
        a(f's_cmp_lg_u32 s{S_ODD}, 0'); a(f's_cbranch_scc1 {Lo}')
        fn_even()
        if front:
            a.label(Le)
            main = a.L; a.L = []
            a.label(Lo); fn_odd(); a(f's_branch {Le}')
            main[front_pos:front_pos] = a.L
            a.L = main
        else:
            a(f's_branch {Le}')
            a.label(Lo); fn_odd(); a.label(Le)
    two(lambda: phaseB_main(a, True, hist, 8 if SPLIT else 7), lambda: phaseB_main(a, True, hist, 6), front=True)
    Lown = a.newlabel('OWN'); Lown2 = a.newlabel('OWN2')
    rl = {0: a.newlabel('RARE'), 1: a.newlabel('RARE'), 'first': a.newlabel('RARE'), 'stubs': []}
    def qsc(): a(f'v_mov_b32 v{B_QS}, s{S_QSC}'); a(f'v_mov_b32 v{B_QS+1}, s{S_QSC}')
    def own_params():
        a(f's_lshl_b32 s{S_RB}, s{S_OWN}, 2'); a(f's_add_u32 s{S_N}, s{S_RB}, 4'); a(f's_add_u32 s{S_RB}, s{S_RB}, s{S_WAVE}')
        a(f's_cmp_eq_u32 s{S_ROLE}, 0'); a(f's_cselect_b32 s{S_TS}, s{S_T0}, 0')
        a(f's_sub_u32 s{S_N}, s{S_N}, s{S_TS}')
    qsc()
    a(f's_sub_u32 s{S_PUBQ}, s{S_T0}, s{S_HASX}')
    own_params()
    a(f's_cmp_lg_u32 s{S_HASX}, 0'); a(f's_cselect_b32 s{S_N}, s{S_T0}, s{S_N}')
    phaseB_epi(a)
    a('s_waitcnt vmcnt(16)')
    spin_wait(a, S_FP)
    stamp(a, 8)
    phaseC_begin(a, 1)
    two(lambda: phaseB_epi_h(a, 8 if SPLIT else 7), lambda: phaseB_epi_h(a, 6))
    Lq = a.newlabel('QF')
    a(f's_cmp_eq_u32 s{S_PUBQ}, 0'); a(f's_cbranch_scc1 {Lq}')
    a('s_waitcnt vmcnt(12)')
    a('s_barrier')
    a(f's_lshl_b32 s{S_T}, s{S_PAIR}, 8'); a(f's_add_u32 s{S_T}, s{S_T}, {hex(WS_FLG + 0x30000)}')
    a(f'buffer_store_dword v{V_NONCE}, v{V_SIG}, {sr(S_WS)}, s{S_T} offen sc1')
    a.label(Lq)
    stamp(a, 5)
    a(f's_cmp_eq_u32 s{S_HASX}, 0'); a(f's_cbranch_scc1 {Lown2}')
    phaseC(a, False, rl, after_first_wait=lambda a: stamp(a, 6))
    stamp(a, 9)
    own_params()
    phaseC_begin(a, 1)
    publish_stores(a)
    a.label(Lown2)
    stamp(a, 10)
    t = S_T
    def afw(a):
        if OPT.get('pfd_c0'): a(flat(pfD(2)))
        if OPT.get('pfd_big', True): pfD_big(a)
    phaseC(a, True, rl, after_first_wait=afw)
    a.label('M_D_START')
    stamp(a, 11)
    phaseD_begin(a)
    finalize(a)
    stamp(a, 12)
    two(lambda: phaseD(a, 12), lambda: phaseD(a, 11))
    if OPT.get('fuse_r', True): phaseR(a, Lend)
    elif dbg:
        a('s_waitcnt vmcnt(0)')
        stamp(a, 13)
    a.label(Lend)
    a('s_endpgm')
    rare_subs(a, rl)
    a.label('M_CODE_END')
    kdesc(a, name, 512, 256, sgpr=102)
```

```python
from asmlib import *
from layout import *
from sched import *
import struct

def f32(x): return hex(struct.unpack('<I', struct.pack('<f', x))[0])
MF = 'v_mfma_f32_16x16x32_bf16'
DBG = [False]
def KT_(): return OPT.get('kvtile', 32768)
def KH_(): return 64*KT_() + OPT.get('kvhpad', 0)
OPT = dict(kv_sc1=True, a_pf=0, tlb=False, cpf0=0, cpfs=8)

S_WS, S_CKV, S_W, S_WQ, S_W1, S_WO, S_W2, S_B1, S_XIN, S_DBG = 4, 8, 12, 16, 20, 24, 28, 32, 36, 40
S_WAVE, S_H, S_ROLE, S_I, S_OWN, S_EXT, S_T0, S_HASX, S_W4K, S_W2K, S_PAIR, S_QSC, S_THR = range(44, 57)
S_KVT, S_KT = S_ROLE, S_I
S_SOX, S_SOW, S_DX, S_RX, S_CNT = 57, 58, 59, 60, 61
S_XO, S_KVO = 71, 62
S_DL = 86
S_KO, S_VO, S_PB, S_PO, S_RB, S_TS, S_N = 57, 58, 59, 60, 62, 63, 64
S_DO, S_D2, S_DS, S_PRT = 57, 58, 59, 60
S_FKV = 65
S_FP = 70
S_PUBQ = 68
S_F0, S_ODD = 98, 99
S_Q1 = 3
S_PC = 66
S_T = 72
S_RET = 84
S_MK = 86
S_ST = 94
PTR = 72
V_L16, V_SIG, V_NONCE, V_POLL = 4, 5, 6, 7
V_SIG16, V_DUM = 30, 31
V_H = 128
A_QX, A_H = 128, 192
V_QO = 128
CNT_KV, CNT_XN = 128, 192

def stamp(a, idx, dyn=None):
    if not DBG[0]: return
    L = a.newlabel('ST')
    a(f's_cmp_lg_u32 s{S_WAVE}, 0'); a(f's_cbranch_scc1 {L}')
    a(f's_memtime s[{S_ST}:{S_ST+1}]'); a(f's_memrealtime s[{S_ST+2}:{S_ST+3}]')
    a('s_waitcnt lgkmcnt(0)')
    a(f'v_mov_b32 v2, s{S_ST}'); a(f'v_mov_b32 v3, s{S_ST+2}')
    a(f's_lshl_b32 s{S_ST}, s2, 8'); a(f's_add_u32 s{S_ST}, s{S_ST}, {hex(WS_DBG + idx*8)}')
    if dyn is not None:
        a(f's_lshl_b32 s{S_ST+1}, s{dyn}, 3'); a(f's_add_u32 s{S_ST}, s{S_ST}, s{S_ST+1}')
    a(f'buffer_store_dwordx2 v[2:3], v{V_SIG}, {sr(S_WS)}, s{S_ST} offen')
    a('s_nop 1')
    a.label(L)

def code_pf(off, n, vt):
    g = []
    for i in range(n):
        g.append([f'v_lshlrev_b32 v{vt}, 7, v0', f'v_add_u32 v{vt}, {off + i*32768}, v{vt}',
                  f'v_min_u32 v{vt}, M_CODE_END-M_CODE_START-4, v{vt}',
                  f'global_load_dword v31, v{vt}, s[{S_PC}:{S_PC+1}]'])
    return g

def spin_wait(a, soff, mask=0xffff):
    t = S_T
    Lok = a.newlabel('WOK'); Ls = a.newlabel('WSP')
    a(f's_cmp_lg_u32 s{S_WAVE}, 0'); a(f's_cbranch_scc1 {Lok}')
    a(f's_mov_b32 s{t+1}, 0')
    a.label(Ls)
    a(f'v_cmp_eq_u32 vcc, v{V_POLL}, v{V_NONCE}')
    a(f's_and_b32 s{t}, vcc_lo, {hex(mask)}')
    a(f's_cmp_eq_u32 s{t}, {hex(mask)}'); a(f's_cbranch_scc1 {Lok}')
    a('s_sleep 8')
    a(poll_issue(soff))
    a('s_waitcnt vmcnt(0)')
    a(f's_add_u32 s{t+1}, s{t+1}, 1')
    a(f's_cmp_lt_u32 s{t+1}, 20000'); a(f's_cbranch_scc1 {Ls}')
    a.label(Lok)

def poll_issue(soff):
    return [f'buffer_load_dword v{V_POLL}, v{V_SIG16}, {sr(S_WS)}, s{soff} offen sc1']

def xn_flag_addr(dst, qb):
    return [f's_lshl_b32 s{dst}, s{qb}, 12', f's_add_u32 s{dst}, s{dst}, {hex(WS_FLG + 0x10000)}']

def row2_reduce(a, v, t, sd, sm):
    for mod in ['quad_perm:[1,0,3,2]', 'quad_perm:[2,3,0,1]', 'row_ror:8']:
        a('s_nop 1')
        a(f'v_add_f32 v{v}, v{v}, v{v} {mod} row_mask:0xf bank_mask:0xf')
    a('s_nop 1')
    for i in range(4): a(f'v_readlane_b32 s{sd+i}, v{v}, {16*i}')
    for i in range(4): a(f'v_readlane_b32 s{sd+4+i}, v{v}, {16*i+4}')
    a('s_nop 1')
    a(f'v_mov_b32 v{v}, s{sd}'); a(f'v_mov_b32 v{t}, s{sd+4}')
    for i in range(1, 4):
        a(f'v_add_f32 v{v}, s{sd+i}, v{v}'); a(f'v_add_f32 v{t}, s{sd+4+i}, v{t}')
    a(f'v_cndmask_b32 v{v}, v{v}, v{t}, s[{sm}:{sm+1}]')

def bf16_round(a, d, s):
    a(f'v_cvt_pk_bf16_f32 v{d}, v{s}, v{s}')
    a(f'v_and_b32 v{d}, 0xffff0000, v{d}')

def ln_rows(a, xr, f, t, sd, sm, out):
    a(f's_mov_b32 s{sm}, 0xf0f0f0f0'); a(f's_mov_b32 s{sm+1}, 0xf0f0f0f0')
    for i in range(8):
        a(f'v_lshlrev_b32 v{f+2*i}, 16, v{xr+i}')
        a(f'v_and_b32 v{f+2*i+1}, 0xffff0000, v{xr+i}')
    a(f'v_add_f32 v{t}, v{f}, v{f+1}')
    for i in range(2, 16): a(f'v_add_f32 v{t}, v{t}, v{f+i}')
    row2_reduce(a, t, t+3, sd, sm)
    a(f'v_mul_f32 v{t}, 0x3b124925, v{t}')
    a(f'v_mov_b32 v{t+1}, 0')
    for i in range(16):
        a(f'v_sub_f32 v{t+2}, v{f+i}, v{t}')
        a(f'v_fmac_f32 v{t+1}, v{t+2}, v{t+2}')
    a(f'v_cndmask_b32 v{t+1}, 0, v{t+1}, vcc')
    row2_reduce(a, t+1, t+3, sd, sm)
    a(f'v_mul_f32 v{t+1}, 0x3b124925, v{t+1}')
    bf16_round(a, t, t)
    bf16_round(a, t+1, t+1)
    a(f'v_add_f32 v{t+1}, 0x3727c5ac, v{t+1}')
    bf16_round(a, t+1, t+1)
    a(f'v_sqrt_f32 v{t+1}, v{t+1}')
    a('s_nop 0')
    bf16_round(a, t+1, t+1)
    a(f'v_rcp_f32 v{t+2}, v{t+1}')
    a('s_nop 0')
    a(f'v_fma_f32 v{t+3}, -v{t+1}, v{t+2}, 1.0')
    a(f'v_fmac_f32 v{t+2}, v{t+3}, v{t+2}')
    for i in range(16): a(f'v_sub_f32 v{f+i}, v{f+i}, v{t}')
    for i in range(8): a(f'v_cvt_pk_bf16_f32 v{out+i}, v{f+2*i}, v{f+2*i+1}')
    for i in range(8):
        a(f'v_lshlrev_b32 v{f+2*i}, 16, v{out+i}')
        a(f'v_and_b32 v{f+2*i+1}, 0xffff0000, v{out+i}')
    for i in range(16): a(f'v_mul_f32 v{f+i}, v{f+i}, v{t+2}')
    for i in range(8): a(f'v_cvt_pk_bf16_f32 v{out+i}, v{f+2*i}, v{f+2*i+1}')

WSLOT, NWS = 16384, 4
XBASE, XSLOT, NXS = 65536, 32768, 3
A_VX, A_VW, A_XAB, A_XA, A_WA = 8, 12, 16, 18, 20
AF = [dict(X=32, W=64), dict(X=96, W=128)]

def A_dma_w(wslot):
    g = [[f's_add_u32 m0, s{S_W4K}, {wslot*WSLOT}', f's_add_u32 s{S_SOW}, s{S_SOW}, {32*8192}',
          f'buffer_load_dwordx4 v{A_VW}, {sr(S_W)}, s{S_SOW} offen lds']]
    for i in range(1, 4):
        g.append([f'buffer_load_dwordx4 v{A_VW+i}, {sr(S_W)}, s{S_SOW} offen offset:{1024*i} lds'])
    return g

def A_dma_x(half):
    if half == 0:
        so = S_SOX
        g = [[f's_mov_b32 m0, s{S_DX}', f's_add_u32 s{S_SOX}, s{S_SOX}, 128', f'buffer_load_dwordx4 v{A_VX}, {sr(S_CKV)}, s{so} offen lds']]
    else:
        so = S_T + 1
        g = [[f's_add_u32 m0, s{S_DX}, 16384', f's_add_u32 s{so}, s{S_SOX}, {128*2048}',
              f'buffer_load_dwordx4 v{A_VX}, {sr(S_CKV)}, s{so} offen lds']]
    for i in range(1, 4):
        g.append([f'buffer_load_dwordx4 v{A_VX+i}, {sr(S_CKV)}, s{so} offen offset:{1024*i} lds'])
    if half == 1:
        g[-1] += [f's_add_u32 s{S_DX}, s{S_DX}, {XSLOT}',
                  f's_cmp_ge_u32 s{S_DX}, {XBASE+NXS*XSLOT}\ns_cselect_b32 s{S_T}, {NXS*XSLOT}, 0',
                  f's_sub_u32 s{S_DX}, s{S_DX}, s{S_T}']
    return g

def A_reads(u):
    f = AF[u & 1]; ks = u & 1; ws = u % NWS
    def wr(db): return [f'ds_read_b64_tr_b16 {vr(f["W"]+4*db+2*h,2)}, v{A_WA+db} offset:{ws*WSLOT+2048*h}' for h in range(2)]
    r = wr(0)
    for kb in range(8): r.append(f'ds_read_b128 {vr(f["X"]+4*kb)}, v{A_XA+ks} offset:{2048*kb}')
    for db in range(1, 8): r += wr(db)
    return r

def A_order(vtype):
    if vtype: return [(db, 2*tt+h) for db in range(8) for tt in range(4) for h in range(2)]
    return [(2*s_+h, kb) for s_ in range(4) for kb in range(8) for h in range(2)]

def A_kstep(u, vtype, dmaw, dmax, vm, last=False, extras=(), head=(), czero=False):
    out = list(head)
    if not last: out += [f's_waitcnt vmcnt({vm}) lgkmcnt(0)', 's_barrier']
    else: out += ['s_waitcnt lgkmcnt(0)']
    f = AF[u & 1]
    steps = []
    for i, (db, kb) in enumerate(A_order(vtype)):
        acc = ar(i*4, 4); w = vr(f['W']+4*db); x = vr(f['X']+4*kb)
        c = '0' if czero else acc
        steps.append(Step([f'{MF} {acc}, {x}, {w}, {c}' if vtype else f'{MF} {acc}, {w}, {x}, {c}']))
    sc = Sched(steps, LA=0, first_issued=0)
    d = []
    if dmaw: d += A_dma_w(u % NWS)
    if dmax: d += A_dma_x(0 if (u & 1) else 1)
    if d: sc.place(tag(d, f'A{u}'), 2, 58)
    if not last:
        r = []
        if (u & 1) == 1:
            r += [f's_add_u32 s{S_RX}, s{S_RX}, {XSLOT}', f's_cmp_ge_u32 s{S_RX}, {NXS*XSLOT}\ns_cselect_b32 s{S_RX}, 0, s{S_RX}']
            r += [f'v_add_u32 v{A_XA+i}, s{S_RX}, v{A_XAB+i}' for i in range(2)]
        sc.place(r + A_reads(u+1), 0, 44)
    for (items, lo, hi) in extras: sc.place(items, lo, hi)
    return out + sc.text(0, 63)

PEND = 32

def phaseA(a):
    t = 4
    S_ROW0, S_ROWO = 68, 69
    a(f's_lshl_b32 s{t}, s{S_KT}, 3'); a(f's_add_u32 s{t}, s{t}, s{S_WAVE}'); a(f's_lshl_b32 s{t}, s{t}, 16')
    a('v_lshrrev_b32 v2, 3, v1'); a('v_lshlrev_b32 v2, 11, v2')
    a('v_and_b32 v3, 7, v1'); a('v_lshrrev_b32 v200, 4, v1'); a('v_xor_b32 v3, v3, v200')
    a(f'v_add_u32 v2, s{t}, v2')
    for i in range(4):
        a(f'v_xor_b32 v201, {4*(i&1)}, v3'); a('v_lshl_add_u32 v201, v201, 4, v2')
        a(f'v_add_u32 v{A_VX+i}, {i*(8*2048-1024)}, v201')
    w_voffsets(a, A_VW, t)
    a(f's_mov_b32 s{S_SOX}, -128'); a(f's_mov_b32 s{S_SOW}, {-32*8192}')
    a(f's_add_u32 s{S_DX}, s{S_W4K}, {XBASE}')
    a(f's_lshl_b32 s{t}, s2, 3'); a(f's_lshl_b32 s{t+1}, s{S_WAVE}, 1'); a(f's_add_u32 s{S_ROW0}, s{t}, s{t+1}')
    a(f's_mul_i32 s{S_ROWO}, s{S_ROW0}, 896')
    a(f's_and_b32 s{t}, s{S_WAVE}, 1'); a(f's_lshr_b32 s{t+1}, s{S_WAVE}, 1')
    a(f's_lshl_b32 s{t+2}, s{t}, 14'); a(f's_add_u32 s{t+2}, s{t+2}, {XBASE}')
    a('v_and_b32 v201, 15, v1'); a('v_lshrrev_b32 v200, 4, v1'); a('v_lshrrev_b32 v2, 1, v201')
    for ks in range(2):
        a(f'v_add_u32 v3, {4*ks}, v200'); a('v_xor_b32 v3, v3, v2'); a('v_lshlrev_b32 v3, 4, v3')
        a('v_lshl_add_u32 v3, v201, 7, v3')
        a(f'v_add_u32 v{A_XAB+ks}, s{t+2}, v3'); a(f'v_mov_b32 v{A_XA+ks}, v{A_XAB+ks}')
    a('v_bfe_u32 v3, v1, 2, 2')
    a('v_lshlrev_b32 v202, 12, v200'); a('v_lshl_add_u32 v202, v3, 9, v202')
    a('v_and_b32 v2, 3, v1'); a('v_lshl_add_u32 v202, v2, 3, v202')
    a(f's_lshl_b32 s{t+2}, s{t+1}, 8'); a(f'v_add_u32 v202, s{t+2}, v202')
    a('v_and_b32 v2, 1, v200'); a('v_lshl_or_b32 v3, v2, 2, v3')
    for db in range(8):
        a(f'v_xor_b32 v2, {db}, v3'); a(f'v_lshl_add_u32 v{A_WA+db}, v2, 5, v202')
    a(f's_mov_b32 s{S_RX}, 0')
    a('v_cmp_gt_u32 vcc, 56, v1')
    a('v_lshrrev_b32 v200, 3, v1'); a('v_bfe_u32 v201, v1, 2, 1'); a('v_and_b32 v202, 3, v1'); a('v_lshlrev_b32 v202, 4, v202')
    a('v_mul_u32_u24 v2, 896, v201'); a('v_lshl_add_u32 v2, v200, 6, v2'); a('v_add_u32 v2, v2, v202')
    a('v_mov_b32 v3, 0x7fffff00')
    a('v_cndmask_b32 v192, v3, v2, vcc')
    a('v_lshlrev_b32 v2, 10, v200'); a('v_lshl_add_u32 v2, v201, 6, v2'); a('v_add_u32 v2, v2, v202')
    a('v_cndmask_b32 v193, v3, v2, vcc')
    a('s_waitcnt lgkmcnt(0)')
    build_srds(a)
    t = S_T
    if OPT.get('fsplit', False):
        a(f's_lshr_b32 s{t}, s{S_H}, 2'); a(f's_mul_i32 s{S_F0}, s{t}, 448')
        a(f's_and_b32 s{t}, s{S_H}, 3'); a(f's_lshl_b32 s{t+1}, s{t}, 7'); a(f's_add_u32 s{S_F0}, s{S_F0}, s{t+1}')
        a(f's_cmp_eq_u32 s{t}, 3'); a(f's_cselect_b32 s{t+1}, 32, 0'); a(f's_sub_u32 s{S_F0}, s{S_F0}, s{t+1}')
        a(f's_lshr_b32 s{S_ODD}, s{t}, 1')
    else:
        a(f's_mul_i32 s{S_F0}, s{S_H}, 112'); a(f's_mov_b32 s{S_ODD}, 0')
    Ln = a.newlabel('NON')
    a('s_cmp_lg_u32 s2, 0'); a(f's_cbranch_scc1 {Ln}')
    a(f's_memrealtime s[{t}:{t+1}]'); a('s_waitcnt lgkmcnt(0)')
    a(f's_or_b32 s{t+2}, s{t}, 1'); a(f'v_mov_b32 v2, s{t+2}')
    a(f'buffer_store_dword v2, v{V_SIG}, {sr(S_DBG)}, 0 offen sc1')
    a.label(Ln)
    stamp(a, 0)
    pro = flat(tag(A_dma_w(0) + A_dma_x(0) + A_dma_x(1), 'G0') + tag(A_dma_w(1), 'G1') + tag(A_dma_x(0) + A_dma_w(2) + A_dma_x(1), 'G2'))
    pro += [f'buffer_load_dwordx4 v[160:163], v192, {sr(S_XIN)}, s{S_ROWO} offen ;@XL',
            f'buffer_load_dwordx4 v[164:167], v192, {sr(S_XIN)}, s{S_ROWO} offen offset:448 ;@XL']
    pro += ['s_waitcnt vmcnt(@G0)', 's_barrier'] + A_reads(0)
    a(resolve_vm(pro))
    stamp(a, 1)
    if DBG[0]:
        a(f's_getreg_b32 s{S_ST}, hwreg(HW_REG_XCC_ID)'); a(f'v_mov_b32 v2, s{S_ST}'); a(f'v_mov_b32 v3, s{S_ST}')
        a(f's_lshl_b32 s{S_ST}, s2, 8'); a(f's_add_u32 s{S_ST}, s{S_ST}, {hex(WS_DBG + 19*8)}')
        a(f'buffer_store_dwordx2 v[2:3], v{V_SIG}, {sr(S_WS)}, s{S_ST} offen')
    def cap(fn):
        x = Asm(); fn(x); return [l.strip() for l in x.L]
    u_ = t + 4
    ln = ['s_waitcnt vmcnt(@XL)'] + cap(lambda x: ln_rows(x, 160, 168, 184, S_MK, S_RET, 208))
    ln += [f's_lshr_b32 s{u_}, s{S_ROW0}, 4', f's_mul_i32 s{u_}, s{u_}, 14*1024', f's_and_b32 s{u_+1}, s{S_ROW0}, 15', f's_lshl_b32 s{u_+1}, s{u_+1}, 6',
           f's_add_u32 s{u_}, s{u_}, s{u_+1}', f's_add_u32 s{u_}, s{u_}, {hex(WS_XN)}', f's_add_u32 s{u_+1}, s{u_}, 7168',
           f'buffer_store_dwordx4 v[208:211], v193, {sr(S_WS)}, s{u_} offen sc1',
           f'buffer_store_dwordx4 v[212:215], v193, {sr(S_WS)}, s{u_+1} offen sc1']
    ln1 = ln[:75]; ln2 = ln[75:]
    bs = cap(lambda x: B_setup(x, S_T + 8))
    Lv = a.newlabel('AV'); Lj = a.newlabel('AJ')
    a(f's_cmp_eq_u32 s{S_KVT}, 1'); a(f's_cbranch_scc1 {Lv}')
    pf = pfB()
    for vtype in range(2):
        if vtype: a.label(Lv)
        first = []
        first += A_kstep(0, vtype, False, False, '@G1', czero=True, extras=[(tag(A_dma_w(3) + A_dma_x(0), 'G3'), 24, 62), (bs, 0, 40)])
        first += A_kstep(1, vtype, False, False, '@G2', extras=[(tag(A_dma_w(0) + A_dma_x(1), 'G4') + tag(A_dma_w(1), 'G5'), 2, 60), (ln1, 4, 63)])
        first += A_kstep(2, vtype, False, False, '@G3', extras=[(flat(A_dma_x(0) + A_dma_w(2) + A_dma_x(1)), 2, 60), (ln2[:75], 0, 63)])
        first += A_kstep(3, vtype, True, True, '@G4', extras=[(ln2[75:], 0, 45)])
        r = resolve_vm(pro + ['MARK'] + first)
        a(r[r.index('MARK')+1:])
        if OPT.get('astamp'): stamp(a, 20)
        a(f's_mov_b32 s{S_CNT}, 1')
        Ll = a.newlabel('AL'); a.label(Ll)
        for u in range(4): a(resolve_vm(A_kstep(u, vtype, True, True, 16)))
        Lm1 = a.newlabel('AM'); Lm2 = a.newlabel('AM'); Lm3 = a.newlabel('AM')
        if OPT.get('astamp'): stamp(a, 20, S_CNT)
        a(f's_add_u32 s{S_CNT}, s{S_CNT}, 1')
        a(f's_cmp_lg_u32 s{S_WAVE}, 0'); a(f's_cbranch_scc1 {Lm2}')
        a(f's_cmp_lg_u32 s{S_CNT}, 2'); a(f's_cbranch_scc1 {Lm1}')
        a(f'v_mov_b32 v2, 0')
        a(f'buffer_load_dword v{V_NONCE}, v2, {sr(S_DBG)}, 0 offen' + (' sc1' if OPT.get('nonce_sc1') else ''))
        a.label(Lm1)
        a(f's_cmp_lg_u32 s{S_CNT}, 4'); a(f's_cbranch_scc1 {Lm2}')
        a(f's_mov_b32 s{t+5}, 0')
        a.label(Lm3)
        a(f'v_readfirstlane_b32 s{t+4}, v{V_NONCE}')
        Lm4 = a.newlabel('AM')
        a(f's_cmp_lg_u32 s{t+4}, 0'); a(f's_cbranch_scc1 {Lm4}')
        a('s_sleep 8'); a(f'v_mov_b32 v2, 0')
        a(f'buffer_load_dword v{V_NONCE}, v2, {sr(S_DBG)}, 0 offen sc1')
        a('s_waitcnt vmcnt(0)')
        a(f's_add_u32 s{t+5}, s{t+5}, 1'); a(f's_cmp_lt_u32 s{t+5}, 20000'); a(f's_cbranch_scc1 {Lm3}')
        a.label(Lm4)
        a(f's_lshr_b32 s{t+4}, s2, 4'); a(xn_flag_addr(t+4, t+4))
        a(f's_and_b32 s{t+5}, s2, 15'); a(f's_lshl_b32 s{t+5}, s{t+5}, 2'); a(f's_add_u32 s{t+4}, s{t+4}, s{t+5}')
        a(f'buffer_store_dword v{V_NONCE}, v{V_SIG}, {sr(S_WS)}, s{t+4} offen sc1')
        a(f's_cmp_lg_u32 s{S_H}, 0'); a(f's_cbranch_scc1 {Lm2}')
        a(f's_lshl_b32 s{t+4}, s{S_OWN}, 12'); a(f's_add_u32 s{t+4}, s{t+4}, {hex(WS_FLG + 0x50000)}')
        a('v_mov_b32 v2, 0')
        a(f'buffer_store_dword v2, v{V_SIG}, {sr(S_WS)}, s{t+4} offen sc1')
        a.label(Lm2)
        a(f's_cmp_lt_u32 s{S_CNT}, 6'); a(f's_cbranch_scc1 {Ll}')
        cpf = cpfB()
        kvs = [f's_mul_i32 s{S_KVO}, s{S_H}, {KH_()}', f's_add_u32 s{S_KVO}, s{S_KVO}, {hex(WS_KV)}', f's_mul_i32 s{t+4}, s{S_KT}, {8*KT_()}', f's_add_u32 s{S_KVO}, s{S_KVO}, s{t+4}',
               f's_and_b32 s{t+4}, s{S_WAVE}, 1', f's_mul_i32 s{t+4}, s{t+4}, {4*KT_()}', f's_add_u32 s{S_KVO}, s{S_KVO}, s{t+4}',
               f's_lshr_b32 s{t+4}, s{S_WAVE}, 1', f's_lshl_b32 s{t+4}, s{t+4}, {13 if vtype else 12}', f's_add_u32 s{S_KVO}, s{S_KVO}, s{t+4}']
        if vtype: kvs.append(f's_add_u32 s{S_KVO}, s{S_KVO}, 16384')
        w_ = [KT_(), 2*KT_(), 1024, 2048] if vtype else [8192, KT_(), 2*KT_(), 1024]
        for b in range(4): kvs.append(f's_mov_b32 s{S_DL+b}, {w_[b] - sum(w_[:b])}')
        xo = [f's_lshl_b32 s{t+4}, s{S_OWN}, 3', f's_add_u32 s{t+4}, s{t+4}, s{S_WAVE}', f's_mul_i32 s{t+4}, s{t+4}, 14336',
              f's_add_u32 s{S_XO}, s{t+4}, {hex(WS_XN)}']
        bias = [f's_lshl_b32 s{t+4}, s{S_F0}, 1', 'v_lshrrev_b32 v200, 4, v1', 'v_lshlrev_b32 v200, 3, v200']
        bias += [f'buffer_load_dwordx2 {vr(B_TMP+2*fb,2)}, v200, {sr(S_B1)}, s{t+4} offen offset:{32*fb} ;@BIAS' for fb in range(8)]
        sw = Asm(); sw.nlab = a.nlab; spin_wait(sw, S_FP); a.nlab = sw.nlab
        chk = ['s_waitcnt vmcnt(@POLL)'] + [x.strip() + (' ;!' if x.strip().startswith('buffer_') else '') for x in sw.L]
        NW = OPT.get('nweave', 8); BH = OPT.get('bh', 0)
        xpf = [['v_lshlrev_b32 v200, 7, v1', f's_add_u32 s{t+4}, s{S_XO}, 4096', f'buffer_load_dword v31, v200, {sr(S_WS)}, s{t+4} offen'],
               [f's_add_u32 s{t+5}, s{t+4}, s{t+6}', f'buffer_load_dword v31, v200, {sr(S_WS)}, s{t+5} offen'],
               ['v_and_b32 v201, 15, v1', 'v_lshlrev_b32 v201, 7, v201', f'v_mov_b32 v202, s{t+6}', 'v_cmp_gt_u32 vcc, 16, v1', f's_add_u32 s{t+4}, s{t+4}, 8192',
                's_nop 0', 'v_cndmask_b32 v202, v202, 0, vcc', 'v_add_u32 v201, v201, v202', f'buffer_load_dword v31, v201, {sr(S_WS)}, s{t+4} offen']]
        ex = {25: [(kvs + xo, 46, 62)],
              26: [(xn_flag_addr(S_FP, S_OWN) + [poll_issue(S_FP)[0] + ' ;@POLL'], 5, 20)],
              28: [([f's_mul_i32 s{t+6}, s{S_Q1}, 14336', f'v_and_b32 v{B_VX0}, 15, v1', f'v_lshlrev_b32 v{B_VX0}, 6, v{B_VX0}', f'v_and_b32 v{B_VX1}, 48, v1',
                   f'v_add_u32 v{B_VX0}, v{B_VX0}, v{B_VX1}', f'v_add_u32 v{B_VX1}, s{t+6}, v{B_VX0}'] + flat(pf + cpf), 0, 24)] + ([(B_dma_w(0, True), 32, 62)] if BH == 0 else []),
              29: [(tag(B_dma_xp(0), 'B0') + [bias] + B_dma(1, True), 0, 60)],
              30: [(B_dma(2, True) + (xpf if OPT.get('xpf', True) else []), 0, 60)],
              31: [([x for k in range(NW) for x in pack_store(k, 208 + 8*(k & 1), True)], 10, 63)]}
        tail = []
        for k in (21, 22, 23): tail += [f'buffer_dummy ;@A{k}']*8
        tail.append('MARK')
        for u in range(24, 32):
            tail += A_kstep(u, vtype, u <= 27, u <= 26, f'@A{min(u-3, 27)}', last=(u == 31), extras=ex.get(u, ()), head=(chk if u == 29 else ()))
            if OPT.get('astamp') and u in (27, 29): tail.append(f'STAMP{u}')
        tail.append('MARK2')
        hist = tail
        r = resolve_vm(tail)
        for x in r[r.index('MARK')+1:r.index('MARK2')]:
            if x.endswith(':'): a.raw(x)
            elif x.startswith('STAMP'): stamp(a, 26 if x == 'STAMP27' else 27)
            else: a(x)
        if vtype == 0: a(f's_branch {Lj}')
    a.label(Lj)
    stamp(a, 2)
    return hist

def pfB():
    t = S_T
    return [[f's_lshr_b32 s{t+4}, s2, 4', f's_mul_i32 s{t+4}, s{t+4}, 28', f's_mul_i32 s{t+5}, s{S_WAVE}, 7', f's_add_u32 s{t+4}, s{t+4}, s{t+5}'],
          ['v_lshrrev_b32 v200, 2, v1', 'v_min_u32 v200, 6, v200', f'v_add_u32 v200, s{t+4}, v200', 'v_and_b32 v201, 3, v1'],
          ['v_lshlrev_b32 v201, 7, v201', 'v_lshl_add_u32 v202, v200, 13, v201', f's_lshl_b32 s{t+4}, s{S_H}, 9',
           f'buffer_load_dword v31, v202, {sr(S_WQ)}, s{t+4} offen'],
          ['v_mul_u32_u24 v202, 3584, v200', 'v_add_u32 v202, v202, v201', f's_lshl_b32 s{t+4}, s{S_F0}, 1', f's_and_b32 s{t+4}, s{t+4}, 0xffffff80',
           f'buffer_load_dword v31, v202, {sr(S_W1)}, s{t+4} offen']]
def cpfB():
    t = S_T
    return [[f's_lshr_b32 s{t+4}, s2, 3', f's_mul_i32 s{t+4}, s{t+4}, 3328', f's_add_u32 s{t+4}, s{t+4}, 36864',
             'v_min_u32 v200, 25, v1', 'v_lshlrev_b32 v200, 7, v200', f'v_add_u32 v200, s{t+4}, v200',
             'v_min_u32 v200, M_CODE_END-M_CODE_START-4, v200', f'global_load_dword v31, v200, s[{S_PC}:{S_PC+1}]']]

def pfD_big(a):
    t = S_T
    L = a.newlabel('PD'); L7 = a.newlabel('PD'); La = a.newlabel('PD')
    a(f's_cmp_lt_u32 s{S_I}, 6'); a(f's_cbranch_scc1 {L}')
    a('v_lshlrev_b32 v2, 7, v0')
    a(f's_mul_i32 s{t+1}, s{S_H}, {256*896}'); a(f's_mul_i32 s{t+2}, s{S_F0}, 896')
    def wo(u): a(f's_add_u32 s{t}, s{t+1}, {u*32768}'); a(f'buffer_load_dword v31, v2, {sr(S_WO)}, s{t} offen')
    def w2(off): a(f's_add_u32 s{t}, s{t+2}, {off}'); a(f'buffer_load_dword v31, v2, {sr(S_W2)}, s{t} offen')
    n6 = OPT.get('pf_n6', 6)
    a(f's_cmp_eq_u32 s{S_ROLE}, 0'); a(f's_cbranch_scc1 {La}')
    a(f's_cmp_eq_u32 s{S_I}, 7'); a(f's_cbranch_scc1 {L7}')
    for u in range(n6): wo(u)
    a(f's_branch {L}')
    a.label(L7)
    for u in range(n6, 7): wo(u)
    for k in range(3): w2(k*32768)
    a(f's_branch {L}')
    a.label(La)
    a(f's_cmp_eq_u32 s{S_I}, 6'); a(f's_cbranch_scc1 {L}')
    a('v_min_u32 v3, 16256, v2')
    a(f's_add_u32 s{t}, s{t+2}, {3*32768}'); a(f'buffer_load_dword v31, v3, {sr(S_W2)}, s{t} offen')
    a('v_add_u32 v2, M_D_START-M_CODE_START-10240, v2')
    a(f's_mul_i32 s{t}, s{S_ODD}, 13056'); a(f's_cmp_ge_u32 s{S_WAVE}, 2'); a(f's_cselect_b32 s{t}, s{t}, 0'); a(f'v_add_u32 v2, s{t}, v2')
    a('v_min_u32 v2, M_CODE_END-M_CODE_START-4, v2')
    a(f'global_load_dword v31, v2, s[{S_PC}:{S_PC+1}]')
    a.label(L)

def pfD(v, code=True):
    t = S_T
    g = [[f's_lshr_b32 s{t+9}, s2, 4', f's_lshl_b32 s{t+9}, s{t+9}, 2', f's_add_u32 s{t+9}, s{t+9}, s{S_WAVE}',
          f's_lshl_b32 s{t+10}, s{S_H}, 6', f's_add_u32 s{t+10}, s{t+10}, s{t+9}', f's_mul_i32 s{t+10}, s{t+10}, {4*896}'],
         [f'v_lshlrev_b32 v{v}, 7, v1', f'v_min_u32 v{v}, 3580, v{v}', f'buffer_load_dword v31, v{v}, {sr(S_WO)}, s{t+10} offen'],
         [f's_mul_i32 s{t+10}, s{S_H}, {112*896}', f's_mul_i32 s{t+11}, s{t+9}, {2*896}', f's_add_u32 s{t+10}, s{t+10}, s{t+11}',
          f'v_min_u32 v{v}, 1788, v{v}', f'buffer_load_dword v31, v{v}, {sr(S_W2)}, s{t+10} offen']]
    if code:
        g += [[f's_lshl_b32 s{t+9}, s{t+9}, 9',
          f'v_min_u32 v{v}, 384, v{v}', f'v_add_u32 v{v}, s{t+9}, v{v}', f'v_add_u32 v{v}, M_D_START-M_CODE_START-10240, v{v}',
          f'v_min_u32 v{v}, M_CODE_END-M_CODE_START-4, v{v}', f'global_load_dword v31, v{v}, s[{S_PC}:{S_PC+1}]']]
    return g

def pack_store(k, tb, store):
    ops = [f'v_accvgpr_read_b32 v{tb+e}, a{8*k+e}' for e in range(8)]
    ops += [f'v_cvt_pk_bf16_f32 v{PEND+4*k+e}, v{tb+2*e}, v{tb+2*e+1}' for e in range(4)]
    if store:
        st = kv_store(k)
        ops = st[:-1] + ops + st[-1:]
    return ops

def kv_store(k):
    ops = []
    if k > 0:
        b = min((k & -k).bit_length() - 1, 3)
        ops.append(f's_add_u32 s{S_KVO}, s{S_KVO}, s{S_DL+b}')
    ops.append(f'buffer_store_dwordx4 {vr(PEND+4*k)}, v{V_L16}, {sr(S_WS)}, s{S_KVO} offen {OPT.get("kvf", "sc1")} ;@KVST')
    return ops

def w_voffsets(a, dst, t):
    a(f's_lshl_b32 s{t}, s{S_WAVE}, 16'); a(f's_lshl_b32 s{t+1}, s{S_H}, 9'); a(f's_add_u32 s{t}, s{t}, s{t+1}')
    a(f's_and_b32 s{t+1}, s{S_WAVE}, 1'); a(f's_lshl_b32 s{t+1}, s{t+1}, 2')
    a('v_lshrrev_b32 v200, 5, v1'); a('v_and_b32 v201, 31, v1'); a('v_lshrrev_b32 v202, 1, v201')
    a(f'v_xor_b32 v202, s{t+1}, v202'); a('v_and_b32 v203, 1, v201')
    for i in range(4):
        a(f'v_add_u32 v2, {(2*i)&3}, v200'); a('v_xor_b32 v2, v202, v2'); a('v_lshl_add_u32 v2, v2, 1, v203')
        a('v_lshlrev_b32 v2, 4, v2'); a('v_lshl_add_u32 v2, v200, 13, v2')
        a(f'v_add_u32 v2, {2*i*8192-1024*i}, v2'); a(f'v_add_u32 v{dst+i}, s{t}, v2')

B_VW, B_V1, B_VX1, B_VX0 = A_VW, 28, 11, 10
B_WA, B_1A = 240, 248
B_XF = 160
B_WF, B_NB = 192, 8
B_TMP = 224
B_QS = 8
W1BASE = 98304

def B_setup(a, t):
    a(f's_and_b32 s{t+1}, s{S_WAVE}, 1'); a(f's_lshl_b32 s{t+1}, s{t+1}, 2')
    a(f's_mul_i32 s{t}, s{S_WAVE}, {8*3584}'); a(f's_lshl_b32 s{t+2}, s{S_F0}, 1'); a(f's_add_u32 s{t}, s{t}, s{t+2}')
    a('v_lshrrev_b32 v200, 4, v1'); a('v_and_b32 v201, 15, v1'); a('v_lshrrev_b32 v202, 1, v201')
    a(f'v_xor_b32 v202, s{t+1}, v202'); a('v_xor_b32 v202, v200, v202'); a('v_and_b32 v203, 1, v201')
    a('v_lshl_add_u32 v2, v202, 1, v203'); a('v_lshlrev_b32 v2, 4, v2')
    a('v_mul_u32_u24 v3, 3584, v200'); a('v_add_u32 v2, v2, v3')
    a(f'v_add_u32 v{B_V1}, s{t}, v2'); a(f'v_add_u32 v{B_V1+1}, {4*3584-1024}, v{B_V1}')
    a(f's_lshl_b32 s{t}, s{S_WAVE}, 1'); a(f's_sub_u32 s{S_Q1}, 7, s{t}');
    a('v_bfe_u32 v201, v1, 2, 2')
    a('v_lshl_add_u32 v202, v200, 3, v201')
    a('v_and_b32 v203, 3, v1'); a('v_lshlrev_b32 v203, 3, v203')
    a('v_and_b32 v2, 1, v200'); a('v_lshl_or_b32 v201, v2, 2, v201')
    a('v_lshl_add_u32 v204, v202, 9, v203')
    a('v_lshl_add_u32 v205, v202, 8, v203'); a(f'v_add_u32 v205, {W1BASE}, v205')
    for d in range(8):
        a(f'v_xor_b32 v2, {d}, v201')
        a(f'v_lshl_add_u32 v{B_WA+d}, v2, 5, v204')
        a(f'v_lshl_add_u32 v{B_1A+d}, v2, 5, v205')

def B_dma_w(u, ffn):
    sl = u % 4; t = S_T + 2
    g = [[f's_add_u32 m0, s{S_W4K}, {sl*16384}', f's_mov_b32 s{t}, {u*32*8192}',
          f'buffer_load_dwordx4 v{B_VW}, {sr(S_WQ)}, s{t} offen lds']]
    for i in range(1, 4): g.append([f'buffer_load_dwordx4 v{B_VW+i}, {sr(S_WQ)}, s{t} offen offset:{1024*i} lds'])
    if ffn:
        g.append([f's_add_u32 m0, s{S_W2K}, {W1BASE+sl*8192}', f's_mov_b32 s{t}, {u*32*3584}',
                  f'buffer_load_dwordx4 v{B_V1}, {sr(S_W1)}, s{t} offen lds'])
        g.append([f'buffer_load_dwordx4 v{B_V1+1}, {sr(S_W1)}, s{t} offen offset:1024 lds'])
    return tag(g, f'B{u}')

def xr(u):
    sl = u % 6
    return B_XF + sl*8 if sl < 4 else PEND + (sl-4)*8
def B_dma_xp(p):
    g = []
    t = S_T + 3
    g.append([f's_add_u32 s{t}, s{S_XO}, {2*p*1024}'])
    for k in range(2):
        for qb, v in ((0, B_VX0), (1, B_VX1)):
            g.append([f'buffer_load_dwordx4 {vr(xr(2*p+k)+4*qb)}, v{v}, {sr(S_WS)}, s{t} offen offset:{k*1024}'])
    return g

def B_dma(u, ffn):
    return (B_dma_xp((u+1)//2) if (u & 1) and (u+1)//2 <= 6 else []) + B_dma_w(u, ffn)

def B_head(ffn):
    h = []
    for u in range(3): h += flat(B_dma(u, ffn))
    return h

def phaseB_begin_ext(a):
    t = S_T
    spin_wait(a, S_FP)
    a(f's_lshl_b32 s{t}, s{S_EXT}, 2'); a(f's_add_u32 s{t}, s{t}, s{S_WAVE}'); a(f's_mul_i32 s{t}, s{t}, {2*14336}')
    a(f's_add_u32 s{S_XO}, s{t}, {hex(WS_XN)}')
    a('s_barrier')
    a(resolve_vm(B_head(False)))

def phaseB_main(a, ffn, hist, nfb):
    pre = []
    NW = OPT.get('nweave', 8); NL = 16 + nfb
    if ffn:
        pre.append('s_nop 7')
        nst_pre = OPT.get('nst_pre', 6)
        for k in range(NW, NL):
            pre += pack_store(k, 208 + 8*(k & 1), False)
            if (k - NW) % 2 == 1 and NW + (k - NW)//2 < NW + nst_pre: pre += kv_store(NW + (k - NW)//2)
        nsd = NW + min(nst_pre, (NL - NW)//2)
        pre.append('s_waitcnt vmcnt(@BIAS)')
        for fb in range(nfb):
            for k in range(2):
                pre += [f'v_lshlrev_b32 v2, 16, v{B_TMP+2*fb+k}', f'v_and_b32 v3, 0xffff0000, v{B_TMP+2*fb+k}']
                for qb in range(2):
                    pre += [f'v_accvgpr_write_b32 a{128+(fb*2+qb)*4+2*k}, v2', f'v_accvgpr_write_b32 a{128+(fb*2+qb)*4+2*k+1}, v3']
    pre += ['s_waitcnt vmcnt(@B0)', 's_barrier', 'STAMP']
    nf = 16 + nfb
    steps = []
    for u in range(14):
        sl = u % 4
        for f in range(nf):
            buf = B_WF + (len(steps) % B_NB)*4
            if f < 16:
                rd = [f'ds_read_b64_tr_b16 {vr(buf+2*h,2)}, v{B_WA+(f&7)} offset:{sl*16384+2048*h+256*(f>>3)}' for h in range(2)]
                acc = f*8
            else:
                rd = [f'ds_read_b64_tr_b16 {vr(buf+2*h,2)}, v{B_1A+f-16} offset:{sl*8192+1024*h}' for h in range(2)]
                acc = 128 + (f-16)*8
            mf = []
            for qb in range(2):
                c = '0' if (u == 0 and f < 16) else ar(acc+4*qb)
                mf.append(f'{MF} {ar(acc+4*qb)}, {vr(buf)}, {vr(xr(u)+4*qb)}, {c}')
            steps.append(Step(mf, rd))
    LA = 6
    bp = {}
    for u in range(13):
        bp[u] = (u+1)*nf - LA - 1
        steps[bp[u]].pre += [f's_waitcnt vmcnt(@B{u+1})', 's_barrier']
        for f in range(nf): steps[(u+1)*nf+f].gate = bp[u]
    SIGU = OPT.get('sigu', 10)
    if ffn:
        steps[bp[SIGU]].pre.insert(0, 's_waitcnt vmcnt(@KVST)')
    sc = Sched(steps, LA=LA, wait_group=2)
    sc.place(B_dma(3, ffn), 0, bp[0]-2)
    for u in range(1, 11):
        sc.place(B_dma(u+3, ffn), bp[u], min(bp[u+1]-2, bp[u]+OPT.get('b_dw', 30)))
    if ffn:
        st_ = []
        for k in range(nsd, 32):
            st_ += kv_store(k) if k < NL else pack_store(k, B_TMP + 8*(k & 1), True)
        sc.place(st_, 0, bp[OPT.get('st_end', 7)])
        sc.place([[f's_lshr_b32 s{S_T+7}, s2, 4', f's_lshl_b32 s{S_T+7}, s{S_T+7}, 2', f's_add_u32 s{S_T+7}, s{S_T+7}, s{S_FKV}',
                   f'buffer_store_dword v{V_NONCE}, v{V_SIG}, {sr(S_WS)}, s{S_T+7} offen sc1']], bp[SIGU], bp[SIGU]+3)
    pl = [f's_mov_b32 s{S_FP}, s{S_FKV}'] + poll_issue(S_FP)
    sc.place([pl], len(steps)-OPT.get('pollat', 6), len(steps)-OPT.get('pollat', 6)+4)
    print('phaseB overflow', sc.overflow(0, len(steps)-1))
    body = resolve_vm(hist + ['MARKB'] + pre + sc.pre + sc.text(0, len(steps)-1))
    for x in body[body.index('MARKB')+1:]:
        if x == 'STAMP': stamp(a, 3 if ffn else 6)
        else: a(x)
    stamp(a, 4 if ffn else 7)

def qx_base(a, d):
    a(f's_lshl_b32 s{d}, s{S_PAIR}, 16'); a(f's_lshl_b32 s{d+1}, s{S_WAVE}, 14'); a(f's_add_u32 s{d}, s{d}, s{d+1}')
    a(f's_add_u32 s{d}, s{d}, {hex(WS_QX)}')

def phaseB_epi(a):
    t = S_T
    a('s_nop 3')
    qx_base(a, t)
    a(f's_cmp_eq_u32 s{S_PUBQ}, 0'); a(f's_cselect_b32 s{t}, 0x70000000, s{t}')
    k = 0
    for s in range(8):
        for qb in range(2):
            tb = V_QO + (s*2+qb)*4
            tm = B_TMP + 8*(k & 1)
            for half in range(2):
                src = ((2*s+half)*2+qb)*4
                for e in range(4): a(f'v_accvgpr_read_b32 v{tm+4*half+e}, a{src+e}')
            for e in range(0, 8, 2): a(f'v_pk_mul_f32 {vr(tm+e,2)}, {vr(tm+e,2)}, {vr(B_QS,2)}')
            for e in range(4): a(f'v_cvt_pk_bf16_f32 v{tb+e}, v{tm+2*e}, v{tm+2*e+1}')
            if k % 4 == 0 and k: a(f's_add_u32 s{t}, s{t}, 4096')
            a(f'buffer_store_dwordx4 {vr(tb)}, v{V_L16}, {sr(S_WS)}, s{t} offen offset:{1024*(k%4)} sc1')
            k += 1

def phaseB_epi_h(a, nfb):
    for ks in range((nfb+1)//2):
        for qb in range(2):
            d = A_H + (ks*2+qb)*4
            for half in range(2):
                fb = 2*ks + half
                if fb >= nfb:
                    a(f'v_accvgpr_write_b32 a{d+2}, 0'); a(f'v_accvgpr_write_b32 a{d+3}, 0'); continue
                src = 128 + (fb*2+qb)*4
                tm = B_TMP + 8*half
                for e in range(4): a(f'v_accvgpr_read_b32 v{tm+e}, a{src+e}')
                for e in range(4): a(f'v_max_f32 v{tm+e}, 0, v{tm+e}')
                for e in range(0, 4, 2): a(f'v_pk_mul_f32 {vr(tm+e,2)}, {vr(tm+e,2)}, {vr(tm+e,2)}')
                for e in range(2): a(f'v_cvt_pk_bf16_f32 v{tm+4+e}, v{tm+2*e}, v{tm+2*e+1}')
                for e in range(2): a(f'v_accvgpr_write_b32 a{d+2*half+e}, v{tm+4+e}')

def fetch_qx(a):
    t = S_T
    a(f's_lshl_b32 s{S_FP}, s{S_PAIR}, 8'); a(f's_add_u32 s{S_FP}, s{S_FP}, {hex(WS_FLG + 0x30000)}')
    a(poll_issue(S_FP))
    a('s_waitcnt vmcnt(0)')
    spin_wait(a, S_FP, mask=1)
    a('s_barrier')
    qx_base(a, t)
    for k in range(16):
        if k % 4 == 0 and k: a(f's_add_u32 s{t}, s{t}, 4096')
        a(f'buffer_load_dwordx4 {ar(A_QX+4*k)}, v{V_L16}, {sr(S_WS)}, s{t} offen offset:{1024*(k%4)} sc1')

C_KA, C_VA, C_VD, C_DV, C_DV0, C_TM, C_NINF, C_ONE = 8, 9, 10, 11, 12, 13, 14, 16
C_BP16, C_BP32 = 20, 21
C_T = 22
C_S = [32, 48]
C_P, C_NM, C_L = 64, 72, 80
C_F, C_NB = 88, 8
C_MRG = 192

def C_dma(kind, m0expr):
    so = S_KO if kind == 'K' else S_VO
    g = [[m0expr, f's_add_u32 s{so}, s{so}, {KT_()}', f'buffer_load_dwordx4 v{C_VD}, {sr(S_WS)}, s{so} offen lds']]
    for i in range(1, 4): g.append([f'buffer_load_dwordx4 v{C_VD}, {sr(S_WS)}, s{so} offen offset:{1024*i} lds'])
    return g

def mask_ops(S, qb):
    ops = []
    for kb in range(2):
        for r in range(4): ops.append(f'v_cmp_gt_i32 s[{S_MK+2*r}:{S_MK+2*r+1}], {16*kb+r}, v{C_DV}')
        for r in range(4):
            reg = S + (kb*2+qb)*4 + r
            ops.append(f'v_cndmask_b32 v{reg}, v{reg}, v{C_NINF}, s[{S_MK+2*r}:{S_MK+2*r+1}]')
    return ops

def max_ops(S, half=False):
    r = [S + (kb*2+1)*4 + e for kb in range(2) for e in range(4)] if half else list(range(S, S+16))
    ops = [f'v_max3_f32 v{C_TM}, v{r[0]}, v{r[1]}, v{r[2]}']
    for i in range(3, len(r)-1, 2): ops.append(f'v_max3_f32 v{C_TM}, v{C_TM}, v{r[i]}, v{r[i+1]}')
    ops.append(f'v_max_f32 v{C_TM}, v{C_TM}, v{r[-1]}')
    return ops

def rowmax(a, S, qb, d):
    r = [S + (kb*2+qb)*4 + e for kb in range(2) for e in range(4)]
    a(f'v_max3_f32 v{d}, v{r[0]}, v{r[1]}, v{r[2]}')
    a(f'v_max3_f32 v{d}, v{d}, v{r[3]}, v{r[4]}')
    a(f'v_max3_f32 v{d}, v{d}, v{r[5]}, v{r[6]}')
    a(f'v_max_f32 v{d}, v{d}, v{r[7]}')
    for bp in (C_BP16, C_BP32):
        a(f'ds_bpermute_b32 v{C_T+7}, v{bp}, v{d}')
        a('s_waitcnt lgkmcnt(0)')
        a(f'v_max_f32 v{d}, v{d}, v{C_T+7}')

def rare_path(a, S, first):
    a('s_nop 7')
    for qb in range(2):
        d = C_T + qb
        rowmax(a, S, qb, d)
        if not first: a(f'v_max_f32 v{d}, 0, v{d}')
        for kb in range(2):
            for e in range(4):
                r = S + (kb*2+qb)*4 + e
                a(f'v_sub_f32 v{r}, v{r}, v{d}')
        for e in range(4): a(f'v_sub_f32 v{C_NM+4*qb+e}, v{C_NM+4*qb+e}, v{d}')
        if not first:
            al = C_T + 2 + qb
            a(f'v_exp_f32 v{al}, -v{d}')
            a('s_nop 0')
            for e in range(4): a(f'v_mul_f32 v{C_L+4*qb+e}, v{C_L+4*qb+e}, v{al}')
            for db in range(16):
                o = (db*2+qb)*4
                for e in range(3): a(f'v_accvgpr_read_b32 v{C_T+4+e}, a{o+e}')
                a(f'v_accvgpr_read_b32 v2, a{o+3}')
                for e in range(3): a(f'v_mul_f32 v{C_T+4+e}, v{C_T+4+e}, v{al}')
                a(f'v_mul_f32 v2, v2, v{al}')
                for e in range(3): a(f'v_accvgpr_write_b32 a{o+e}, v{C_T+4+e}')
                a(f'v_accvgpr_write_b32 a{o+3}, v2')
    a('s_nop 1')

def softmax_ops(S, qbs=(0, 1)):
    ops = []
    for qb in qbs:
        for kb in range(2):
            b = S + (kb*2+qb)*4
            for e in range(4): ops.append(f'v_exp_f32 v{b+e}, v{b+e}')
        for kb in range(2):
            b = S + (kb*2+qb)*4
            for e in range(2): ops.append(f'v_cvt_pk_bf16_f32 v{C_P+4*qb+2*kb+e}, v{b+2*e}, v{b+2*e+1}')
    return ops

def phaseC_begin(a, part=3):
    t = S_T
    lst = [('K', 0), ('K', 1), ('V', 0), ('K', 2), ('V', 1), ('K', 3)]
    if part & 1:
        a('s_barrier')
        a(f's_mul_i32 s{t}, s{S_H}, {KH_()}'); a(f's_mul_i32 s{t+1}, s{S_TS}, {KT_()}'); a(f's_add_u32 s{S_KO}, s{t}, s{t+1}')
        a(f's_add_u32 s{S_KO}, s{S_KO}, {hex(WS_KV - KT_())}')
        a(f's_add_u32 s{S_VO}, s{S_KO}, 16384')
        a(f'v_add_u32 v{C_VD}, s{S_W4K}, v{V_L16}')
    for kind, sl in (lst[:3] if part & 1 else []) + (lst[3:] if part & 2 else []):
        a(flat(C_dma(kind, f's_add_u32 m0, s{S_W4K}, {(0 if kind=="K" else 65536) + sl*16384}')))

def phaseC(a, own, rl, after_first_wait=None, tail_extra=None):
    t = S_T
    def AQ(i): return vr(V_QO+i) if own else ar(A_QX+i)
    NBUF = C_NB
    a(f's_mov_b32 s{S_PB}, s{S_W4K}'); a(f's_xor_b32 s{S_PO}, s{S_PB}, 0x8000')
    a(f'v_mov_b32 v{C_KA}, v{V_L16}'); a(f'v_add_u32 v{C_VA}, 0x18000, v{V_L16}')
    if own:
        a('v_and_b32 v2, 15, v1'); a('v_lshrrev_b32 v3, 4, v1'); a('v_lshlrev_b32 v3, 2, v3'); a(f'v_sub_u32 v{C_DV0}, v2, v3')
        a(f's_lshl_b32 s{t}, s{S_WAVE}, 4'); a(f'v_add_u32 v{C_DV0}, s{t}, v{C_DV0}')
        a(f's_sub_u32 s{t}, s{S_N}, 4'); a(f's_lshl_b32 s{t}, s{t}, 5')
        a(f'v_add_u32 v{C_DV}, s{t}, v{C_DV0}')
        a(f's_lshl_b32 s{S_RB}, s{S_Q1}, 4'); a(f's_sub_u32 s{S_RB}, s{S_RB}, 64')
        a(f'v_mov_b32 v{C_NINF}, 0xff800000')
    for e in range(4): a(f'v_mov_b32 v{C_ONE+e}, 0x3f803f80')
    a(f'v_xor_b32 v{C_BP16}, 16, v1'); a(f'v_lshlrev_b32 v{C_BP16}, 2, v{C_BP16}')
    a(f'v_xor_b32 v{C_BP32}, 32, v1'); a(f'v_lshlrev_b32 v{C_BP32}, 2, v{C_BP32}')
    for e in range(8): a(f'v_mov_b32 v{C_NM+e}, {f32(OPT.get("nm0", -8.0))}'); a(f'v_mov_b32 v{C_L+e}, 0')
    NZ = OPT.get('nz', 40)
    for r in range(128-NZ): a(f'v_accvgpr_write_b32 a{r}, 0')
    if own: phaseC_begin(a, 2)
    if own:
        Lw = a.newlabel('FW'); Lw2 = a.newlabel('FW')
        a(f's_cmp_eq_u32 s{S_HASX}, 0'); a(f's_cbranch_scc1 {Lw}')
        a('s_waitcnt vmcnt(29)'); a(f's_branch {Lw2}')
        a.label(Lw); a('s_waitcnt vmcnt(12)'); a.label(Lw2)
    else:
        fetch_qx(a)
        phaseC_begin(a, 2)
        a('s_waitcnt vmcnt(12)')
    a('s_barrier')
    if after_first_wait: after_first_wait(a)
    n = 10
    NM2, NM3, NM4 = 7, 10, 0
    steps = []; start = {}; h2s = {}
    def hf(j): return own and j >= n-2
    LV = OPT.get('lvalu', False)
    cnt = [0]
    def nbuf():
        b = C_F + (cnt[0] % OPT.get('c_nb', 8))*4; cnt[0] += 1; return b
    def ksteps(j, cinit):
        S = C_S[j & 1]
        for kb in range(2):
            for s in range(8):
                buf = nbuf()
                rd = f'ds_read_b128 {vr(buf)}, v{C_KA} offset:{(j&1)*16384 + (kb*8+s)*1024}'
                pv = f'v_xor_b32 v{C_KA}, 0x8000, v{C_KA}' if (kb == 0 and s == 0 and (j & 1) == 0 and j > 0) else None
                mf = []
                for qb in ((1,) if hf(j) else (0, 1)):
                    d = vr(S + (kb*2+qb)*4)
                    c = d if s > 0 else (cinit if cinit is not None else vr(C_NM+4*qb))
                    mf.append(f'{MF} {d}, {vr(buf)}, {AQ((s*2+qb)*4)}, {c}')
                steps.append(Step(mf, [rd], prev=pv))
                if hf(j): steps[-1].wg = 2
    def vsteps(j):
        for db in range(16):
            buf = nbuf()
            rd = f'ds_read_b128 {vr(buf)}, v{C_VA} offset:{(j&1)*16384 + db*1024}'
            pv = f'v_xor_b32 v{C_VA}, 0x8000, v{C_VA}' if (db == 0 and (j & 1) == 0) else None
            qbs = (1,) if hf(j) else (0, 1)
            mf = [f'{MF} {ar((db*2+qb)*4)}, {vr(buf)}, {vr(C_P+4*qb)}, {ar((db*2+qb)*4)}' for qb in qbs]
            if db == 15 and not LV:
                mf += [f'{MF} {vr(C_L+4*qb)}, {vr(C_ONE)}, {vr(C_P+4*qb)}, {vr(C_L+4*qb)}' for qb in qbs]
            steps.append(Step(mf, [rd], prev=pv))
            if hf(j): steps[-1].wg = 2
    start[-1] = 0
    ksteps(0, None)
    for j in range(n):
        start[j] = len(steps)
        if j < n-1: ksteps(j+1, None)
        h2s[j] = len(steps)
        vsteps(j)
        tail = j - (n-6)
        vm = {0: 12, 1: 12, 2: 8, 3: (4 + NM2 if own else 4), 4: (NM2 + NM3 if own else 0)}.get(max(tail, 0), None)
        if vm is not None: steps[h2s[j]+2].pre += [f's_waitcnt vmcnt({vm})', 's_barrier']
        if j == n-1: steps[h2s[j]].block += softmax_ops(C_S[j & 1], (1,) if hf(j) else (0, 1)) + ['s_nop 1']
    start[n] = len(steps)
    sc = Sched(steps, LA=OPT.get('c_la', 7), wait_group=OPT.get('c_wg', 4), wait_first=True)
    for j in range(n):
        p = j & 1; h2 = h2s[j]; end = start[j+1] - 1; tail = j - (n-6)
        if j < n-1 and not hf(j+1):
            S = C_S[p]
            regs = [S + (kb*2+qb)*4 + e for qb in range(2) for kb in range(2) for e in range(4)]
            for k in range(16):
                sc.put(start[j]+k, 0, f'v_exp_f32 v{regs[k]}, v{regs[k]}')
                if k & 1: sc.put(start[j]+k, 1, f'v_cvt_pk_bf16_f32 v{C_P+k//2}, v{regs[k-1]}, v{regs[k]}')
            adds = [f'v_add_f32 v{C_L+4*(k//8)}, v{C_L+4*(k//8)}, v{regs[k]}' for k in range(16)] if LV else []
        elif j < n-1:
            S = C_S[p]
            regs = [S + (kb*2+qb)*4 + e for qb in ((1,) if hf(j) else (0, 1)) for kb in range(2) for e in range(4)]
            o = []
            for k in range(len(regs)):
                o.append(f'v_exp_f32 v{regs[k]}, v{regs[k]}')
                if k >= 2 and k % 2 == 0: o.append(f'v_cvt_pk_bf16_f32 v{C_P+(4 if hf(j) else 0)+(k-2)//2}, v{regs[k-2]}, v{regs[k-1]}')
            o += ['s_nop 0', f'v_cvt_pk_bf16_f32 v{C_P+7}, v{regs[-2]}, v{regs[-1]}']
            sc.place(o, start[j], h2-3)
            adds = [f'v_add_f32 v{C_L+(4 if hf(j) else 4*(k//8))}, v{C_L+(4 if hf(j) else 4*(k//8))}, v{regs[k]}' for k in range(len(regs))] if LV else []
        else:
            S = C_S[p]
            regs = [S + (kb*2+qb)*4 + e for qb in ((1,) if hf(j) else (0, 1)) for kb in range(2) for e in range(4)]
            adds = [f'v_add_f32 v{C_L+(4 if hf(j) else 4*(k//8))}, v{C_L+(4 if hf(j) else 4*(k//8))}, v{regs[k]}' for k in range(len(regs))] if LV else []
        dv = C_dma('V', f's_add_u32 m0, s{S_PO if p==0 else S_PB}, {65536 + (16384 if p==0 else 0)}') if tail <= 2 else None
        dk = C_dma('K', f's_add_u32 m0, s{S_PB if p==0 else S_PO}, {16384 if p==0 else 0}') if tail <= 0 else None
        if dv:
            dv = flat(dv)
            sc.put(h2, 0, dv[0]); sc.put(h2, 0, dv[1])
            for x, st_ in zip(dv[2:], (2, 4, 5, 6)): sc.put(h2+st_, 0, x)
        else: sc.put(h2, 0, 's_nop 0')
        if dk:
            dk = flat(dk)
            sc.put(h2+7, 0, dk[0]); sc.put(h2+7, 0, dk[1])
            for x, st_ in zip(dk[2:], (8, 9, 10, 12)): sc.put(h2+st_, 0, x)
        if own:
            ml = merge_loads()
            if tail == 2: sc.place(ml[:NM2], h2+7, end)
            if tail == 3: sc.place(ml[NM2:NM2+NM3], h2+2, end)
            if tail == 2: sc.place(D_setup_v(), start[j], h2-1)
            if tail == 3: sc.place(D_setup_s(), h2+2, end)
            d0 = D_dma(0)
            if tail == 4: sc.place(d0[:6], h2+2, end)
            if tail == 5: sc.place(d0[6:], h2, end)
        if p == 1:
            e = [f's_xor_b32 s{S_PB}, s{S_PB}, 0x8000', f's_xor_b32 s{S_PO}, s{S_PO}, 0x8000']
            if j < 4: e += [f's_sub_u32 s{S_CNT}, s{S_CNT}, 2', f's_cmp_lg_u32 s{S_CNT}, 0']
            sc.place(e, end-2, end)
        if j < n-1:
            Sn = C_S[p ^ 1]; ops = []
            if own and tail == 1: ops += [f'v_mov_b32 v{C_DV}, v{C_DV0}'] + mask_ops(Sn, 0)
            if own and tail == 2: ops += [f'v_subrev_u32 v{C_DV}, 32, v{C_DV0}'] + mask_ops(Sn, 0)
            if own and tail == 3: ops += [f'v_add_u32 v{C_DV}, s{S_RB}, v{C_DV0}'] + mask_ops(Sn, 1)
            if own and tail == 4: ops += [f'v_subrev_u32 v{C_DV}, 32, v{C_DV}'] + mask_ops(Sn, 1)
            if hf(j+1): ops = [f'v_mov_b32 v{Sn+kb*8+e}, 0' for kb in range(2) for e in range(4)] + ops
            ops += max_ops(Sn, hf(j+1)) + [f'v_cmp_lt_f32 vcc, s{S_THR}, v{C_TM}']
            sc.place(ops, h2+(5 if hf(j) else 3), end)
        if adds:
            if j < n-1 and not hf(j+1):
                k0 = 0
                for st_ in range(2, 16, 2):
                    g = sc.gidx[start[j]+st_] + 1
                    if len(sc.gaps[g]) == 1: sc.put(start[j]+st_, 1, adds[k0]); k0 += 1
                sc.place(adds[k0:], h2, end)
            else: sc.place(adds, h2, end)
    if NZ: sc.place([f'v_accvgpr_write_b32 a{r}, 0' for r in range(128-NZ, 128)], 0, 15)
    def text(j0, j1): return sc.text(start[j0], start[j1+1]-1)
    def emit_iter(j):
        tx = resolve_vm(text(j, j))
        if own and j == n-6:
            a(f's_lshl_b32 s{S_FP}, s{S_PAIR}, 8'); a(f's_add_u32 s{S_FP}, s{S_FP}, {hex(WS_FLG + 0x20000)}')
            a(poll_issue(S_FP))
        if own and j == n-4:
            L = a.newlabel('NMC')
            for x in merge_setup(): a(x.split('\n'))
            a(f's_cmp_eq_u32 s{S_TS}, 0'); a(f's_cbranch_scc1 {L}')
            a('s_waitcnt vmcnt(12)')
            spin_wait(a, S_FP, mask=1)
            a.label(L)
        ab = OPT.get('ablate', '')
        if 'dma' in ab: tx = [x for x in tx if not (x.startswith('buffer_load') or 'vmcnt' in x)]
        if 'bar' in ab: tx = [x for x in tx if not x.startswith('s_barrier')]
        if 'exp' in ab: tx = [x for x in tx if not x.startswith('v_exp')]
        if 'max' in ab: tx = [x for x in tx if not x.startswith('v_max')]
        if 'read' in ab: tx = [x for x in tx if not (x.startswith('ds_read') or 'lgkmcnt' in x)]
        a(tx)
        if j < n-1 and not ab:
            Lb = a.newlabel('CB'); Ls = a.newlabel('CS')
            a(f's_cbranch_vccnz {Ls}')
            a.label(Lb)
            rl['stubs'].append((Ls, Lb, (j&1)^1))
    assert text(0, 1) == text(2, 3), 'not periodic'
    print('phaseC overflow per pair', sc.overflow(start[2], start[4]-1))
    if own: stamp(a, 14)
    a(sc.pre)
    a(text(-1, -1))
    if own: stamp(a, 15)
    if own:
        Lx = a.newlabel('FX')
        a(f's_cmp_eq_u32 s{S_HASX}, 0'); a(f's_cbranch_scc1 {Lx}')
        a('s_waitcnt vmcnt(12)')
        a.label(Lx)
    a('s_barrier')
    if own: publish_flag(a)
    a(flat(C_dma('V', f's_add_u32 m0, s{S_W4K}, {65536+2*16384}') + C_dma('K', f's_mov_b32 m0, s{S_W4K}')))
    if own: a(mask_ops(C_S[0], 0))
    S0 = C_S[0]
    for qb in range(2):
        r = [S0 + (kb*2+qb)*4 + e for kb in range(2) for e in range(4)]
        d = C_T + qb
        a(f'v_max3_f32 v{d}, v{r[0]}, v{r[1]}, v{r[2]}'); a(f'v_max3_f32 v{d}, v{d}, v{r[3]}, v{r[4]}')
        a(f'v_max3_f32 v{d}, v{d}, v{r[5]}, v{r[6]}'); a(f'v_max_f32 v{d}, v{d}, v{r[7]}')
    a(f'v_max_f32 v{C_T}, abs(v{C_T}), abs(v{C_T+1})')
    a(f'v_cmp_nge_f32 vcc, s{S_THR}, v{C_T}')
    Lb = a.newlabel('CB'); Ls = a.newlabel('CS')
    a(f's_cbranch_vccnz {Ls}')
    a.label(Lb)
    rl['stubs'].append((Ls, Lb, 'first'))
    if own: stamp(a, 16)
    Ltail4 = a.newlabel('CT4'); Ltail = a.newlabel('CT6'); Lloop = a.newlabel('CL')
    if own:
        a(f's_cmp_eq_u32 s{S_N}, 4'); a(f's_cbranch_scc1 {Ltail4}')
    a(f's_sub_u32 s{S_CNT}, s{S_N}, 6')
    a(f's_cmp_eq_u32 s{S_CNT}, 0'); a(f's_cbranch_scc1 {Ltail}')
    a.label(Lloop)
    emit_iter(2); emit_iter(3)
    a(f's_cbranch_scc1 {Lloop}')
    a.label(Ltail)
    if own: stamp(a, 17)
    emit_iter(4); emit_iter(5)
    if own: a.label(Ltail4)
    for j in range(6, 10): emit_iter(j)

def rare_subs(a, rl):
    for (Ls, Lb, p) in rl['stubs']:
        a.label(Ls)
        a(f's_cselect_b32 s{S_T+8}, 1, 0')
        a(f's_getpc_b64 s[{S_RET}:{S_RET+1}]')
        Lp = a.newlabel('CP'); a.label(Lp)
        a(f's_sub_u32 s{S_RET}, s{S_RET}, {Lp}-{Lb}'); a(f's_subb_u32 s{S_RET+1}, s{S_RET+1}, 0')
        a(f's_branch {rl[p]}')
    a.label(rl['first'])
    rare_path(a, C_S[0], True)
    a(f's_setpc_b64 s[{S_RET}:{S_RET+1}]')
    for p in range(2):
        a.label(rl[p])
        rare_path(a, C_S[p], False)
        a(f's_cmp_lg_u32 s{S_T+8}, 0')
        a(f's_setpc_b64 s[{S_RET}:{S_RET+1}]')

def op_base(a, d):
    a(f's_mul_i32 s{d}, s{S_PAIR}, {OP_PAIR}'); a(f's_mul_i32 s{d+1}, s{S_WAVE}, {OP_WAVE}')
    a(f's_add_u32 s{d}, s{d}, s{d+1}'); a(f's_add_u32 s{d}, s{d}, {hex(WS_OP)}')

def l_reduce(a):
    if not OPT.get('lvalu', False): return
    for bp in (C_BP16, C_BP32):
        for qb in range(2): a(f'ds_bpermute_b32 v{C_L+4*qb+1}, v{bp}, v{C_L+4*qb}')
        a('s_waitcnt lgkmcnt(0)')
        for qb in range(2): a(f'v_add_f32 v{C_L+4*qb}, v{C_L+4*qb}, v{C_L+4*qb+1}')

def publish_stores(a):
    t = S_T
    a('s_nop 7')
    l_reduce(a)
    op_base(a, t)
    a(f's_add_u32 s{t+1}, s{t}, 32768')
    a(f'v_mov_b32 v{C_T}, v{C_NM}'); a(f'v_mov_b32 v{C_T+1}, v{C_NM+4}'); a(f'v_mov_b32 v{C_T+2}, v{C_L}'); a(f'v_mov_b32 v{C_T+3}, v{C_L+4}')
    a(f'buffer_store_dwordx4 {vr(C_T)}, v{V_L16}, {sr(S_WS)}, s{t+1} offen sc1')
    for k in range(16):
        if k % 4 == 0 and k: a(f's_add_u32 s{t}, s{t}, 4096')
        tb = 32 + 16*(k & 1)
        for e in range(8): a(f'v_accvgpr_read_b32 v{tb+e}, a{8*k+e}')
        for e in range(4): a(f'v_cvt_pk_bf16_f32 v{tb+8+e}, v{tb+2*e}, v{tb+2*e+1}')
        a(f'buffer_store_dwordx4 {vr(tb+8)}, v{V_L16}, {sr(S_WS)}, s{t} offen offset:{1024*(k%4)} sc1')
    a('s_nop 1')

def publish_flag(a):
    L = a.newlabel('PF')
    a(f's_cmp_eq_u32 s{S_HASX}, 0'); a(f's_cbranch_scc1 {L}')
    a(f's_lshl_b32 s{S_T}, s{S_PAIR}, 8'); a(f's_add_u32 s{S_T}, s{S_T}, {hex(WS_FLG + 0x20000)}')
    a(f'buffer_store_dword v{V_NONCE}, v{V_SIG}, {sr(S_WS)}, s{S_T} offen sc1')
    a.label(L)

D_CTX = 32
D_WF, D_NB = 176, 8
D_ACC = 128
D_PK = 160
D_VO = 120
D_RA, D_RB = 20, 24
D_ST1 = 28
DSLOT = 49152
S_MB = 71
C_ML = 124

def merge_setup():
    t = S_T + 4
    return [f's_mul_i32 s{S_MB}, s{S_PAIR}, {OP_PAIR}', f's_mul_i32 s{t}, s{S_WAVE}, {OP_WAVE}',
            f's_add_u32 s{S_MB}, s{S_MB}, s{t}', f's_add_u32 s{S_MB}, s{S_MB}, {hex(WS_OP)}',
            f's_cmp_eq_u32 s{S_TS}, 0\ns_cselect_b32 s{S_MB}, 0x70000000, s{S_MB}']

def merge_loads():
    t = S_T + 4
    g = [[f's_add_u32 s{t}, s{S_MB}, 32768', f'buffer_load_dwordx4 {vr(C_ML)}, v{V_L16}, {sr(S_WS)}, s{t} offen sc1']]
    for k in range(16):
        pre = [f's_add_u32 s{S_MB}, s{S_MB}, 4096'] if (k % 4 == 0 and k) else []
        g.append(pre + [f'buffer_load_dwordx4 {vr(C_MRG+4*k)}, v{V_L16}, {sr(S_WS)}, s{S_MB} offen offset:{1024*(k%4)} sc1'])
    return g

def D_setup_v(): return D_setup()[:12]
def D_setup_s(): return D_setup()[12:]
def D_setup():
    t = S_T + 5
    r = ['v_lshrrev_b32 v2, 3, v1', 'v_mul_u32_u24 v3, 896, v2', 'v_bfe_u32 v2, v1, 4, 2', f'v_bfe_u32 v{D_VO}, v1, 1, 2', f'v_xor_b32 v2, v2, v{D_VO}',
         f'v_and_b32 v{D_VO}, 1, v1', f'v_lshl_add_u32 v2, v2, 1, v{D_VO}', 'v_lshl_add_u32 v3, v2, 4, v3']
    r += [f'v_add_u32 v{D_VO+i}, {i*(8*896-1024)}, v3' for i in range(4)]
    r += [f's_lshl_b32 s{t}, s{S_H}, 8', f's_lshl_b32 s{t+1}, s{S_WAVE}, 6', f's_add_u32 s{t}, s{t}, s{t+1}', f's_mul_i32 s{S_DO}, s{t}, 896',
          f's_lshl_b32 s{t+1}, s{S_WAVE}, 5', f's_add_u32 s{t}, s{S_F0}, s{t+1}', f's_mul_i32 s{S_D2}, s{t}, 896']
    return r

def finalize(a):
    t = S_T
    Lno = a.newlabel('NOMRG'); Ldone = a.newlabel('FIN')
    l_reduce(a)
    a(f's_cmp_lg_u32 s{S_TS}, 0'); a(f's_cbranch_scc0 {Lno}')
    a('s_waitcnt vmcnt(24)')
    a(f's_mov_b32 s{t}, 0xffff0000')
    for qb in range(2):
        nm_a = C_NM + 4*qb; nm_b = C_ML + qb; l_a = C_L + 4*qb; l_b = C_ML + 2 + qb
        sa = 8 + 2*qb; sb = 16 + 2*qb
        a(f'v_min_f32 v2, v{nm_a}, v{nm_b}')
        a(f'v_sub_f32 v3, v2, v{nm_a}'); a(f'v_exp_f32 v{sa}, v3')
        a(f'v_sub_f32 v3, v2, v{nm_b}'); a(f'v_exp_f32 v{sb}, v3')
        a('s_nop 0')
        a(f'v_mul_f32 v2, v{sa}, v{l_a}'); a(f'v_fmac_f32 v2, v{sb}, v{l_b}')
        a('v_rcp_f32 v2, v2'); a('s_nop 0')
        a(f'v_mul_f32 v{sa}, v{sa}, v2'); a(f'v_mul_f32 v{sb}, v{sb}, v2')
        a(f'v_mov_b32 v{sa+1}, v{sa}'); a(f'v_mov_b32 v{sb+1}, v{sb}')
    k = 0
    for s in range(8):
        for qb in range(2):
            for half in range(2):
                o = ((2*s+half)*2+qb)*4; tb = 12 if k & 1 else 20; k += 1
                for e in range(4): a(f'v_accvgpr_read_b32 v{tb+e}, a{o+e}')
                for e in range(2):
                    a(f'v_lshlrev_b32 v{24+2*e}, 16, v{C_MRG+o//2+e}'); a(f'v_and_b32 v{25+2*e}, s{t}, v{C_MRG+o//2+e}')
                for e in (0, 2): a(f'v_pk_mul_f32 {vr(tb+e,2)}, {vr(tb+e,2)}, {vr(8+2*qb,2)}')
                for e in (0, 2): a(f'v_pk_fma_f32 {vr(tb+e,2)}, {vr(24+e,2)}, {vr(16+2*qb,2)}, {vr(tb+e,2)}')
                for e in range(2): a(f'v_cvt_pk_bf16_f32 v{D_CTX+(s*2+qb)*4+2*half+e}, v{tb+2*e}, v{tb+2*e+1}')
    a(f's_branch {Ldone}')
    a.label(Lno)
    for qb in range(2): a(f'v_rcp_f32 v{8+2*qb}, v{C_L+4*qb}')
    a('s_nop 0')
    for qb in range(2): a(f'v_mov_b32 v{9+2*qb}, v{8+2*qb}')
    for s in range(8):
        for qb in range(2):
            for half in range(2):
                o = ((2*s+half)*2+qb)*4; tb = 12 if k & 1 else 20; k += 1
                for e in range(4): a(f'v_accvgpr_read_b32 v{tb+e}, a{o+e}')
                for e in (0, 2): a(f'v_pk_mul_f32 {vr(tb+e,2)}, {vr(tb+e,2)}, {vr(8+2*qb,2)}')
                for e in range(2): a(f'v_cvt_pk_bf16_f32 v{D_CTX+(s*2+qb)*4+2*half+e}, v{tb+2*e}, v{tb+2*e+1}')
    a.label(Ldone)

def D_dma(tile):
    t = S_T; sl = (tile % 3)*DSLOT
    g = []
    for half in range(2):
        first = [f's_lshl_b32 s{t}, s{S_W4K}, 1'] if half == 0 else []
        first += [f's_add_u32 m0, s{t}, {sl + 4096*half}', f's_add_u32 s{t+1}, s{S_DO}, {half*32*896 + tile*128}']
        for i in range(4):
            g.append((first if i == 0 else []) + [f'buffer_load_dwordx4 v{D_VO+i}, {sr(S_WO)}, s{t+1} offen offset:{1024*i} lds'])
    first = [f's_add_u32 m0, s{S_W4K}, {sl + 32768}', f's_add_u32 s{t+1}, s{S_D2}, {tile*128}']
    for i in range(4):
        g.append((first if i == 0 else []) + [f'buffer_load_dwordx4 v{D_VO+i}, {sr(S_W2)}, s{t+1} offen offset:{1024*i} lds'])
    return tag(g, f'T{tile}')

def phaseD_begin(a):
    a('s_barrier')
    a(resolve_vm(flat(D_dma(1))))

def phaseD(a, nks):
    t = S_T
    a('v_lshrrev_b32 v2, 2, v1'); a('v_bfe_u32 v3, v1, 3, 2')
    a('v_and_b32 v8, 3, v1'); a('v_lshlrev_b32 v8, 3, v8'); a('v_lshl_add_u32 v8, v2, 7, v8')
    for c in range(4):
        a(f'v_xor_b32 v2, {c}, v3'); a(f'v_lshl_add_u32 v{D_RB+c}, v2, 5, v8')
    a(f's_lshl_b32 s{t}, s{S_OWN}, 3'); a(f's_add_u32 s{t}, s{t}, s{S_WAVE}'); a(f's_mul_i32 s{t}, s{t}, {14*16384}')
    a(f's_lshl_b32 s{t+1}, s{S_H}, 10'); a(f's_add_u32 s{t}, s{t}, s{t+1}')
    a(f's_add_u32 s{S_PRT}, s{t}, {hex(WS_PART)}')
    a(f's_mul_i32 s{t}, s{S_Q1}, {14*16384}'); a(f'v_add_u32 v{D_ST1}, s{t}, v{V_L16}')
    steps = []
    for tile in range(7):
        sl = tile % 3
        for c in range(4):
            for ks in range(nks):
                buf = D_WF + (len(steps) % D_NB)*4
                rd = [f'ds_read_b64_tr_b16 {vr(buf+2*h,2)}, v{D_RA+c} offset:{4096*ks+2048*h}' for h in range(2)]
                pv = f'v_add_u32 v{D_RA+c}, {sl*DSLOT}, v{D_RB+c}' if ks == 0 else None
                mf = []
                for qb in range(2):
                    d = vr(D_ACC + (c*2+qb)*4)
                    b = vr(D_CTX + (ks*2+qb)*4) if ks < 8 else ar(A_H + ((ks-8)*2+qb)*4)
                    mf.append(f'{MF} {d}, {vr(buf)}, {b}, {d if ks else "0"}')
                steps.append(Step(mf, rd, prev=pv))
    nst = 4*nks; LA = 6
    bp = {}
    for tile in range(6):
        bp[tile] = (tile+1)*nst - LA - 1
        steps[bp[tile]].pre += [f's_waitcnt vmcnt(@T{tile+1})', 's_barrier']
        for f in range(nst): steps[(tile+1)*nst+f].gate = bp[tile]
    FUSE = OPT.get('fuse_r', True)
    if FUSE:
        bp[6] = 7*nst - LA - 1
        steps[bp[6]].pre += ['s_barrier']
        for tile in range(1, 7): steps[bp[tile]].pre.insert(0, f's_waitcnt vmcnt(@P{2*tile-1-OPT.get("plag", 0)})')
        a(f's_lshl_b32 s{S_FP}, s{S_OWN}, 12'); a(f's_add_u32 s{S_FP}, s{S_FP}, {hex(WS_FLG + 0x40000)}')
        a(f's_lshl_b32 s{S_MB}, s{S_H}, 2'); a(f's_add_u32 s{S_MB}, s{S_MB}, s{S_FP}')
    sc = Sched(steps, LA=LA, wait_group=2)
    if FUSE:
        for tile in range(1, 7):
            sc.place([f'v_add_u32 v{8+(tile&1)}, {2*tile-OPT.get("plag", 0)}, v{V_NONCE}', f'buffer_store_dword v{8+(tile&1)}, v{V_SIG}, {sr(S_WS)}, s{S_MB} offen sc1'], bp[tile], bp[tile]+1)
    sc.place(D_dma(2), 0, 24)
    for tile in range(1, 5): sc.place(D_dma(tile+2), bp[tile], bp[tile]+OPT.get('d_dw', 16))
    tail_ops = None
    for tile in range(7):
        for cp in range(2):
            v = tile*2 + cp
            endstep = (tile*4 + cp*2 + 2)*nks
            ops = []
            for qb in range(2):
                pk = D_PK + (cp*2+qb)*4
                for half in range(2):
                    src = D_ACC + ((cp*2+half)*2+qb)*4
                    for e in range(2): ops.append(f'v_cvt_pk_bf16_f32 v{pk+2*half+e}, v{src+2*e}, v{src+2*e+1}')
                st = [f's_add_u32 s{t+4}, s{S_PRT}, {v*16384}'] if qb == 0 else []
                ops.append(st + [f'buffer_store_dwordx4 {vr(pk)}, v{V_L16 if qb==0 else D_ST1}, {sr(S_WS)}, s{t+4} offen sc1 ;@P{v}'])
            if endstep + 3 < len(steps): sc.place(ops, endstep+3, endstep+12)
            else: tail_ops = ops
    print('phaseD overflow', sc.overflow(0, len(steps)-1))
    head = flat(D_dma(0) + D_dma(1))
    body = resolve_vm(head + ['MARK', 's_waitcnt vmcnt(@T0)', 's_barrier'] + sc.pre + sc.text(0, len(steps)-1))
    a(body[body.index('MARK')+1:])
    a('s_nop 7')
    a(resolve_vm(flat(tail_ops)))

def phaseR(a, Lend):
    t = S_T
    S_OUT, S_B2 = S_CKV, S_W
    S_CT, S_U, S_IT, S_MSK = 57, 58, 59, 60
    a(f's_load_dwordx4 s[{t+4}:{t+7}], s[0:1], 80')
    a('s_waitcnt vmcnt(0)')
    a('s_barrier')
    a(f'v_add_u32 v8, 14, v{V_NONCE}')
    a(f'buffer_store_dword v8, v{V_SIG}, {sr(S_WS)}, s{S_MB} offen sc1')
    stamp(a, 13)
    a('s_waitcnt lgkmcnt(0)')
    srd(a, S_B2, t+4, 448*2); srd(a, S_OUT, t+6, 2048*448*2)
    a(f's_add_u32 s{S_CT}, s{S_FP}, 0x10000')
    a(f's_mov_b32 s{S_IT}, 0'); a(f's_mov_b32 s{S_MSK}, 0xffff0000')
    a('v_and_b32 v10, 15, v1'); a('v_mul_u32_u24 v10, 896, v10'); a('v_lshrrev_b32 v11, 4, v1'); a('v_lshlrev_b32 v11, 3, v11')
    a('v_add_u32 v10, v10, v11')
    def wait_prog(need_sgpr):
        Ls = a.newlabel('RP'); Lo = a.newlabel('RP')
        a(f's_mov_b32 s{t+1}, 0')
        a(f's_sub_u32 s{t+2}, 14, s{need_sgpr}')
        a.label(Ls)
        a(poll_issue(S_FP))
        a('s_waitcnt vmcnt(0)')
        a(f'v_sub_u32 v2, v{V_POLL}, v{V_NONCE}'); a(f'v_subrev_u32 v2, s{need_sgpr}, v2')
        a(f'v_cmp_ge_u32 vcc, s{t+2}, v2')
        a(f's_and_b32 s{t}, vcc_lo, 0xffff')
        a(f's_cmp_eq_u32 s{t}, 0xffff'); a(f's_cbranch_scc1 {Lo}')
        a(f's_sleep {OPT.get("rsleep", 3)}')
        a(f's_add_u32 s{t+1}, s{t+1}, 1')
        a(f's_cmp_lt_u32 s{t+1}, 20000'); a(f's_cbranch_scc1 {Ls}')
        a.label(Lo)
    Lloop = a.newlabel('RL'); Lsk = a.newlabel('RS'); Lw = a.newlabel('RW'); Lf = a.newlabel('RF')
    a(f's_cmp_lg_u32 s{S_WAVE}, 0'); a(f's_cbranch_scc1 {Lloop}')
    a(f's_mov_b32 s{t+3}, 1')
    wait_prog(t+3)
    a.label(Lloop)
    a(f'v_mov_b32 v12, s{S_IT}')
    a(f's_cmp_lg_u32 s{S_WAVE}, 0'); a(f's_cbranch_scc1 {Lsk}')
    a('v_mov_b32 v3, 1')
    a(f'buffer_atomic_add v3, v{V_SIG}, {sr(S_WS)}, s{S_CT} offen sc0 sc1')
    a('s_waitcnt vmcnt(0)')
    a(f'v_readfirstlane_b32 s{S_U}, v3')
    a(f's_cmp_ge_u32 s{S_U}, 28'); a(f's_cbranch_scc1 {Lw}')
    a(f's_lshr_b32 s{t+3}, s{S_U}, 1'); a(f's_add_u32 s{t+3}, s{t+3}, 1')
    wait_prog(t+3)
    a.label(Lw)
    a(f'v_mov_b32 v3, s{S_U}')
    a('ds_write_b32 v12, v3')
    a('s_waitcnt lgkmcnt(0)')
    a.label(Lsk)
    a('s_barrier')
    a('ds_read_b32 v3, v12')
    a('s_waitcnt lgkmcnt(0)')
    a(f'v_readfirstlane_b32 s{S_U}, v3')
    a(f's_xor_b32 s{S_IT}, s{S_IT}, 4')
    a(f's_cmp_ge_u32 s{S_U}, 28'); a(f's_cbranch_scc1 {Lf}')
    a(f's_and_b32 s{t}, s{S_U}, 1'); a(f's_lshl_b32 s{t}, s{t}, 2'); a(f's_add_u32 s{t}, s{t}, s{S_WAVE}')
    a(f's_lshl_b32 s{t+1}, s{S_OWN}, 3'); a(f's_add_u32 s{t}, s{t}, s{t+1}')
    a(f's_lshr_b32 s{t+1}, s{S_U}, 1')
    a(f's_mul_i32 s{t+2}, s{t}, 14'); a(f's_add_u32 s{t+2}, s{t+2}, s{t+1}'); a(f's_lshl_b32 s{t+2}, s{t+2}, 14')
    a(f's_add_u32 s{t+2}, s{t+2}, {hex(WS_PART)}')
    for h in range(16):
        a(f'buffer_load_dwordx4 {vr(32+4*h)}, v{V_L16}, {sr(S_WS)}, s{t+2} offen offset:{(h%4)*1024} sc1')
        if h % 4 == 3 and h < 15: a(f's_add_u32 s{t+2}, s{t+2}, 4096')
    a(f's_mul_i32 s{t}, s{t}, {16*896}'); a(f's_lshl_b32 s{t+1}, s{t+1}, 6'); a(f's_add_u32 s{t}, s{t}, s{t+1}')
    a(f'buffer_load_dwordx2 v[96:97], v10, {sr(S_XIN)}, s{t} offen')
    a(f'buffer_load_dwordx2 v[98:99], v10, {sr(S_XIN)}, s{t} offen offset:32')
    a(f'buffer_load_dwordx2 v[100:101], v11, {sr(S_B2)}, s{t+1} offen')
    a(f'buffer_load_dwordx2 v[102:103], v11, {sr(S_B2)}, s{t+1} offen offset:32')
    for h in range(18):
        a(f's_waitcnt vmcnt({19-h if h < 16 else (2 if h == 16 else 0)})')
        src = 32 + 4*h
        for i in range(4):
            if h == 0:
                a(f'v_lshlrev_b32 v{16+2*i}, 16, v{src+i}'); a(f'v_and_b32 v{17+2*i}, s{S_MSK}, v{src+i}')
            else:
                a(f'v_lshlrev_b32 v14, 16, v{src+i}'); a(f'v_and_b32 v15, s{S_MSK}, v{src+i}')
                a(f'v_add_f32 v{16+2*i}, v{16+2*i}, v14'); a(f'v_add_f32 v{17+2*i}, v{17+2*i}, v15')
    for i in range(4): a(f'v_cvt_pk_bf16_f32 v{24+i}, v{16+2*i}, v{17+2*i}')
    a(f'buffer_store_dwordx2 v[24:25], v10, {sr(S_OUT)}, s{t} offen')
    a(f'buffer_store_dwordx2 v[26:27], v10, {sr(S_OUT)}, s{t} offen offset:32')
    a(f's_cmp_lt_u32 s{S_U}, {OPT.get("u0", 20)}'); a(f's_cbranch_scc1 {Lloop}')
    a.label(Lf)
    if DBG[0]:
        a('s_waitcnt vmcnt(0)')
        stamp(a, 18)

def build_srds(a):
    P = PTR
    srd(a, S_WS, P+26, WS_BYTES); srd(a, S_CKV, P+2, 2048*1024*2); srd(a, S_XIN, P+0, 2048*448*2)
    a(f's_cmp_eq_u32 s{S_KVT}, 0')
    a(f's_cselect_b32 s{P+6}, s{P+6}, s{P+8}'); a(f's_cselect_b32 s{P+7}, s{P+7}, s{P+9}')
    srd(a, S_W, P+6, 1024*4096*2)
    srd(a, S_WQ, P+4, 448*4096*2); srd(a, S_W1, P+14, 448*1792*2); srd(a, S_WO, P+10, 4096*448*2)
    srd(a, S_W2, P+18, 1792*448*2); srd(a, S_B1, P+16, 1792*2); srd(a, S_DBG, P+24, 256)

def gen_mega(a, name='m_kernel', dbg=False):
    DBG[0] = dbg
    kstart(a, name)
    a.label('M_CODE_START')
    Lend = a.newlabel('MEND')
    Lgo = a.newlabel('GO')
    a('s_cmp_lt_u32 s2, 256'); a(f's_cbranch_scc1 {Lgo}')
    a('s_endpgm')
    a.label(Lgo)
    a(f's_load_dwordx16 s[{PTR}:{PTR+15}], s[0:1], 0')
    a(f's_load_dwordx8 s[{PTR+16}:{PTR+23}], s[0:1], 64')
    a(f's_load_dwordx4 s[{PTR+24}:{PTR+27}], s[0:1], 96')
    Lp = a.newlabel('PC')
    a(f's_getpc_b64 s[{S_PC}:{S_PC+1}]')
    a.label(Lp)
    a(f's_sub_u32 s{S_PC}, s{S_PC}, {Lp}-M_CODE_START'); a(f's_subb_u32 s{S_PC+1}, s{S_PC+1}, 0')
    a(flat(code_pf(0, OPT.get('cpf0', 1), 200)))
    if OPT.get('cpfs'):
        ns = OPT['cpfs']; per = (OPT.get('codekb', 112)*1024 // ns) // 128
        a('s_lshr_b32 s4, s2, 3'); a(f's_and_b32 s4, s4, {ns-1}'); a(f's_mul_i32 s4, s4, {per*128}')
        a(f'v_min_u32 v200, {per-1}, v0'); a('v_lshlrev_b32 v200, 7, v200'); a('v_add_u32 v200, s4, v200')
        a('v_min_u32 v200, M_CODE_END-M_CODE_START-4, v200')
        a(f'global_load_dword v31, v200, s[{S_PC}:{S_PC+1}]')
    a('v_and_b32 v1, 63, v0')
    a('v_lshrrev_b32 v2, 6, v0')
    a(f'v_lshlrev_b32 v{V_L16}, 4, v1')
    a(f'v_readfirstlane_b32 s{S_WAVE}, v2')
    t = 4
    a(f's_and_b32 s{t}, s2, 7'); a(f's_lshr_b32 s{t+1}, s2, 3'); a(f's_and_b32 s{t+2}, s{t+1}, 1')
    if OPT.get('xswap'): a(f's_xor_b32 s{t}, s{t}, {OPT["xswap"]}')
    a(f's_lshl_b32 s{t}, s{t}, 1'); a(f's_add_u32 s{S_H}, s{t}, s{t+2}')
    a(f's_lshr_b32 s{t+1}, s{t+1}, 1'); a(f's_and_b32 s{S_ROLE}, s{t+1}, 1'); a(f's_lshr_b32 s{S_I}, s{t+1}, 1')
    a(f's_lshl_b32 s{S_W4K}, s{S_WAVE}, 12'); a(f's_lshl_b32 s{S_W2K}, s{S_WAVE}, 11')
    a(f's_lshl_b32 s{S_PAIR}, s{S_H}, 3'); a(f's_add_u32 s{S_PAIR}, s{S_PAIR}, s{S_I}')
    a(f's_lshl_b32 s{S_FKV}, s{S_H}, 12'); a(f's_add_u32 s{S_FKV}, s{S_FKV}, {hex(WS_FLG)}')
    lo = sum(T0[i] << (8*i) for i in range(4)); hi = sum(T0[4+i] << (8*i) for i in range(4))
    a(f's_mov_b32 s{t}, {hex(lo)}'); a(f's_mov_b32 s{t+1}, {hex(hi)}')
    a(f's_lshl_b32 s{t+2}, s{S_I}, 3'); a(f's_lshr_b64 s[{t}:{t+1}], s[{t}:{t+1}], s{t+2}'); a(f's_and_b32 s{S_T0}, s{t}, 0xff')
    a(f's_sub_u32 s{S_EXT}, 15, s{S_I}')
    a(f's_cmp_eq_u32 s{S_ROLE}, 0'); a(f's_cselect_b32 s{S_OWN}, s{S_EXT}, s{S_I}')
    a(f's_mul_i32 s{S_HASX}, s{S_ROLE}, s{S_T0}')
    a(f's_mov_b32 s{S_QSC}, {f32(1.4426950408889634/16)}')
    a(f's_mov_b32 s{S_THR}, {f32(16.0)}')
    a('v_mov_b32 v3, 0x7fffff00'); a('v_cmp_eq_u32 vcc, 0, v0'); a(f'v_mov_b32 v{V_NONCE}, 0')
    a('v_lshlrev_b32 v2, 2, v0')
    a(f'v_cndmask_b32 v{V_SIG}, v3, 0, vcc')
    a('v_cmp_gt_u32 vcc, 16, v0'); a('s_nop 1')
    a(f'v_cndmask_b32 v{V_SIG16}, v3, v2, vcc')
    hist = phaseA(a)
    SPLIT = OPT.get('fsplit', False)
    def two(fn_even, fn_odd):
        if not SPLIT: fn_even(); return
        Lo = a.newlabel('OD'); Le = a.newlabel('EV')
        a(f's_cmp_lg_u32 s{S_ODD}, 0'); a(f's_cbranch_scc1 {Lo}')
        fn_even(); a(f's_branch {Le}')
        a.label(Lo); fn_odd(); a.label(Le)
    two(lambda: phaseB_main(a, True, hist, 8 if SPLIT else 7), lambda: phaseB_main(a, True, hist, 6))
    Lown = a.newlabel('OWN'); Lown2 = a.newlabel('OWN2')
    rl = {0: a.newlabel('RARE'), 1: a.newlabel('RARE'), 'first': a.newlabel('RARE'), 'stubs': []}
    def qsc(): a(f'v_mov_b32 v{B_QS}, s{S_QSC}'); a(f'v_mov_b32 v{B_QS+1}, s{S_QSC}')
    def own_params():
        a(f's_lshl_b32 s{S_RB}, s{S_OWN}, 2'); a(f's_add_u32 s{S_N}, s{S_RB}, 4'); a(f's_add_u32 s{S_RB}, s{S_RB}, s{S_WAVE}')
        a(f's_cmp_eq_u32 s{S_ROLE}, 0'); a(f's_cselect_b32 s{S_TS}, s{S_T0}, 0')
        a(f's_sub_u32 s{S_N}, s{S_N}, s{S_TS}')
    qsc()
    a(f's_sub_u32 s{S_PUBQ}, s{S_T0}, s{S_HASX}')
    own_params()
    a(f's_cmp_lg_u32 s{S_HASX}, 0'); a(f's_cselect_b32 s{S_N}, s{S_T0}, s{S_N}')
    phaseB_epi(a)
    a('s_waitcnt vmcnt(16)')
    spin_wait(a, S_FP)
    stamp(a, 8)
    phaseC_begin(a, 1)
    two(lambda: phaseB_epi_h(a, 8 if SPLIT else 7), lambda: phaseB_epi_h(a, 6))
    Lq = a.newlabel('QF')
    a(f's_cmp_eq_u32 s{S_PUBQ}, 0'); a(f's_cbranch_scc1 {Lq}')
    a('s_waitcnt vmcnt(12)')
    a('s_barrier')
    a(f's_lshl_b32 s{S_T}, s{S_PAIR}, 8'); a(f's_add_u32 s{S_T}, s{S_T}, {hex(WS_FLG + 0x30000)}')
    a(f'buffer_store_dword v{V_NONCE}, v{V_SIG}, {sr(S_WS)}, s{S_T} offen sc1')
    a.label(Lq)
    stamp(a, 5)
    a(f's_cmp_eq_u32 s{S_HASX}, 0'); a(f's_cbranch_scc1 {Lown2}')
    phaseC(a, False, rl, after_first_wait=lambda a: stamp(a, 6))
    stamp(a, 9)
    own_params()
    phaseC_begin(a, 1)
    publish_stores(a)
    a.label(Lown2)
    stamp(a, 10)
    t = S_T
    def afw(a):
        if OPT.get('pfd_c0'): a(flat(pfD(2)))
        if OPT.get('pfd_big', True): pfD_big(a)
    phaseC(a, True, rl, after_first_wait=afw)
    a.label('M_D_START')
    stamp(a, 11)
    phaseD_begin(a)
    finalize(a)
    stamp(a, 12)
    two(lambda: phaseD(a, 12), lambda: phaseD(a, 11))
    if OPT.get('fuse_r', True): phaseR(a, Lend)
    elif dbg:
        a('s_waitcnt vmcnt(0)')
        stamp(a, 13)
    a.label(Lend)
    a('s_endpgm')
    rare_subs(a, rl)
    a.label('M_CODE_END')
    kdesc(a, name, 512, 256, sgpr=102)
```

```python
from asmlib import *
from layout import *
from sched import *
import struct

def f32(x): return hex(struct.unpack('<I', struct.pack('<f', x))[0])
MF = 'v_mfma_f32_16x16x32_bf16'
DBG = [False]
def KT_(): return OPT.get('kvtile', 32768)
def KH_(): return 64*KT_() + OPT.get('kvhpad', 0)
OPT = dict(kv_sc1=True, a_pf=0, tlb=False, cpf0=0, cpfs=8, kvs=2, vs=3)

S_WS, S_CKV, S_W, S_WQ, S_W1, S_WO, S_W2, S_B1, S_XIN, S_DBG = 4, 8, 12, 16, 20, 24, 28, 32, 36, 40
S_WAVE, S_H, S_ROLE, S_I, S_OWN, S_EXT, S_T0, S_HASX, S_W4K, S_W2K, S_PAIR, S_QSC, S_THR = range(44, 57)
S_KVT, S_KT = S_ROLE, S_I
S_SOX, S_SOW, S_DX, S_RX, S_CNT = 57, 58, 59, 60, 61
S_XO, S_KVO = 71, 62
S_DL = 86
S_KO, S_VO, S_PB, S_PO, S_RB, S_TS, S_N = 57, 58, 59, 60, 62, 63, 64
S_DO, S_D2, S_DS, S_PRT = 57, 58, 59, 60
S_FKV = 65
S_FP = 70
S_PUBQ = 68
S_F0, S_ODD = 98, 99
S_KVS, S_VS = 100, 101
S_Q1 = 3
S_PC = 66
S_T = 72
S_RET = 84
S_MK = 86
S_ST = 94
PTR = 72
V_L16, V_SIG, V_NONCE, V_POLL = 4, 5, 6, 7
V_SIG16, V_DUM = 30, 31
V_H = 128
A_QX, A_H = 128, 192
V_QO = 128
CNT_KV, CNT_XN = 128, 192

def stamp(a, idx, dyn=None):
    if not DBG[0]: return
    L = a.newlabel('ST')
    a(f's_cmp_lg_u32 s{S_WAVE}, 0'); a(f's_cbranch_scc1 {L}')
    a(f's_memtime s[{S_ST}:{S_ST+1}]'); a(f's_memrealtime s[{S_ST+2}:{S_ST+3}]')
    a('s_waitcnt lgkmcnt(0)')
    a(f'v_mov_b32 v2, s{S_ST}'); a(f'v_mov_b32 v3, s{S_ST+2}')
    a(f's_lshl_b32 s{S_ST}, s2, 8'); a(f's_add_u32 s{S_ST}, s{S_ST}, {hex(WS_DBG + idx*8)}')
    if dyn is not None:
        a(f's_lshl_b32 s{S_ST+1}, s{dyn}, 3'); a(f's_add_u32 s{S_ST}, s{S_ST}, s{S_ST+1}')
    a(f'buffer_store_dwordx2 v[2:3], v{V_SIG}, {sr(S_WS)}, s{S_ST} offen')
    a('s_nop 1')
    a.label(L)

def code_pf(off, n, vt):
    g = []
    for i in range(n):
        g.append([f'v_lshlrev_b32 v{vt}, 7, v0', f'v_add_u32 v{vt}, {off + i*32768}, v{vt}',
                  f'v_min_u32 v{vt}, M_CODE_END-M_CODE_START-4, v{vt}',
                  f'global_load_dword v31, v{vt}, s[{S_PC}:{S_PC+1}]'])
    return g

def spin_wait(a, soff, mask=0xffff):
    t = S_T
    Lok = a.newlabel('WOK'); Ls = a.newlabel('WSP')
    a(f's_cmp_lg_u32 s{S_WAVE}, 0'); a(f's_cbranch_scc1 {Lok}')
    a(f's_mov_b32 s{t+1}, 0')
    a.label(Ls)
    a(f'v_cmp_eq_u32 vcc, v{V_POLL}, v{V_NONCE}')
    a(f's_and_b32 s{t}, vcc_lo, {hex(mask)}')
    a(f's_cmp_eq_u32 s{t}, {hex(mask)}'); a(f's_cbranch_scc1 {Lok}')
    a('s_sleep 8')
    a(poll_issue(soff))
    a('s_waitcnt vmcnt(0)')
    a(f's_add_u32 s{t+1}, s{t+1}, 1')
    a(f's_cmp_lt_u32 s{t+1}, 20000'); a(f's_cbranch_scc1 {Ls}')
    a.label(Lok)

def poll_issue(soff):
    return [f'buffer_load_dword v{V_POLL}, v{V_SIG16}, {sr(S_WS)}, s{soff} offen sc1']

def xn_flag_addr(dst, qb):
    return [f's_lshl_b32 s{dst}, s{qb}, 12', f's_add_u32 s{dst}, s{dst}, {hex(WS_FLG + 0x10000)}']

def row2_reduce(a, v, t, sd, sm):
    for mod in ['quad_perm:[1,0,3,2]', 'quad_perm:[2,3,0,1]', 'row_ror:8']:
        a('s_nop 1')
        a(f'v_add_f32 v{v}, v{v}, v{v} {mod} row_mask:0xf bank_mask:0xf')
    a('s_nop 1')
    for i in range(4): a(f'v_readlane_b32 s{sd+i}, v{v}, {16*i}')
    for i in range(4): a(f'v_readlane_b32 s{sd+4+i}, v{v}, {16*i+4}')
    a('s_nop 1')
    a(f'v_mov_b32 v{v}, s{sd}'); a(f'v_mov_b32 v{t}, s{sd+4}')
    for i in range(1, 4):
        a(f'v_add_f32 v{v}, s{sd+i}, v{v}'); a(f'v_add_f32 v{t}, s{sd+4+i}, v{t}')
    a(f'v_cndmask_b32 v{v}, v{v}, v{t}, s[{sm}:{sm+1}]')

def bf16_round(a, d, s):
    a(f'v_cvt_pk_bf16_f32 v{d}, v{s}, v{s}')
    a(f'v_and_b32 v{d}, 0xffff0000, v{d}')

def ln_rows(a, xr, f, t, sd, sm, out):
    a(f's_mov_b32 s{sm}, 0xf0f0f0f0'); a(f's_mov_b32 s{sm+1}, 0xf0f0f0f0')
    for i in range(8):
        a(f'v_lshlrev_b32 v{f+2*i}, 16, v{xr+i}')
        a(f'v_and_b32 v{f+2*i+1}, 0xffff0000, v{xr+i}')
    a(f'v_add_f32 v{t}, v{f}, v{f+1}')
    for i in range(2, 16): a(f'v_add_f32 v{t}, v{t}, v{f+i}')
    row2_reduce(a, t, t+3, sd, sm)
    a(f'v_mul_f32 v{t}, 0x3b124925, v{t}')
    a(f'v_mov_b32 v{t+1}, 0')
    for i in range(16):
        a(f'v_sub_f32 v{t+2}, v{f+i}, v{t}')
        a(f'v_fmac_f32 v{t+1}, v{t+2}, v{t+2}')
    a(f'v_cndmask_b32 v{t+1}, 0, v{t+1}, vcc')
    row2_reduce(a, t+1, t+3, sd, sm)
    a(f'v_mul_f32 v{t+1}, 0x3b124925, v{t+1}')
    bf16_round(a, t, t)
    bf16_round(a, t+1, t+1)
    a(f'v_add_f32 v{t+1}, 0x3727c5ac, v{t+1}')
    bf16_round(a, t+1, t+1)
    a(f'v_sqrt_f32 v{t+1}, v{t+1}')
    a('s_nop 0')
    bf16_round(a, t+1, t+1)
    a(f'v_rcp_f32 v{t+2}, v{t+1}')
    a('s_nop 0')
    a(f'v_fma_f32 v{t+3}, -v{t+1}, v{t+2}, 1.0')
    a(f'v_fmac_f32 v{t+2}, v{t+3}, v{t+2}')
    for i in range(16): a(f'v_sub_f32 v{f+i}, v{f+i}, v{t}')
    for i in range(8): a(f'v_cvt_pk_bf16_f32 v{out+i}, v{f+2*i}, v{f+2*i+1}')
    for i in range(8):
        a(f'v_lshlrev_b32 v{f+2*i}, 16, v{out+i}')
        a(f'v_and_b32 v{f+2*i+1}, 0xffff0000, v{out+i}')
    for i in range(16): a(f'v_mul_f32 v{f+i}, v{f+i}, v{t+2}')
    for i in range(8): a(f'v_cvt_pk_bf16_f32 v{out+i}, v{f+2*i}, v{f+2*i+1}')

WSLOT, NWS = 16384, 4
XBASE, XSLOT, NXS = 65536, 32768, 3
A_VX, A_VW, A_XAB, A_XA, A_WA = 8, 12, 16, 18, 20
AF = [dict(X=32, W=64), dict(X=96, W=128)]

def A_dma_w(wslot):
    g = [[f's_add_u32 m0, s{S_W4K}, {wslot*WSLOT}', f's_add_u32 s{S_SOW}, s{S_SOW}, {32*8192}'] + ([f's_and_b32 s{S_SOW}, s{S_SOW}, 0x7fffff'] if OPT.get('rot') else []) +
         [f'buffer_load_dwordx4 v{A_VW}, {sr(S_W)}, s{S_SOW} offen lds']]
    for i in range(1, 4):
        g.append([f'buffer_load_dwordx4 v{A_VW+i}, {sr(S_W)}, s{S_SOW} offen offset:{1024*i} lds'])
    return g

def A_dma_x(half):
    if half == 0:
        so = S_SOX
        g = [[f's_mov_b32 m0, s{S_DX}', f's_add_u32 s{S_SOX}, s{S_SOX}, 128'] + ([f's_and_b32 s{S_SOX}, s{S_SOX}, 2047'] if OPT.get('rot') else []) + [f'buffer_load_dwordx4 v{A_VX}, {sr(S_CKV)}, s{so} offen lds']]
    else:
        so = S_T + 1
        g = [[f's_add_u32 m0, s{S_DX}, 16384', f's_add_u32 s{so}, s{S_SOX}, {128*2048}',
              f'buffer_load_dwordx4 v{A_VX}, {sr(S_CKV)}, s{so} offen lds']]
    for i in range(1, 4):
        g.append([f'buffer_load_dwordx4 v{A_VX+i}, {sr(S_CKV)}, s{so} offen offset:{1024*i} lds'])
    if half == 1:
        g[-1] += [f's_add_u32 s{S_DX}, s{S_DX}, {XSLOT}',
                  f's_cmp_ge_u32 s{S_DX}, {XBASE+NXS*XSLOT}\ns_cselect_b32 s{S_T}, {NXS*XSLOT}, 0',
                  f's_sub_u32 s{S_DX}, s{S_DX}, s{S_T}']
    return g

def A_reads(u):
    f = AF[u & 1]; ks = u & 1; ws = u % NWS
    def wr(db): return [f'ds_read_b64_tr_b16 {vr(f["W"]+4*db+2*h,2)}, v{A_WA+db} offset:{ws*WSLOT+2048*h}' for h in range(2)]
    r = wr(0)
    for kb in range(8): r.append(f'ds_read_b128 {vr(f["X"]+4*kb)}, v{A_XA+ks} offset:{2048*kb}')
    for db in range(1, 8): r += wr(db)
    return r

def A_order(vtype):
    if vtype: return [(db, 2*tt+h) for db in range(8) for tt in range(4) for h in range(2)]
    return [(2*s_+h, kb) for s_ in range(4) for kb in range(8) for h in range(2)]

def A_kstep(u, vtype, dmaw, dmax, vm, last=False, extras=(), head=(), czero=False):
    out = list(head)
    if not last: out += [f's_waitcnt vmcnt({vm}) lgkmcnt(0)', 's_barrier']
    else: out += ['s_waitcnt lgkmcnt(0)']
    f = AF[u & 1]
    steps = []
    for i, (db, kb) in enumerate(A_order(vtype)):
        acc = ar(i*4, 4); w = vr(f['W']+4*db); x = vr(f['X']+4*kb)
        c = '0' if czero else acc
        steps.append(Step([f'{MF} {acc}, {x}, {w}, {c}' if vtype else f'{MF} {acc}, {w}, {x}, {c}']))
    sc = Sched(steps, LA=0, first_issued=0)
    d = []
    if dmaw: d += A_dma_w(u % NWS)
    if dmax: d += A_dma_x(0 if (u & 1) else 1)
    if d: sc.place(tag(d, f'A{u}'), 2, 58)
    if not last:
        r = []
        if (u & 1) == 1:
            r += [f's_add_u32 s{S_RX}, s{S_RX}, {XSLOT}', f's_cmp_ge_u32 s{S_RX}, {NXS*XSLOT}\ns_cselect_b32 s{S_RX}, 0, s{S_RX}']
            r += [f'v_add_u32 v{A_XA+i}, s{S_RX}, v{A_XAB+i}' for i in range(2)]
        sc.place(r + A_reads(u+1), 0, 44)
    for (items, lo, hi) in extras: sc.place(items, lo, hi)
    return out + sc.text(0, 63)

PEND = 32

def phaseA(a):
    t = 4
    S_ROW0, S_ROWO = 68, 69
    a(f's_lshl_b32 s{t}, s{S_KT}, 3'); a(f's_add_u32 s{t}, s{t}, s{S_WAVE}'); a(f's_lshl_b32 s{t}, s{t}, 16')
    a('v_lshrrev_b32 v2, 3, v1'); a('v_lshlrev_b32 v2, 11, v2')
    a('v_and_b32 v3, 7, v1'); a('v_lshrrev_b32 v200, 4, v1'); a('v_xor_b32 v3, v3, v200')
    a(f'v_add_u32 v2, s{t}, v2')
    for i in range(4):
        a(f'v_xor_b32 v201, {4*(i&1)}, v3'); a('v_lshl_add_u32 v201, v201, 4, v2')
        a(f'v_add_u32 v{A_VX+i}, {i*(8*2048-1024)}, v201')
    w_voffsets(a, A_VW, t)
    a(f's_mov_b32 s{S_SOX}, -128'); a(f's_mov_b32 s{S_SOW}, {-32*8192}')
    if OPT.get('rot'):
        kind, mul = OPT['rot']
        if kind == 'xcd': a(f's_and_b32 s{t}, s2, 7')
        elif kind == 'xcd2': a(f's_and_b32 s{t}, s2, 1')
        elif kind == 'xcd4': a(f's_and_b32 s{t}, s2, 3')
        elif kind == 'kt': a(f's_mov_b32 s{t}, s{S_KT}')
        elif kind == 'kt2': a(f's_and_b32 s{t}, s{S_KT}, 1')
        a(f's_mul_i32 s{t}, s{t}, {mul}')
        a(f's_lshl_b32 s{t+1}, s{t}, 7'); a(f's_add_u32 s{S_SOX}, s{S_SOX}, s{t+1}')
        a(f's_lshl_b32 s{t+1}, s{t}, 19'); a(f's_add_u32 s{S_SOW}, s{S_SOW}, s{t+1}')
    a(f's_add_u32 s{S_DX}, s{S_W4K}, {XBASE}')
    a(f's_lshl_b32 s{t}, s2, 3'); a(f's_lshl_b32 s{t+1}, s{S_WAVE}, 1'); a(f's_add_u32 s{S_ROW0}, s{t}, s{t+1}')
    a(f's_mul_i32 s{S_ROWO}, s{S_ROW0}, 896')
    a(f's_and_b32 s{t}, s{S_WAVE}, 1'); a(f's_lshr_b32 s{t+1}, s{S_WAVE}, 1')
    a(f's_lshl_b32 s{t+2}, s{t}, 14'); a(f's_add_u32 s{t+2}, s{t+2}, {XBASE}')
    a('v_and_b32 v201, 15, v1'); a('v_lshrrev_b32 v200, 4, v1'); a('v_lshrrev_b32 v2, 1, v201')
    for ks in range(2):
        a(f'v_add_u32 v3, {4*ks}, v200'); a('v_xor_b32 v3, v3, v2'); a('v_lshlrev_b32 v3, 4, v3')
        a('v_lshl_add_u32 v3, v201, 7, v3')
        a(f'v_add_u32 v{A_XAB+ks}, s{t+2}, v3'); a(f'v_mov_b32 v{A_XA+ks}, v{A_XAB+ks}')
    a('v_bfe_u32 v3, v1, 2, 2')
    a('v_lshlrev_b32 v202, 12, v200'); a('v_lshl_add_u32 v202, v3, 9, v202')
    a('v_and_b32 v2, 3, v1'); a('v_lshl_add_u32 v202, v2, 3, v202')
    a(f's_lshl_b32 s{t+2}, s{t+1}, 8'); a(f'v_add_u32 v202, s{t+2}, v202')
    a('v_and_b32 v2, 1, v200'); a('v_lshl_or_b32 v3, v2, 2, v3')
    for db in range(8):
        a(f'v_xor_b32 v2, {db}, v3'); a(f'v_lshl_add_u32 v{A_WA+db}, v2, 5, v202')
    a(f's_mov_b32 s{S_RX}, 0')
    a('v_cmp_gt_u32 vcc, 56, v1')
    a('v_lshrrev_b32 v200, 3, v1'); a('v_bfe_u32 v201, v1, 2, 1'); a('v_and_b32 v202, 3, v1'); a('v_lshlrev_b32 v202, 4, v202')
    a('v_mul_u32_u24 v2, 896, v201'); a('v_lshl_add_u32 v2, v200, 6, v2'); a('v_add_u32 v2, v2, v202')
    a('v_mov_b32 v3, 0x7fffff00')
    a('v_cndmask_b32 v192, v3, v2, vcc')
    a('v_lshlrev_b32 v2, 10, v200'); a('v_lshl_add_u32 v2, v201, 6, v2'); a('v_add_u32 v2, v2, v202')
    a('v_cndmask_b32 v193, v3, v2, vcc')
    a('s_waitcnt lgkmcnt(0)')
    build_srds(a)
    t = S_T
    if OPT.get('fsplit', False):
        a(f's_lshr_b32 s{t}, s{S_H}, 2'); a(f's_mul_i32 s{S_F0}, s{t}, 448')
        a(f's_and_b32 s{t}, s{S_H}, 3'); a(f's_lshl_b32 s{t+1}, s{t}, 7'); a(f's_add_u32 s{S_F0}, s{S_F0}, s{t+1}')
        a(f's_cmp_eq_u32 s{t}, 3'); a(f's_cselect_b32 s{t+1}, 32, 0'); a(f's_sub_u32 s{S_F0}, s{S_F0}, s{t+1}')
        a(f's_lshr_b32 s{S_ODD}, s{t}, 1')
    else:
        a(f's_mul_i32 s{S_F0}, s{S_H}, 112'); a(f's_mov_b32 s{S_ODD}, 0')
    Ln = a.newlabel('NON')
    a('s_cmp_lg_u32 s2, 0'); a(f's_cbranch_scc1 {Ln}')
    a(f's_memrealtime s[{t}:{t+1}]'); a('s_waitcnt lgkmcnt(0)')
    a(f's_or_b32 s{t+2}, s{t}, 1'); a(f'v_mov_b32 v2, s{t+2}')
    a(f'buffer_store_dword v2, v{V_SIG}, {sr(S_DBG)}, 0 offen sc1')
    a.label(Ln)
    stamp(a, 0)
    pro = flat(tag(A_dma_w(0) + A_dma_x(0) + A_dma_x(1), 'G0') + tag(A_dma_w(1), 'G1') + tag(A_dma_x(0) + A_dma_w(2) + A_dma_x(1), 'G2'))
    pro += [f'buffer_load_dwordx4 v[160:163], v192, {sr(S_XIN)}, s{S_ROWO} offen ;@XL',
            f'buffer_load_dwordx4 v[164:167], v192, {sr(S_XIN)}, s{S_ROWO} offen offset:448 ;@XL']
    pro += ['s_waitcnt vmcnt(@G0)', 's_barrier'] + A_reads(0)
    a(resolve_vm(pro))
    stamp(a, 1)
    if DBG[0]:
        a(f's_getreg_b32 s{S_ST}, hwreg(HW_REG_XCC_ID)'); a(f'v_mov_b32 v2, s{S_ST}'); a(f'v_mov_b32 v3, s{S_ST}')
        a(f's_lshl_b32 s{S_ST}, s2, 8'); a(f's_add_u32 s{S_ST}, s{S_ST}, {hex(WS_DBG + 19*8)}')
        a(f'buffer_store_dwordx2 v[2:3], v{V_SIG}, {sr(S_WS)}, s{S_ST} offen')
    def cap(fn):
        x = Asm(); fn(x); return [l.strip() for l in x.L]
    u_ = t + 4
    ln = ['s_waitcnt vmcnt(@XL)'] + cap(lambda x: ln_rows(x, 160, 168, 184, S_MK, S_RET, 208))
    ln += [f's_lshr_b32 s{u_}, s{S_ROW0}, 4', f's_mul_i32 s{u_}, s{u_}, 14*1024', f's_and_b32 s{u_+1}, s{S_ROW0}, 15', f's_lshl_b32 s{u_+1}, s{u_+1}, 6',
           f's_add_u32 s{u_}, s{u_}, s{u_+1}', f's_add_u32 s{u_}, s{u_}, {hex(WS_XN)}', f's_add_u32 s{u_+1}, s{u_}, 7168',
           f'buffer_store_dwordx4 v[208:211], v193, {sr(S_WS)}, s{u_} offen sc1',
           f'buffer_store_dwordx4 v[212:215], v193, {sr(S_WS)}, s{u_+1} offen sc1']
    ln1 = ln[:75]; ln2 = ln[75:]
    bs = cap(lambda x: B_setup(x, S_T + 8))
    Lv = a.newlabel('AV'); Lj = a.newlabel('AJ')
    a(f's_cmp_eq_u32 s{S_KVT}, 1'); a(f's_cbranch_scc1 {Lv}')
    pf = pfB()
    for vtype in range(2):
        if vtype: a.label(Lv)
        first = []
        first += A_kstep(0, vtype, False, False, '@G1', czero=True, extras=[(tag(A_dma_w(3) + A_dma_x(0), 'G3'), 24, 62), (bs, 0, 40)])
        first += A_kstep(1, vtype, False, False, '@G2', extras=[(tag(A_dma_w(0) + A_dma_x(1), 'G4') + tag(A_dma_w(1), 'G5'), 2, 60), (ln1, 4, 63)])
        first += A_kstep(2, vtype, False, False, '@G3', extras=[(flat(A_dma_x(0) + A_dma_w(2) + A_dma_x(1)), 2, 60), (ln2[:75], 0, 63)])
        first += A_kstep(3, vtype, True, True, '@G4', extras=[(ln2[75:], 0, 45)])
        r = resolve_vm(pro + ['MARK'] + first)
        a(r[r.index('MARK')+1:])
        if OPT.get('astamp'): stamp(a, 20)
        a(f's_mov_b32 s{S_CNT}, 1')
        Ll = a.newlabel('AL'); a.label(Ll)
        for u in range(4): a(resolve_vm(A_kstep(u, vtype, True, True, 16)))
        Lm1 = a.newlabel('AM'); Lm2 = a.newlabel('AM'); Lm3 = a.newlabel('AM')
        if OPT.get('astamp'): stamp(a, 20, S_CNT)
        a(f's_add_u32 s{S_CNT}, s{S_CNT}, 1')
        a(f's_cmp_lg_u32 s{S_WAVE}, 0'); a(f's_cbranch_scc1 {Lm2}')
        a(f's_cmp_lg_u32 s{S_CNT}, 2'); a(f's_cbranch_scc1 {Lm1}')
        a(f'v_mov_b32 v2, 0')
        a(f'buffer_load_dword v{V_NONCE}, v2, {sr(S_DBG)}, 0 offen' + (' sc1' if OPT.get('nonce_sc1') else ''))
        a.label(Lm1)
        a(f's_cmp_lg_u32 s{S_CNT}, 4'); a(f's_cbranch_scc1 {Lm2}')
        a(f's_mov_b32 s{t+5}, 0')
        a.label(Lm3)
        a(f'v_readfirstlane_b32 s{t+4}, v{V_NONCE}')
        Lm4 = a.newlabel('AM')
        a(f's_cmp_lg_u32 s{t+4}, 0'); a(f's_cbranch_scc1 {Lm4}')
        a('s_sleep 8'); a(f'v_mov_b32 v2, 0')
        a(f'buffer_load_dword v{V_NONCE}, v2, {sr(S_DBG)}, 0 offen sc1')
        a('s_waitcnt vmcnt(0)')
        a(f's_add_u32 s{t+5}, s{t+5}, 1'); a(f's_cmp_lt_u32 s{t+5}, 20000'); a(f's_cbranch_scc1 {Lm3}')
        a.label(Lm4)
        a(f's_lshr_b32 s{t+4}, s2, 4'); a(xn_flag_addr(t+4, t+4))
        a(f's_and_b32 s{t+5}, s2, 15'); a(f's_lshl_b32 s{t+5}, s{t+5}, 2'); a(f's_add_u32 s{t+4}, s{t+4}, s{t+5}')
        a(f'buffer_store_dword v{V_NONCE}, v{V_SIG}, {sr(S_WS)}, s{t+4} offen sc1')
        a(f's_cmp_lg_u32 s{S_H}, 0'); a(f's_cbranch_scc1 {Lm2}')
        a(f's_lshl_b32 s{t+4}, s{S_OWN}, 12'); a(f's_add_u32 s{t+4}, s{t+4}, {hex(WS_FLG + 0x50000)}')
        a('v_mov_b32 v2, 0')
        a(f'buffer_store_dword v2, v{V_SIG}, {sr(S_WS)}, s{t+4} offen sc1')
        a.label(Lm2)
        a(f's_cmp_lt_u32 s{S_CNT}, 6'); a(f's_cbranch_scc1 {Ll}')
        cpf = cpfB()
        kvs = [f's_mul_i32 s{S_KVO}, s{S_H}, {KH_()}', f's_add_u32 s{S_KVO}, s{S_KVO}, {hex(WS_KV)}', f's_mul_i32 s{t+4}, s{S_KT}, {8*KT_()}', f's_add_u32 s{S_KVO}, s{S_KVO}, s{t+4}',
               f's_and_b32 s{t+4}, s{S_WAVE}, 1', f's_mul_i32 s{t+4}, s{t+4}, {4*KT_()}', f's_add_u32 s{S_KVO}, s{S_KVO}, s{t+4}',
               f's_lshr_b32 s{t+4}, s{S_WAVE}, 1', f's_lshl_b32 s{t+4}, s{t+4}, {13 if vtype else 12}', f's_add_u32 s{S_KVO}, s{S_KVO}, s{t+4}']
        if vtype: kvs.append(f's_add_u32 s{S_KVO}, s{S_KVO}, 16384')
        w_ = [KT_(), 2*KT_(), 1024, 2048] if vtype else [8192, KT_(), 2*KT_(), 1024]
        for b in range(4): kvs.append(f's_mov_b32 s{S_DL+b}, {w_[b] - sum(w_[:b])}')
        xo = [f's_lshl_b32 s{t+4}, s{S_OWN}, 3', f's_add_u32 s{t+4}, s{t+4}, s{S_WAVE}', f's_mul_i32 s{t+4}, s{t+4}, 14336',
              f's_add_u32 s{S_XO}, s{t+4}, {hex(WS_XN)}']
        bias = [f's_lshl_b32 s{t+4}, s{S_F0}, 1', 'v_lshrrev_b32 v200, 4, v1', 'v_lshlrev_b32 v200, 3, v200']
        bias += [f'buffer_load_dwordx2 {vr(B_TMP+2*fb,2)}, v200, {sr(S_B1)}, s{t+4} offen offset:{32*fb} ;@BIAS' for fb in range(8)]
        sw = Asm(); sw.nlab = a.nlab; spin_wait(sw, S_FP); a.nlab = sw.nlab
        chk = ['s_waitcnt vmcnt(@POLL)'] + [x.strip() + (' ;!' if x.strip().startswith('buffer_') else '') for x in sw.L]
        NW = OPT.get('nweave', 8); BH = OPT.get('bh', 0)
        xpf = [['v_lshlrev_b32 v200, 7, v1', f's_add_u32 s{t+4}, s{S_XO}, 4096', f'buffer_load_dword v31, v200, {sr(S_WS)}, s{t+4} offen'],
               [f's_add_u32 s{t+5}, s{t+4}, s{t+6}', f'buffer_load_dword v31, v200, {sr(S_WS)}, s{t+5} offen'],
               ['v_and_b32 v201, 15, v1', 'v_lshlrev_b32 v201, 7, v201', f'v_mov_b32 v202, s{t+6}', 'v_cmp_gt_u32 vcc, 16, v1', f's_add_u32 s{t+4}, s{t+4}, 8192',
                's_nop 0', 'v_cndmask_b32 v202, v202, 0, vcc', 'v_add_u32 v201, v201, v202', f'buffer_load_dword v31, v201, {sr(S_WS)}, s{t+4} offen']]
        ex = {25: [(kvs + xo, 46, 62)],
              26: [(xn_flag_addr(S_FP, S_OWN) + [poll_issue(S_FP)[0] + ' ;@POLL'], 5, 20)],
              28: [([f's_mul_i32 s{t+6}, s{S_Q1}, 14336', f'v_and_b32 v{B_VX0}, 15, v1', f'v_lshlrev_b32 v{B_VX0}, 6, v{B_VX0}', f'v_and_b32 v{B_VX1}, 48, v1',
                   f'v_add_u32 v{B_VX0}, v{B_VX0}, v{B_VX1}', f'v_add_u32 v{B_VX1}, s{t+6}, v{B_VX0}'] + flat(pf + cpf), 0, 24)] + ([(B_dma_w(0, True), 32, 62)] if BH == 0 else []),
              29: [(tag(B_dma_xp(0), 'B0') + [bias] + B_dma(1, True), 0, 60)],
              30: [(B_dma(2, True) + (xpf if OPT.get('xpf', False) else []), 0, 60)],
              31: [([x for k in range(NW) for x in pack_store(k, 208 + 8*(k & 1), True)], 10, 63)]}
        tail = []
        for k in (21, 22, 23): tail += [f'buffer_dummy ;@A{k}']*8
        tail.append('MARK')
        for u in range(24, 32):
            tail += A_kstep(u, vtype, u <= 27, u <= 26, f'@A{min(u-3, 27)}', last=(u == 31), extras=ex.get(u, ()), head=(chk if u == 29 else ()))
            if OPT.get('astamp') and u in (27, 29): tail.append(f'STAMP{u}')
        tail.append('MARK2')
        hist = tail
        r = resolve_vm(tail)
        for x in r[r.index('MARK')+1:r.index('MARK2')]:
            if x.endswith(':'): a.raw(x)
            elif x.startswith('STAMP'): stamp(a, 26 if x == 'STAMP27' else 27)
            else: a(x)
        if vtype == 0: a(f's_branch {Lj}')
    a.label(Lj)
    stamp(a, 2)
    return hist

def pfB():
    t = S_T
    return [[f's_lshr_b32 s{t+4}, s2, 4', f's_mul_i32 s{t+4}, s{t+4}, 28', f's_mul_i32 s{t+5}, s{S_WAVE}, 7', f's_add_u32 s{t+4}, s{t+4}, s{t+5}'],
          ['v_lshrrev_b32 v200, 2, v1', 'v_min_u32 v200, 6, v200', f'v_add_u32 v200, s{t+4}, v200', 'v_and_b32 v201, 3, v1'],
          ['v_lshlrev_b32 v201, 7, v201', 'v_lshl_add_u32 v202, v200, 13, v201', f's_lshl_b32 s{t+4}, s{S_H}, 9',
           f'buffer_load_dword v31, v202, {sr(S_WQ)}, s{t+4} offen'],
          ['v_mul_u32_u24 v202, 3584, v200', 'v_add_u32 v202, v202, v201', f's_lshl_b32 s{t+4}, s{S_F0}, 1', f's_and_b32 s{t+4}, s{t+4}, 0xffffff80',
           f'buffer_load_dword v31, v202, {sr(S_W1)}, s{t+4} offen']]
def cpfB():
    t = S_T
    CPN, CP0 = (36, 0) if OPT.get('fsplit', False) else (20, 32768)
    return [[f's_lshr_b32 s{t+4}, s2, 3', f's_mul_i32 s{t+4}, s{t+4}, {CPN*128}', f's_add_u32 s{t+4}, s{t+4}, {CP0}',
             f'v_min_u32 v200, {CPN-1}, v1', 'v_lshlrev_b32 v200, 7, v200', f'v_add_u32 v200, s{t+4}, v200',
             'v_min_u32 v200, M_CODE_END-M_CODE_START-4, v200', f'global_load_dword v31, v200, s[{S_PC}:{S_PC+1}]']]

def pfD_big(a):
    t = S_T
    L = a.newlabel('PD'); L7 = a.newlabel('PD'); La = a.newlabel('PD')
    a(f's_cmp_lt_u32 s{S_I}, 6'); a(f's_cbranch_scc1 {L}')
    a('v_lshlrev_b32 v2, 7, v0')
    a(f's_mul_i32 s{t+1}, s{S_H}, {256*896}'); a(f's_mul_i32 s{t+2}, s{S_F0}, 896')
    def wo(u): a(f's_add_u32 s{t}, s{t+1}, {u*32768}'); a(f'buffer_load_dword v31, v2, {sr(S_WO)}, s{t} offen')
    def w2(off): a(f's_add_u32 s{t}, s{t+2}, {off}'); a(f'buffer_load_dword v31, v2, {sr(S_W2)}, s{t} offen')
    n6 = OPT.get('pf_n6', 6)
    a(f's_cmp_eq_u32 s{S_ROLE}, 0'); a(f's_cbranch_scc1 {La}')
    a(f's_cmp_eq_u32 s{S_I}, 7'); a(f's_cbranch_scc1 {L7}')
    for u in range(n6): wo(u)
    a(f's_branch {L}')
    a.label(L7)
    for u in range(n6, 7): wo(u)
    for k in range(3): w2(k*32768)
    a(f's_branch {L}')
    a.label(La)
    a(f's_cmp_eq_u32 s{S_I}, 6'); a(f's_cbranch_scc1 {L}')
    a('v_min_u32 v3, 16256, v2')
    a(f's_add_u32 s{t}, s{t+2}, {3*32768}'); a(f'buffer_load_dword v31, v3, {sr(S_W2)}, s{t} offen')
    a('v_add_u32 v2, M_D_START-M_CODE_START-10240, v2')
    a(f's_mul_i32 s{t}, s{S_ODD}, 13056'); a(f's_cmp_ge_u32 s{S_WAVE}, 2'); a(f's_cselect_b32 s{t}, s{t}, 0'); a(f'v_add_u32 v2, s{t}, v2')
    a('v_min_u32 v2, M_CODE_END-M_CODE_START-4, v2')
    a(f'global_load_dword v31, v2, s[{S_PC}:{S_PC+1}]')
    a.label(L)

def pfD(v, code=True):
    t = S_T
    g = [[f's_lshr_b32 s{t+9}, s2, 4', f's_lshl_b32 s{t+9}, s{t+9}, 2', f's_add_u32 s{t+9}, s{t+9}, s{S_WAVE}',
          f's_lshl_b32 s{t+10}, s{S_H}, 6', f's_add_u32 s{t+10}, s{t+10}, s{t+9}', f's_mul_i32 s{t+10}, s{t+10}, {4*896}'],
         [f'v_lshlrev_b32 v{v}, 7, v1', f'v_min_u32 v{v}, 3580, v{v}', f'buffer_load_dword v31, v{v}, {sr(S_WO)}, s{t+10} offen'],
         [f's_mul_i32 s{t+10}, s{S_H}, {112*896}', f's_mul_i32 s{t+11}, s{t+9}, {2*896}', f's_add_u32 s{t+10}, s{t+10}, s{t+11}',
          f'v_min_u32 v{v}, 1788, v{v}', f'buffer_load_dword v31, v{v}, {sr(S_W2)}, s{t+10} offen']]
    if code:
        g += [[f's_lshl_b32 s{t+9}, s{t+9}, 9',
          f'v_min_u32 v{v}, 384, v{v}', f'v_add_u32 v{v}, s{t+9}, v{v}', f'v_add_u32 v{v}, M_D_START-M_CODE_START-10240, v{v}',
          f'v_min_u32 v{v}, M_CODE_END-M_CODE_START-4, v{v}', f'global_load_dword v31, v{v}, s[{S_PC}:{S_PC+1}]']]
    return g

def pack_store(k, tb, store):
    ops = [f'v_accvgpr_read_b32 v{tb+e}, a{8*k+e}' for e in range(8)]
    if OPT.get('kvs', 0): ops += [f'v_mul_f32 v{tb+e}, s{S_KVS}, v{tb+e}' for e in range(8)]
    ops += [f'v_cvt_pk_bf16_f32 v{PEND+4*k+e}, v{tb+2*e}, v{tb+2*e+1}' for e in range(4)]
    if store:
        st = kv_store(k)
        ops = st[:-1] + ops + st[-1:]
    return ops

def kv_store(k):
    ops = []
    if k > 0:
        b = min((k & -k).bit_length() - 1, 3)
        ops.append(f's_add_u32 s{S_KVO}, s{S_KVO}, s{S_DL+b}')
    ops.append(f'buffer_store_dwordx4 {vr(PEND+4*k)}, v{V_L16}, {sr(S_WS)}, s{S_KVO} offen {OPT.get("kvf", "sc1")} ;@KVST')
    return ops

def w_voffsets(a, dst, t):
    a(f's_lshl_b32 s{t}, s{S_WAVE}, 16'); a(f's_lshl_b32 s{t+1}, s{S_H}, 9'); a(f's_add_u32 s{t}, s{t}, s{t+1}')
    a(f's_and_b32 s{t+1}, s{S_WAVE}, 1'); a(f's_lshl_b32 s{t+1}, s{t+1}, 2')
    a('v_lshrrev_b32 v200, 5, v1'); a('v_and_b32 v201, 31, v1'); a('v_lshrrev_b32 v202, 1, v201')
    a(f'v_xor_b32 v202, s{t+1}, v202'); a('v_and_b32 v203, 1, v201')
    for i in range(4):
        a(f'v_add_u32 v2, {(2*i)&3}, v200'); a('v_xor_b32 v2, v202, v2'); a('v_lshl_add_u32 v2, v2, 1, v203')
        a('v_lshlrev_b32 v2, 4, v2'); a('v_lshl_add_u32 v2, v200, 13, v2')
        a(f'v_add_u32 v2, {2*i*8192-1024*i}, v2'); a(f'v_add_u32 v{dst+i}, s{t}, v2')

B_VW, B_V1, B_VX1, B_VX0 = A_VW, 28, 11, 10
B_WA, B_1A = 240, 248
B_XF = 160
B_WF, B_NB = 192, 8
B_TMP = 224
B_PT = 16
B_QS = 8
W1BASE = 98304

def B_setup(a, t):
    a(f's_and_b32 s{t+1}, s{S_WAVE}, 1'); a(f's_lshl_b32 s{t+1}, s{t+1}, 2')
    a(f's_mul_i32 s{t}, s{S_WAVE}, {8*3584}'); a(f's_lshl_b32 s{t+2}, s{S_F0}, 1'); a(f's_add_u32 s{t}, s{t}, s{t+2}')
    a('v_lshrrev_b32 v200, 4, v1'); a('v_and_b32 v201, 15, v1'); a('v_lshrrev_b32 v202, 1, v201')
    a(f'v_xor_b32 v202, s{t+1}, v202'); a('v_xor_b32 v202, v200, v202'); a('v_and_b32 v203, 1, v201')
    a('v_lshl_add_u32 v2, v202, 1, v203'); a('v_lshlrev_b32 v2, 4, v2')
    a('v_mul_u32_u24 v3, 3584, v200'); a('v_add_u32 v2, v2, v3')
    a(f'v_add_u32 v{B_V1}, s{t}, v2'); a(f'v_add_u32 v{B_V1+1}, {4*3584-1024}, v{B_V1}')
    a(f's_lshl_b32 s{t}, s{S_WAVE}, 1'); a(f's_sub_u32 s{S_Q1}, 7, s{t}');
    a('v_bfe_u32 v201, v1, 2, 2')
    a('v_lshl_add_u32 v202, v200, 3, v201')
    a('v_and_b32 v203, 3, v1'); a('v_lshlrev_b32 v203, 3, v203')
    a('v_and_b32 v2, 1, v200'); a('v_lshl_or_b32 v201, v2, 2, v201')
    a('v_lshl_add_u32 v204, v202, 9, v203')
    a('v_lshl_add_u32 v205, v202, 8, v203'); a(f'v_add_u32 v205, {W1BASE}, v205')
    for d in range(8):
        a(f'v_xor_b32 v2, {d}, v201')
        a(f'v_lshl_add_u32 v{B_WA+d}, v2, 5, v204')
        a(f'v_lshl_add_u32 v{B_1A+d}, v2, 5, v205')

def B_dma_w(u, ffn):
    sl = u % 4; t = S_T + 2
    g = [[f's_add_u32 m0, s{S_W4K}, {sl*16384}', f's_mov_b32 s{t}, {u*32*8192}',
          f'buffer_load_dwordx4 v{B_VW}, {sr(S_WQ)}, s{t} offen lds']]
    for i in range(1, 4): g.append([f'buffer_load_dwordx4 v{B_VW+i}, {sr(S_WQ)}, s{t} offen offset:{1024*i} lds'])
    if ffn:
        g.append([f's_add_u32 m0, s{S_W2K}, {W1BASE+sl*8192}', f's_mov_b32 s{t}, {u*32*3584}',
                  f'buffer_load_dwordx4 v{B_V1}, {sr(S_W1)}, s{t} offen lds'])
        g.append([f'buffer_load_dwordx4 v{B_V1+1}, {sr(S_W1)}, s{t} offen offset:1024 lds'])
    return tag(g, f'B{u}')

def xr(u):
    sl = u % 6
    return B_XF + sl*8 if sl < 4 else PEND + (sl-4)*8
def B_dma_xp(p):
    g = []
    t = S_T + 3
    g.append([f's_add_u32 s{t}, s{S_XO}, {2*p*1024}'])
    for k in range(2):
        for qb, v in ((0, B_VX0), (1, B_VX1)):
            g.append([f'buffer_load_dwordx4 {vr(xr(2*p+k)+4*qb)}, v{v}, {sr(S_WS)}, s{t} offen offset:{k*1024} sc1'])
    return g

def B_dma(u, ffn):
    return (B_dma_xp((u+1)//2) if (u & 1) and (u+1)//2 <= 6 else []) + B_dma_w(u, ffn)

def B_head(ffn):
    h = []
    for u in range(3): h += flat(B_dma(u, ffn))
    return h

def phaseB_begin_ext(a):
    t = S_T
    spin_wait(a, S_FP)
    a(f's_lshl_b32 s{t}, s{S_EXT}, 2'); a(f's_add_u32 s{t}, s{t}, s{S_WAVE}'); a(f's_mul_i32 s{t}, s{t}, {2*14336}')
    a(f's_add_u32 s{S_XO}, s{t}, {hex(WS_XN)}')
    a('s_barrier')
    a(resolve_vm(B_head(False)))

def q_epi_ops():
    t = S_T + 8
    ops = [f's_lshl_b32 s{t}, s{S_PAIR}, 16', f's_lshl_b32 s{t+1}, s{S_WAVE}, 14', f's_add_u32 s{t}, s{t}, s{t+1}', f's_add_u32 s{t}, s{t}, {hex(WS_QX)}',
           f's_sub_u32 s{S_PUBQ}, s{S_T0}, s{S_HASX}', f's_cmp_eq_u32 s{S_PUBQ}, 0\ns_cselect_b32 s{t}, 0x70000000, s{t}',
           f'v_mov_b32 v{B_QS}, s{S_QSC}', f'v_mov_b32 v{B_QS+1}, s{S_QSC}']
    fr = []
    k = 0
    for s in range(8):
        for qb in range(2):
            tb = V_QO + (s*2+qb)*4; tm = B_TMP + 8*(k & 1); o = []
            if k % 4 == 0 and k: o.append(f's_add_u32 s{t}, s{t}, 4096')
            for half in range(2):
                src = ((2*s+half)*2+qb)*4
                o += [f'v_accvgpr_read_b32 v{tm+4*half+e}, a{src+e}' for e in range(4)]
            if k < OPT.get('nqw', 5) and OPT.get('qmul', True): o += [f'v_mul_f32 v{tm+e}, s{S_QSC}, v{tm+e}' for e in range(8)]
            else: o += [f'v_pk_mul_f32 {vr(tm+e,2)}, {vr(tm+e,2)}, {vr(B_QS,2)}' for e in range(0, 8, 2)]
            o += [f'v_cvt_pk_bf16_f32 v{tb+e}, v{tm+2*e}, v{tm+2*e+1}' for e in range(4)]
            o.append(f'buffer_store_dwordx4 {vr(tb)}, v{V_L16}, {sr(S_WS)}, s{t} offen offset:{1024*(k%4)} sc1')
            fr.append(o); k += 1
    return ops, fr

def phaseB_main(a, ffn, hist, nfb):
    NW = OPT.get('nweave', 8); NL = 16 + nfb
    DF = OPT.get('b_defer', True)
    NE = 16 if DF else NL
    pre = ['s_nop 7']
    nst_pre = OPT.get('nst_pre', 6)
    nsd = NW
    for k in range(NW, NE):
        pre += pack_store(k, 208 + 8*(k & 1), False)
        if ((k - NW) % 2 == 1 or DF) and nsd < NW + nst_pre: pre += kv_store(nsd); nsd += 1
    bias = ['s_waitcnt vmcnt(@BIAS)']
    for fb in range(nfb):
        for k in range(2):
            bias += [f'v_lshlrev_b32 v2, 16, v{B_TMP+2*fb+k}', f'v_and_b32 v3, 0xffff0000, v{B_TMP+2*fb+k}']
            for qb in range(2):
                bias += [f'v_accvgpr_write_b32 a{128+(fb*2+qb)*4+2*k}, v2', f'v_accvgpr_write_b32 a{128+(fb*2+qb)*4+2*k+1}, v3']
    if not DF: pre += bias
    pre += ['s_waitcnt vmcnt(@B0)', 's_barrier', 'STAMP']
    if DF:
        order = [(0, 'Q'), (1, 'Q'), (0, 'F'), (1, 'F')] + [(u, p) for u in range(2, 10) for p in 'QF'] + \
                [(u, 'Q') for u in range(10, 14)] + [(u, 'F') for u in (12, 13, 10, 11)]
    else: order = [(u, p) for u in range(14) for p in 'QF']
    steps = []; first = {}; pos = {}
    for (u, part) in order:
        sl = u % 4
        first.setdefault(u, len(steps)); pos[(u, part)] = len(steps)
        for f in (range(16) if part == 'Q' else range(16, 16+nfb)):
            buf = B_WF + (len(steps) % B_NB)*4
            if f < 16:
                rd = [f'ds_read_b64_tr_b16 {vr(buf+2*h,2)}, v{B_WA+(f&7)} offset:{sl*16384+2048*h+256*(f>>3)}' for h in range(2)]
                acc = f*8
            else:
                rd = [f'ds_read_b64_tr_b16 {vr(buf+2*h,2)}, v{B_1A+f-16} offset:{sl*8192+1024*h}' for h in range(2)]
                acc = 128 + (f-16)*8
            mf = []
            for qb in range(2):
                c = '0' if (u == 0 and f < 16) else ar(acc+4*qb)
                mf.append(f'{MF} {ar(acc+4*qb)}, {vr(buf)}, {vr(xr(u)+4*qb)}, {c}')
            steps.append(Step(mf, rd)); steps[-1].u = u
    LA = OPT.get('bd_la', 6)
    bp = {}
    for u in range(13):
        bp[u] = first[u+1] - LA - 1
        steps[bp[u]].pre += [f's_waitcnt vmcnt(@B{u+1})', 's_barrier']
    for st in steps:
        if st.u > 0: st.gate = bp[st.u-1]
    for u in range(1, 11):
        assert max(i for i, st in enumerate(steps) if st.u == u-1) < bp[u], u
    SIGU = OPT.get('sigu', 10)
    steps[bp[SIGU]].pre.insert(0, 's_waitcnt vmcnt(@KVST)')
    sc = Sched(steps, LA=LA, wait_group=OPT.get('bd_wg', 2))
    sc.place(B_dma(3, ffn), 0, min(bp[1]-2, 20))
    for u in range(1, 11):
        sc.place(B_dma(u+3, ffn), bp[u], min(bp[u+1]-2, bp[u]+OPT.get('b_dw', 30)))
    if DF:
        e_ = []
        for k in range(NE, NL): e_ += pack_store(k, B_PT, False)
        sc.place(e_ + bias, 0, pos[(0, 'F')] - 3)
    st_ = []
    for k in range(nsd, 32):
        st_ += kv_store(k) if k < NL else pack_store(k, B_PT, True)
    sc.place(st_, pos[(0, 'F')] - (14 if DF else 16), bp[OPT.get('st_end', 7)])
    sc.place([[f's_lshr_b32 s{S_T+7}, s2, 4', f's_lshl_b32 s{S_T+7}, s{S_T+7}, 2', f's_add_u32 s{S_T+7}, s{S_T+7}, s{S_FKV}',
               f'buffer_store_dword v{V_NONCE}, v{V_SIG}, {sr(S_WS)}, s{S_T+7} offen sc1']], bp[SIGU], bp[SIGU]+3)
    qs, qf = q_epi_ops()
    NQ = OPT.get('nqw', 5) if DF else 0
    pl = [f's_mov_b32 s{S_FP}, s{S_FKV}']
    sc.place(pl + qs, bp[12], bp[12]+6)
    if NQ: sc.place(flat(qf[:NQ]), pos[(13, 'Q')] + 8, len(steps)-1)
    print('phaseB overflow', sc.overflow(0, len(steps)-1))
    tx = []
    cuts = [0] + [first[u] for u in (2, 4, 6, 8, 10, 12)] + [pos[(12, 'F')] if DF else len(steps)-1, len(steps)]
    for i in range(len(cuts)-1):
        tx += sc.text(cuts[i], cuts[i+1]-1)
        if OPT.get('bstamp') and i < len(cuts)-2: tx.append(f'STAMP{20+i}')
    body = resolve_vm(hist + ['MARKB'] + pre + sc.pre + tx)
    body = body[body.index('MARKB')+1:]
    for k in range(NE, 32):
        pi = max(i for i, x in enumerate(body) if x.startswith(f'v_cvt_pk_bf16_f32 v{PEND+4*k+3}, v{B_PT+6}'))
        si = next(i for i, x in enumerate(body) if x.startswith(f'buffer_store_dwordx4 {vr(PEND+4*k)}, v{V_L16}, {sr(S_WS)}, s{S_KVO}'))
        assert pi < si, k
    rd_ = [int(x.split('a')[-1]) for x in body if x.startswith(f'v_accvgpr_read_b32 v{B_PT},') or x.startswith(f'v_accvgpr_read_b32 v{B_PT+7},')]
    assert rd_ == sorted(rd_), 'pack lists interleave'
    for x in body:
        if x == 'STAMP': stamp(a, 3)
        elif x.startswith('STAMP'): stamp(a, int(x[5:]))
        else: a(x)
    stamp(a, 4)
    a('s_nop 3')
    a(poll_issue(S_FP))
    a(flat(qf[NQ:]))
    return 16 - NQ

def qx_base(a, d):
    a(f's_lshl_b32 s{d}, s{S_PAIR}, 16'); a(f's_lshl_b32 s{d+1}, s{S_WAVE}, 14'); a(f's_add_u32 s{d}, s{d}, s{d+1}')
    a(f's_add_u32 s{d}, s{d}, {hex(WS_QX)}')

def phaseB_epi_h(a, nfb):
    for ks in range((nfb+1)//2):
        for qb in range(2):
            d = A_H + (ks*2+qb)*4
            for half in range(2):
                fb = 2*ks + half
                if fb >= nfb:
                    a(f'v_accvgpr_write_b32 a{d+2}, 0'); a(f'v_accvgpr_write_b32 a{d+3}, 0'); continue
                src = 128 + (fb*2+qb)*4
                tm = B_TMP + 8*half
                for e in range(4): a(f'v_accvgpr_read_b32 v{tm+e}, a{src+e}')
                for e in range(4): a(f'v_max_f32 v{tm+e}, 0, v{tm+e}')
                for e in range(0, 4, 2): a(f'v_pk_mul_f32 {vr(tm+e,2)}, {vr(tm+e,2)}, {vr(tm+e,2)}')
                for e in range(2): a(f'v_cvt_pk_bf16_f32 v{tm+4+e}, v{tm+2*e}, v{tm+2*e+1}')
                for e in range(2): a(f'v_accvgpr_write_b32 a{d+2*half+e}, v{tm+4+e}')

def fetch_qx(a):
    t = S_T
    a(f's_lshl_b32 s{S_FP}, s{S_PAIR}, 8'); a(f's_add_u32 s{S_FP}, s{S_FP}, {hex(WS_FLG + 0x30000)}')
    a(poll_issue(S_FP))
    a('s_waitcnt vmcnt(0)')
    spin_wait(a, S_FP, mask=1)
    a('s_barrier')
    qx_base(a, t)
    for k in range(16):
        if k % 4 == 0 and k: a(f's_add_u32 s{t}, s{t}, 4096')
        a(f'buffer_load_dwordx4 {ar(A_QX+4*k)}, v{V_L16}, {sr(S_WS)}, s{t} offen offset:{1024*(k%4)} sc1')

C_KA, C_VA, C_VD, C_DV, C_DV0, C_TM, C_NINF, C_ONE = 8, 9, 10, 11, 12, 13, 14, 16
C_BP16, C_BP32 = 20, 21
C_T = 22
C_S = [32, 48]
C_P, C_NM, C_L = 64, 72, 80
C_F, C_NB = 88, 8
C_MRG = 192

def C_dma(kind, m0expr):
    so = S_KO if kind == 'K' else S_VO
    g = [[m0expr, f's_add_u32 s{so}, s{so}, {KT_()}', f'buffer_load_dwordx4 v{C_VD}, {sr(S_WS)}, s{so} offen sc1 lds']]
    for i in range(1, 4): g.append([f'buffer_load_dwordx4 v{C_VD}, {sr(S_WS)}, s{so} offen offset:{1024*i} sc1 lds'])
    return g

def mask_ops(S, qb):
    ops = []
    for kb in range(2):
        for r in range(4): ops.append(f'v_cmp_gt_i32 s[{S_MK+2*r}:{S_MK+2*r+1}], {16*kb+r}, v{C_DV}')
        for r in range(4):
            reg = S + (kb*2+qb)*4 + r
            ops.append(f'v_cndmask_b32 v{reg}, v{reg}, v{C_NINF}, s[{S_MK+2*r}:{S_MK+2*r+1}]')
    return ops

def max_ops(S, half=False):
    r = [S + (kb*2+1)*4 + e for kb in range(2) for e in range(4)] if half else list(range(S, S+16))
    ops = [f'v_max3_f32 v{C_TM}, v{r[0]}, v{r[1]}, v{r[2]}']
    for i in range(3, len(r)-1, 2): ops.append(f'v_max3_f32 v{C_TM}, v{C_TM}, v{r[i]}, v{r[i+1]}')
    ops.append(f'v_max_f32 v{C_TM}, v{C_TM}, v{r[-1]}')
    return ops

def rowmax(a, S, qb, d):
    r = [S + (kb*2+qb)*4 + e for kb in range(2) for e in range(4)]
    a(f'v_max3_f32 v{d}, v{r[0]}, v{r[1]}, v{r[2]}')
    a(f'v_max3_f32 v{d}, v{d}, v{r[3]}, v{r[4]}')
    a(f'v_max3_f32 v{d}, v{d}, v{r[5]}, v{r[6]}')
    a(f'v_max_f32 v{d}, v{d}, v{r[7]}')
    for bp in (C_BP16, C_BP32):
        a(f'ds_bpermute_b32 v{C_T+7}, v{bp}, v{d}')
        a('s_waitcnt lgkmcnt(0)')
        a(f'v_max_f32 v{d}, v{d}, v{C_T+7}')

def rare_path(a, S, first):
    a('s_nop 7')
    for qb in range(2):
        d = C_T + qb
        rowmax(a, S, qb, d)
        if not first: a(f'v_max_f32 v{d}, 0, v{d}')
        for kb in range(2):
            for e in range(4):
                r = S + (kb*2+qb)*4 + e
                a(f'v_sub_f32 v{r}, v{r}, v{d}')
        for e in range(4): a(f'v_sub_f32 v{C_NM+4*qb+e}, v{C_NM+4*qb+e}, v{d}')
        if not first:
            al = C_T + 2 + qb
            a(f'v_exp_f32 v{al}, -v{d}')
            a('s_nop 0')
            for e in range(4): a(f'v_mul_f32 v{C_L+4*qb+e}, v{C_L+4*qb+e}, v{al}')
            for db in range(16):
                o = (db*2+qb)*4
                for e in range(3): a(f'v_accvgpr_read_b32 v{C_T+4+e}, a{o+e}')
                a(f'v_accvgpr_read_b32 v2, a{o+3}')
                for e in range(3): a(f'v_mul_f32 v{C_T+4+e}, v{C_T+4+e}, v{al}')
                a(f'v_mul_f32 v2, v2, v{al}')
                for e in range(3): a(f'v_accvgpr_write_b32 a{o+e}, v{C_T+4+e}')
                a(f'v_accvgpr_write_b32 a{o+3}, v2')
    a('s_nop 1')

def softmax_ops(S, qbs=(0, 1)):
    ops = []
    for qb in qbs:
        for kb in range(2):
            b = S + (kb*2+qb)*4
            for e in range(4): ops.append(f'v_exp_f32 v{b+e}, v{b+e}')
        for kb in range(2):
            b = S + (kb*2+qb)*4
            for e in range(2): ops.append(f'v_cvt_pk_bf16_f32 v{C_P+4*qb+2*kb+e}, v{b+2*e}, v{b+2*e+1}')
    return ops

def phaseC_begin(a, part=3):
    t = S_T
    lst = [('K', 0), ('K', 1), ('V', 0), ('K', 2), ('V', 1), ('K', 3)]
    if part & 1:
        a('s_barrier')
        a(f's_mul_i32 s{t}, s{S_H}, {KH_()}'); a(f's_mul_i32 s{t+1}, s{S_TS}, {KT_()}'); a(f's_add_u32 s{S_KO}, s{t}, s{t+1}')
        a(f's_add_u32 s{S_KO}, s{S_KO}, {hex(WS_KV - KT_())}')
        a(f's_add_u32 s{S_VO}, s{S_KO}, 16384')
        a(f'v_add_u32 v{C_VD}, s{S_W4K}, v{V_L16}')
    for kind, sl in (lst[:3] if part & 1 else []) + (lst[3:] if part & 2 else []):
        a(flat(C_dma(kind, f's_add_u32 m0, s{S_W4K}, {(0 if kind=="K" else 65536) + sl*16384}')))

def phaseC(a, own, rl, after_first_wait=None, tail_extra=None):
    t = S_T
    def AQ(i): return vr(V_QO+i) if own else ar(A_QX+i)
    NBUF = C_NB
    a(f's_mov_b32 s{S_PB}, s{S_W4K}'); a(f's_xor_b32 s{S_PO}, s{S_PB}, 0x8000')
    a(f'v_mov_b32 v{C_KA}, v{V_L16}'); a(f'v_add_u32 v{C_VA}, 0x18000, v{V_L16}')
    if own:
        a('v_and_b32 v2, 15, v1'); a('v_lshrrev_b32 v3, 4, v1'); a('v_lshlrev_b32 v3, 2, v3'); a(f'v_sub_u32 v{C_DV0}, v2, v3')
        a(f's_lshl_b32 s{t}, s{S_WAVE}, 4'); a(f'v_add_u32 v{C_DV0}, s{t}, v{C_DV0}')
        a(f's_sub_u32 s{t}, s{S_N}, 4'); a(f's_lshl_b32 s{t}, s{t}, 5')
        a(f'v_add_u32 v{C_DV}, s{t}, v{C_DV0}')
        a(f's_lshl_b32 s{S_RB}, s{S_Q1}, 4'); a(f's_sub_u32 s{S_RB}, s{S_RB}, 64')
        a(f'v_mov_b32 v{C_NINF}, 0xff800000')
    for e in range(4): a(f'v_mov_b32 v{C_ONE+e}, 0x3f803f80')
    a(f'v_xor_b32 v{C_BP16}, 16, v1'); a(f'v_lshlrev_b32 v{C_BP16}, 2, v{C_BP16}')
    a(f'v_xor_b32 v{C_BP32}, 32, v1'); a(f'v_lshlrev_b32 v{C_BP32}, 2, v{C_BP32}')
    for e in range(8): a(f'v_mov_b32 v{C_NM+e}, {f32(OPT.get("nm0", -8.0))}'); a(f'v_mov_b32 v{C_L+e}, 0')
    NZ = OPT.get('nz', 40)
    for r in range(128-NZ): a(f'v_accvgpr_write_b32 a{r}, 0')
    if own: phaseC_begin(a, 2)
    if own:
        Lw = a.newlabel('FW'); Lw2 = a.newlabel('FW')
        a(f's_cmp_eq_u32 s{S_HASX}, 0'); a(f's_cbranch_scc1 {Lw}')
        a('s_waitcnt vmcnt(29)'); a(f's_branch {Lw2}')
        a.label(Lw); a('s_waitcnt vmcnt(12)'); a.label(Lw2)
    else:
        fetch_qx(a)
        phaseC_begin(a, 2)
        a('s_waitcnt vmcnt(12)')
    a('s_barrier')
    if after_first_wait: after_first_wait(a)
    n = 10
    NM2, NM3, NM4 = 7, 10, 0
    steps = []; start = {}; h2s = {}
    def hf(j): return own and j >= n-2
    LV = OPT.get('lvalu', False)
    cnt = [0]
    def nbuf():
        b = C_F + (cnt[0] % OPT.get('c_nb', 8))*4; cnt[0] += 1; return b
    def ksteps(j, cinit):
        S = C_S[j & 1]
        for kb in range(2):
            for s in range(8):
                buf = nbuf()
                rd = f'ds_read_b128 {vr(buf)}, v{C_KA} offset:{(j&1)*16384 + (kb*8+s)*1024}'
                pv = f'v_xor_b32 v{C_KA}, 0x8000, v{C_KA}' if (kb == 0 and s == 0 and (j & 1) == 0 and j > 0) else None
                mf = []
                for qb in ((1,) if hf(j) else (0, 1)):
                    d = vr(S + (kb*2+qb)*4)
                    c = d if s > 0 else (cinit if cinit is not None else vr(C_NM+4*qb))
                    mf.append(f'{MF} {d}, {vr(buf)}, {AQ((s*2+qb)*4)}, {c}')
                steps.append(Step(mf, [rd], prev=pv))
                if hf(j): steps[-1].wg = 2
    def vsteps(j):
        for db in range(16):
            buf = nbuf()
            rd = f'ds_read_b128 {vr(buf)}, v{C_VA} offset:{(j&1)*16384 + db*1024}'
            pv = f'v_xor_b32 v{C_VA}, 0x8000, v{C_VA}' if (db == 0 and (j & 1) == 0) else None
            qbs = (1,) if hf(j) else (0, 1)
            mf = [f'{MF} {ar((db*2+qb)*4)}, {vr(buf)}, {vr(C_P+4*qb)}, {ar((db*2+qb)*4)}' for qb in qbs]
            if db == 15 and not LV:
                mf += [f'{MF} {vr(C_L+4*qb)}, {vr(C_ONE)}, {vr(C_P+4*qb)}, {vr(C_L+4*qb)}' for qb in qbs]
            steps.append(Step(mf, [rd], prev=pv))
            if hf(j): steps[-1].wg = 2
    start[-1] = 0
    ksteps(0, None)
    for j in range(n):
        start[j] = len(steps)
        if j < n-1: ksteps(j+1, None)
        h2s[j] = len(steps)
        vsteps(j)
        tail = j - (n-6)
        vm = {0: 12, 1: 12, 2: 8, 3: (4 + NM2 if own else 4), 4: (NM2 + NM3 if own else 0)}.get(max(tail, 0), None)
        if vm is not None: steps[h2s[j]+2].pre += [f's_waitcnt vmcnt({vm})', 's_barrier']
        if j == n-1: steps[h2s[j]].block += softmax_ops(C_S[j & 1], (1,) if hf(j) else (0, 1)) + ['s_nop 1']
    start[n] = len(steps)
    sc = Sched(steps, LA=OPT.get('c_la', 7), wait_group=OPT.get('c_wg', 4), wait_first=True)
    for j in range(n):
        p = j & 1; h2 = h2s[j]; end = start[j+1] - 1; tail = j - (n-6)
        if j < n-1 and not hf(j+1):
            S = C_S[p]
            regs = [S + (kb*2+qb)*4 + e for qb in range(2) for kb in range(2) for e in range(4)]
            for k in range(16):
                sc.put(start[j]+k, 0, f'v_exp_f32 v{regs[k]}, v{regs[k]}')
                if k & 1: sc.put(start[j]+k, 1, f'v_cvt_pk_bf16_f32 v{C_P+k//2}, v{regs[k-1]}, v{regs[k]}')
            adds = [f'v_add_f32 v{C_L+4*(k//8)}, v{C_L+4*(k//8)}, v{regs[k]}' for k in range(16)] if LV else []
        elif j < n-1:
            S = C_S[p]
            regs = [S + (kb*2+qb)*4 + e for qb in ((1,) if hf(j) else (0, 1)) for kb in range(2) for e in range(4)]
            o = []
            for k in range(len(regs)):
                o.append(f'v_exp_f32 v{regs[k]}, v{regs[k]}')
                if k >= 2 and k % 2 == 0: o.append(f'v_cvt_pk_bf16_f32 v{C_P+(4 if hf(j) else 0)+(k-2)//2}, v{regs[k-2]}, v{regs[k-1]}')
            o += ['s_nop 0', f'v_cvt_pk_bf16_f32 v{C_P+7}, v{regs[-2]}, v{regs[-1]}']
            sc.place(o, start[j], h2-3)
            adds = [f'v_add_f32 v{C_L+(4 if hf(j) else 4*(k//8))}, v{C_L+(4 if hf(j) else 4*(k//8))}, v{regs[k]}' for k in range(len(regs))] if LV else []
        else:
            S = C_S[p]
            regs = [S + (kb*2+qb)*4 + e for qb in ((1,) if hf(j) else (0, 1)) for kb in range(2) for e in range(4)]
            adds = [f'v_add_f32 v{C_L+(4 if hf(j) else 4*(k//8))}, v{C_L+(4 if hf(j) else 4*(k//8))}, v{regs[k]}' for k in range(len(regs))] if LV else []
        dv = C_dma('V', f's_add_u32 m0, s{S_PO if p==0 else S_PB}, {65536 + (16384 if p==0 else 0)}') if tail <= 2 else None
        dk = C_dma('K', f's_add_u32 m0, s{S_PB if p==0 else S_PO}, {16384 if p==0 else 0}') if tail <= 0 else None
        if dv:
            dv = flat(dv)
            sc.put(h2, 0, dv[0]); sc.put(h2, 0, dv[1])
            for x, st_ in zip(dv[2:], (2, 4, 5, 6)): sc.put(h2+st_, 0, x)
        else: sc.put(h2, 0, 's_nop 0')
        if dk:
            dk = flat(dk)
            sc.put(h2+7, 0, dk[0]); sc.put(h2+7, 0, dk[1])
            for x, st_ in zip(dk[2:], (8, 9, 10, 12)): sc.put(h2+st_, 0, x)
        if own:
            ml = merge_loads()
            if tail == 2: sc.place(ml[:NM2], h2+7, end)
            if tail == 3: sc.place(ml[NM2:NM2+NM3], h2+2, end)
            if tail == 2: sc.place(D_setup_v(), start[j], h2-1)
            if tail == 3: sc.place(D_setup_s(), h2+2, end)
            d0 = D_dma(0)
            if tail == 4: sc.place(d0[:6], h2+2, end)
            if tail == 5: sc.place(d0[6:], h2, end)
        if p == 1:
            e = [f's_xor_b32 s{S_PB}, s{S_PB}, 0x8000', f's_xor_b32 s{S_PO}, s{S_PO}, 0x8000']
            if j < 4: e += [f's_sub_u32 s{S_CNT}, s{S_CNT}, 2', f's_cmp_lg_u32 s{S_CNT}, 0']
            sc.place(e, end-2, end)
        if j < n-1:
            Sn = C_S[p ^ 1]; ops = []
            if own and tail == 1: ops += [f'v_mov_b32 v{C_DV}, v{C_DV0}'] + mask_ops(Sn, 0)
            if own and tail == 2: ops += [f'v_subrev_u32 v{C_DV}, 32, v{C_DV0}'] + mask_ops(Sn, 0)
            if own and tail == 3: ops += [f'v_add_u32 v{C_DV}, s{S_RB}, v{C_DV0}'] + mask_ops(Sn, 1)
            if own and tail == 4: ops += [f'v_subrev_u32 v{C_DV}, 32, v{C_DV}'] + mask_ops(Sn, 1)
            if hf(j+1): ops = [f'v_mov_b32 v{Sn+kb*8+e}, 0' for kb in range(2) for e in range(4)] + ops
            ops += max_ops(Sn, hf(j+1)) + [f'v_cmp_lt_f32 vcc, s{S_THR}, v{C_TM}']
            sc.place(ops, h2+(5 if hf(j) else 3), end)
        if adds:
            if j < n-1 and not hf(j+1):
                k0 = 0
                for st_ in range(2, 16, 2):
                    g = sc.gidx[start[j]+st_] + 1
                    if len(sc.gaps[g]) == 1: sc.put(start[j]+st_, 1, adds[k0]); k0 += 1
                sc.place(adds[k0:], h2, end)
            else: sc.place(adds, h2, end)
    if NZ: sc.place([f'v_accvgpr_write_b32 a{r}, 0' for r in range(128-NZ, 128)], 0, 15)
    def text(j0, j1): return sc.text(start[j0], start[j1+1]-1)
    def emit_iter(j):
        tx = resolve_vm(text(j, j))
        if own and j == n-6:
            a(f's_lshl_b32 s{S_FP}, s{S_PAIR}, 8'); a(f's_add_u32 s{S_FP}, s{S_FP}, {hex(WS_FLG + 0x20000)}')
            a(poll_issue(S_FP))
        if own and j == n-4:
            L = a.newlabel('NMC')
            for x in merge_setup(): a(x.split('\n'))
            a(f's_cmp_eq_u32 s{S_TS}, 0'); a(f's_cbranch_scc1 {L}')
            a('s_waitcnt vmcnt(12)')
            spin_wait(a, S_FP, mask=1)
            a.label(L)
        ab = OPT.get('ablate', '')
        if 'dma' in ab: tx = [x for x in tx if not (x.startswith('buffer_load') or 'vmcnt' in x)]
        if 'bar' in ab: tx = [x for x in tx if not x.startswith('s_barrier')]
        if 'exp' in ab: tx = [x for x in tx if not x.startswith('v_exp')]
        if 'max' in ab: tx = [x for x in tx if not x.startswith('v_max')]
        if 'read' in ab: tx = [x for x in tx if not (x.startswith('ds_read') or 'lgkmcnt' in x)]
        a(tx)
        if j < n-1 and not ab:
            Lb = a.newlabel('CB'); Ls = a.newlabel('CS')
            a(f's_cbranch_vccnz {Ls}')
            a.label(Lb)
            rl['stubs'].append((Ls, Lb, (j&1)^1))
    assert text(0, 1) == text(2, 3), 'not periodic'
    print('phaseC overflow per pair', sc.overflow(start[2], start[4]-1))
    if own: stamp(a, 14)
    a(sc.pre)
    a(text(-1, -1))
    if own: stamp(a, 15)
    if own:
        Lx = a.newlabel('FX')
        a(f's_cmp_eq_u32 s{S_HASX}, 0'); a(f's_cbranch_scc1 {Lx}')
        a('s_waitcnt vmcnt(12)')
        a.label(Lx)
    a('s_barrier')
    if own: publish_flag(a)
    a(flat(C_dma('V', f's_add_u32 m0, s{S_W4K}, {65536+2*16384}') + C_dma('K', f's_mov_b32 m0, s{S_W4K}')))
    if own: a(mask_ops(C_S[0], 0))
    S0 = C_S[0]
    for qb in range(2):
        r = [S0 + (kb*2+qb)*4 + e for kb in range(2) for e in range(4)]
        d = C_T + qb
        a(f'v_max3_f32 v{d}, v{r[0]}, v{r[1]}, v{r[2]}'); a(f'v_max3_f32 v{d}, v{d}, v{r[3]}, v{r[4]}')
        a(f'v_max3_f32 v{d}, v{d}, v{r[5]}, v{r[6]}'); a(f'v_max_f32 v{d}, v{d}, v{r[7]}')
    a(f'v_max_f32 v{C_T}, abs(v{C_T}), abs(v{C_T+1})')
    a(f'v_cmp_nge_f32 vcc, s{S_THR}, v{C_T}')
    Lb = a.newlabel('CB'); Ls = a.newlabel('CS')
    a(f's_cbranch_vccnz {Ls}')
    a.label(Lb)
    rl['stubs'].append((Ls, Lb, 'first'))
    if own: stamp(a, 16)
    Ltail4 = a.newlabel('CT4'); Ltail = a.newlabel('CT6'); Lloop = a.newlabel('CL')
    if own:
        a(f's_cmp_eq_u32 s{S_N}, 4'); a(f's_cbranch_scc1 {Ltail4}')
    a(f's_sub_u32 s{S_CNT}, s{S_N}, 6')
    a(f's_cmp_eq_u32 s{S_CNT}, 0'); a(f's_cbranch_scc1 {Ltail}')
    a.label(Lloop)
    emit_iter(2); emit_iter(3)
    a(f's_cbranch_scc1 {Lloop}')
    a.label(Ltail)
    if own: stamp(a, 17)
    emit_iter(4); emit_iter(5)
    if own: a.label(Ltail4)
    for j in range(6, 10): emit_iter(j)

def rare_subs(a, rl):
    for (Ls, Lb, p) in rl['stubs']:
        a.label(Ls)
        a(f's_cselect_b32 s{S_T+8}, 1, 0')
        a(f's_getpc_b64 s[{S_RET}:{S_RET+1}]')
        Lp = a.newlabel('CP'); a.label(Lp)
        a(f's_sub_u32 s{S_RET}, s{S_RET}, {Lp}-{Lb}'); a(f's_subb_u32 s{S_RET+1}, s{S_RET+1}, 0')
        a(f's_branch {rl[p]}')
    a.label(rl['first'])
    rare_path(a, C_S[0], True)
    a(f's_setpc_b64 s[{S_RET}:{S_RET+1}]')
    for p in range(2):
        a.label(rl[p])
        rare_path(a, C_S[p], False)
        a(f's_cmp_lg_u32 s{S_T+8}, 0')
        a(f's_setpc_b64 s[{S_RET}:{S_RET+1}]')

def op_base(a, d):
    a(f's_mul_i32 s{d}, s{S_PAIR}, {OP_PAIR}'); a(f's_mul_i32 s{d+1}, s{S_WAVE}, {OP_WAVE}')
    a(f's_add_u32 s{d}, s{d}, s{d+1}'); a(f's_add_u32 s{d}, s{d}, {hex(WS_OP)}')

def l_reduce(a):
    if not OPT.get('lvalu', False): return
    for bp in (C_BP16, C_BP32):
        for qb in range(2): a(f'ds_bpermute_b32 v{C_L+4*qb+1}, v{bp}, v{C_L+4*qb}')
        a('s_waitcnt lgkmcnt(0)')
        for qb in range(2): a(f'v_add_f32 v{C_L+4*qb}, v{C_L+4*qb}, v{C_L+4*qb+1}')

def publish_stores(a):
    t = S_T
    a('s_nop 7')
    l_reduce(a)
    op_base(a, t)
    a(f's_add_u32 s{t+1}, s{t}, 32768')
    a(f'v_mov_b32 v{C_T}, v{C_NM}'); a(f'v_mov_b32 v{C_T+1}, v{C_NM+4}'); a(f'v_mov_b32 v{C_T+2}, v{C_L}'); a(f'v_mov_b32 v{C_T+3}, v{C_L+4}')
    a(f'buffer_store_dwordx4 {vr(C_T)}, v{V_L16}, {sr(S_WS)}, s{t+1} offen sc1')
    for k in range(16):
        if k % 4 == 0 and k: a(f's_add_u32 s{t}, s{t}, 4096')
        tb = 32 + 16*(k & 1)
        for e in range(8): a(f'v_accvgpr_read_b32 v{tb+e}, a{8*k+e}')
        for e in range(4): a(f'v_cvt_pk_bf16_f32 v{tb+8+e}, v{tb+2*e}, v{tb+2*e+1}')
        a(f'buffer_store_dwordx4 {vr(tb+8)}, v{V_L16}, {sr(S_WS)}, s{t} offen offset:{1024*(k%4)} sc1')
    a('s_nop 1')

def publish_flag(a):
    L = a.newlabel('PF')
    a(f's_cmp_eq_u32 s{S_HASX}, 0'); a(f's_cbranch_scc1 {L}')
    a(f's_lshl_b32 s{S_T}, s{S_PAIR}, 8'); a(f's_add_u32 s{S_T}, s{S_T}, {hex(WS_FLG + 0x20000)}')
    a(f'buffer_store_dword v{V_NONCE}, v{V_SIG}, {sr(S_WS)}, s{S_T} offen sc1')
    a.label(L)

D_CTX = 32
D_WF, D_NB = 176, 8
D_ACC = 128
D_PK = 160
D_VO = 120
D_RA, D_RB = 20, 24
D_ST1 = 28
DSLOT = 49152
S_MB = 71
C_ML = 124

def merge_setup():
    t = S_T + 4
    return [f's_mul_i32 s{S_MB}, s{S_PAIR}, {OP_PAIR}', f's_mul_i32 s{t}, s{S_WAVE}, {OP_WAVE}',
            f's_add_u32 s{S_MB}, s{S_MB}, s{t}', f's_add_u32 s{S_MB}, s{S_MB}, {hex(WS_OP)}',
            f's_cmp_eq_u32 s{S_TS}, 0\ns_cselect_b32 s{S_MB}, 0x70000000, s{S_MB}']

def merge_loads():
    t = S_T + 4
    g = [[f's_add_u32 s{t}, s{S_MB}, 32768', f'buffer_load_dwordx4 {vr(C_ML)}, v{V_L16}, {sr(S_WS)}, s{t} offen sc1']]
    for k in range(16):
        pre = [f's_add_u32 s{S_MB}, s{S_MB}, 4096'] if (k % 4 == 0 and k) else []
        g.append(pre + [f'buffer_load_dwordx4 {vr(C_MRG+4*k)}, v{V_L16}, {sr(S_WS)}, s{S_MB} offen offset:{1024*(k%4)} sc1'])
    return g

def D_setup_v(): return D_setup()[:12]
def D_setup_s(): return D_setup()[12:]
def D_setup():
    t = S_T + 5
    r = ['v_lshrrev_b32 v2, 3, v1', 'v_mul_u32_u24 v3, 896, v2', 'v_bfe_u32 v2, v1, 4, 2', f'v_bfe_u32 v{D_VO}, v1, 1, 2', f'v_xor_b32 v2, v2, v{D_VO}',
         f'v_and_b32 v{D_VO}, 1, v1', f'v_lshl_add_u32 v2, v2, 1, v{D_VO}', 'v_lshl_add_u32 v3, v2, 4, v3']
    r += [f'v_add_u32 v{D_VO+i}, {i*(8*896-1024)}, v3' for i in range(4)]
    r += [f's_lshl_b32 s{t}, s{S_H}, 8', f's_lshl_b32 s{t+1}, s{S_WAVE}, 6', f's_add_u32 s{t}, s{t}, s{t+1}', f's_mul_i32 s{S_DO}, s{t}, 896',
          f's_lshl_b32 s{t+1}, s{S_WAVE}, 5', f's_add_u32 s{t}, s{S_F0}, s{t+1}', f's_mul_i32 s{S_D2}, s{t}, 896']
    return r

def finalize(a):
    t = S_T
    Lno = a.newlabel('NOMRG'); Ldone = a.newlabel('FIN')
    l_reduce(a)
    a(f's_cmp_lg_u32 s{S_TS}, 0'); a(f's_cbranch_scc0 {Lno}')
    a('s_waitcnt vmcnt(24)')
    a(f's_mov_b32 s{t}, 0xffff0000')
    for qb in range(2):
        nm_a = C_NM + 4*qb; nm_b = C_ML + qb; l_a = C_L + 4*qb; l_b = C_ML + 2 + qb
        sa = 8 + 2*qb; sb = 16 + 2*qb
        a(f'v_min_f32 v2, v{nm_a}, v{nm_b}')
        a(f'v_sub_f32 v3, v2, v{nm_a}'); a(f'v_exp_f32 v{sa}, v3')
        a(f'v_sub_f32 v3, v2, v{nm_b}'); a(f'v_exp_f32 v{sb}, v3')
        a('s_nop 0')
        a(f'v_mul_f32 v2, v{sa}, v{l_a}'); a(f'v_fmac_f32 v2, v{sb}, v{l_b}')
        if OPT.get('kvs', 0): a(f'v_mul_f32 v2, s{S_VS}, v2')
        a('v_rcp_f32 v2, v2'); a('s_nop 0')
        a(f'v_mul_f32 v{sa}, v{sa}, v2'); a(f'v_mul_f32 v{sb}, v{sb}, v2')
        a(f'v_mov_b32 v{sa+1}, v{sa}'); a(f'v_mov_b32 v{sb+1}, v{sb}')
    k = 0
    for s in range(8):
        for qb in range(2):
            for half in range(2):
                o = ((2*s+half)*2+qb)*4; tb = 12 if k & 1 else 20; k += 1
                for e in range(4): a(f'v_accvgpr_read_b32 v{tb+e}, a{o+e}')
                for e in range(2):
                    a(f'v_lshlrev_b32 v{24+2*e}, 16, v{C_MRG+o//2+e}'); a(f'v_and_b32 v{25+2*e}, s{t}, v{C_MRG+o//2+e}')
                for e in (0, 2): a(f'v_pk_mul_f32 {vr(tb+e,2)}, {vr(tb+e,2)}, {vr(8+2*qb,2)}')
                for e in (0, 2): a(f'v_pk_fma_f32 {vr(tb+e,2)}, {vr(24+e,2)}, {vr(16+2*qb,2)}, {vr(tb+e,2)}')
                for e in range(2): a(f'v_cvt_pk_bf16_f32 v{D_CTX+(s*2+qb)*4+2*half+e}, v{tb+2*e}, v{tb+2*e+1}')
    a(f's_branch {Ldone}')
    a.label(Lno)
    if OPT.get('kvs', 0):
        for qb in range(2): a(f'v_mul_f32 v{C_L+4*qb}, s{S_VS}, v{C_L+4*qb}')
    for qb in range(2): a(f'v_rcp_f32 v{8+2*qb}, v{C_L+4*qb}')
    a('s_nop 0')
    for qb in range(2): a(f'v_mov_b32 v{9+2*qb}, v{8+2*qb}')
    for s in range(8):
        for qb in range(2):
            for half in range(2):
                o = ((2*s+half)*2+qb)*4; tb = 12 if k & 1 else 20; k += 1
                for e in range(4): a(f'v_accvgpr_read_b32 v{tb+e}, a{o+e}')
                for e in (0, 2): a(f'v_pk_mul_f32 {vr(tb+e,2)}, {vr(tb+e,2)}, {vr(8+2*qb,2)}')
                for e in range(2): a(f'v_cvt_pk_bf16_f32 v{D_CTX+(s*2+qb)*4+2*half+e}, v{tb+2*e}, v{tb+2*e+1}')
    a.label(Ldone)

def D_dma(tile):
    t = S_T; sl = (tile % 3)*DSLOT
    g = []
    for half in range(2):
        first = [f's_lshl_b32 s{t}, s{S_W4K}, 1'] if half == 0 else []
        first += [f's_add_u32 m0, s{t}, {sl + 4096*half}', f's_add_u32 s{t+1}, s{S_DO}, {half*32*896 + tile*128}']
        for i in range(4):
            g.append((first if i == 0 else []) + [f'buffer_load_dwordx4 v{D_VO+i}, {sr(S_WO)}, s{t+1} offen offset:{1024*i} lds'])
    first = [f's_add_u32 m0, s{S_W4K}, {sl + 32768}', f's_add_u32 s{t+1}, s{S_D2}, {tile*128}']
    for i in range(4):
        g.append((first if i == 0 else []) + [f'buffer_load_dwordx4 v{D_VO+i}, {sr(S_W2)}, s{t+1} offen offset:{1024*i} lds'])
    return tag(g, f'T{tile}')

def phaseD_begin(a):
    a('s_barrier')
    a(resolve_vm(flat(D_dma(1))))

def phaseD(a, nks):
    t = S_T
    a('v_lshrrev_b32 v2, 2, v1'); a('v_bfe_u32 v3, v1, 3, 2')
    a('v_and_b32 v8, 3, v1'); a('v_lshlrev_b32 v8, 3, v8'); a('v_lshl_add_u32 v8, v2, 7, v8')
    for c in range(4):
        a(f'v_xor_b32 v2, {c}, v3'); a(f'v_lshl_add_u32 v{D_RB+c}, v2, 5, v8')
    a(f's_lshl_b32 s{t}, s{S_OWN}, 3'); a(f's_add_u32 s{t}, s{t}, s{S_WAVE}'); a(f's_mul_i32 s{t}, s{t}, {14*16384}')
    a(f's_lshl_b32 s{t+1}, s{S_H}, 10'); a(f's_add_u32 s{t}, s{t}, s{t+1}')
    a(f's_add_u32 s{S_PRT}, s{t}, {hex(WS_PART)}')
    a(f's_mul_i32 s{t}, s{S_Q1}, {14*16384}'); a(f'v_add_u32 v{D_ST1}, s{t}, v{V_L16}')
    steps = []
    for tile in range(7):
        sl = tile % 3
        for c in range(4):
            for ks in range(nks):
                buf = D_WF + (len(steps) % D_NB)*4
                rd = [f'ds_read_b64_tr_b16 {vr(buf+2*h,2)}, v{D_RA+c} offset:{4096*ks+2048*h}' for h in range(2)]
                pv = f'v_add_u32 v{D_RA+c}, {sl*DSLOT}, v{D_RB+c}' if ks == 0 else None
                mf = []
                for qb in range(2):
                    d = vr(D_ACC + (c*2+qb)*4)
                    b = vr(D_CTX + (ks*2+qb)*4) if ks < 8 else ar(A_H + ((ks-8)*2+qb)*4)
                    mf.append(f'{MF} {d}, {vr(buf)}, {b}, {d if ks else "0"}')
                steps.append(Step(mf, rd, prev=pv))
    nst = 4*nks; LA = OPT.get('bd_la', 6)
    bp = {}
    for tile in range(6):
        bp[tile] = (tile+1)*nst - LA - 1
        steps[bp[tile]].pre += [f's_waitcnt vmcnt(@T{tile+1})', 's_barrier']
        for f in range(nst): steps[(tile+1)*nst+f].gate = bp[tile]
    FUSE = OPT.get('fuse_r', True)
    if FUSE:
        bp[6] = 7*nst - LA - 1
        steps[bp[6]].pre += ['s_barrier']
        for tile in range(1, 7): steps[bp[tile]].pre.insert(0, f's_waitcnt vmcnt(@P{2*tile-1-OPT.get("plag", 0)})')
        a(f's_lshl_b32 s{S_FP}, s{S_OWN}, 12'); a(f's_add_u32 s{S_FP}, s{S_FP}, {hex(WS_FLG + 0x40000)}')
        a(f's_lshl_b32 s{S_MB}, s{S_H}, 2'); a(f's_add_u32 s{S_MB}, s{S_MB}, s{S_FP}')
    D2 = OPT.get('d2bar', True)
    if D2:
        for tile in range(1, 5): steps[tile*nst+1].pre += ['s_barrier']
    sc = Sched(steps, LA=LA, wait_group=OPT.get('bd_wg', 2))
    if FUSE:
        for tile in range(1, 7):
            sc.place([f'v_add_u32 v{8+(tile&1)}, {2*tile-OPT.get("plag", 0)}, v{V_NONCE}', f'buffer_store_dword v{8+(tile&1)}, v{V_SIG}, {sr(S_WS)}, s{S_MB} offen sc1'], bp[tile], bp[tile]+1)
    sc.place(D_dma(2), 0, 24)
    for tile in range(1, 5):
        if D2: sc.place(D_dma(tile+2), tile*nst+1, tile*nst+1+OPT.get('d_dw2', 30))
        else: sc.place(D_dma(tile+2), bp[tile], bp[tile]+OPT.get('d_dw', 16))
    tail_ops = None
    for tile in range(7):
        for cp in range(2):
            v = tile*2 + cp
            endstep = (tile*4 + cp*2 + 2)*nks
            ops = []
            for qb in range(2):
                pk = D_PK + (cp*2+qb)*4
                for half in range(2):
                    src = D_ACC + ((cp*2+half)*2+qb)*4
                    for e in range(2): ops.append(f'v_cvt_pk_bf16_f32 v{pk+2*half+e}, v{src+2*e}, v{src+2*e+1}')
                st = [f's_add_u32 s{t+4}, s{S_PRT}, {v*16384}'] if qb == 0 else []
                ops.append(st + [f'buffer_store_dwordx4 {vr(pk)}, v{V_L16 if qb==0 else D_ST1}, {sr(S_WS)}, s{t+4} offen sc1 ;@P{v}'])
            if endstep + 3 < len(steps): sc.place(ops, endstep+3, endstep+12)
            else: tail_ops = ops
    print('phaseD overflow', sc.overflow(0, len(steps)-1))
    head = flat(D_dma(0) + D_dma(1))
    tx = []
    for tile in range(7):
        if OPT.get('dstamp'): tx.append(f'STAMP{20+tile}')
        tx += sc.text(tile*nst, (tile+1)*nst-1)
    if OPT.get('dstamp'): tx.append('STAMP27')
    body = resolve_vm(head + ['MARK', 's_waitcnt vmcnt(@T0)', 's_barrier'] + sc.pre + tx)
    for x in body[body.index('MARK')+1:]:
        if x.startswith('STAMP'): stamp(a, int(x[5:]))
        else: a(x)
    a('s_nop 7')
    a(resolve_vm(flat(tail_ops)))

def phaseR(a, Lend):
    t = S_T
    S_OUT, S_B2 = S_CKV, S_W
    S_CT, S_U, S_IT, S_MSK = 57, 58, 59, 60
    a(f's_load_dwordx4 s[{t+4}:{t+7}], s[0:1], 80')
    a('s_waitcnt vmcnt(0)')
    a('s_barrier')
    a(f'v_add_u32 v8, 14, v{V_NONCE}')
    a(f'buffer_store_dword v8, v{V_SIG}, {sr(S_WS)}, s{S_MB} offen sc1')
    stamp(a, 13)
    a('s_waitcnt lgkmcnt(0)')
    srd(a, S_B2, t+4, 448*2); srd(a, S_OUT, t+6, 2048*448*2)
    a(f's_add_u32 s{S_CT}, s{S_FP}, 0x10000')
    a(f's_mov_b32 s{S_IT}, 0'); a(f's_mov_b32 s{S_MSK}, 0xffff0000')
    a('v_and_b32 v10, 15, v1'); a('v_mul_u32_u24 v10, 896, v10'); a('v_lshrrev_b32 v11, 4, v1'); a('v_lshlrev_b32 v11, 3, v11')
    a('v_add_u32 v10, v10, v11')
    def wait_prog(need_sgpr):
        Ls = a.newlabel('RP'); Lo = a.newlabel('RP')
        a(f's_mov_b32 s{t+1}, 0')
        a(f's_sub_u32 s{t+2}, 14, s{need_sgpr}')
        a.label(Ls)
        a(poll_issue(S_FP))
        a('s_waitcnt vmcnt(0)')
        a(f'v_sub_u32 v2, v{V_POLL}, v{V_NONCE}'); a(f'v_subrev_u32 v2, s{need_sgpr}, v2')
        a(f'v_cmp_ge_u32 vcc, s{t+2}, v2')
        a(f's_and_b32 s{t}, vcc_lo, 0xffff')
        a(f's_cmp_eq_u32 s{t}, 0xffff'); a(f's_cbranch_scc1 {Lo}')
        a(f's_sleep {OPT.get("rsleep", 3)}')
        a(f's_add_u32 s{t+1}, s{t+1}, 1')
        a(f's_cmp_lt_u32 s{t+1}, 20000'); a(f's_cbranch_scc1 {Ls}')
        a.label(Lo)
    Lloop = a.newlabel('RL'); Lsk = a.newlabel('RS'); Lw = a.newlabel('RW'); Lf = a.newlabel('RF')
    a(f's_cmp_lg_u32 s{S_WAVE}, 0'); a(f's_cbranch_scc1 {Lloop}')
    a(f's_mov_b32 s{t+3}, 1')
    wait_prog(t+3)
    a.label(Lloop)
    a(f'v_mov_b32 v12, s{S_IT}')
    a(f's_cmp_lg_u32 s{S_WAVE}, 0'); a(f's_cbranch_scc1 {Lsk}')
    a('v_mov_b32 v3, 1')
    a(f'buffer_atomic_add v3, v{V_SIG}, {sr(S_WS)}, s{S_CT} offen sc0 sc1')
    a('s_waitcnt vmcnt(0)')
    a(f'v_readfirstlane_b32 s{S_U}, v3')
    a(f's_cmp_ge_u32 s{S_U}, 28'); a(f's_cbranch_scc1 {Lw}')
    a(f's_lshr_b32 s{t+3}, s{S_U}, 1'); a(f's_add_u32 s{t+3}, s{t+3}, 1')
    wait_prog(t+3)
    a.label(Lw)
    a(f'v_mov_b32 v3, s{S_U}')
    a('ds_write_b32 v12, v3')
    a('s_waitcnt lgkmcnt(0)')
    a.label(Lsk)
    a('s_barrier')
    a('ds_read_b32 v3, v12')
    a('s_waitcnt lgkmcnt(0)')
    a(f'v_readfirstlane_b32 s{S_U}, v3')
    a(f's_xor_b32 s{S_IT}, s{S_IT}, 4')
    a(f's_cmp_ge_u32 s{S_U}, 28'); a(f's_cbranch_scc1 {Lf}')
    a(f's_and_b32 s{t}, s{S_U}, 1'); a(f's_lshl_b32 s{t}, s{t}, 2'); a(f's_add_u32 s{t}, s{t}, s{S_WAVE}')
    a(f's_lshl_b32 s{t+1}, s{S_OWN}, 3'); a(f's_add_u32 s{t}, s{t}, s{t+1}')
    a(f's_lshr_b32 s{t+1}, s{S_U}, 1')
    a(f's_mul_i32 s{t+2}, s{t}, 14'); a(f's_add_u32 s{t+2}, s{t+2}, s{t+1}'); a(f's_lshl_b32 s{t+2}, s{t+2}, 14')
    a(f's_add_u32 s{t+2}, s{t+2}, {hex(WS_PART)}')
    for h in range(16):
        a(f'buffer_load_dwordx4 {vr(32+4*h)}, v{V_L16}, {sr(S_WS)}, s{t+2} offen offset:{(h%4)*1024} sc1')
        if h % 4 == 3 and h < 15: a(f's_add_u32 s{t+2}, s{t+2}, 4096')
    a(f's_mul_i32 s{t}, s{t}, {16*896}'); a(f's_lshl_b32 s{t+1}, s{t+1}, 6'); a(f's_add_u32 s{t}, s{t}, s{t+1}')
    a(f'buffer_load_dwordx2 v[96:97], v10, {sr(S_XIN)}, s{t} offen')
    a(f'buffer_load_dwordx2 v[98:99], v10, {sr(S_XIN)}, s{t} offen offset:32')
    a(f'buffer_load_dwordx2 v[100:101], v11, {sr(S_B2)}, s{t+1} offen')
    a(f'buffer_load_dwordx2 v[102:103], v11, {sr(S_B2)}, s{t+1} offen offset:32')
    for h in range(18):
        a(f's_waitcnt vmcnt({19-h if h < 16 else (2 if h == 16 else 0)})')
        src = 32 + 4*h
        for i in range(4):
            if h == 0:
                a(f'v_lshlrev_b32 v{16+2*i}, 16, v{src+i}'); a(f'v_and_b32 v{17+2*i}, s{S_MSK}, v{src+i}')
            else:
                a(f'v_lshlrev_b32 v14, 16, v{src+i}'); a(f'v_and_b32 v15, s{S_MSK}, v{src+i}')
                a(f'v_add_f32 v{16+2*i}, v{16+2*i}, v14'); a(f'v_add_f32 v{17+2*i}, v{17+2*i}, v15')
    for i in range(4): a(f'v_cvt_pk_bf16_f32 v{24+i}, v{16+2*i}, v{17+2*i}')
    a(f'buffer_store_dwordx2 v[24:25], v10, {sr(S_OUT)}, s{t} offen')
    a(f'buffer_store_dwordx2 v[26:27], v10, {sr(S_OUT)}, s{t} offen offset:32')
    a(f's_cmp_lt_u32 s{S_U}, {OPT.get("u0", 20)}'); a(f's_cbranch_scc1 {Lloop}')
    a.label(Lf)
    if DBG[0]:
        a('s_waitcnt vmcnt(0)')
        stamp(a, 18)

def build_srds(a):
    P = PTR
    srd(a, S_WS, P+26, WS_BYTES); srd(a, S_CKV, P+2, 2048*1024*2); srd(a, S_XIN, P+0, 2048*448*2)
    a(f's_cmp_eq_u32 s{S_KVT}, 0')
    a(f's_cselect_b32 s{P+6}, s{P+6}, s{P+8}'); a(f's_cselect_b32 s{P+7}, s{P+7}, s{P+9}')
    srd(a, S_W, P+6, 1024*4096*2)
    srd(a, S_WQ, P+4, 448*4096*2); srd(a, S_W1, P+14, 448*1792*2); srd(a, S_WO, P+10, 4096*448*2)
    srd(a, S_W2, P+18, 1792*448*2); srd(a, S_B1, P+16, 1792*2); srd(a, S_DBG, P+24, 256)

def gen_mega(a, name='m_kernel', dbg=False):
    DBG[0] = dbg
    a.raw('.text'); a.raw('.p2align 8')
    a.label('M_CODE_START')
    front_pos = len(a.L)
    kstart(a, name)
    Lend = a.newlabel('MEND')
    Lgo = a.newlabel('GO')
    a('s_cmp_lt_u32 s2, 256'); a(f's_cbranch_scc1 {Lgo}')
    a('s_endpgm')
    a.label(Lgo)
    a(f's_load_dwordx16 s[{PTR}:{PTR+15}], s[0:1], 0')
    a(f's_load_dwordx8 s[{PTR+16}:{PTR+23}], s[0:1], 64')
    a(f's_load_dwordx4 s[{PTR+24}:{PTR+27}], s[0:1], 96')
    Lp = a.newlabel('PC')
    a(f's_getpc_b64 s[{S_PC}:{S_PC+1}]')
    a.label(Lp)
    a(f's_sub_u32 s{S_PC}, s{S_PC}, {Lp}-M_CODE_START'); a(f's_subb_u32 s{S_PC+1}, s{S_PC+1}, 0')
    a(flat(code_pf(0, OPT.get('cpf0', 1), 200)))
    if OPT.get('cpfs'):
        ns = OPT['cpfs']; per = (OPT.get('codekb', 112)*1024 // ns) // 128
        a('s_lshr_b32 s4, s2, 3'); a(f's_and_b32 s4, s4, {ns-1}'); a(f's_mul_i32 s4, s4, {per*128}')
        a(f'v_min_u32 v200, {per-1}, v0'); a('v_lshlrev_b32 v200, 7, v200'); a('v_add_u32 v200, s4, v200')
        a('v_min_u32 v200, M_CODE_END-M_CODE_START-4, v200')
        a(f'global_load_dword v31, v200, s[{S_PC}:{S_PC+1}]')
    a('v_and_b32 v1, 63, v0')
    a('v_lshrrev_b32 v2, 6, v0')
    a(f'v_lshlrev_b32 v{V_L16}, 4, v1')
    a(f'v_readfirstlane_b32 s{S_WAVE}, v2')
    t = 4
    a(f's_and_b32 s{t}, s2, 7'); a(f's_lshr_b32 s{t+1}, s2, 3'); a(f's_and_b32 s{t+2}, s{t+1}, 1')
    if OPT.get('xswap'): a(f's_xor_b32 s{t}, s{t}, {OPT["xswap"]}')
    a(f's_lshl_b32 s{t}, s{t}, 1'); a(f's_add_u32 s{S_H}, s{t}, s{t+2}')
    a(f's_lshr_b32 s{t+1}, s{t+1}, 1'); a(f's_and_b32 s{S_ROLE}, s{t+1}, 1'); a(f's_lshr_b32 s{S_I}, s{t+1}, 1')
    a(f's_lshl_b32 s{S_W4K}, s{S_WAVE}, 12'); a(f's_lshl_b32 s{S_W2K}, s{S_WAVE}, 11')
    a(f's_lshl_b32 s{S_PAIR}, s{S_H}, 3'); a(f's_add_u32 s{S_PAIR}, s{S_PAIR}, s{S_I}')
    a(f's_lshl_b32 s{S_FKV}, s{S_H}, 12'); a(f's_add_u32 s{S_FKV}, s{S_FKV}, {hex(WS_FLG)}')
    lo = sum(T0[i] << (8*i) for i in range(4)); hi = sum(T0[4+i] << (8*i) for i in range(4))
    a(f's_mov_b32 s{t}, {hex(lo)}'); a(f's_mov_b32 s{t+1}, {hex(hi)}')
    a(f's_lshl_b32 s{t+2}, s{S_I}, 3'); a(f's_lshr_b64 s[{t}:{t+1}], s[{t}:{t+1}], s{t+2}'); a(f's_and_b32 s{S_T0}, s{t}, 0xff')
    a(f's_sub_u32 s{S_EXT}, 15, s{S_I}')
    a(f's_cmp_eq_u32 s{S_ROLE}, 0'); a(f's_cselect_b32 s{S_OWN}, s{S_EXT}, s{S_I}')
    a(f's_mul_i32 s{S_HASX}, s{S_ROLE}, s{S_T0}')
    a(f's_mov_b32 s{S_QSC}, {f32(1.4426950408889634/16*2**OPT.get("kvs", 0))}'); a(f's_mov_b32 s{S_KVS}, {f32(2.0**-OPT.get("kvs", 0))}'); a(f's_mov_b32 s{S_VS}, {f32(2.0**-OPT.get("vs", 0))}')
    a(f's_cmp_eq_u32 s{S_KVT}, 0'); a(f's_cselect_b32 s{S_KVS}, s{S_KVS}, s{S_VS}')
    a(f's_mov_b32 s{S_THR}, {f32(16.0)}')
    a('v_mov_b32 v3, 0x7fffff00'); a('v_cmp_eq_u32 vcc, 0, v0'); a(f'v_mov_b32 v{V_NONCE}, 0')
    a('v_lshlrev_b32 v2, 2, v0')
    a(f'v_cndmask_b32 v{V_SIG}, v3, 0, vcc')
    a('v_cmp_gt_u32 vcc, 16, v0'); a('s_nop 1')
    a(f'v_cndmask_b32 v{V_SIG16}, v3, v2, vcc')
    hist = phaseA(a)
    SPLIT = OPT.get('fsplit', False)
    def two(fn_even, fn_odd, front=False):
        if not SPLIT: fn_even(); return
        Lo = a.newlabel('OD'); Le = a.newlabel('EV')
        a(f's_cmp_lg_u32 s{S_ODD}, 0'); a(f's_cbranch_scc1 {Lo}')
        fn_even()
        if front:
            a.label(Le)
            main = a.L; a.L = []
            a.label(Lo); fn_odd(); a(f's_branch {Le}')
            main[front_pos:front_pos] = a.L
            a.L = main
        else:
            a(f's_branch {Le}')
            a.label(Lo); fn_odd(); a.label(Le)
    nq_after = phaseB_main(a, True, hist, 7)
    Lown = a.newlabel('OWN'); Lown2 = a.newlabel('OWN2')
    rl = {0: a.newlabel('RARE'), 1: a.newlabel('RARE'), 'first': a.newlabel('RARE'), 'stubs': []}
    def qsc(): a(f'v_mov_b32 v{B_QS}, s{S_QSC}'); a(f'v_mov_b32 v{B_QS+1}, s{S_QSC}')
    def own_params():
        a(f's_lshl_b32 s{S_RB}, s{S_OWN}, 2'); a(f's_add_u32 s{S_N}, s{S_RB}, 4'); a(f's_add_u32 s{S_RB}, s{S_RB}, s{S_WAVE}')
        a(f's_cmp_eq_u32 s{S_ROLE}, 0'); a(f's_cselect_b32 s{S_TS}, s{S_T0}, 0')
        a(f's_sub_u32 s{S_N}, s{S_N}, s{S_TS}')
    own_params()
    a(f's_cmp_lg_u32 s{S_HASX}, 0'); a(f's_cselect_b32 s{S_N}, s{S_T0}, s{S_N}')
    a(f's_waitcnt vmcnt({nq_after})')
    spin_wait(a, S_FP)
    stamp(a, 8)
    phaseC_begin(a, 1)
    two(lambda: phaseB_epi_h(a, 8 if SPLIT else 7), lambda: phaseB_epi_h(a, 6))
    Lq = a.newlabel('QF')
    a(f's_cmp_eq_u32 s{S_PUBQ}, 0'); a(f's_cbranch_scc1 {Lq}')
    a('s_waitcnt vmcnt(12)')
    a('s_barrier')
    a(f's_lshl_b32 s{S_T}, s{S_PAIR}, 8'); a(f's_add_u32 s{S_T}, s{S_T}, {hex(WS_FLG + 0x30000)}')
    a(f'buffer_store_dword v{V_NONCE}, v{V_SIG}, {sr(S_WS)}, s{S_T} offen sc1')
    a.label(Lq)
    stamp(a, 5)
    a(f's_cmp_eq_u32 s{S_HASX}, 0'); a(f's_cbranch_scc1 {Lown2}')
    phaseC(a, False, rl, after_first_wait=lambda a: stamp(a, 6))
    stamp(a, 9)
    own_params()
    phaseC_begin(a, 1)
    publish_stores(a)
    a.label(Lown2)
    stamp(a, 10)
    t = S_T
    def afw(a):
        if OPT.get('pfd_c0'): a(flat(pfD(2)))
        if OPT.get('pfd_big', True): pfD_big(a)
    phaseC(a, True, rl, after_first_wait=afw)
    a.label('M_D_START')
    stamp(a, 11)
    phaseD_begin(a)
    finalize(a)
    stamp(a, 12)
    two(lambda: phaseD(a, 12), lambda: phaseD(a, 11))
    if OPT.get('fuse_r', True): phaseR(a, Lend)
    elif dbg:
        a('s_waitcnt vmcnt(0)')
        stamp(a, 13)
    a.label(Lend)
    a('s_endpgm')
    rare_subs(a, rl)
    a.label('M_CODE_END')
    kdesc(a, name, 512, 256, sgpr=102)
```

```python
import build, mega
for name, o in [('r0', None), ('rx8', ('xcd', 2)), ('rx2', ('xcd2', 8)), ('rx4', ('xcd4', 4)), ('rk2', ('kt2', 8)), ('rx81', ('xcd', 1))]:
    build.build(f'ab_{name}.s', dbg=True, rot=o)
```

```python
from asmlib import *
from layout import *
from sched import *
import struct

def f32(x): return hex(struct.unpack('<I', struct.pack('<f', x))[0])
MF = 'v_mfma_f32_16x16x32_bf16'
DBG = [False]
def KT_(): return OPT.get('kvtile', 32768)
def KH_(): return 64*KT_() + OPT.get('kvhpad', 0)
OPT = dict(kv_sc1=True, a_pf=0, tlb=False, cpf0=0, cpfs=8, kvs=2, vs=3, fsplit=True, codekb=144, align=3)

S_WS, S_CKV, S_W, S_WQ, S_W1, S_WO, S_W2, S_B1, S_XIN, S_DBG = 4, 8, 12, 16, 20, 24, 28, 32, 36, 40
S_WAVE, S_H, S_ROLE, S_I, S_OWN, S_EXT, S_T0, S_HASX, S_W4K, S_W2K, S_PAIR, S_QSC, S_THR = range(44, 57)
S_KVT, S_KT = S_ROLE, S_I
S_SOX, S_SOW, S_DX, S_RX, S_CNT = 57, 58, 59, 60, 61
S_XO, S_KVO = 71, 62
S_DL = 86
S_KO, S_VO, S_PB, S_PO, S_RB, S_TS, S_N = 57, 58, 59, 60, 62, 63, 64
S_DO, S_D2, S_DS, S_PRT = 57, 58, 59, 60
S_FKV = 65
S_FP = 70
S_PUBQ = 68
S_F0, S_ODD = 98, 99
S_KVS, S_VS = 100, 101
S_Q1 = 3
S_PC = 66
S_T = 72
S_RET = 84
S_MK = 86
S_ST = 94
PTR = 72
V_L16, V_SIG, V_NONCE, V_POLL = 4, 5, 6, 7
V_SIG16, V_DUM = 30, 31
V_H = 128
A_QX, A_H = 128, 192
V_QO = 128
CNT_KV, CNT_XN = 128, 192

def stamp(a, idx, dyn=None):
    if not DBG[0]: return
    L = a.newlabel('ST')
    a(f's_cmp_lg_u32 s{S_WAVE}, 0'); a(f's_cbranch_scc1 {L}')
    a(f's_memtime s[{S_ST}:{S_ST+1}]'); a(f's_memrealtime s[{S_ST+2}:{S_ST+3}]')
    a('s_waitcnt lgkmcnt(0)')
    a(f'v_mov_b32 v2, s{S_ST}'); a(f'v_mov_b32 v3, s{S_ST+2}')
    a(f's_lshl_b32 s{S_ST}, s2, 8'); a(f's_add_u32 s{S_ST}, s{S_ST}, {hex(WS_DBG + idx*8)}')
    if dyn is not None:
        a(f's_lshl_b32 s{S_ST+1}, s{dyn}, 3'); a(f's_add_u32 s{S_ST}, s{S_ST}, s{S_ST+1}')
    a(f'buffer_store_dwordx2 v[2:3], v{V_SIG}, {sr(S_WS)}, s{S_ST} offen')
    a('s_nop 1')
    a.label(L)

def code_pf(off, n, vt):
    g = []
    for i in range(n):
        g.append([f'v_lshlrev_b32 v{vt}, 7, v0', f'v_add_u32 v{vt}, {off + i*32768}, v{vt}',
                  f'v_min_u32 v{vt}, M_CODE_END-M_CODE_START-4, v{vt}',
                  f'global_load_dword v31, v{vt}, s[{S_PC}:{S_PC+1}]'])
    return g

def spin_wait(a, soff, mask=0xffff):
    t = S_T
    Lok = a.newlabel('WOK'); Ls = a.newlabel('WSP')
    a(f's_cmp_lg_u32 s{S_WAVE}, 0'); a(f's_cbranch_scc1 {Lok}')
    a(f's_mov_b32 s{t+1}, 0')
    a.label(Ls)
    a(f'v_cmp_eq_u32 vcc, v{V_POLL}, v{V_NONCE}')
    a(f's_and_b32 s{t}, vcc_lo, {hex(mask)}')
    a(f's_cmp_eq_u32 s{t}, {hex(mask)}'); a(f's_cbranch_scc1 {Lok}')
    a('s_sleep 8')
    a(poll_issue(soff))
    a('s_waitcnt vmcnt(0)')
    a(f's_add_u32 s{t+1}, s{t+1}, 1')
    a(f's_cmp_lt_u32 s{t+1}, 20000'); a(f's_cbranch_scc1 {Ls}')
    a.label(Lok)

def poll_issue(soff):
    return [f'buffer_load_dword v{V_POLL}, v{V_SIG16}, {sr(S_WS)}, s{soff} offen sc1']

def xn_flag_addr(dst, qb):
    return [f's_lshl_b32 s{dst}, s{qb}, 12', f's_add_u32 s{dst}, s{dst}, {hex(WS_FLG + 0x10000)}']

def row2_reduce(a, v, t, sd, sm):
    for mod in ['quad_perm:[1,0,3,2]', 'quad_perm:[2,3,0,1]', 'row_ror:8']:
        a('s_nop 1')
        a(f'v_add_f32 v{v}, v{v}, v{v} {mod} row_mask:0xf bank_mask:0xf')
    a('s_nop 1')
    for i in range(4): a(f'v_readlane_b32 s{sd+i}, v{v}, {16*i}')
    for i in range(4): a(f'v_readlane_b32 s{sd+4+i}, v{v}, {16*i+4}')
    a('s_nop 1')
    a(f'v_mov_b32 v{v}, s{sd}'); a(f'v_mov_b32 v{t}, s{sd+4}')
    for i in range(1, 4):
        a(f'v_add_f32 v{v}, s{sd+i}, v{v}'); a(f'v_add_f32 v{t}, s{sd+4+i}, v{t}')
    a(f'v_cndmask_b32 v{v}, v{v}, v{t}, s[{sm}:{sm+1}]')

def bf16_round(a, d, s):
    a(f'v_cvt_pk_bf16_f32 v{d}, v{s}, v{s}')
    a(f'v_and_b32 v{d}, 0xffff0000, v{d}')

def ln_rows(a, xr, f, t, sd, sm, out):
    a(f's_mov_b32 s{sm}, 0xf0f0f0f0'); a(f's_mov_b32 s{sm+1}, 0xf0f0f0f0')
    for i in range(8):
        a(f'v_lshlrev_b32 v{f+2*i}, 16, v{xr+i}')
        a(f'v_and_b32 v{f+2*i+1}, 0xffff0000, v{xr+i}')
    a(f'v_add_f32 v{t}, v{f}, v{f+1}')
    for i in range(2, 16): a(f'v_add_f32 v{t}, v{t}, v{f+i}')
    row2_reduce(a, t, t+3, sd, sm)
    a(f'v_mul_f32 v{t}, 0x3b124925, v{t}')
    a(f'v_mov_b32 v{t+1}, 0')
    for i in range(16):
        a(f'v_sub_f32 v{t+2}, v{f+i}, v{t}')
        a(f'v_fmac_f32 v{t+1}, v{t+2}, v{t+2}')
    a(f'v_cndmask_b32 v{t+1}, 0, v{t+1}, vcc')
    row2_reduce(a, t+1, t+3, sd, sm)
    a(f'v_mul_f32 v{t+1}, 0x3b124925, v{t+1}')
    bf16_round(a, t, t)
    bf16_round(a, t+1, t+1)
    a(f'v_add_f32 v{t+1}, 0x3727c5ac, v{t+1}')
    bf16_round(a, t+1, t+1)
    a(f'v_sqrt_f32 v{t+1}, v{t+1}')
    a('s_nop 0')
    bf16_round(a, t+1, t+1)
    a(f'v_rcp_f32 v{t+2}, v{t+1}')
    a('s_nop 0')
    a(f'v_fma_f32 v{t+3}, -v{t+1}, v{t+2}, 1.0')
    a(f'v_fmac_f32 v{t+2}, v{t+3}, v{t+2}')
    for i in range(16): a(f'v_sub_f32 v{f+i}, v{f+i}, v{t}')
    for i in range(8): a(f'v_cvt_pk_bf16_f32 v{out+i}, v{f+2*i}, v{f+2*i+1}')
    for i in range(8):
        a(f'v_lshlrev_b32 v{f+2*i}, 16, v{out+i}')
        a(f'v_and_b32 v{f+2*i+1}, 0xffff0000, v{out+i}')
    for i in range(16): a(f'v_mul_f32 v{f+i}, v{f+i}, v{t+2}')
    for i in range(8): a(f'v_cvt_pk_bf16_f32 v{out+i}, v{f+2*i}, v{f+2*i+1}')

WSLOT, NWS = 16384, 4
XBASE, XSLOT, NXS = 65536, 32768, 3
A_VX, A_VW, A_XAB, A_XA, A_WA = 8, 12, 16, 18, 20
AF = [dict(X=32, W=64), dict(X=96, W=128)]

def A_dma_w(wslot):
    g = [[f's_add_u32 m0, s{S_W4K}, {wslot*WSLOT}', f's_add_u32 s{S_SOW}, s{S_SOW}, {32*8192}'] + ([f's_and_b32 s{S_SOW}, s{S_SOW}, 0x7fffff'] if OPT.get('rot') else []) +
         [f'buffer_load_dwordx4 v{A_VW}, {sr(S_W)}, s{S_SOW} offen lds']]
    for i in range(1, 4):
        g.append([f'buffer_load_dwordx4 v{A_VW+i}, {sr(S_W)}, s{S_SOW} offen offset:{1024*i} lds'])
    return g

def A_dma_x(half):
    if half == 0:
        so = S_SOX
        g = [[f's_mov_b32 m0, s{S_DX}', f's_add_u32 s{S_SOX}, s{S_SOX}, 128'] + ([f's_and_b32 s{S_SOX}, s{S_SOX}, 2047'] if OPT.get('rot') else []) + [f'buffer_load_dwordx4 v{A_VX}, {sr(S_CKV)}, s{so} offen lds']]
    else:
        so = S_T + 1
        g = [[f's_add_u32 m0, s{S_DX}, 16384', f's_add_u32 s{so}, s{S_SOX}, {128*2048}',
              f'buffer_load_dwordx4 v{A_VX}, {sr(S_CKV)}, s{so} offen lds']]
    for i in range(1, 4):
        g.append([f'buffer_load_dwordx4 v{A_VX+i}, {sr(S_CKV)}, s{so} offen offset:{1024*i} lds'])
    if half == 1:
        g[-1] += [f's_add_u32 s{S_DX}, s{S_DX}, {XSLOT}',
                  f's_cmp_ge_u32 s{S_DX}, {XBASE+NXS*XSLOT}\ns_cselect_b32 s{S_T}, {NXS*XSLOT}, 0',
                  f's_sub_u32 s{S_DX}, s{S_DX}, s{S_T}']
    return g

def A_reads(u):
    f = AF[u & 1]; ks = u & 1; ws = u % NWS
    def wr(db): return [f'ds_read_b64_tr_b16 {vr(f["W"]+4*db+2*h,2)}, v{A_WA+db} offset:{ws*WSLOT+2048*h}' for h in range(2)]
    r = wr(0)
    for kb in range(8): r.append(f'ds_read_b128 {vr(f["X"]+4*kb)}, v{A_XA+ks} offset:{2048*kb}')
    for db in range(1, 8): r += wr(db)
    return r

def A_order(vtype):
    if vtype: return [(db, 2*tt+h) for db in range(8) for tt in range(4) for h in range(2)]
    return [(2*s_+h, kb) for s_ in range(4) for kb in range(8) for h in range(2)]

def A_kstep(u, vtype, dmaw, dmax, vm, last=False, extras=(), head=(), czero=False):
    out = list(head)
    if not last: out += [f's_waitcnt vmcnt({vm}) lgkmcnt(0)', 's_barrier']
    else: out += ['s_waitcnt lgkmcnt(0)']
    f = AF[u & 1]
    steps = []
    for i, (db, kb) in enumerate(A_order(vtype)):
        acc = ar(i*4, 4); w = vr(f['W']+4*db); x = vr(f['X']+4*kb)
        c = '0' if czero else acc
        steps.append(Step([f'{MF} {acc}, {x}, {w}, {c}' if vtype else f'{MF} {acc}, {w}, {x}, {c}']))
    sc = Sched(steps, LA=0, first_issued=0)
    d = []
    if dmaw: d += A_dma_w(u % NWS)
    if dmax: d += A_dma_x(0 if (u & 1) else 1)
    if d: sc.place(tag(d, f'A{u}'), 2, 58)
    if not last:
        r = []
        if (u & 1) == 1:
            r += [f's_add_u32 s{S_RX}, s{S_RX}, {XSLOT}', f's_cmp_ge_u32 s{S_RX}, {NXS*XSLOT}\ns_cselect_b32 s{S_RX}, 0, s{S_RX}']
            r += [f'v_add_u32 v{A_XA+i}, s{S_RX}, v{A_XAB+i}' for i in range(2)]
        sc.place(r + A_reads(u+1), 0, 44)
    for (items, lo, hi) in extras: sc.place(items, lo, hi)
    return out + sc.text(0, 63)

PEND = 32

def phaseA(a):
    t = 4
    S_ROW0, S_ROWO = 68, 69
    a(f's_lshl_b32 s{t}, s{S_KT}, 3'); a(f's_add_u32 s{t}, s{t}, s{S_WAVE}'); a(f's_lshl_b32 s{t}, s{t}, 16')
    a('v_lshrrev_b32 v2, 3, v1'); a('v_lshlrev_b32 v2, 11, v2')
    a('v_and_b32 v3, 7, v1'); a('v_lshrrev_b32 v200, 4, v1'); a('v_xor_b32 v3, v3, v200')
    a(f'v_add_u32 v2, s{t}, v2')
    for i in range(4):
        a(f'v_xor_b32 v201, {4*(i&1)}, v3'); a('v_lshl_add_u32 v201, v201, 4, v2')
        a(f'v_add_u32 v{A_VX+i}, {i*(8*2048-1024)}, v201')
    w_voffsets(a, A_VW, t)
    a(f's_mov_b32 s{S_SOX}, -128'); a(f's_mov_b32 s{S_SOW}, {-32*8192}')
    if OPT.get('rot'):
        kind, mul = OPT['rot']
        if kind == 'xcd': a(f's_and_b32 s{t}, s2, 7')
        elif kind == 'xcd2': a(f's_and_b32 s{t}, s2, 1')
        elif kind == 'xcd4': a(f's_and_b32 s{t}, s2, 3')
        elif kind == 'kt': a(f's_mov_b32 s{t}, s{S_KT}')
        elif kind == 'kt2': a(f's_and_b32 s{t}, s{S_KT}, 1')
        a(f's_mul_i32 s{t}, s{t}, {mul}')
        a(f's_lshl_b32 s{t+1}, s{t}, 7'); a(f's_add_u32 s{S_SOX}, s{S_SOX}, s{t+1}')
        a(f's_lshl_b32 s{t+1}, s{t}, 19'); a(f's_add_u32 s{S_SOW}, s{S_SOW}, s{t+1}')
    a(f's_add_u32 s{S_DX}, s{S_W4K}, {XBASE}')
    a(f's_lshl_b32 s{t}, s2, 3'); a(f's_lshl_b32 s{t+1}, s{S_WAVE}, 1'); a(f's_add_u32 s{S_ROW0}, s{t}, s{t+1}')
    a(f's_mul_i32 s{S_ROWO}, s{S_ROW0}, 896')
    a(f's_and_b32 s{t}, s{S_WAVE}, 1'); a(f's_lshr_b32 s{t+1}, s{S_WAVE}, 1')
    a(f's_lshl_b32 s{t+2}, s{t}, 14'); a(f's_add_u32 s{t+2}, s{t+2}, {XBASE}')
    a('v_and_b32 v201, 15, v1'); a('v_lshrrev_b32 v200, 4, v1'); a('v_lshrrev_b32 v2, 1, v201')
    for ks in range(2):
        a(f'v_add_u32 v3, {4*ks}, v200'); a('v_xor_b32 v3, v3, v2'); a('v_lshlrev_b32 v3, 4, v3')
        a('v_lshl_add_u32 v3, v201, 7, v3')
        a(f'v_add_u32 v{A_XAB+ks}, s{t+2}, v3'); a(f'v_mov_b32 v{A_XA+ks}, v{A_XAB+ks}')
    a('v_bfe_u32 v3, v1, 2, 2')
    a('v_lshlrev_b32 v202, 12, v200'); a('v_lshl_add_u32 v202, v3, 9, v202')
    a('v_and_b32 v2, 3, v1'); a('v_lshl_add_u32 v202, v2, 3, v202')
    a(f's_lshl_b32 s{t+2}, s{t+1}, 8'); a(f'v_add_u32 v202, s{t+2}, v202')
    a('v_and_b32 v2, 1, v200'); a('v_lshl_or_b32 v3, v2, 2, v3')
    for db in range(8):
        a(f'v_xor_b32 v2, {db}, v3'); a(f'v_lshl_add_u32 v{A_WA+db}, v2, 5, v202')
    a(f's_mov_b32 s{S_RX}, 0')
    a('v_cmp_gt_u32 vcc, 56, v1')
    a('v_lshrrev_b32 v200, 3, v1'); a('v_bfe_u32 v201, v1, 2, 1'); a('v_and_b32 v202, 3, v1'); a('v_lshlrev_b32 v202, 4, v202')
    a('v_mul_u32_u24 v2, 896, v201'); a('v_lshl_add_u32 v2, v200, 6, v2'); a('v_add_u32 v2, v2, v202')
    a('v_mov_b32 v3, 0x7fffff00')
    a('v_cndmask_b32 v192, v3, v2, vcc')
    a('v_lshlrev_b32 v2, 10, v200'); a('v_lshl_add_u32 v2, v201, 6, v2'); a('v_add_u32 v2, v2, v202')
    a('v_cndmask_b32 v193, v3, v2, vcc')
    a('s_waitcnt lgkmcnt(0)')
    build_srds(a)
    t = S_T
    if OPT.get('fsplit', False):
        a(f's_lshr_b32 s{t}, s{S_H}, 2'); a(f's_mul_i32 s{S_F0}, s{t}, 448')
        a(f's_and_b32 s{t}, s{S_H}, 3'); a(f's_lshl_b32 s{t+1}, s{t}, 7'); a(f's_add_u32 s{S_F0}, s{S_F0}, s{t+1}')
        a(f's_cmp_eq_u32 s{t}, 3'); a(f's_cselect_b32 s{t+1}, 32, 0'); a(f's_sub_u32 s{S_F0}, s{S_F0}, s{t+1}')
        a(f's_lshr_b32 s{S_ODD}, s{t}, 1')
    else:
        a(f's_mul_i32 s{S_F0}, s{S_H}, 112'); a(f's_mov_b32 s{S_ODD}, 0')
    Ln = a.newlabel('NON')
    a('s_cmp_lg_u32 s2, 0'); a(f's_cbranch_scc1 {Ln}')
    a(f's_memrealtime s[{t}:{t+1}]'); a('s_waitcnt lgkmcnt(0)')
    a(f's_or_b32 s{t+2}, s{t}, 1'); a(f'v_mov_b32 v2, s{t+2}')
    a(f'buffer_store_dword v2, v{V_SIG}, {sr(S_DBG)}, 0 offen sc1')
    a.label(Ln)
    stamp(a, 0)
    pro = flat(tag(A_dma_w(0) + A_dma_x(0) + A_dma_x(1), 'G0') + tag(A_dma_w(1), 'G1') + tag(A_dma_x(0) + A_dma_w(2) + A_dma_x(1), 'G2'))
    pro += [f'buffer_load_dwordx4 v[160:163], v192, {sr(S_XIN)}, s{S_ROWO} offen ;@XL',
            f'buffer_load_dwordx4 v[164:167], v192, {sr(S_XIN)}, s{S_ROWO} offen offset:448 ;@XL']
    pro += ['s_waitcnt vmcnt(@G0)', 's_barrier'] + A_reads(0)
    a(resolve_vm(pro))
    stamp(a, 1)
    if DBG[0]:
        a(f's_getreg_b32 s{S_ST}, hwreg(HW_REG_XCC_ID)'); a(f'v_mov_b32 v2, s{S_ST}'); a(f'v_mov_b32 v3, s{S_ST}')
        a(f's_lshl_b32 s{S_ST}, s2, 8'); a(f's_add_u32 s{S_ST}, s{S_ST}, {hex(WS_DBG + 19*8)}')
        a(f'buffer_store_dwordx2 v[2:3], v{V_SIG}, {sr(S_WS)}, s{S_ST} offen')
    def cap(fn):
        x = Asm(); fn(x); return [l.strip() for l in x.L]
    u_ = t + 4
    ln = ['s_waitcnt vmcnt(@XL)'] + cap(lambda x: ln_rows(x, 160, 168, 184, S_MK, S_RET, 208))
    ln += [f's_lshr_b32 s{u_}, s{S_ROW0}, 4', f's_mul_i32 s{u_}, s{u_}, 14*1024', f's_and_b32 s{u_+1}, s{S_ROW0}, 15', f's_lshl_b32 s{u_+1}, s{u_+1}, 6',
           f's_add_u32 s{u_}, s{u_}, s{u_+1}', f's_add_u32 s{u_}, s{u_}, {hex(WS_XN)}', f's_add_u32 s{u_+1}, s{u_}, 7168',
           f'buffer_store_dwordx4 v[208:211], v193, {sr(S_WS)}, s{u_} offen sc1',
           f'buffer_store_dwordx4 v[212:215], v193, {sr(S_WS)}, s{u_+1} offen sc1']
    ln1 = ln[:75]; ln2 = ln[75:]
    bs = cap(lambda x: B_setup(x, S_T + 8))
    Lv = a.newlabel('AV'); Lj = a.newlabel('AJ')
    a(f's_cmp_eq_u32 s{S_KVT}, 1'); a(f's_cbranch_scc1 {Lv}')
    pf = pfB()
    for vtype in range(2):
        if vtype: a.label(Lv)
        first = []
        first += A_kstep(0, vtype, False, False, '@G1', czero=True, extras=[(tag(A_dma_w(3) + A_dma_x(0), 'G3'), 24, 62), (bs, 0, 40)])
        first += A_kstep(1, vtype, False, False, '@G2', extras=[(tag(A_dma_w(0) + A_dma_x(1), 'G4') + tag(A_dma_w(1), 'G5'), 2, 60), (ln1, 4, 63)])
        first += A_kstep(2, vtype, False, False, '@G3', extras=[(flat(A_dma_x(0) + A_dma_w(2) + A_dma_x(1)), 2, 60), (ln2[:75], 0, 63)])
        first += A_kstep(3, vtype, True, True, '@G4', extras=[(ln2[75:], 0, 45)])
        r = resolve_vm(pro + ['MARK'] + first)
        a(r[r.index('MARK')+1:])
        if OPT.get('astamp'): stamp(a, 20)
        a(f's_mov_b32 s{S_CNT}, 1')
        Ll = a.newlabel('AL'); a.label(Ll)
        for u in range(4): a(resolve_vm(A_kstep(u, vtype, True, True, 16)))
        Lm1 = a.newlabel('AM'); Lm2 = a.newlabel('AM'); Lm3 = a.newlabel('AM')
        if OPT.get('astamp'): stamp(a, 20, S_CNT)
        a(f's_add_u32 s{S_CNT}, s{S_CNT}, 1')
        a(f's_cmp_lg_u32 s{S_WAVE}, 0'); a(f's_cbranch_scc1 {Lm2}')
        a(f's_cmp_lg_u32 s{S_CNT}, 2'); a(f's_cbranch_scc1 {Lm1}')
        a(f'v_mov_b32 v2, 0')
        a(f'buffer_load_dword v{V_NONCE}, v2, {sr(S_DBG)}, 0 offen' + (' sc1' if OPT.get('nonce_sc1') else ''))
        a.label(Lm1)
        a(f's_cmp_lg_u32 s{S_CNT}, 4'); a(f's_cbranch_scc1 {Lm2}')
        a(f's_mov_b32 s{t+5}, 0')
        a.label(Lm3)
        a(f'v_readfirstlane_b32 s{t+4}, v{V_NONCE}')
        Lm4 = a.newlabel('AM')
        a(f's_cmp_lg_u32 s{t+4}, 0'); a(f's_cbranch_scc1 {Lm4}')
        a('s_sleep 8'); a(f'v_mov_b32 v2, 0')
        a(f'buffer_load_dword v{V_NONCE}, v2, {sr(S_DBG)}, 0 offen sc1')
        a('s_waitcnt vmcnt(0)')
        a(f's_add_u32 s{t+5}, s{t+5}, 1'); a(f's_cmp_lt_u32 s{t+5}, 20000'); a(f's_cbranch_scc1 {Lm3}')
        a.label(Lm4)
        a(f's_lshr_b32 s{t+4}, s2, 4'); a(xn_flag_addr(t+4, t+4))
        a(f's_and_b32 s{t+5}, s2, 15'); a(f's_lshl_b32 s{t+5}, s{t+5}, 2'); a(f's_add_u32 s{t+4}, s{t+4}, s{t+5}')
        a(f'buffer_store_dword v{V_NONCE}, v{V_SIG}, {sr(S_WS)}, s{t+4} offen sc1')
        a(f's_cmp_lg_u32 s{S_H}, 0'); a(f's_cbranch_scc1 {Lm2}')
        a(f's_lshl_b32 s{t+4}, s{S_OWN}, 12'); a(f's_add_u32 s{t+4}, s{t+4}, {hex(WS_FLG + 0x50000)}')
        a('v_mov_b32 v2, 0')
        a(f'buffer_store_dword v2, v{V_SIG}, {sr(S_WS)}, s{t+4} offen sc1')
        a.label(Lm2)
        a(f's_cmp_lt_u32 s{S_CNT}, 6'); a(f's_cbranch_scc1 {Ll}')
        cpf = cpfB()
        kvs = [f's_mul_i32 s{S_KVO}, s{S_H}, {KH_()}', f's_add_u32 s{S_KVO}, s{S_KVO}, {hex(WS_KV)}', f's_mul_i32 s{t+4}, s{S_KT}, {8*KT_()}', f's_add_u32 s{S_KVO}, s{S_KVO}, s{t+4}',
               f's_and_b32 s{t+4}, s{S_WAVE}, 1', f's_mul_i32 s{t+4}, s{t+4}, {4*KT_()}', f's_add_u32 s{S_KVO}, s{S_KVO}, s{t+4}',
               f's_lshr_b32 s{t+4}, s{S_WAVE}, 1', f's_lshl_b32 s{t+4}, s{t+4}, {13 if vtype else 12}', f's_add_u32 s{S_KVO}, s{S_KVO}, s{t+4}']
        if vtype: kvs.append(f's_add_u32 s{S_KVO}, s{S_KVO}, 16384')
        w_ = [KT_(), 2*KT_(), 1024, 2048] if vtype else [8192, KT_(), 2*KT_(), 1024]
        for b in range(4): kvs.append(f's_mov_b32 s{S_DL+b}, {w_[b] - sum(w_[:b])}')
        xo = [f's_lshl_b32 s{t+4}, s{S_OWN}, 3', f's_add_u32 s{t+4}, s{t+4}, s{S_WAVE}', f's_mul_i32 s{t+4}, s{t+4}, 14336',
              f's_add_u32 s{S_XO}, s{t+4}, {hex(WS_XN)}']
        bias = [f's_lshl_b32 s{t+4}, s{S_F0}, 1', 'v_lshrrev_b32 v200, 4, v1', 'v_lshlrev_b32 v200, 3, v200']
        bias += [f'buffer_load_dwordx2 {vr(B_TMP+2*fb,2)}, v200, {sr(S_B1)}, s{t+4} offen offset:{32*fb} ;@BIAS' for fb in range(8)]
        sw = Asm(); sw.nlab = a.nlab; spin_wait(sw, S_FP); a.nlab = sw.nlab
        chk = ['s_waitcnt vmcnt(@POLL)'] + [x.strip() + (' ;!' if x.strip().startswith('buffer_') else '') for x in sw.L]
        NW = OPT.get('nweave', 8); BH = OPT.get('bh', 0)
        xpf = [['v_lshlrev_b32 v200, 7, v1', f's_add_u32 s{t+4}, s{S_XO}, 4096', f'buffer_load_dword v31, v200, {sr(S_WS)}, s{t+4} offen'],
               [f's_add_u32 s{t+5}, s{t+4}, s{t+6}', f'buffer_load_dword v31, v200, {sr(S_WS)}, s{t+5} offen'],
               ['v_and_b32 v201, 15, v1', 'v_lshlrev_b32 v201, 7, v201', f'v_mov_b32 v202, s{t+6}', 'v_cmp_gt_u32 vcc, 16, v1', f's_add_u32 s{t+4}, s{t+4}, 8192',
                's_nop 0', 'v_cndmask_b32 v202, v202, 0, vcc', 'v_add_u32 v201, v201, v202', f'buffer_load_dword v31, v201, {sr(S_WS)}, s{t+4} offen']]
        ex = {25: [(kvs + xo, 46, 62)],
              26: [(xn_flag_addr(S_FP, S_OWN) + [poll_issue(S_FP)[0] + ' ;@POLL'], 5, 20)],
              28: [([f's_mul_i32 s{t+6}, s{S_Q1}, 14336', f'v_and_b32 v{B_VX0}, 15, v1', f'v_lshlrev_b32 v{B_VX0}, 6, v{B_VX0}', f'v_and_b32 v{B_VX1}, 48, v1',
                   f'v_add_u32 v{B_VX0}, v{B_VX0}, v{B_VX1}', f'v_add_u32 v{B_VX1}, s{t+6}, v{B_VX0}'] + flat(pf + cpf), 0, 24)] + ([(B_dma_w(0, True), 32, 62)] if BH == 0 else []),
              29: [(tag(B_dma_xp(0), 'B0') + [bias] + B_dma(1, True), 0, 60)],
              30: [(B_dma(2, True) + (xpf if OPT.get('xpf', False) else []), 0, 60)],
              31: [([x for k in range(NW) for x in pack_store(k, 208 + 8*(k & 1), True)], 10, 63)]}
        tail = []
        for k in (21, 22, 23): tail += [f'buffer_dummy ;@A{k}']*8
        tail.append('MARK')
        for u in range(24, 32):
            tail += A_kstep(u, vtype, u <= 27, u <= 26, f'@A{min(u-3, 27)}', last=(u == 31), extras=ex.get(u, ()), head=(chk if u == 29 else ()))
            if OPT.get('astamp') and u in (27, 29): tail.append(f'STAMP{u}')
        tail.append('MARK2')
        hist = tail
        r = resolve_vm(tail)
        for x in r[r.index('MARK')+1:r.index('MARK2')]:
            if x.endswith(':'): a.raw(x)
            elif x.startswith('STAMP'): stamp(a, 26 if x == 'STAMP27' else 27)
            else: a(x)
        if vtype == 0: a(f's_branch {Lj}')
    a.label(Lj)
    stamp(a, 2)
    return hist

def pfB():
    t = S_T
    return [[f's_lshr_b32 s{t+4}, s2, 4', f's_mul_i32 s{t+4}, s{t+4}, 28', f's_mul_i32 s{t+5}, s{S_WAVE}, 7', f's_add_u32 s{t+4}, s{t+4}, s{t+5}'],
          ['v_lshrrev_b32 v200, 2, v1', 'v_min_u32 v200, 6, v200', f'v_add_u32 v200, s{t+4}, v200', 'v_and_b32 v201, 3, v1'],
          ['v_lshlrev_b32 v201, 7, v201', 'v_lshl_add_u32 v202, v200, 13, v201', f's_lshl_b32 s{t+4}, s{S_H}, 9',
           f'buffer_load_dword v31, v202, {sr(S_WQ)}, s{t+4} offen'],
          ['v_mul_u32_u24 v202, 3584, v200', 'v_add_u32 v202, v202, v201', f's_lshl_b32 s{t+4}, s{S_F0}, 1', f's_and_b32 s{t+4}, s{t+4}, 0xffffff80',
           f'buffer_load_dword v31, v202, {sr(S_W1)}, s{t+4} offen']]
def cpfB():
    t = S_T
    CPN, CP0 = (36, 0) if OPT.get('fsplit', False) else (20, 32768)
    return [[f's_lshr_b32 s{t+4}, s2, 3', f's_mul_i32 s{t+4}, s{t+4}, {CPN*128}', f's_add_u32 s{t+4}, s{t+4}, {CP0}',
             f'v_min_u32 v200, {CPN-1}, v1', 'v_lshlrev_b32 v200, 7, v200', f'v_add_u32 v200, s{t+4}, v200',
             'v_min_u32 v200, M_CODE_END-M_CODE_START-4, v200', f'global_load_dword v31, v200, s[{S_PC}:{S_PC+1}]']]

def pfD_big(a):
    t = S_T
    L = a.newlabel('PD'); L7 = a.newlabel('PD'); La = a.newlabel('PD')
    a(f's_cmp_lt_u32 s{S_I}, 6'); a(f's_cbranch_scc1 {L}')
    a('v_lshlrev_b32 v2, 7, v0')
    a(f's_mul_i32 s{t+1}, s{S_H}, {256*896}'); a(f's_mul_i32 s{t+2}, s{S_F0}, 896')
    def wo(u): a(f's_add_u32 s{t}, s{t+1}, {u*32768}'); a(f'buffer_load_dword v31, v2, {sr(S_WO)}, s{t} offen')
    def w2(off): a(f's_add_u32 s{t}, s{t+2}, {off}'); a(f'buffer_load_dword v31, v2, {sr(S_W2)}, s{t} offen')
    n6 = OPT.get('pf_n6', 6)
    a(f's_cmp_eq_u32 s{S_ROLE}, 0'); a(f's_cbranch_scc1 {La}')
    a(f's_cmp_eq_u32 s{S_I}, 7'); a(f's_cbranch_scc1 {L7}')
    for u in range(n6): wo(u)
    a(f's_branch {L}')
    a.label(L7)
    for u in range(n6, 7): wo(u)
    for k in range(3): w2(k*32768)
    a(f's_branch {L}')
    a.label(La)
    a(f's_cmp_eq_u32 s{S_I}, 6'); a(f's_cbranch_scc1 {L}')
    a('v_min_u32 v3, 16256, v2')
    a(f's_add_u32 s{t}, s{t+2}, {3*32768}'); a(f'buffer_load_dword v31, v3, {sr(S_W2)}, s{t} offen')
    a('v_add_u32 v2, M_D_START-M_CODE_START-10240, v2')
    a(f's_mul_i32 s{t}, s{S_ODD}, 13056'); a(f's_cmp_ge_u32 s{S_WAVE}, 2'); a(f's_cselect_b32 s{t}, s{t}, 0'); a(f'v_add_u32 v2, s{t}, v2')
    a('v_min_u32 v2, M_CODE_END-M_CODE_START-4, v2')
    a(f'global_load_dword v31, v2, s[{S_PC}:{S_PC+1}]')
    a.label(L)

def pfD(v, code=True):
    t = S_T
    g = [[f's_lshr_b32 s{t+9}, s2, 4', f's_lshl_b32 s{t+9}, s{t+9}, 2', f's_add_u32 s{t+9}, s{t+9}, s{S_WAVE}',
          f's_lshl_b32 s{t+10}, s{S_H}, 6', f's_add_u32 s{t+10}, s{t+10}, s{t+9}', f's_mul_i32 s{t+10}, s{t+10}, {4*896}'],
         [f'v_lshlrev_b32 v{v}, 7, v1', f'v_min_u32 v{v}, 3580, v{v}', f'buffer_load_dword v31, v{v}, {sr(S_WO)}, s{t+10} offen'],
         [f's_mul_i32 s{t+10}, s{S_H}, {112*896}', f's_mul_i32 s{t+11}, s{t+9}, {2*896}', f's_add_u32 s{t+10}, s{t+10}, s{t+11}',
          f'v_min_u32 v{v}, 1788, v{v}', f'buffer_load_dword v31, v{v}, {sr(S_W2)}, s{t+10} offen']]
    if code:
        g += [[f's_lshl_b32 s{t+9}, s{t+9}, 9',
          f'v_min_u32 v{v}, 384, v{v}', f'v_add_u32 v{v}, s{t+9}, v{v}', f'v_add_u32 v{v}, M_D_START-M_CODE_START-10240, v{v}',
          f'v_min_u32 v{v}, M_CODE_END-M_CODE_START-4, v{v}', f'global_load_dword v31, v{v}, s[{S_PC}:{S_PC+1}]']]
    return g

def pack_store(k, tb, store):
    ops = [f'v_accvgpr_read_b32 v{tb+e}, a{8*k+e}' for e in range(8)]
    if OPT.get('kvs', 0): ops += [f'v_mul_f32 v{tb+e}, s{S_KVS}, v{tb+e}' for e in range(8)]
    ops += [f'v_cvt_pk_bf16_f32 v{PEND+4*k+e}, v{tb+2*e}, v{tb+2*e+1}' for e in range(4)]
    if store:
        st = kv_store(k)
        ops = st[:-1] + ops + st[-1:]
    return ops

def kv_store(k):
    ops = []
    if k > 0:
        b = min((k & -k).bit_length() - 1, 3)
        ops.append(f's_add_u32 s{S_KVO}, s{S_KVO}, s{S_DL+b}')
    ops.append(f'buffer_store_dwordx4 {vr(PEND+4*k)}, v{V_L16}, {sr(S_WS)}, s{S_KVO} offen {OPT.get("kvf", "sc1")} ;@KVST')
    return ops

def w_voffsets(a, dst, t):
    a(f's_lshl_b32 s{t}, s{S_WAVE}, 16'); a(f's_lshl_b32 s{t+1}, s{S_H}, 9'); a(f's_add_u32 s{t}, s{t}, s{t+1}')
    a(f's_and_b32 s{t+1}, s{S_WAVE}, 1'); a(f's_lshl_b32 s{t+1}, s{t+1}, 2')
    a('v_lshrrev_b32 v200, 5, v1'); a('v_and_b32 v201, 31, v1'); a('v_lshrrev_b32 v202, 1, v201')
    a(f'v_xor_b32 v202, s{t+1}, v202'); a('v_and_b32 v203, 1, v201')
    for i in range(4):
        a(f'v_add_u32 v2, {(2*i)&3}, v200'); a('v_xor_b32 v2, v202, v2'); a('v_lshl_add_u32 v2, v2, 1, v203')
        a('v_lshlrev_b32 v2, 4, v2'); a('v_lshl_add_u32 v2, v200, 13, v2')
        a(f'v_add_u32 v2, {2*i*8192-1024*i}, v2'); a(f'v_add_u32 v{dst+i}, s{t}, v2')

B_VW, B_V1, B_VX1, B_VX0 = A_VW, 28, 11, 10
B_WA, B_1A = 240, 248
B_XF = 160
B_WF, B_NB = 192, 8
B_TMP = 224
B_PT = 16
B_QS = 8
W1BASE = 98304

def B_setup(a, t):
    a(f's_and_b32 s{t+1}, s{S_WAVE}, 1'); a(f's_lshl_b32 s{t+1}, s{t+1}, 2')
    a(f's_mul_i32 s{t}, s{S_WAVE}, {8*3584}'); a(f's_lshl_b32 s{t+2}, s{S_F0}, 1'); a(f's_add_u32 s{t}, s{t}, s{t+2}')
    a('v_lshrrev_b32 v200, 4, v1'); a('v_and_b32 v201, 15, v1'); a('v_lshrrev_b32 v202, 1, v201')
    a(f'v_xor_b32 v202, s{t+1}, v202'); a('v_xor_b32 v202, v200, v202'); a('v_and_b32 v203, 1, v201')
    a('v_lshl_add_u32 v2, v202, 1, v203'); a('v_lshlrev_b32 v2, 4, v2')
    a('v_mul_u32_u24 v3, 3584, v200'); a('v_add_u32 v2, v2, v3')
    a(f'v_add_u32 v{B_V1}, s{t}, v2'); a(f'v_add_u32 v{B_V1+1}, {4*3584-1024}, v{B_V1}')
    a(f's_lshl_b32 s{t}, s{S_WAVE}, 1'); a(f's_sub_u32 s{S_Q1}, 7, s{t}');
    a('v_bfe_u32 v201, v1, 2, 2')
    a('v_lshl_add_u32 v202, v200, 3, v201')
    a('v_and_b32 v203, 3, v1'); a('v_lshlrev_b32 v203, 3, v203')
    a('v_and_b32 v2, 1, v200'); a('v_lshl_or_b32 v201, v2, 2, v201')
    a('v_lshl_add_u32 v204, v202, 9, v203')
    a('v_lshl_add_u32 v205, v202, 8, v203'); a(f'v_add_u32 v205, {W1BASE}, v205')
    for d in range(8):
        a(f'v_xor_b32 v2, {d}, v201')
        a(f'v_lshl_add_u32 v{B_WA+d}, v2, 5, v204')
        a(f'v_lshl_add_u32 v{B_1A+d}, v2, 5, v205')

def B_dma_w(u, ffn):
    sl = u % 4; t = S_T + 2
    g = [[f's_add_u32 m0, s{S_W4K}, {sl*16384}', f's_mov_b32 s{t}, {u*32*8192}',
          f'buffer_load_dwordx4 v{B_VW}, {sr(S_WQ)}, s{t} offen lds']]
    for i in range(1, 4): g.append([f'buffer_load_dwordx4 v{B_VW+i}, {sr(S_WQ)}, s{t} offen offset:{1024*i} lds'])
    if ffn:
        g.append([f's_add_u32 m0, s{S_W2K}, {W1BASE+sl*8192}', f's_mov_b32 s{t}, {u*32*3584}',
                  f'buffer_load_dwordx4 v{B_V1}, {sr(S_W1)}, s{t} offen lds'])
        g.append([f'buffer_load_dwordx4 v{B_V1+1}, {sr(S_W1)}, s{t} offen offset:1024 lds'])
    return tag(g, f'B{u}')

def xr(u):
    sl = u % 6
    return B_XF + sl*8 if sl < 4 else PEND + (sl-4)*8
def B_dma_xp(p):
    g = []
    t = S_T + 3
    g.append([f's_add_u32 s{t}, s{S_XO}, {2*p*1024}'])
    for k in range(2):
        for qb, v in ((0, B_VX0), (1, B_VX1)):
            g.append([f'buffer_load_dwordx4 {vr(xr(2*p+k)+4*qb)}, v{v}, {sr(S_WS)}, s{t} offen offset:{k*1024} sc1'])
    return g

def B_dma(u, ffn):
    return (B_dma_xp((u+1)//2) if (u & 1) and (u+1)//2 <= 6 else []) + B_dma_w(u, ffn)

def B_head(ffn):
    h = []
    for u in range(3): h += flat(B_dma(u, ffn))
    return h

def phaseB_begin_ext(a):
    t = S_T
    spin_wait(a, S_FP)
    a(f's_lshl_b32 s{t}, s{S_EXT}, 2'); a(f's_add_u32 s{t}, s{t}, s{S_WAVE}'); a(f's_mul_i32 s{t}, s{t}, {2*14336}')
    a(f's_add_u32 s{S_XO}, s{t}, {hex(WS_XN)}')
    a('s_barrier')
    a(resolve_vm(B_head(False)))

def q_epi_ops():
    t = S_T + 8
    ops = [f's_lshl_b32 s{t}, s{S_PAIR}, 16', f's_lshl_b32 s{t+1}, s{S_WAVE}, 14', f's_add_u32 s{t}, s{t}, s{t+1}', f's_add_u32 s{t}, s{t}, {hex(WS_QX)}',
           f's_sub_u32 s{S_PUBQ}, s{S_T0}, s{S_HASX}', f's_cmp_eq_u32 s{S_PUBQ}, 0\ns_cselect_b32 s{t}, 0x70000000, s{t}',
           f'v_mov_b32 v{B_QS}, s{S_QSC}', f'v_mov_b32 v{B_QS+1}, s{S_QSC}']
    fr = []
    k = 0
    for s in range(8):
        for qb in range(2):
            tb = V_QO + (s*2+qb)*4; tm = B_TMP + 8*(k & 1); o = []
            if k % 4 == 0 and k: o.append(f's_add_u32 s{t}, s{t}, 4096')
            for half in range(2):
                src = ((2*s+half)*2+qb)*4
                o += [f'v_accvgpr_read_b32 v{tm+4*half+e}, a{src+e}' for e in range(4)]
            if k < OPT.get('nqw', 5) and OPT.get('qmul', True): o += [f'v_mul_f32 v{tm+e}, s{S_QSC}, v{tm+e}' for e in range(8)]
            else: o += [f'v_pk_mul_f32 {vr(tm+e,2)}, {vr(tm+e,2)}, {vr(B_QS,2)}' for e in range(0, 8, 2)]
            o += [f'v_cvt_pk_bf16_f32 v{tb+e}, v{tm+2*e}, v{tm+2*e+1}' for e in range(4)]
            o.append(f'buffer_store_dwordx4 {vr(tb)}, v{V_L16}, {sr(S_WS)}, s{t} offen offset:{1024*(k%4)} sc1')
            fr.append(o); k += 1
    return ops, fr

def phaseB_main(a, ffn, hist, nfb):
    NW = OPT.get('nweave', 8); NL = 16 + nfb
    DF = OPT.get('b_defer', True)
    NE = 16 if DF else NL
    pre = ['s_nop 7']
    nst_pre = OPT.get('nst_pre', 6)
    nsd = NW
    for k in range(NW, NE):
        pre += pack_store(k, 208 + 8*(k & 1), False)
        if ((k - NW) % 2 == 1 or DF) and nsd < NW + nst_pre: pre += kv_store(nsd); nsd += 1
    bias = ['s_waitcnt vmcnt(@BIAS)']
    for fb in range(nfb):
        for k in range(2):
            bias += [f'v_lshlrev_b32 v2, 16, v{B_TMP+2*fb+k}', f'v_and_b32 v3, 0xffff0000, v{B_TMP+2*fb+k}']
            for qb in range(2):
                bias += [f'v_accvgpr_write_b32 a{128+(fb*2+qb)*4+2*k}, v2', f'v_accvgpr_write_b32 a{128+(fb*2+qb)*4+2*k+1}, v3']
    if not DF: pre += bias
    pre += ['s_waitcnt vmcnt(@B0)', 's_barrier', 'STAMP']
    if DF:
        order = [(0, 'Q'), (1, 'Q'), (0, 'F'), (1, 'F')] + [(u, p) for u in range(2, 10) for p in 'QF'] + \
                [(u, 'Q') for u in range(10, 14)] + [(u, 'F') for u in (12, 13, 10, 11)]
    else: order = [(u, p) for u in range(14) for p in 'QF']
    steps = []; first = {}; pos = {}
    for (u, part) in order:
        sl = u % 4
        first.setdefault(u, len(steps)); pos[(u, part)] = len(steps)
        for f in (range(16) if part == 'Q' else range(16, 16+nfb)):
            buf = B_WF + (len(steps) % B_NB)*4
            if f < 16:
                rd = [f'ds_read_b64_tr_b16 {vr(buf+2*h,2)}, v{B_WA+(f&7)} offset:{sl*16384+2048*h+256*(f>>3)}' for h in range(2)]
                acc = f*8
            else:
                rd = [f'ds_read_b64_tr_b16 {vr(buf+2*h,2)}, v{B_1A+f-16} offset:{sl*8192+1024*h}' for h in range(2)]
                acc = 128 + (f-16)*8
            mf = []
            for qb in range(2):
                c = '0' if (u == 0 and f < 16) else ar(acc+4*qb)
                mf.append(f'{MF} {ar(acc+4*qb)}, {vr(buf)}, {vr(xr(u)+4*qb)}, {c}')
            steps.append(Step(mf, rd)); steps[-1].u = u
    LA = OPT.get('bd_la', 6)
    bp = {}
    for u in range(13):
        bp[u] = first[u+1] - LA - 1
        if 1 <= u <= 10: bp[u] = max(bp[u], max(i for i, st in enumerate(steps) if st.u == u-1) + 1)
        steps[bp[u]].pre += [f's_waitcnt vmcnt(@B{u+1})', 's_barrier']
    for st in steps:
        if st.u > 0: st.gate = bp[st.u-1]
    for u in range(1, 11):
        assert max(i for i, st in enumerate(steps) if st.u == u-1) < bp[u], u
    SIGU = OPT.get('sigu', 10)
    steps[bp[SIGU]].pre.insert(0, 's_waitcnt vmcnt(@KVST)')
    sc = Sched(steps, LA=LA, wait_group=OPT.get('bd_wg', 2))
    sc.place(B_dma(3, ffn), 0, min(bp[1]-2, 20))
    for u in range(1, 11):
        sc.place(B_dma(u+3, ffn), bp[u], min(bp[u+1]-2, bp[u]+OPT.get('b_dw', 30)))
    if DF:
        e_ = []
        for k in range(NE, NL): e_ += pack_store(k, B_PT, False)
        sc.place(e_ + bias, 0, pos[(0, 'F')] - 3)
    st_ = []
    for k in range(nsd, 32):
        st_ += kv_store(k) if k < NL else pack_store(k, B_PT, True)
    sc.place(st_, pos[(0, 'F')] - (14 if DF else 16), bp[OPT.get('st_end', 7)])
    sc.place([[f's_lshr_b32 s{S_T+7}, s2, 4', f's_lshl_b32 s{S_T+7}, s{S_T+7}, 2', f's_add_u32 s{S_T+7}, s{S_T+7}, s{S_FKV}',
               f'buffer_store_dword v{V_NONCE}, v{V_SIG}, {sr(S_WS)}, s{S_T+7} offen sc1']], bp[SIGU], bp[SIGU]+3)
    qs, qf = q_epi_ops()
    NQ = OPT.get('nqw', 5) if DF else 0
    pl = [f's_mov_b32 s{S_FP}, s{S_FKV}']
    sc.place(pl + qs, bp[12], bp[12]+6)
    if NQ: sc.place(flat(qf[:NQ]), pos[(13, 'Q')] + 8, len(steps)-1)
    print('phaseB overflow', sc.overflow(0, len(steps)-1))
    tx = []
    cuts = [0] + [first[u] for u in (2, 4, 6, 8, 10, 12)] + [pos[(12, 'F')] if DF else len(steps)-1, len(steps)]
    for i in range(len(cuts)-1):
        tx += sc.text(cuts[i], cuts[i+1]-1)
        if OPT.get('bstamp') and i < len(cuts)-2: tx.append(f'STAMP{20+i}')
    body = resolve_vm(hist + ['MARKB'] + pre + sc.pre + tx)
    body = body[body.index('MARKB')+1:]
    for k in range(NE, 32):
        pi = max(i for i, x in enumerate(body) if x.startswith(f'v_cvt_pk_bf16_f32 v{PEND+4*k+3}, v{B_PT+6}'))
        si = next(i for i, x in enumerate(body) if x.startswith(f'buffer_store_dwordx4 {vr(PEND+4*k)}, v{V_L16}, {sr(S_WS)}, s{S_KVO}'))
        assert pi < si, k
    rd_ = [int(x.split('a')[-1]) for x in body if x.startswith(f'v_accvgpr_read_b32 v{B_PT},') or x.startswith(f'v_accvgpr_read_b32 v{B_PT+7},')]
    assert rd_ == sorted(rd_), 'pack lists interleave'
    for x in body:
        if x == 'STAMP': stamp(a, 3)
        elif x.startswith('STAMP'): stamp(a, int(x[5:]))
        else: a(x)
    stamp(a, 4)
    a('s_nop 3')
    a(poll_issue(S_FP))
    a(flat(qf[NQ:]))
    return 16 - NQ

def qx_base(a, d):
    a(f's_lshl_b32 s{d}, s{S_PAIR}, 16'); a(f's_lshl_b32 s{d+1}, s{S_WAVE}, 14'); a(f's_add_u32 s{d}, s{d}, s{d+1}')
    a(f's_add_u32 s{d}, s{d}, {hex(WS_QX)}')

def phaseB_epi_h(a, nfb):
    for ks in range((nfb+1)//2):
        for qb in range(2):
            d = A_H + (ks*2+qb)*4
            for half in range(2):
                fb = 2*ks + half
                if fb >= nfb:
                    a(f'v_accvgpr_write_b32 a{d+2}, 0'); a(f'v_accvgpr_write_b32 a{d+3}, 0'); continue
                src = 128 + (fb*2+qb)*4
                tm = B_TMP + 8*half
                for e in range(4): a(f'v_accvgpr_read_b32 v{tm+e}, a{src+e}')
                for e in range(4): a(f'v_max_f32 v{tm+e}, 0, v{tm+e}')
                for e in range(0, 4, 2): a(f'v_pk_mul_f32 {vr(tm+e,2)}, {vr(tm+e,2)}, {vr(tm+e,2)}')
                for e in range(2): a(f'v_cvt_pk_bf16_f32 v{tm+4+e}, v{tm+2*e}, v{tm+2*e+1}')
                for e in range(2): a(f'v_accvgpr_write_b32 a{d+2*half+e}, v{tm+4+e}')

def fetch_qx(a):
    t = S_T
    a(f's_lshl_b32 s{S_FP}, s{S_PAIR}, 8'); a(f's_add_u32 s{S_FP}, s{S_FP}, {hex(WS_FLG + 0x30000)}')
    a(poll_issue(S_FP))
    a('s_waitcnt vmcnt(0)')
    spin_wait(a, S_FP, mask=1)
    a('s_barrier')
    qx_base(a, t)
    for k in range(16):
        if k % 4 == 0 and k: a(f's_add_u32 s{t}, s{t}, 4096')
        a(f'buffer_load_dwordx4 {ar(A_QX+4*k)}, v{V_L16}, {sr(S_WS)}, s{t} offen offset:{1024*(k%4)} sc1')

C_KA, C_VA, C_VD, C_DV, C_DV0, C_TM, C_NINF, C_ONE = 8, 9, 10, 11, 12, 13, 14, 16
C_BP16, C_BP32 = 20, 21
C_T = 22
C_S = [32, 48]
C_P, C_NM, C_L = 64, 72, 80
C_F, C_NB = 88, 8
C_MRG = 192

def C_dma(kind, m0expr):
    so = S_KO if kind == 'K' else S_VO
    g = [[m0expr, f's_add_u32 s{so}, s{so}, {KT_()}', f'buffer_load_dwordx4 v{C_VD}, {sr(S_WS)}, s{so} offen sc1 lds']]
    for i in range(1, 4): g.append([f'buffer_load_dwordx4 v{C_VD}, {sr(S_WS)}, s{so} offen offset:{1024*i} sc1 lds'])
    return g

def mask_ops(S, qb):
    ops = []
    for kb in range(2):
        for r in range(4): ops.append(f'v_cmp_gt_i32 s[{S_MK+2*r}:{S_MK+2*r+1}], {16*kb+r}, v{C_DV}')
        for r in range(4):
            reg = S + (kb*2+qb)*4 + r
            ops.append(f'v_cndmask_b32 v{reg}, v{reg}, v{C_NINF}, s[{S_MK+2*r}:{S_MK+2*r+1}]')
    return ops

def max_ops(S, half=False):
    r = [S + (kb*2+1)*4 + e for kb in range(2) for e in range(4)] if half else list(range(S, S+16))
    ops = [f'v_max3_f32 v{C_TM}, v{r[0]}, v{r[1]}, v{r[2]}']
    for i in range(3, len(r)-1, 2): ops.append(f'v_max3_f32 v{C_TM}, v{C_TM}, v{r[i]}, v{r[i+1]}')
    ops.append(f'v_max_f32 v{C_TM}, v{C_TM}, v{r[-1]}')
    return ops

def rowmax(a, S, qb, d):
    r = [S + (kb*2+qb)*4 + e for kb in range(2) for e in range(4)]
    a(f'v_max3_f32 v{d}, v{r[0]}, v{r[1]}, v{r[2]}')
    a(f'v_max3_f32 v{d}, v{d}, v{r[3]}, v{r[4]}')
    a(f'v_max3_f32 v{d}, v{d}, v{r[5]}, v{r[6]}')
    a(f'v_max_f32 v{d}, v{d}, v{r[7]}')
    for bp in (C_BP16, C_BP32):
        a(f'ds_bpermute_b32 v{C_T+7}, v{bp}, v{d}')
        a('s_waitcnt lgkmcnt(0)')
        a(f'v_max_f32 v{d}, v{d}, v{C_T+7}')

def rare_path(a, S, first):
    a('s_nop 7')
    for qb in range(2):
        d = C_T + qb
        rowmax(a, S, qb, d)
        if not first: a(f'v_max_f32 v{d}, 0, v{d}')
        for kb in range(2):
            for e in range(4):
                r = S + (kb*2+qb)*4 + e
                a(f'v_sub_f32 v{r}, v{r}, v{d}')
        for e in range(4): a(f'v_sub_f32 v{C_NM+4*qb+e}, v{C_NM+4*qb+e}, v{d}')
        if not first:
            al = C_T + 2 + qb
            a(f'v_exp_f32 v{al}, -v{d}')
            a('s_nop 0')
            for e in range(4): a(f'v_mul_f32 v{C_L+4*qb+e}, v{C_L+4*qb+e}, v{al}')
            for db in range(16):
                o = (db*2+qb)*4
                for e in range(3): a(f'v_accvgpr_read_b32 v{C_T+4+e}, a{o+e}')
                a(f'v_accvgpr_read_b32 v2, a{o+3}')
                for e in range(3): a(f'v_mul_f32 v{C_T+4+e}, v{C_T+4+e}, v{al}')
                a(f'v_mul_f32 v2, v2, v{al}')
                for e in range(3): a(f'v_accvgpr_write_b32 a{o+e}, v{C_T+4+e}')
                a(f'v_accvgpr_write_b32 a{o+3}, v2')
    a('s_nop 1')

def softmax_ops(S, qbs=(0, 1)):
    ops = []
    for qb in qbs:
        for kb in range(2):
            b = S + (kb*2+qb)*4
            for e in range(4): ops.append(f'v_exp_f32 v{b+e}, v{b+e}')
        for kb in range(2):
            b = S + (kb*2+qb)*4
            for e in range(2): ops.append(f'v_cvt_pk_bf16_f32 v{C_P+4*qb+2*kb+e}, v{b+2*e}, v{b+2*e+1}')
    return ops

def phaseC_begin(a, part=3):
    t = S_T
    lst = [('K', 0), ('K', 1), ('V', 0), ('K', 2), ('V', 1), ('K', 3)]
    if part & 1:
        a('s_barrier')
        a(f's_mul_i32 s{t}, s{S_H}, {KH_()}'); a(f's_mul_i32 s{t+1}, s{S_TS}, {KT_()}'); a(f's_add_u32 s{S_KO}, s{t}, s{t+1}')
        a(f's_add_u32 s{S_KO}, s{S_KO}, {hex(WS_KV - KT_())}')
        a(f's_add_u32 s{S_VO}, s{S_KO}, 16384')
        a(f'v_add_u32 v{C_VD}, s{S_W4K}, v{V_L16}')
    for kind, sl in (lst[:3] if part & 1 else []) + (lst[3:] if part & 2 else []):
        a(flat(C_dma(kind, f's_add_u32 m0, s{S_W4K}, {(0 if kind=="K" else 65536) + sl*16384}')))

def phaseC(a, own, rl, after_first_wait=None, tail_extra=None):
    t = S_T
    def AQ(i): return vr(V_QO+i) if own else ar(A_QX+i)
    NBUF = C_NB
    a(f's_mov_b32 s{S_PB}, s{S_W4K}'); a(f's_xor_b32 s{S_PO}, s{S_PB}, 0x8000')
    a(f'v_mov_b32 v{C_KA}, v{V_L16}'); a(f'v_add_u32 v{C_VA}, 0x18000, v{V_L16}')
    if own:
        a('v_and_b32 v2, 15, v1'); a('v_lshrrev_b32 v3, 4, v1'); a('v_lshlrev_b32 v3, 2, v3'); a(f'v_sub_u32 v{C_DV0}, v2, v3')
        a(f's_lshl_b32 s{t}, s{S_WAVE}, 4'); a(f'v_add_u32 v{C_DV0}, s{t}, v{C_DV0}')
        a(f's_sub_u32 s{t}, s{S_N}, 4'); a(f's_lshl_b32 s{t}, s{t}, 5')
        a(f'v_add_u32 v{C_DV}, s{t}, v{C_DV0}')
        a(f's_lshl_b32 s{S_RB}, s{S_Q1}, 4'); a(f's_sub_u32 s{S_RB}, s{S_RB}, 64')
        a(f'v_mov_b32 v{C_NINF}, 0xff800000')
    for e in range(4): a(f'v_mov_b32 v{C_ONE+e}, 0x3f803f80')
    a(f'v_xor_b32 v{C_BP16}, 16, v1'); a(f'v_lshlrev_b32 v{C_BP16}, 2, v{C_BP16}')
    a(f'v_xor_b32 v{C_BP32}, 32, v1'); a(f'v_lshlrev_b32 v{C_BP32}, 2, v{C_BP32}')
    for e in range(8): a(f'v_mov_b32 v{C_NM+e}, {f32(OPT.get("nm0", -8.0))}'); a(f'v_mov_b32 v{C_L+e}, 0')
    NZ = OPT.get('nz', 40)
    for r in range(128-NZ): a(f'v_accvgpr_write_b32 a{r}, 0')
    if own: phaseC_begin(a, 2)
    if own:
        Lw = a.newlabel('FW'); Lw2 = a.newlabel('FW')
        a(f's_cmp_eq_u32 s{S_HASX}, 0'); a(f's_cbranch_scc1 {Lw}')
        a('s_waitcnt vmcnt(29)'); a(f's_branch {Lw2}')
        a.label(Lw); a('s_waitcnt vmcnt(12)'); a.label(Lw2)
    else:
        fetch_qx(a)
        phaseC_begin(a, 2)
        a('s_waitcnt vmcnt(12)')
    a('s_barrier')
    if after_first_wait: after_first_wait(a)
    n = 10
    NM2, NM3, NM4 = 7, 10, 0
    steps = []; start = {}; h2s = {}
    def hf(j): return own and j >= n-2
    LV = OPT.get('lvalu', False)
    cnt = [0]
    def nbuf():
        b = C_F + (cnt[0] % OPT.get('c_nb', 8))*4; cnt[0] += 1; return b
    def ksteps(j, cinit):
        S = C_S[j & 1]
        for kb in range(2):
            for s in range(8):
                buf = nbuf()
                rd = f'ds_read_b128 {vr(buf)}, v{C_KA} offset:{(j&1)*16384 + (kb*8+s)*1024}'
                pv = f'v_xor_b32 v{C_KA}, 0x8000, v{C_KA}' if (kb == 0 and s == 0 and (j & 1) == 0 and j > 0) else None
                mf = []
                for qb in ((1,) if hf(j) else (0, 1)):
                    d = vr(S + (kb*2+qb)*4)
                    c = d if s > 0 else (cinit if cinit is not None else vr(C_NM+4*qb))
                    mf.append(f'{MF} {d}, {vr(buf)}, {AQ((s*2+qb)*4)}, {c}')
                steps.append(Step(mf, [rd], prev=pv))
                if hf(j): steps[-1].wg = 2
    def vsteps(j):
        for db in range(16):
            buf = nbuf()
            rd = f'ds_read_b128 {vr(buf)}, v{C_VA} offset:{(j&1)*16384 + db*1024}'
            pv = f'v_xor_b32 v{C_VA}, 0x8000, v{C_VA}' if (db == 0 and (j & 1) == 0) else None
            qbs = (1,) if hf(j) else (0, 1)
            mf = [f'{MF} {ar((db*2+qb)*4)}, {vr(buf)}, {vr(C_P+4*qb)}, {ar((db*2+qb)*4)}' for qb in qbs]
            if db == 15 and not LV:
                mf += [f'{MF} {vr(C_L+4*qb)}, {vr(C_ONE)}, {vr(C_P+4*qb)}, {vr(C_L+4*qb)}' for qb in qbs]
            steps.append(Step(mf, [rd], prev=pv))
            if hf(j): steps[-1].wg = 2
    start[-1] = 0
    ksteps(0, None)
    for j in range(n):
        start[j] = len(steps)
        if j < n-1: ksteps(j+1, None)
        h2s[j] = len(steps)
        vsteps(j)
        tail = j - (n-6)
        vm = {0: 12, 1: 12, 2: 8, 3: (4 + NM2 if own else 4), 4: (NM2 + NM3 if own else 0)}.get(max(tail, 0), None)
        if vm is not None: steps[h2s[j]+2].pre += [f's_waitcnt vmcnt({vm})', 's_barrier']
        if j == n-1: steps[h2s[j]].block += softmax_ops(C_S[j & 1], (1,) if hf(j) else (0, 1)) + ['s_nop 1']
    start[n] = len(steps)
    sc = Sched(steps, LA=OPT.get('c_la', 7), wait_group=OPT.get('c_wg', 4), wait_first=True)
    for j in range(n):
        p = j & 1; h2 = h2s[j]; end = start[j+1] - 1; tail = j - (n-6)
        if j < n-1 and not hf(j+1):
            S = C_S[p]
            regs = [S + (kb*2+qb)*4 + e for qb in range(2) for kb in range(2) for e in range(4)]
            for k in range(16):
                sc.put(start[j]+k, 0, f'v_exp_f32 v{regs[k]}, v{regs[k]}')
                if k & 1: sc.put(start[j]+k, 1, f'v_cvt_pk_bf16_f32 v{C_P+k//2}, v{regs[k-1]}, v{regs[k]}')
            adds = [f'v_add_f32 v{C_L+4*(k//8)}, v{C_L+4*(k//8)}, v{regs[k]}' for k in range(16)] if LV else []
        elif j < n-1:
            S = C_S[p]
            regs = [S + (kb*2+qb)*4 + e for qb in ((1,) if hf(j) else (0, 1)) for kb in range(2) for e in range(4)]
            o = []
            for k in range(len(regs)):
                o.append(f'v_exp_f32 v{regs[k]}, v{regs[k]}')
                if k >= 2 and k % 2 == 0: o.append(f'v_cvt_pk_bf16_f32 v{C_P+(4 if hf(j) else 0)+(k-2)//2}, v{regs[k-2]}, v{regs[k-1]}')
            o += ['s_nop 0', f'v_cvt_pk_bf16_f32 v{C_P+7}, v{regs[-2]}, v{regs[-1]}']
            sc.place(o, start[j], h2-3)
            adds = [f'v_add_f32 v{C_L+(4 if hf(j) else 4*(k//8))}, v{C_L+(4 if hf(j) else 4*(k//8))}, v{regs[k]}' for k in range(len(regs))] if LV else []
        else:
            S = C_S[p]
            regs = [S + (kb*2+qb)*4 + e for qb in ((1,) if hf(j) else (0, 1)) for kb in range(2) for e in range(4)]
            adds = [f'v_add_f32 v{C_L+(4 if hf(j) else 4*(k//8))}, v{C_L+(4 if hf(j) else 4*(k//8))}, v{regs[k]}' for k in range(len(regs))] if LV else []
        dv = C_dma('V', f's_add_u32 m0, s{S_PO if p==0 else S_PB}, {65536 + (16384 if p==0 else 0)}') if tail <= 2 else None
        dk = C_dma('K', f's_add_u32 m0, s{S_PB if p==0 else S_PO}, {16384 if p==0 else 0}') if tail <= 0 else None
        if dv:
            dv = flat(dv)
            sc.put(h2, 0, dv[0]); sc.put(h2, 0, dv[1])
            for x, st_ in zip(dv[2:], (2, 4, 5, 6)): sc.put(h2+st_, 0, x)
        else: sc.put(h2, 0, 's_nop 0')
        if dk:
            dk = flat(dk)
            sc.put(h2+7, 0, dk[0]); sc.put(h2+7, 0, dk[1])
            for x, st_ in zip(dk[2:], (8, 9, 10, 12)): sc.put(h2+st_, 0, x)
        if own:
            ml = merge_loads()
            if tail == 2: sc.place(ml[:NM2], h2+7, end)
            if tail == 3: sc.place(ml[NM2:NM2+NM3], h2+2, end)
            if tail == 2: sc.place(D_setup_v(), start[j], h2-1)
            if tail == 3: sc.place(D_setup_s(), h2+2, end)
            d0 = D_dma(0)
            if tail == 4: sc.place(d0[:6], h2+2, end)
            if tail == 5: sc.place(d0[6:], h2, end)
        if p == 1:
            e = [f's_xor_b32 s{S_PB}, s{S_PB}, 0x8000', f's_xor_b32 s{S_PO}, s{S_PO}, 0x8000']
            if j < 4: e += [f's_sub_u32 s{S_CNT}, s{S_CNT}, 2', f's_cmp_lg_u32 s{S_CNT}, 0']
            sc.place(e, end-2, end)
        if j < n-1:
            Sn = C_S[p ^ 1]; ops = []
            if own and tail == 1: ops += [f'v_mov_b32 v{C_DV}, v{C_DV0}'] + mask_ops(Sn, 0)
            if own and tail == 2: ops += [f'v_subrev_u32 v{C_DV}, 32, v{C_DV0}'] + mask_ops(Sn, 0)
            if own and tail == 3: ops += [f'v_add_u32 v{C_DV}, s{S_RB}, v{C_DV0}'] + mask_ops(Sn, 1)
            if own and tail == 4: ops += [f'v_subrev_u32 v{C_DV}, 32, v{C_DV}'] + mask_ops(Sn, 1)
            if hf(j+1): ops = [f'v_mov_b32 v{Sn+kb*8+e}, 0' for kb in range(2) for e in range(4)] + ops
            ops += max_ops(Sn, hf(j+1)) + [f'v_cmp_lt_f32 vcc, s{S_THR}, v{C_TM}']
            sc.place(ops, h2+(5 if hf(j) else 3), end)
        if adds:
            if j < n-1 and not hf(j+1):
                k0 = 0
                for st_ in range(2, 16, 2):
                    g = sc.gidx[start[j]+st_] + 1
                    if len(sc.gaps[g]) == 1: sc.put(start[j]+st_, 1, adds[k0]); k0 += 1
                sc.place(adds[k0:], h2, end)
            else: sc.place(adds, h2, end)
    if NZ: sc.place([f'v_accvgpr_write_b32 a{r}, 0' for r in range(128-NZ, 128)], 0, 15)
    def text(j0, j1): return sc.text(start[j0], start[j1+1]-1)
    def emit_iter(j):
        tx = resolve_vm(text(j, j))
        if own and j == n-6:
            a(f's_lshl_b32 s{S_FP}, s{S_PAIR}, 8'); a(f's_add_u32 s{S_FP}, s{S_FP}, {hex(WS_FLG + 0x20000)}')
            a(poll_issue(S_FP))
        if own and j == n-4:
            L = a.newlabel('NMC')
            for x in merge_setup(): a(x.split('\n'))
            a(f's_cmp_eq_u32 s{S_TS}, 0'); a(f's_cbranch_scc1 {L}')
            a('s_waitcnt vmcnt(12)')
            spin_wait(a, S_FP, mask=1)
            a.label(L)
        ab = OPT.get('ablate', '')
        if 'dma' in ab: tx = [x for x in tx if not (x.startswith('buffer_load') or 'vmcnt' in x)]
        if 'bar' in ab: tx = [x for x in tx if not x.startswith('s_barrier')]
        if 'exp' in ab: tx = [x for x in tx if not x.startswith('v_exp')]
        if 'max' in ab: tx = [x for x in tx if not x.startswith('v_max')]
        if 'read' in ab: tx = [x for x in tx if not (x.startswith('ds_read') or 'lgkmcnt' in x)]
        a(tx)
        if j < n-1 and not ab:
            Lb = a.newlabel('CB'); Ls = a.newlabel('CS')
            a(f's_cbranch_vccnz {Ls}')
            a.label(Lb)
            rl['stubs'].append((Ls, Lb, (j&1)^1))
    assert text(0, 1) == text(2, 3), 'not periodic'
    print('phaseC overflow per pair', sc.overflow(start[2], start[4]-1))
    if own: stamp(a, 14)
    a(sc.pre)
    a(text(-1, -1))
    if own: stamp(a, 15)
    if own:
        Lx = a.newlabel('FX')
        a(f's_cmp_eq_u32 s{S_HASX}, 0'); a(f's_cbranch_scc1 {Lx}')
        a('s_waitcnt vmcnt(12)')
        a.label(Lx)
    a('s_barrier')
    if own: publish_flag(a)
    a(flat(C_dma('V', f's_add_u32 m0, s{S_W4K}, {65536+2*16384}') + C_dma('K', f's_mov_b32 m0, s{S_W4K}')))
    if own: a(mask_ops(C_S[0], 0))
    S0 = C_S[0]
    for qb in range(2):
        r = [S0 + (kb*2+qb)*4 + e for kb in range(2) for e in range(4)]
        d = C_T + qb
        a(f'v_max3_f32 v{d}, v{r[0]}, v{r[1]}, v{r[2]}'); a(f'v_max3_f32 v{d}, v{d}, v{r[3]}, v{r[4]}')
        a(f'v_max3_f32 v{d}, v{d}, v{r[5]}, v{r[6]}'); a(f'v_max_f32 v{d}, v{d}, v{r[7]}')
    a(f'v_max_f32 v{C_T}, abs(v{C_T}), abs(v{C_T+1})')
    a(f'v_cmp_nge_f32 vcc, s{S_THR}, v{C_T}')
    Lb = a.newlabel('CB'); Ls = a.newlabel('CS')
    a(f's_cbranch_vccnz {Ls}')
    a.label(Lb)
    rl['stubs'].append((Ls, Lb, 'first'))
    if own: stamp(a, 16)
    Ltail4 = a.newlabel('CT4'); Ltail = a.newlabel('CT6'); Lloop = a.newlabel('CL')
    if own:
        a(f's_cmp_eq_u32 s{S_N}, 4'); a(f's_cbranch_scc1 {Ltail4}')
    a(f's_sub_u32 s{S_CNT}, s{S_N}, 6')
    a(f's_cmp_eq_u32 s{S_CNT}, 0'); a(f's_cbranch_scc1 {Ltail}')
    a.label(Lloop)
    emit_iter(2); emit_iter(3)
    a(f's_cbranch_scc1 {Lloop}')
    a.label(Ltail)
    if own: stamp(a, 17)
    emit_iter(4); emit_iter(5)
    if own: a.label(Ltail4)
    for j in range(6, 10): emit_iter(j)

def rare_subs(a, rl):
    for (Ls, Lb, p) in rl['stubs']:
        a.label(Ls)
        a(f's_cselect_b32 s{S_T+8}, 1, 0')
        a(f's_getpc_b64 s[{S_RET}:{S_RET+1}]')
        Lp = a.newlabel('CP'); a.label(Lp)
        a(f's_sub_u32 s{S_RET}, s{S_RET}, {Lp}-{Lb}'); a(f's_subb_u32 s{S_RET+1}, s{S_RET+1}, 0')
        a(f's_branch {rl[p]}')
    a.label(rl['first'])
    rare_path(a, C_S[0], True)
    a(f's_setpc_b64 s[{S_RET}:{S_RET+1}]')
    for p in range(2):
        a.label(rl[p])
        rare_path(a, C_S[p], False)
        a(f's_cmp_lg_u32 s{S_T+8}, 0')
        a(f's_setpc_b64 s[{S_RET}:{S_RET+1}]')

def op_base(a, d):
    a(f's_mul_i32 s{d}, s{S_PAIR}, {OP_PAIR}'); a(f's_mul_i32 s{d+1}, s{S_WAVE}, {OP_WAVE}')
    a(f's_add_u32 s{d}, s{d}, s{d+1}'); a(f's_add_u32 s{d}, s{d}, {hex(WS_OP)}')

def l_reduce(a):
    if not OPT.get('lvalu', False): return
    for bp in (C_BP16, C_BP32):
        for qb in range(2): a(f'ds_bpermute_b32 v{C_L+4*qb+1}, v{bp}, v{C_L+4*qb}')
        a('s_waitcnt lgkmcnt(0)')
        for qb in range(2): a(f'v_add_f32 v{C_L+4*qb}, v{C_L+4*qb}, v{C_L+4*qb+1}')

def publish_stores(a):
    t = S_T
    a('s_nop 7')
    l_reduce(a)
    op_base(a, t)
    a(f's_add_u32 s{t+1}, s{t}, 32768')
    a(f'v_mov_b32 v{C_T}, v{C_NM}'); a(f'v_mov_b32 v{C_T+1}, v{C_NM+4}'); a(f'v_mov_b32 v{C_T+2}, v{C_L}'); a(f'v_mov_b32 v{C_T+3}, v{C_L+4}')
    a(f'buffer_store_dwordx4 {vr(C_T)}, v{V_L16}, {sr(S_WS)}, s{t+1} offen sc1')
    for k in range(16):
        if k % 4 == 0 and k: a(f's_add_u32 s{t}, s{t}, 4096')
        tb = 32 + 16*(k & 1)
        for e in range(8): a(f'v_accvgpr_read_b32 v{tb+e}, a{8*k+e}')
        for e in range(4): a(f'v_cvt_pk_bf16_f32 v{tb+8+e}, v{tb+2*e}, v{tb+2*e+1}')
        a(f'buffer_store_dwordx4 {vr(tb+8)}, v{V_L16}, {sr(S_WS)}, s{t} offen offset:{1024*(k%4)} sc1')
    a('s_nop 1')

def publish_flag(a):
    L = a.newlabel('PF')
    a(f's_cmp_eq_u32 s{S_HASX}, 0'); a(f's_cbranch_scc1 {L}')
    a(f's_lshl_b32 s{S_T}, s{S_PAIR}, 8'); a(f's_add_u32 s{S_T}, s{S_T}, {hex(WS_FLG + 0x20000)}')
    a(f'buffer_store_dword v{V_NONCE}, v{V_SIG}, {sr(S_WS)}, s{S_T} offen sc1')
    a.label(L)

D_CTX = 32
D_WF, D_NB = 176, 8
D_ACC = 128
D_PK = 160
D_VO = 120
D_RA, D_RB = 20, 24
D_ST1 = 28
DSLOT = 49152
S_MB = 71
C_ML = 124

def merge_setup():
    t = S_T + 4
    return [f's_mul_i32 s{S_MB}, s{S_PAIR}, {OP_PAIR}', f's_mul_i32 s{t}, s{S_WAVE}, {OP_WAVE}',
            f's_add_u32 s{S_MB}, s{S_MB}, s{t}', f's_add_u32 s{S_MB}, s{S_MB}, {hex(WS_OP)}',
            f's_cmp_eq_u32 s{S_TS}, 0\ns_cselect_b32 s{S_MB}, 0x70000000, s{S_MB}']

def merge_loads():
    t = S_T + 4
    g = [[f's_add_u32 s{t}, s{S_MB}, 32768', f'buffer_load_dwordx4 {vr(C_ML)}, v{V_L16}, {sr(S_WS)}, s{t} offen sc1']]
    for k in range(16):
        pre = [f's_add_u32 s{S_MB}, s{S_MB}, 4096'] if (k % 4 == 0 and k) else []
        g.append(pre + [f'buffer_load_dwordx4 {vr(C_MRG+4*k)}, v{V_L16}, {sr(S_WS)}, s{S_MB} offen offset:{1024*(k%4)} sc1'])
    return g

def D_setup_v(): return D_setup()[:12]
def D_setup_s(): return D_setup()[12:]
def D_setup():
    t = S_T + 5
    r = ['v_lshrrev_b32 v2, 3, v1', 'v_mul_u32_u24 v3, 896, v2', 'v_bfe_u32 v2, v1, 4, 2', f'v_bfe_u32 v{D_VO}, v1, 1, 2', f'v_xor_b32 v2, v2, v{D_VO}',
         f'v_and_b32 v{D_VO}, 1, v1', f'v_lshl_add_u32 v2, v2, 1, v{D_VO}', 'v_lshl_add_u32 v3, v2, 4, v3']
    r += [f'v_add_u32 v{D_VO+i}, {i*(8*896-1024)}, v3' for i in range(4)]
    r += [f's_lshl_b32 s{t}, s{S_H}, 8', f's_lshl_b32 s{t+1}, s{S_WAVE}, 6', f's_add_u32 s{t}, s{t}, s{t+1}', f's_mul_i32 s{S_DO}, s{t}, 896',
          f's_lshl_b32 s{t+1}, s{S_WAVE}, 5', f's_add_u32 s{t}, s{S_F0}, s{t+1}', f's_mul_i32 s{S_D2}, s{t}, 896']
    return r

def finalize(a):
    t = S_T
    Lno = a.newlabel('NOMRG'); Ldone = a.newlabel('FIN')
    l_reduce(a)
    a(f's_cmp_lg_u32 s{S_TS}, 0'); a(f's_cbranch_scc0 {Lno}')
    a('s_waitcnt vmcnt(24)')
    a(f's_mov_b32 s{t}, 0xffff0000')
    for qb in range(2):
        nm_a = C_NM + 4*qb; nm_b = C_ML + qb; l_a = C_L + 4*qb; l_b = C_ML + 2 + qb
        sa = 8 + 2*qb; sb = 16 + 2*qb
        a(f'v_min_f32 v2, v{nm_a}, v{nm_b}')
        a(f'v_sub_f32 v3, v2, v{nm_a}'); a(f'v_exp_f32 v{sa}, v3')
        a(f'v_sub_f32 v3, v2, v{nm_b}'); a(f'v_exp_f32 v{sb}, v3')
        a('s_nop 0')
        a(f'v_mul_f32 v2, v{sa}, v{l_a}'); a(f'v_fmac_f32 v2, v{sb}, v{l_b}')
        if OPT.get('kvs', 0): a(f'v_mul_f32 v2, s{S_VS}, v2')
        a('v_rcp_f32 v2, v2'); a('s_nop 0')
        a(f'v_mul_f32 v{sa}, v{sa}, v2'); a(f'v_mul_f32 v{sb}, v{sb}, v2')
        a(f'v_mov_b32 v{sa+1}, v{sa}'); a(f'v_mov_b32 v{sb+1}, v{sb}')
    k = 0
    for s in range(8):
        for qb in range(2):
            for half in range(2):
                o = ((2*s+half)*2+qb)*4; tb = 12 if k & 1 else 20; k += 1
                for e in range(4): a(f'v_accvgpr_read_b32 v{tb+e}, a{o+e}')
                for e in range(2):
                    a(f'v_lshlrev_b32 v{24+2*e}, 16, v{C_MRG+o//2+e}'); a(f'v_and_b32 v{25+2*e}, s{t}, v{C_MRG+o//2+e}')
                for e in (0, 2): a(f'v_pk_mul_f32 {vr(tb+e,2)}, {vr(tb+e,2)}, {vr(8+2*qb,2)}')
                for e in (0, 2): a(f'v_pk_fma_f32 {vr(tb+e,2)}, {vr(24+e,2)}, {vr(16+2*qb,2)}, {vr(tb+e,2)}')
                for e in range(2): a(f'v_cvt_pk_bf16_f32 v{D_CTX+(s*2+qb)*4+2*half+e}, v{tb+2*e}, v{tb+2*e+1}')
    a(f's_branch {Ldone}')
    a.label(Lno)
    if OPT.get('kvs', 0):
        for qb in range(2): a(f'v_mul_f32 v{C_L+4*qb}, s{S_VS}, v{C_L+4*qb}')
    for qb in range(2): a(f'v_rcp_f32 v{8+2*qb}, v{C_L+4*qb}')
    a('s_nop 0')
    for qb in range(2): a(f'v_mov_b32 v{9+2*qb}, v{8+2*qb}')
    for s in range(8):
        for qb in range(2):
            for half in range(2):
                o = ((2*s+half)*2+qb)*4; tb = 12 if k & 1 else 20; k += 1
                for e in range(4): a(f'v_accvgpr_read_b32 v{tb+e}, a{o+e}')
                for e in (0, 2): a(f'v_pk_mul_f32 {vr(tb+e,2)}, {vr(tb+e,2)}, {vr(8+2*qb,2)}')
                for e in range(2): a(f'v_cvt_pk_bf16_f32 v{D_CTX+(s*2+qb)*4+2*half+e}, v{tb+2*e}, v{tb+2*e+1}')
    a.label(Ldone)

def D_dma(tile):
    t = S_T; sl = (tile % 3)*DSLOT
    g = []
    for half in range(2):
        first = [f's_lshl_b32 s{t}, s{S_W4K}, 1'] if half == 0 else []
        first += [f's_add_u32 m0, s{t}, {sl + 4096*half}', f's_add_u32 s{t+1}, s{S_DO}, {half*32*896 + tile*128}']
        for i in range(4):
            g.append((first if i == 0 else []) + [f'buffer_load_dwordx4 v{D_VO+i}, {sr(S_WO)}, s{t+1} offen offset:{1024*i} lds'])
    first = [f's_add_u32 m0, s{S_W4K}, {sl + 32768}', f's_add_u32 s{t+1}, s{S_D2}, {tile*128}']
    for i in range(4):
        g.append((first if i == 0 else []) + [f'buffer_load_dwordx4 v{D_VO+i}, {sr(S_W2)}, s{t+1} offen offset:{1024*i} lds'])
    return tag(g, f'T{tile}')

def phaseD_begin(a):
    a('s_barrier')
    a(resolve_vm(flat(D_dma(1))))

def phaseD(a, nks):
    t = S_T
    a('v_lshrrev_b32 v2, 2, v1'); a('v_bfe_u32 v3, v1, 3, 2')
    a('v_and_b32 v8, 3, v1'); a('v_lshlrev_b32 v8, 3, v8'); a('v_lshl_add_u32 v8, v2, 7, v8')
    for c in range(4):
        a(f'v_xor_b32 v2, {c}, v3'); a(f'v_lshl_add_u32 v{D_RB+c}, v2, 5, v8')
    a(f's_lshl_b32 s{t}, s{S_OWN}, 3'); a(f's_add_u32 s{t}, s{t}, s{S_WAVE}'); a(f's_mul_i32 s{t}, s{t}, {14*16384}')
    a(f's_lshl_b32 s{t+1}, s{S_H}, 10'); a(f's_add_u32 s{t}, s{t}, s{t+1}')
    a(f's_add_u32 s{S_PRT}, s{t}, {hex(WS_PART)}')
    a(f's_mul_i32 s{t}, s{S_Q1}, {14*16384}'); a(f'v_add_u32 v{D_ST1}, s{t}, v{V_L16}')
    steps = []
    for tile in range(7):
        sl = tile % 3
        for c in range(4):
            for ks in range(nks):
                buf = D_WF + (len(steps) % D_NB)*4
                rd = [f'ds_read_b64_tr_b16 {vr(buf+2*h,2)}, v{D_RA+c} offset:{4096*ks+2048*h}' for h in range(2)]
                pv = f'v_add_u32 v{D_RA+c}, {sl*DSLOT}, v{D_RB+c}' if ks == 0 else None
                mf = []
                for qb in range(2):
                    d = vr(D_ACC + (c*2+qb)*4)
                    b = vr(D_CTX + (ks*2+qb)*4) if ks < 8 else ar(A_H + ((ks-8)*2+qb)*4)
                    mf.append(f'{MF} {d}, {vr(buf)}, {b}, {d if ks else "0"}')
                steps.append(Step(mf, rd, prev=pv))
    nst = 4*nks; LA = OPT.get('bd_la', 6)
    bp = {}
    for tile in range(6):
        bp[tile] = (tile+1)*nst - LA - 1
        steps[bp[tile]].pre += [f's_waitcnt vmcnt(@T{tile+1})', 's_barrier']
        for f in range(nst): steps[(tile+1)*nst+f].gate = bp[tile]
    FUSE = OPT.get('fuse_r', True)
    if FUSE:
        bp[6] = 7*nst - LA - 1
        steps[bp[6]].pre += ['s_barrier']
        for tile in range(1, 7): steps[bp[tile]].pre.insert(0, f's_waitcnt vmcnt(@P{2*tile-1-OPT.get("plag", 0)})')
        a(f's_lshl_b32 s{S_FP}, s{S_OWN}, 12'); a(f's_add_u32 s{S_FP}, s{S_FP}, {hex(WS_FLG + 0x40000)}')
        a(f's_lshl_b32 s{S_MB}, s{S_H}, 2'); a(f's_add_u32 s{S_MB}, s{S_MB}, s{S_FP}')
    D2 = OPT.get('d2bar', True)
    if D2:
        for tile in range(1, 5): steps[tile*nst+1].pre += ['s_barrier']
    sc = Sched(steps, LA=LA, wait_group=OPT.get('bd_wg', 2))
    if FUSE:
        for tile in range(1, 7):
            sc.place([f'v_add_u32 v{8+(tile&1)}, {2*tile-OPT.get("plag", 0)}, v{V_NONCE}', f'buffer_store_dword v{8+(tile&1)}, v{V_SIG}, {sr(S_WS)}, s{S_MB} offen sc1'], bp[tile], bp[tile]+1)
    sc.place(D_dma(2), 0, 24)
    for tile in range(1, 5):
        if D2: sc.place(D_dma(tile+2), tile*nst+1, tile*nst+1+OPT.get('d_dw2', 30))
        else: sc.place(D_dma(tile+2), bp[tile], bp[tile]+OPT.get('d_dw', 16))
    tail_ops = None
    for tile in range(7):
        for cp in range(2):
            v = tile*2 + cp
            endstep = (tile*4 + cp*2 + 2)*nks
            ops = []
            for qb in range(2):
                pk = D_PK + (cp*2+qb)*4
                for half in range(2):
                    src = D_ACC + ((cp*2+half)*2+qb)*4
                    for e in range(2): ops.append(f'v_cvt_pk_bf16_f32 v{pk+2*half+e}, v{src+2*e}, v{src+2*e+1}')
                st = [f's_add_u32 s{t+4}, s{S_PRT}, {v*16384}'] if qb == 0 else []
                ops.append(st + [f'buffer_store_dwordx4 {vr(pk)}, v{V_L16 if qb==0 else D_ST1}, {sr(S_WS)}, s{t+4} offen sc1 ;@P{v}'])
            if endstep + 3 < len(steps): sc.place(ops, endstep+3, endstep+12)
            else: tail_ops = ops
    print('phaseD overflow', sc.overflow(0, len(steps)-1))
    head = flat(D_dma(0) + D_dma(1))
    tx = []
    for tile in range(7):
        if OPT.get('dstamp'): tx.append(f'STAMP{20+tile}')
        tx += sc.text(tile*nst, (tile+1)*nst-1)
    if OPT.get('dstamp'): tx.append('STAMP27')
    body = resolve_vm(head + ['MARK', 's_waitcnt vmcnt(@T0)', 's_barrier'] + sc.pre + tx)
    for x in body[body.index('MARK')+1:]:
        if x.startswith('STAMP'): stamp(a, int(x[5:]))
        else: a(x)
    a('s_nop 7')
    a(resolve_vm(flat(tail_ops)))

def phaseR(a, Lend):
    t = S_T
    S_OUT, S_B2 = S_CKV, S_W
    S_CT, S_U, S_IT, S_MSK = 57, 58, 59, 60
    a(f's_load_dwordx4 s[{t+4}:{t+7}], s[0:1], 80')
    a(poll_issue(S_FP))
    a('s_waitcnt vmcnt(0)')
    a('s_barrier')
    a(f'v_add_u32 v8, 14, v{V_NONCE}')
    a(f'buffer_store_dword v8, v{V_SIG}, {sr(S_WS)}, s{S_MB} offen sc1')
    stamp(a, 13)
    a('s_waitcnt lgkmcnt(0)')
    srd(a, S_B2, t+4, 448*2); srd(a, S_OUT, t+6, 2048*448*2)
    a(f's_add_u32 s{S_CT}, s{S_FP}, 0x10000')
    a(f's_mov_b32 s{S_IT}, 0'); a(f's_mov_b32 s{S_MSK}, 0xffff0000')
    a('v_and_b32 v10, 15, v1'); a('v_mul_u32_u24 v10, 896, v10'); a('v_lshrrev_b32 v11, 4, v1'); a('v_lshlrev_b32 v11, 3, v11')
    a('v_add_u32 v10, v10, v11')
    def wait_prog(need_sgpr, have=False):
        Ls = a.newlabel('RP'); Lo = a.newlabel('RP'); Lc = a.newlabel('RP')
        a(f's_mov_b32 s{t+1}, 0')
        a(f's_sub_u32 s{t+2}, 14, s{need_sgpr}')
        if have: a(f's_branch {Lc}')
        a.label(Ls)
        a(poll_issue(S_FP))
        a('s_waitcnt vmcnt(0)')
        a.label(Lc)
        a(f'v_sub_u32 v2, v{V_POLL}, v{V_NONCE}'); a(f'v_subrev_u32 v2, s{need_sgpr}, v2')
        a(f'v_cmp_ge_u32 vcc, s{t+2}, v2')
        a(f's_and_b32 s{t}, vcc_lo, 0xffff')
        a(f's_cmp_eq_u32 s{t}, 0xffff'); a(f's_cbranch_scc1 {Lo}')
        a(f's_sleep {OPT.get("rsleep", 3)}')
        a(f's_add_u32 s{t+1}, s{t+1}, 1')
        a(f's_cmp_lt_u32 s{t+1}, 20000'); a(f's_cbranch_scc1 {Ls}')
        a.label(Lo)
    Lloop = a.newlabel('RL'); Lsk = a.newlabel('RS'); Lw = a.newlabel('RW'); Lf = a.newlabel('RF'); Lhave = a.newlabel('RV')
    S_PRE = 61
    UP = OPT.get('upre', 0)
    def grab():
        a('v_mov_b32 v13, 1')
        a(f'buffer_atomic_add v13, v{V_SIG}, {sr(S_WS)}, s{S_CT} offen sc0 sc1')
        a(poll_issue(S_FP))
    a(f's_mov_b32 s{S_PRE}, 0')
    a(f's_cmp_lg_u32 s{S_WAVE}, 0'); a(f's_cbranch_scc1 {Lloop}')
    a(f's_mov_b32 s{t+3}, 1')
    wait_prog(t+3, True)
    a.label(Lloop)
    a(f'v_mov_b32 v12, s{S_IT}')
    a(f's_cmp_lg_u32 s{S_WAVE}, 0'); a(f's_cbranch_scc1 {Lsk}')
    a(f's_cmp_lg_u32 s{S_PRE}, 0'); a(f's_cbranch_scc1 {Lhave}')
    grab()
    a('s_waitcnt vmcnt(0)')
    a.label(Lhave)
    a(f'v_readfirstlane_b32 s{S_U}, v13')
    a(f's_cmp_ge_u32 s{S_U}, 28'); a(f's_cbranch_scc1 {Lw}')
    a(f's_lshr_b32 s{t+3}, s{S_U}, 1'); a(f's_add_u32 s{t+3}, s{t+3}, 1')
    wait_prog(t+3, True)
    a.label(Lw)
    a(f'v_mov_b32 v3, s{S_U}')
    a('ds_write_b32 v12, v3')
    a('s_waitcnt lgkmcnt(0)')
    a.label(Lsk)
    a('s_barrier')
    a('ds_read_b32 v3, v12')
    a('s_waitcnt lgkmcnt(0)')
    a(f'v_readfirstlane_b32 s{S_U}, v3')
    a(f's_xor_b32 s{S_IT}, s{S_IT}, 4')
    a(f's_cmp_ge_u32 s{S_U}, 28'); a(f's_cbranch_scc1 {Lf}')
    a(f's_and_b32 s{t}, s{S_U}, 1'); a(f's_lshl_b32 s{t}, s{t}, 2'); a(f's_add_u32 s{t}, s{t}, s{S_WAVE}')
    a(f's_lshl_b32 s{t+1}, s{S_OWN}, 3'); a(f's_add_u32 s{t}, s{t}, s{t+1}')
    a(f's_lshr_b32 s{t+1}, s{S_U}, 1')
    a(f's_mul_i32 s{t+2}, s{t}, 14'); a(f's_add_u32 s{t+2}, s{t+2}, s{t+1}'); a(f's_lshl_b32 s{t+2}, s{t+2}, 14')
    a(f's_add_u32 s{t+2}, s{t+2}, {hex(WS_PART)}')
    for h in range(16):
        a(f'buffer_load_dwordx4 {vr(32+4*h)}, v{V_L16}, {sr(S_WS)}, s{t+2} offen offset:{(h%4)*1024} sc1')
        if h % 4 == 3 and h < 15: a(f's_add_u32 s{t+2}, s{t+2}, 4096')
    a(f's_mul_i32 s{t}, s{t}, {16*896}'); a(f's_lshl_b32 s{t+1}, s{t+1}, 6'); a(f's_add_u32 s{t}, s{t}, s{t+1}')
    a(f'buffer_load_dwordx2 v[96:97], v10, {sr(S_XIN)}, s{t} offen')
    a(f'buffer_load_dwordx2 v[98:99], v10, {sr(S_XIN)}, s{t} offen offset:32')
    a(f'buffer_load_dwordx2 v[100:101], v11, {sr(S_B2)}, s{t+1} offen')
    a(f'buffer_load_dwordx2 v[102:103], v11, {sr(S_B2)}, s{t+1} offen offset:32')
    Ln = a.newlabel('RN')
    a(f's_cmp_lt_u32 s{S_U}, {UP}'); a(f's_cselect_b32 s{S_PRE}, 1, 0'); a(f's_cbranch_scc0 {Ln}')
    grab()
    a.label(Ln)
    for h in range(18):
        a(f's_waitcnt vmcnt({19-h if h < 16 else (2 if h == 16 else 0)})')
        src = 32 + 4*h
        for i in range(4):
            if h == 0:
                a(f'v_lshlrev_b32 v{16+2*i}, 16, v{src+i}'); a(f'v_and_b32 v{17+2*i}, s{S_MSK}, v{src+i}')
            else:
                a(f'v_lshlrev_b32 v14, 16, v{src+i}'); a(f'v_and_b32 v15, s{S_MSK}, v{src+i}')
                a(f'v_add_f32 v{16+2*i}, v{16+2*i}, v14'); a(f'v_add_f32 v{17+2*i}, v{17+2*i}, v15')
    for i in range(4): a(f'v_cvt_pk_bf16_f32 v{24+i}, v{16+2*i}, v{17+2*i}')
    a(f'buffer_store_dwordx2 v[24:25], v10, {sr(S_OUT)}, s{t} offen')
    a(f'buffer_store_dwordx2 v[26:27], v10, {sr(S_OUT)}, s{t} offen offset:32')
    a(f's_cmp_lt_u32 s{S_U}, {OPT.get("u0", 20)}'); a(f's_cbranch_scc1 {Lloop}')
    a.label(Lf)
    if DBG[0]:
        a('s_waitcnt vmcnt(0)')
        stamp(a, 18)

def build_srds(a):
    P = PTR
    srd(a, S_WS, P+26, WS_BYTES); srd(a, S_CKV, P+2, 2048*1024*2); srd(a, S_XIN, P+0, 2048*448*2)
    a(f's_cmp_eq_u32 s{S_KVT}, 0')
    a(f's_cselect_b32 s{P+6}, s{P+6}, s{P+8}'); a(f's_cselect_b32 s{P+7}, s{P+7}, s{P+9}')
    srd(a, S_W, P+6, 1024*4096*2)
    srd(a, S_WQ, P+4, 448*4096*2); srd(a, S_W1, P+14, 448*1792*2); srd(a, S_WO, P+10, 4096*448*2)
    srd(a, S_W2, P+18, 1792*448*2); srd(a, S_B1, P+16, 1792*2); srd(a, S_DBG, P+24, 256)

def gen_mega(a, name='m_kernel', dbg=False):
    DBG[0] = dbg
    a.raw('.text'); a.raw('.p2align 8')
    a.label('M_CODE_START')
    front_pos = len(a.L)
    kstart(a, name)
    Lend = a.newlabel('MEND')
    Lgo = a.newlabel('GO')
    a('s_cmp_lt_u32 s2, 256'); a(f's_cbranch_scc1 {Lgo}')
    a('s_endpgm')
    a.label(Lgo)
    a(f's_load_dwordx16 s[{PTR}:{PTR+15}], s[0:1], 0')
    a(f's_load_dwordx8 s[{PTR+16}:{PTR+23}], s[0:1], 64')
    a(f's_load_dwordx4 s[{PTR+24}:{PTR+27}], s[0:1], 96')
    Lp = a.newlabel('PC')
    a(f's_getpc_b64 s[{S_PC}:{S_PC+1}]')
    a.label(Lp)
    a(f's_sub_u32 s{S_PC}, s{S_PC}, {Lp}-M_CODE_START'); a(f's_subb_u32 s{S_PC+1}, s{S_PC+1}, 0')
    a(flat(code_pf(0, OPT.get('cpf0', 1), 200)))
    if OPT.get('cpfs'):
        ns = OPT['cpfs']; per = (OPT.get('codekb', 112)*1024 // ns) // 128
        a('s_lshr_b32 s4, s2, 3'); a(f's_and_b32 s4, s4, {ns-1}'); a(f's_mul_i32 s4, s4, {per*128}')
        a(f'v_min_u32 v200, {per-1}, v0'); a('v_lshlrev_b32 v200, 7, v200'); a('v_add_u32 v200, s4, v200')
        a('v_min_u32 v200, M_CODE_END-M_CODE_START-4, v200')
        a(f'global_load_dword v31, v200, s[{S_PC}:{S_PC+1}]')
    a('v_and_b32 v1, 63, v0')
    a('v_lshrrev_b32 v2, 6, v0')
    a(f'v_lshlrev_b32 v{V_L16}, 4, v1')
    a(f'v_readfirstlane_b32 s{S_WAVE}, v2')
    t = 4
    a(f's_and_b32 s{t}, s2, 7'); a(f's_lshr_b32 s{t+1}, s2, 3'); a(f's_and_b32 s{t+2}, s{t+1}, 1')
    if OPT.get('xswap'): a(f's_xor_b32 s{t}, s{t}, {OPT["xswap"]}')
    a(f's_lshl_b32 s{t}, s{t}, 1'); a(f's_add_u32 s{S_H}, s{t}, s{t+2}')
    a(f's_lshr_b32 s{t+1}, s{t+1}, 1'); a(f's_and_b32 s{S_ROLE}, s{t+1}, 1'); a(f's_lshr_b32 s{S_I}, s{t+1}, 1')
    a(f's_lshl_b32 s{S_W4K}, s{S_WAVE}, 12'); a(f's_lshl_b32 s{S_W2K}, s{S_WAVE}, 11')
    a(f's_lshl_b32 s{S_PAIR}, s{S_H}, 3'); a(f's_add_u32 s{S_PAIR}, s{S_PAIR}, s{S_I}')
    a(f's_lshl_b32 s{S_FKV}, s{S_H}, 12'); a(f's_add_u32 s{S_FKV}, s{S_FKV}, {hex(WS_FLG)}')
    lo = sum(T0[i] << (8*i) for i in range(4)); hi = sum(T0[4+i] << (8*i) for i in range(4))
    a(f's_mov_b32 s{t}, {hex(lo)}'); a(f's_mov_b32 s{t+1}, {hex(hi)}')
    a(f's_lshl_b32 s{t+2}, s{S_I}, 3'); a(f's_lshr_b64 s[{t}:{t+1}], s[{t}:{t+1}], s{t+2}'); a(f's_and_b32 s{S_T0}, s{t}, 0xff')
    a(f's_sub_u32 s{S_EXT}, 15, s{S_I}')
    a(f's_cmp_eq_u32 s{S_ROLE}, 0'); a(f's_cselect_b32 s{S_OWN}, s{S_EXT}, s{S_I}')
    a(f's_mul_i32 s{S_HASX}, s{S_ROLE}, s{S_T0}')
    a(f's_mov_b32 s{S_QSC}, {f32(1.4426950408889634/16*2**OPT.get("kvs", 0))}'); a(f's_mov_b32 s{S_KVS}, {f32(2.0**-OPT.get("kvs", 0))}'); a(f's_mov_b32 s{S_VS}, {f32(2.0**-OPT.get("vs", 0))}')
    a(f's_cmp_eq_u32 s{S_KVT}, 0'); a(f's_cselect_b32 s{S_KVS}, s{S_KVS}, s{S_VS}')
    a(f's_mov_b32 s{S_THR}, {f32(16.0)}')
    a('v_mov_b32 v3, 0x7fffff00'); a('v_cmp_eq_u32 vcc, 0, v0'); a(f'v_mov_b32 v{V_NONCE}, 0')
    a('v_lshlrev_b32 v2, 2, v0')
    a(f'v_cndmask_b32 v{V_SIG}, v3, 0, vcc')
    a('v_cmp_gt_u32 vcc, 16, v0'); a('s_nop 1')
    a(f'v_cndmask_b32 v{V_SIG16}, v3, v2, vcc')
    hist = phaseA(a)
    SPLIT = OPT.get('fsplit', False)
    def two(fn_even, fn_odd, front=False):
        if not SPLIT: fn_even(); return
        Lo = a.newlabel('OD'); Le = a.newlabel('EV')
        a(f's_cmp_lg_u32 s{S_ODD}, 0'); a(f's_cbranch_scc1 {Lo}')
        fn_even()
        if front:
            a.label(Le)
            main = a.L; a.L = []
            a.label(Lo); fn_odd(); a(f's_branch {Le}')
            main[front_pos:front_pos] = a.L
            a.L = main
        else:
            a(f's_branch {Le}')
            a.label(Lo); fn_odd(); a.label(Le)
    nq_after = 16 - OPT.get('nqw', 5)
    two(lambda: phaseB_main(a, True, hist, 8 if SPLIT else 7), lambda: phaseB_main(a, True, hist, 6), front=True)
    Lown = a.newlabel('OWN'); Lown2 = a.newlabel('OWN2')
    rl = {0: a.newlabel('RARE'), 1: a.newlabel('RARE'), 'first': a.newlabel('RARE'), 'stubs': []}
    def qsc(): a(f'v_mov_b32 v{B_QS}, s{S_QSC}'); a(f'v_mov_b32 v{B_QS+1}, s{S_QSC}')
    def own_params():
        a(f's_lshl_b32 s{S_RB}, s{S_OWN}, 2'); a(f's_add_u32 s{S_N}, s{S_RB}, 4'); a(f's_add_u32 s{S_RB}, s{S_RB}, s{S_WAVE}')
        a(f's_cmp_eq_u32 s{S_ROLE}, 0'); a(f's_cselect_b32 s{S_TS}, s{S_T0}, 0')
        a(f's_sub_u32 s{S_N}, s{S_N}, s{S_TS}')
    own_params()
    a(f's_cmp_lg_u32 s{S_HASX}, 0'); a(f's_cselect_b32 s{S_N}, s{S_T0}, s{S_N}')
    a(f's_waitcnt vmcnt({nq_after})')
    spin_wait(a, S_FP)
    stamp(a, 8)
    phaseC_begin(a, 1)
    two(lambda: phaseB_epi_h(a, 8 if SPLIT else 7), lambda: phaseB_epi_h(a, 6))
    Lq = a.newlabel('QF')
    a(f's_cmp_eq_u32 s{S_PUBQ}, 0'); a(f's_cbranch_scc1 {Lq}')
    a('s_waitcnt vmcnt(12)')
    a('s_barrier')
    a(f's_lshl_b32 s{S_T}, s{S_PAIR}, 8'); a(f's_add_u32 s{S_T}, s{S_T}, {hex(WS_FLG + 0x30000)}')
    a(f'buffer_store_dword v{V_NONCE}, v{V_SIG}, {sr(S_WS)}, s{S_T} offen sc1')
    a.label(Lq)
    stamp(a, 5)
    a(f's_cmp_eq_u32 s{S_HASX}, 0'); a(f's_cbranch_scc1 {Lown2}')
    phaseC(a, False, rl, after_first_wait=lambda a: stamp(a, 6))
    stamp(a, 9)
    own_params()
    phaseC_begin(a, 1)
    publish_stores(a)
    a.label(Lown2)
    stamp(a, 10)
    t = S_T
    def afw(a):
        if OPT.get('pfd_c0'): a(flat(pfD(2)))
        if OPT.get('pfd_big', True): pfD_big(a)
    phaseC(a, True, rl, after_first_wait=afw)
    a.label('M_D_START')
    stamp(a, 11)
    phaseD_begin(a)
    finalize(a)
    stamp(a, 12)
    two(lambda: phaseD(a, 12), lambda: phaseD(a, 11))
    if OPT.get('fuse_r', True): phaseR(a, Lend)
    elif dbg:
        a('s_waitcnt vmcnt(0)')
        stamp(a, 13)
    a.label(Lend)
    a('s_endpgm')
    rare_subs(a, rl)
    a.label('M_CODE_END')
    kdesc(a, name, 512, 256, sgpr=102)
```

```python
import sys
from asmlib import *
import mega, k3
def build(path, dbg=False, plain=False, **opt):
    mega.OPT.update(opt)
    a = Asm()
    for l in """Fused single-launch kernel (generated by my own Python scheduler scripts), 256 workgroups x 4 waves, one per CU.
  phase A: K/V up-projection GEMM tile (256 keys x 256 cols) + LayerNorm of 8 rows, results handed off through d_ws
  phase B: Q projection + FFN1 chunk for the workgroup's 128 query rows (K/V stores drain underneath)
  phase C: causal flash attention (lazy-rescale online softmax with run-time check), long rows split between two workgroups
  phase D: out-projection + FFN2 chunk -> per-head partial sums
  phase R: cooperative reduction over heads + residual + bias
Hand-offs use write-through stores and flags tagged with a per-launch nonce published in d_debug.""".split('\n'):
        a.raw('; ' + l)
    if plain: a.raw('; @launch grid=(256,1,1) block=(256,1,1) lds=163840')
    else: a.raw(f'; @launch kernel=m_kernel grid=(256,1,1) block=(256,1,1) lds=163840')
    fuse = mega.OPT.get('fuse_r', True)
    if not fuse: a.raw(f'; @launch kernel=k3_kernel grid=(256,1,1) block=(448,1,1) lds=0')
    a.raw('.amdgcn_target "amdgcn-amd-amdhsa--gfx950"')
    mega.gen_mega(a, name=(NAME + '_kernel' if plain else 'm_kernel'), dbg=dbg)
    if not fuse: k3.gen_k3(a, dbg=dbg)
    al = mega.OPT.get('align', 0)
    if al:
        import align8
        a.L = align8.align(a.L, nop=al)
    open(path, 'w').write(compact(a.text()))
if __name__ == '__main__':
    build('full_dbg.s', dbg=True)
    build('full_list.s', dbg=False)
    build('cdna_kernels/' + NAME + '.s', dbg=False, plain=True)
```

```python
from asmlib import *
from layout import *
from sched import *
import struct

def f32(x): return hex(struct.unpack('<I', struct.pack('<f', x))[0])
MF = 'v_mfma_f32_16x16x32_bf16'
DBG = [False]
def KT_(): return OPT.get('kvtile', 32768)
def KH_(): return 64*KT_() + OPT.get('kvhpad', 0)
OPT = dict(kv_sc1=True, a_pf=0, tlb=False, cpf0=0, cpfs=8, kvs=2, vs=3, fsplit=True, codekb=144, align=3)

S_WS, S_CKV, S_W, S_WQ, S_W1, S_WO, S_W2, S_B1, S_XIN, S_DBG = 4, 8, 12, 16, 20, 24, 28, 32, 36, 40
S_WAVE, S_H, S_ROLE, S_I, S_OWN, S_EXT, S_T0, S_HASX, S_W4K, S_W2K, S_PAIR, S_QSC, S_THR = range(44, 57)
S_KVT, S_KT = S_ROLE, S_I
S_SOX, S_SOW, S_DX, S_RX, S_CNT = 57, 58, 59, 60, 61
S_XO, S_KVO = 71, 62
S_DL = 86
S_KO, S_VO, S_PB, S_PO, S_RB, S_TS, S_N = 57, 58, 59, 60, 62, 63, 64
S_DO, S_D2, S_DS, S_PRT = 57, 58, 59, 60
S_FKV = 65
S_FP = 70
S_PUBQ = 68
S_F0, S_ODD = 98, 99
S_KVS, S_VS = 100, 101
S_Q1 = 3
S_PC = 66
S_T = 72
S_RET = 84
S_MK = 86
S_ST = 94
PTR = 72
V_L16, V_SIG, V_NONCE, V_POLL = 4, 5, 6, 7
V_SIG16, V_DUM = 30, 31
V_H = 128
A_QX, A_H = 128, 192
V_QO = 128
CNT_KV, CNT_XN = 128, 192

def stamp(a, idx, dyn=None):
    if not DBG[0]: return
    L = a.newlabel('ST')
    a(f's_cmp_lg_u32 s{S_WAVE}, 0'); a(f's_cbranch_scc1 {L}')
    a(f's_memtime s[{S_ST}:{S_ST+1}]'); a(f's_memrealtime s[{S_ST+2}:{S_ST+3}]')
    a('s_waitcnt lgkmcnt(0)')
    a(f'v_mov_b32 v2, s{S_ST}'); a(f'v_mov_b32 v3, s{S_ST+2}')
    a(f's_lshl_b32 s{S_ST}, s2, 8'); a(f's_add_u32 s{S_ST}, s{S_ST}, {hex(WS_DBG + idx*8)}')
    if dyn is not None:
        a(f's_lshl_b32 s{S_ST+1}, s{dyn}, 3'); a(f's_add_u32 s{S_ST}, s{S_ST}, s{S_ST+1}')
    a(f'buffer_store_dwordx2 v[2:3], v{V_SIG}, {sr(S_WS)}, s{S_ST} offen')
    a('s_nop 1')
    a.label(L)

def code_pf(off, n, vt):
    g = []
    for i in range(n):
        g.append([f'v_lshlrev_b32 v{vt}, 7, v0', f'v_add_u32 v{vt}, {off + i*32768}, v{vt}',
                  f'v_min_u32 v{vt}, M_CODE_END-M_CODE_START-4, v{vt}',
                  f'global_load_dword v31, v{vt}, s[{S_PC}:{S_PC+1}]'])
    return g

def spin_wait(a, soff, mask=0xffff):
    t = S_T
    Lok = a.newlabel('WOK'); Ls = a.newlabel('WSP')
    a(f's_cmp_lg_u32 s{S_WAVE}, 0'); a(f's_cbranch_scc1 {Lok}')
    a(f's_mov_b32 s{t+1}, 0')
    a.label(Ls)
    a(f'v_cmp_eq_u32 vcc, v{V_POLL}, v{V_NONCE}')
    a(f's_and_b32 s{t}, vcc_lo, {hex(mask)}')
    a(f's_cmp_eq_u32 s{t}, {hex(mask)}'); a(f's_cbranch_scc1 {Lok}')
    a('s_sleep 8')
    a(poll_issue(soff))
    a('s_waitcnt vmcnt(0)')
    a(f's_add_u32 s{t+1}, s{t+1}, 1')
    a(f's_cmp_lt_u32 s{t+1}, 20000'); a(f's_cbranch_scc1 {Ls}')
    a.label(Lok)

def poll_issue(soff):
    return [f'buffer_load_dword v{V_POLL}, v{V_SIG16}, {sr(S_WS)}, s{soff} offen sc1']

def xn_flag_addr(dst, qb):
    return [f's_lshl_b32 s{dst}, s{qb}, 12', f's_add_u32 s{dst}, s{dst}, {hex(WS_FLG + 0x10000)}']

def row2_reduce(a, v, t, sd, sm):
    for mod in ['quad_perm:[1,0,3,2]', 'quad_perm:[2,3,0,1]', 'row_ror:8']:
        a('s_nop 1')
        a(f'v_add_f32 v{v}, v{v}, v{v} {mod} row_mask:0xf bank_mask:0xf')
    a('s_nop 1')
    for i in range(4): a(f'v_readlane_b32 s{sd+i}, v{v}, {16*i}')
    for i in range(4): a(f'v_readlane_b32 s{sd+4+i}, v{v}, {16*i+4}')
    a('s_nop 1')
    a(f'v_mov_b32 v{v}, s{sd}'); a(f'v_mov_b32 v{t}, s{sd+4}')
    for i in range(1, 4):
        a(f'v_add_f32 v{v}, s{sd+i}, v{v}'); a(f'v_add_f32 v{t}, s{sd+4+i}, v{t}')
    a(f'v_cndmask_b32 v{v}, v{v}, v{t}, s[{sm}:{sm+1}]')

def bf16_round(a, d, s):
    a(f'v_cvt_pk_bf16_f32 v{d}, v{s}, v{s}')
    a(f'v_and_b32 v{d}, 0xffff0000, v{d}')

def ln_rows(a, xr, f, t, sd, sm, out):
    a(f's_mov_b32 s{sm}, 0xf0f0f0f0'); a(f's_mov_b32 s{sm+1}, 0xf0f0f0f0')
    for i in range(8):
        a(f'v_lshlrev_b32 v{f+2*i}, 16, v{xr+i}')
        a(f'v_and_b32 v{f+2*i+1}, 0xffff0000, v{xr+i}')
    a(f'v_add_f32 v{t}, v{f}, v{f+1}')
    for i in range(2, 16): a(f'v_add_f32 v{t}, v{t}, v{f+i}')
    row2_reduce(a, t, t+3, sd, sm)
    a(f'v_mul_f32 v{t}, 0x3b124925, v{t}')
    a(f'v_mov_b32 v{t+1}, 0')
    for i in range(16):
        a(f'v_sub_f32 v{t+2}, v{f+i}, v{t}')
        a(f'v_fmac_f32 v{t+1}, v{t+2}, v{t+2}')
    a(f'v_cndmask_b32 v{t+1}, 0, v{t+1}, vcc')
    row2_reduce(a, t+1, t+3, sd, sm)
    a(f'v_mul_f32 v{t+1}, 0x3b124925, v{t+1}')
    bf16_round(a, t, t)
    bf16_round(a, t+1, t+1)
    a(f'v_add_f32 v{t+1}, 0x3727c5ac, v{t+1}')
    bf16_round(a, t+1, t+1)
    a(f'v_sqrt_f32 v{t+1}, v{t+1}')
    a('s_nop 0')
    bf16_round(a, t+1, t+1)
    a(f'v_rcp_f32 v{t+2}, v{t+1}')
    a('s_nop 0')
    a(f'v_fma_f32 v{t+3}, -v{t+1}, v{t+2}, 1.0')
    a(f'v_fmac_f32 v{t+2}, v{t+3}, v{t+2}')
    for i in range(16): a(f'v_sub_f32 v{f+i}, v{f+i}, v{t}')
    for i in range(8): a(f'v_cvt_pk_bf16_f32 v{out+i}, v{f+2*i}, v{f+2*i+1}')
    for i in range(8):
        a(f'v_lshlrev_b32 v{f+2*i}, 16, v{out+i}')
        a(f'v_and_b32 v{f+2*i+1}, 0xffff0000, v{out+i}')
    for i in range(16): a(f'v_mul_f32 v{f+i}, v{f+i}, v{t+2}')
    for i in range(8): a(f'v_cvt_pk_bf16_f32 v{out+i}, v{f+2*i}, v{f+2*i+1}')

WSLOT, NWS = 16384, 4
XBASE, XSLOT, NXS = 65536, 32768, 3
A_VX, A_VW, A_XAB, A_XA, A_WA = 8, 12, 16, 18, 20
AF = [dict(X=32, W=64), dict(X=96, W=128)]

def A_dma_w(wslot):
    g = [[f's_add_u32 m0, s{S_W4K}, {wslot*WSLOT}', f's_add_u32 s{S_SOW}, s{S_SOW}, {32*8192}'] + ([f's_and_b32 s{S_SOW}, s{S_SOW}, 0x7fffff'] if OPT.get('rot') else []) +
         [f'buffer_load_dwordx4 v{A_VW}, {sr(S_W)}, s{S_SOW} offen lds']]
    for i in range(1, 4):
        g.append([f'buffer_load_dwordx4 v{A_VW+i}, {sr(S_W)}, s{S_SOW} offen offset:{1024*i} lds'])
    return g

def A_dma_x(half):
    if half == 0:
        so = S_SOX
        g = [[f's_mov_b32 m0, s{S_DX}', f's_add_u32 s{S_SOX}, s{S_SOX}, 128'] + ([f's_and_b32 s{S_SOX}, s{S_SOX}, 2047'] if OPT.get('rot') else []) + [f'buffer_load_dwordx4 v{A_VX}, {sr(S_CKV)}, s{so} offen lds']]
    else:
        so = S_T + 1
        g = [[f's_add_u32 m0, s{S_DX}, 16384', f's_add_u32 s{so}, s{S_SOX}, {128*2048}',
              f'buffer_load_dwordx4 v{A_VX}, {sr(S_CKV)}, s{so} offen lds']]
    for i in range(1, 4):
        g.append([f'buffer_load_dwordx4 v{A_VX+i}, {sr(S_CKV)}, s{so} offen offset:{1024*i} lds'])
    if half == 1:
        g[-1] += [f's_add_u32 s{S_DX}, s{S_DX}, {XSLOT}',
                  f's_cmp_ge_u32 s{S_DX}, {XBASE+NXS*XSLOT}\ns_cselect_b32 s{S_T}, {NXS*XSLOT}, 0',
                  f's_sub_u32 s{S_DX}, s{S_DX}, s{S_T}']
    return g

def A_reads(u):
    f = AF[u & 1]; ks = u & 1; ws = u % NWS
    def wr(db): return [f'ds_read_b64_tr_b16 {vr(f["W"]+4*db+2*h,2)}, v{A_WA+db} offset:{ws*WSLOT+2048*h}' for h in range(2)]
    r = wr(0)
    for kb in range(8): r.append(f'ds_read_b128 {vr(f["X"]+4*kb)}, v{A_XA+ks} offset:{2048*kb}')
    for db in range(1, 8): r += wr(db)
    return r

def A_order(vtype):
    if vtype: return [(db, 2*tt+h) for db in range(8) for tt in range(4) for h in range(2)]
    return [(2*s_+h, kb) for s_ in range(4) for kb in range(8) for h in range(2)]

def A_kstep(u, vtype, dmaw, dmax, vm, last=False, extras=(), head=(), czero=False):
    out = list(head)
    if not last: out += [f's_waitcnt vmcnt({vm}) lgkmcnt(0)', 's_barrier']
    else: out += ['s_waitcnt lgkmcnt(0)']
    f = AF[u & 1]
    steps = []
    for i, (db, kb) in enumerate(A_order(vtype)):
        acc = ar(i*4, 4); w = vr(f['W']+4*db); x = vr(f['X']+4*kb)
        c = '0' if czero else acc
        steps.append(Step([f'{MF} {acc}, {x}, {w}, {c}' if vtype else f'{MF} {acc}, {w}, {x}, {c}']))
    sc = Sched(steps, LA=0, first_issued=0)
    d = []
    if dmaw: d += A_dma_w(u % NWS)
    if dmax: d += A_dma_x(0 if (u & 1) else 1)
    if d: sc.place(tag(d, f'A{u}'), 2, 58)
    if not last:
        r = []
        if (u & 1) == 1:
            r += [f's_add_u32 s{S_RX}, s{S_RX}, {XSLOT}', f's_cmp_ge_u32 s{S_RX}, {NXS*XSLOT}\ns_cselect_b32 s{S_RX}, 0, s{S_RX}']
            r += [f'v_add_u32 v{A_XA+i}, s{S_RX}, v{A_XAB+i}' for i in range(2)]
        sc.place(r + A_reads(u+1), 0, 44)
    for (items, lo, hi) in extras: sc.place(items, lo, hi)
    return out + sc.text(0, 63)

PEND = 32

def phaseA(a):
    t = 4
    S_ROW0, S_ROWO = 68, 69
    a(f's_lshl_b32 s{t}, s{S_KT}, 3'); a(f's_add_u32 s{t}, s{t}, s{S_WAVE}'); a(f's_lshl_b32 s{t}, s{t}, 16')
    a('v_lshrrev_b32 v2, 3, v1'); a('v_lshlrev_b32 v2, 11, v2')
    a('v_and_b32 v3, 7, v1'); a('v_lshrrev_b32 v200, 4, v1'); a('v_xor_b32 v3, v3, v200')
    a(f'v_add_u32 v2, s{t}, v2')
    for i in range(4):
        a(f'v_xor_b32 v201, {4*(i&1)}, v3'); a('v_lshl_add_u32 v201, v201, 4, v2')
        a(f'v_add_u32 v{A_VX+i}, {i*(8*2048-1024)}, v201')
    w_voffsets(a, A_VW, t)
    a(f's_mov_b32 s{S_SOX}, -128'); a(f's_mov_b32 s{S_SOW}, {-32*8192}')
    if OPT.get('rot'):
        kind, mul = OPT['rot']
        if kind == 'xcd': a(f's_and_b32 s{t}, s2, 7')
        elif kind == 'xcd2': a(f's_and_b32 s{t}, s2, 1')
        elif kind == 'xcd4': a(f's_and_b32 s{t}, s2, 3')
        elif kind == 'kt': a(f's_mov_b32 s{t}, s{S_KT}')
        elif kind == 'kt2': a(f's_and_b32 s{t}, s{S_KT}, 1')
        a(f's_mul_i32 s{t}, s{t}, {mul}')
        a(f's_lshl_b32 s{t+1}, s{t}, 7'); a(f's_add_u32 s{S_SOX}, s{S_SOX}, s{t+1}')
        a(f's_lshl_b32 s{t+1}, s{t}, 19'); a(f's_add_u32 s{S_SOW}, s{S_SOW}, s{t+1}')
    a(f's_add_u32 s{S_DX}, s{S_W4K}, {XBASE}')
    a(f's_lshl_b32 s{t}, s2, 3'); a(f's_lshl_b32 s{t+1}, s{S_WAVE}, 1'); a(f's_add_u32 s{S_ROW0}, s{t}, s{t+1}')
    a(f's_mul_i32 s{S_ROWO}, s{S_ROW0}, 896')
    a(f's_and_b32 s{t}, s{S_WAVE}, 1'); a(f's_lshr_b32 s{t+1}, s{S_WAVE}, 1')
    a(f's_lshl_b32 s{t+2}, s{t}, 14'); a(f's_add_u32 s{t+2}, s{t+2}, {XBASE}')
    a('v_and_b32 v201, 15, v1'); a('v_lshrrev_b32 v200, 4, v1'); a('v_lshrrev_b32 v2, 1, v201')
    for ks in range(2):
        a(f'v_add_u32 v3, {4*ks}, v200'); a('v_xor_b32 v3, v3, v2'); a('v_lshlrev_b32 v3, 4, v3')
        a('v_lshl_add_u32 v3, v201, 7, v3')
        a(f'v_add_u32 v{A_XAB+ks}, s{t+2}, v3'); a(f'v_mov_b32 v{A_XA+ks}, v{A_XAB+ks}')
    a('v_bfe_u32 v3, v1, 2, 2')
    a('v_lshlrev_b32 v202, 12, v200'); a('v_lshl_add_u32 v202, v3, 9, v202')
    a('v_and_b32 v2, 3, v1'); a('v_lshl_add_u32 v202, v2, 3, v202')
    a(f's_lshl_b32 s{t+2}, s{t+1}, 8'); a(f'v_add_u32 v202, s{t+2}, v202')
    a('v_and_b32 v2, 1, v200'); a('v_lshl_or_b32 v3, v2, 2, v3')
    for db in range(8):
        a(f'v_xor_b32 v2, {db}, v3'); a(f'v_lshl_add_u32 v{A_WA+db}, v2, 5, v202')
    a(f's_mov_b32 s{S_RX}, 0')
    a('v_cmp_gt_u32 vcc, 56, v1')
    a('v_lshrrev_b32 v200, 3, v1'); a('v_bfe_u32 v201, v1, 2, 1'); a('v_and_b32 v202, 3, v1'); a('v_lshlrev_b32 v202, 4, v202')
    a('v_mul_u32_u24 v2, 896, v201'); a('v_lshl_add_u32 v2, v200, 6, v2'); a('v_add_u32 v2, v2, v202')
    a('v_mov_b32 v3, 0x7fffff00')
    a('v_cndmask_b32 v192, v3, v2, vcc')
    a('v_lshlrev_b32 v2, 10, v200'); a('v_lshl_add_u32 v2, v201, 6, v2'); a('v_add_u32 v2, v2, v202')
    a('v_cndmask_b32 v193, v3, v2, vcc')
    a('s_waitcnt lgkmcnt(0)')
    build_srds(a)
    t = S_T
    if OPT.get('fsplit', False):
        a(f's_lshr_b32 s{t}, s{S_H}, 2'); a(f's_mul_i32 s{S_F0}, s{t}, 448')
        a(f's_and_b32 s{t}, s{S_H}, 3'); a(f's_lshl_b32 s{t+1}, s{t}, 7'); a(f's_add_u32 s{S_F0}, s{S_F0}, s{t+1}')
        a(f's_cmp_eq_u32 s{t}, 3'); a(f's_cselect_b32 s{t+1}, 32, 0'); a(f's_sub_u32 s{S_F0}, s{S_F0}, s{t+1}')
        a(f's_lshr_b32 s{S_ODD}, s{t}, 1')
    else:
        a(f's_mul_i32 s{S_F0}, s{S_H}, 112'); a(f's_mov_b32 s{S_ODD}, 0')
    Ln = a.newlabel('NON')
    a('s_cmp_lg_u32 s2, 0'); a(f's_cbranch_scc1 {Ln}')
    a(f's_memrealtime s[{t}:{t+1}]'); a('s_waitcnt lgkmcnt(0)')
    a(f's_or_b32 s{t+2}, s{t}, 1'); a(f'v_mov_b32 v2, s{t+2}')
    a(f'buffer_store_dword v2, v{V_SIG}, {sr(S_DBG)}, 0 offen sc1')
    a.label(Ln)
    stamp(a, 0)
    pro = flat(tag(A_dma_w(0) + A_dma_x(0) + A_dma_x(1), 'G0') + tag(A_dma_w(1), 'G1') + tag(A_dma_x(0) + A_dma_w(2) + A_dma_x(1), 'G2'))
    pro += [f'buffer_load_dwordx4 v[160:163], v192, {sr(S_XIN)}, s{S_ROWO} offen ;@XL',
            f'buffer_load_dwordx4 v[164:167], v192, {sr(S_XIN)}, s{S_ROWO} offen offset:448 ;@XL']
    pro += ['s_waitcnt vmcnt(@G0)', 's_barrier'] + A_reads(0)
    a(resolve_vm(pro))
    stamp(a, 1)
    if DBG[0]:
        a(f's_getreg_b32 s{S_ST}, hwreg(HW_REG_XCC_ID)'); a(f'v_mov_b32 v2, s{S_ST}'); a(f'v_mov_b32 v3, s{S_ST}')
        a(f's_lshl_b32 s{S_ST}, s2, 8'); a(f's_add_u32 s{S_ST}, s{S_ST}, {hex(WS_DBG + 19*8)}')
        a(f'buffer_store_dwordx2 v[2:3], v{V_SIG}, {sr(S_WS)}, s{S_ST} offen')
    def cap(fn):
        x = Asm(); fn(x); return [l.strip() for l in x.L]
    u_ = t + 4
    ln = ['s_waitcnt vmcnt(@XL)'] + cap(lambda x: ln_rows(x, 160, 168, 184, S_MK, S_RET, 208))
    ln += [f's_lshr_b32 s{u_}, s{S_ROW0}, 4', f's_mul_i32 s{u_}, s{u_}, 14*1024', f's_and_b32 s{u_+1}, s{S_ROW0}, 15', f's_lshl_b32 s{u_+1}, s{u_+1}, 6',
           f's_add_u32 s{u_}, s{u_}, s{u_+1}', f's_add_u32 s{u_}, s{u_}, {hex(WS_XN)}', f's_add_u32 s{u_+1}, s{u_}, 7168',
           f'buffer_store_dwordx4 v[208:211], v193, {sr(S_WS)}, s{u_} offen sc1',
           f'buffer_store_dwordx4 v[212:215], v193, {sr(S_WS)}, s{u_+1} offen sc1']
    ln1 = ln[:75]; ln2 = ln[75:]
    bs = cap(lambda x: B_setup(x, S_T + 8))
    Lv = a.newlabel('AV'); Lj = a.newlabel('AJ')
    a(f's_cmp_eq_u32 s{S_KVT}, 1'); a(f's_cbranch_scc1 {Lv}')
    pf = pfB()
    for vtype in range(2):
        if vtype: a.label(Lv)
        first = []
        first += A_kstep(0, vtype, False, False, '@G1', czero=True, extras=[(tag(A_dma_w(3) + A_dma_x(0), 'G3'), 24, 62), (bs, 0, 40)])
        first += A_kstep(1, vtype, False, False, '@G2', extras=[(tag(A_dma_w(0) + A_dma_x(1), 'G4') + tag(A_dma_w(1), 'G5'), 2, 60), (ln1, 4, 63)])
        first += A_kstep(2, vtype, False, False, '@G3', extras=[(flat(A_dma_x(0) + A_dma_w(2) + A_dma_x(1)), 2, 60), (ln2[:75], 0, 63)])
        first += A_kstep(3, vtype, True, True, '@G4', extras=[(ln2[75:], 0, 45)])
        r = resolve_vm(pro + ['MARK'] + first)
        a(r[r.index('MARK')+1:])
        if OPT.get('astamp'): stamp(a, 20)
        a(f's_mov_b32 s{S_CNT}, 1')
        Ll = a.newlabel('AL'); a.label(Ll)
        for u in range(4): a(resolve_vm(A_kstep(u, vtype, True, True, 16)))
        Lm1 = a.newlabel('AM'); Lm2 = a.newlabel('AM'); Lm3 = a.newlabel('AM')
        if OPT.get('astamp'): stamp(a, 20, S_CNT)
        a(f's_add_u32 s{S_CNT}, s{S_CNT}, 1')
        a(f's_cmp_lg_u32 s{S_WAVE}, 0'); a(f's_cbranch_scc1 {Lm2}')
        a(f's_cmp_lg_u32 s{S_CNT}, 2'); a(f's_cbranch_scc1 {Lm1}')
        a(f'v_mov_b32 v2, 0')
        a(f'buffer_load_dword v{V_NONCE}, v2, {sr(S_DBG)}, 0 offen' + (' sc1' if OPT.get('nonce_sc1') else ''))
        a.label(Lm1)
        a(f's_cmp_lg_u32 s{S_CNT}, 4'); a(f's_cbranch_scc1 {Lm2}')
        a(f's_mov_b32 s{t+5}, 0')
        a.label(Lm3)
        a(f'v_readfirstlane_b32 s{t+4}, v{V_NONCE}')
        Lm4 = a.newlabel('AM')
        a(f's_cmp_lg_u32 s{t+4}, 0'); a(f's_cbranch_scc1 {Lm4}')
        a('s_sleep 8'); a(f'v_mov_b32 v2, 0')
        a(f'buffer_load_dword v{V_NONCE}, v2, {sr(S_DBG)}, 0 offen sc1')
        a('s_waitcnt vmcnt(0)')
        a(f's_add_u32 s{t+5}, s{t+5}, 1'); a(f's_cmp_lt_u32 s{t+5}, 20000'); a(f's_cbranch_scc1 {Lm3}')
        a.label(Lm4)
        a(f's_lshr_b32 s{t+4}, s2, 4'); a(xn_flag_addr(t+4, t+4))
        a(f's_and_b32 s{t+5}, s2, 15'); a(f's_lshl_b32 s{t+5}, s{t+5}, 2'); a(f's_add_u32 s{t+4}, s{t+4}, s{t+5}')
        a(f'buffer_store_dword v{V_NONCE}, v{V_SIG}, {sr(S_WS)}, s{t+4} offen sc1')
        a(f's_cmp_lg_u32 s{S_H}, 0'); a(f's_cbranch_scc1 {Lm2}')
        a(f's_lshl_b32 s{t+4}, s{S_OWN}, 12'); a(f's_add_u32 s{t+4}, s{t+4}, {hex(WS_FLG + 0x50000)}')
        a('v_mov_b32 v2, 0')
        a(f'buffer_store_dword v2, v{V_SIG}, {sr(S_WS)}, s{t+4} offen sc1')
        a.label(Lm2)
        a(f's_cmp_lt_u32 s{S_CNT}, 6'); a(f's_cbranch_scc1 {Ll}')
        cpf = cpfB()
        kvs = [f's_mul_i32 s{S_KVO}, s{S_H}, {KH_()}', f's_add_u32 s{S_KVO}, s{S_KVO}, {hex(WS_KV)}', f's_mul_i32 s{t+4}, s{S_KT}, {8*KT_()}', f's_add_u32 s{S_KVO}, s{S_KVO}, s{t+4}',
               f's_and_b32 s{t+4}, s{S_WAVE}, 1', f's_mul_i32 s{t+4}, s{t+4}, {4*KT_()}', f's_add_u32 s{S_KVO}, s{S_KVO}, s{t+4}',
               f's_lshr_b32 s{t+4}, s{S_WAVE}, 1', f's_lshl_b32 s{t+4}, s{t+4}, {13 if vtype else 12}', f's_add_u32 s{S_KVO}, s{S_KVO}, s{t+4}']
        if vtype: kvs.append(f's_add_u32 s{S_KVO}, s{S_KVO}, 16384')
        w_ = [KT_(), 2*KT_(), 1024, 2048] if vtype else [8192, KT_(), 2*KT_(), 1024]
        for b in range(4): kvs.append(f's_mov_b32 s{S_DL+b}, {w_[b] - sum(w_[:b])}')
        xo = [f's_lshl_b32 s{t+4}, s{S_OWN}, 3', f's_add_u32 s{t+4}, s{t+4}, s{S_WAVE}', f's_mul_i32 s{t+4}, s{t+4}, 14336',
              f's_add_u32 s{S_XO}, s{t+4}, {hex(WS_XN)}']
        bias = [f's_lshl_b32 s{t+4}, s{S_F0}, 1', 'v_lshrrev_b32 v200, 4, v1', 'v_lshlrev_b32 v200, 3, v200']
        bias += [f'buffer_load_dwordx2 {vr(B_TMP+2*fb,2)}, v200, {sr(S_B1)}, s{t+4} offen offset:{32*fb} ;@BIAS' for fb in range(8)]
        sw = Asm(); sw.nlab = a.nlab; spin_wait(sw, S_FP); a.nlab = sw.nlab
        chk = ['s_waitcnt vmcnt(@POLL)'] + [x.strip() + (' ;!' if x.strip().startswith('buffer_') else '') for x in sw.L]
        NW = OPT.get('nweave', 8); BH = OPT.get('bh', 0)
        xpf = [['v_lshlrev_b32 v200, 7, v1', f's_add_u32 s{t+4}, s{S_XO}, 4096', f'buffer_load_dword v31, v200, {sr(S_WS)}, s{t+4} offen'],
               [f's_add_u32 s{t+5}, s{t+4}, s{t+6}', f'buffer_load_dword v31, v200, {sr(S_WS)}, s{t+5} offen'],
               ['v_and_b32 v201, 15, v1', 'v_lshlrev_b32 v201, 7, v201', f'v_mov_b32 v202, s{t+6}', 'v_cmp_gt_u32 vcc, 16, v1', f's_add_u32 s{t+4}, s{t+4}, 8192',
                's_nop 0', 'v_cndmask_b32 v202, v202, 0, vcc', 'v_add_u32 v201, v201, v202', f'buffer_load_dword v31, v201, {sr(S_WS)}, s{t+4} offen']]
        ex = {25: [(kvs + xo, 46, 62)],
              26: [(xn_flag_addr(S_FP, S_OWN) + [poll_issue(S_FP)[0] + ' ;@POLL'], 5, 20)],
              28: [([f's_mul_i32 s{t+6}, s{S_Q1}, 14336', f'v_and_b32 v{B_VX0}, 15, v1', f'v_lshlrev_b32 v{B_VX0}, 6, v{B_VX0}', f'v_and_b32 v{B_VX1}, 48, v1',
                   f'v_add_u32 v{B_VX0}, v{B_VX0}, v{B_VX1}', f'v_add_u32 v{B_VX1}, s{t+6}, v{B_VX0}'] + flat(pf + cpf), 0, 24)] + ([(B_dma_w(0, True), 32, 62)] if BH == 0 else []),
              29: [(tag(B_dma_xp(0), 'B0') + [bias] + B_dma(1, True), 0, 60)],
              30: [(B_dma(2, True) + (xpf if OPT.get('xpf', False) else []), 0, 60)],
              31: [([x for k in range(NW) for x in pack_store(k, 208 + 8*(k & 1), True)], 10, 63)]}
        tail = []
        for k in (21, 22, 23): tail += [f'buffer_dummy ;@A{k}']*8
        tail.append('MARK')
        for u in range(24, 32):
            tail += A_kstep(u, vtype, u <= 27, u <= 26, f'@A{min(u-3, 27)}', last=(u == 31), extras=ex.get(u, ()), head=(chk if u == 29 else ()))
            if OPT.get('astamp') and u in (27, 29): tail.append(f'STAMP{u}')
        tail.append('MARK2')
        hist = tail
        r = resolve_vm(tail)
        for x in r[r.index('MARK')+1:r.index('MARK2')]:
            if x.endswith(':'): a.raw(x)
            elif x.startswith('STAMP'): stamp(a, 26 if x == 'STAMP27' else 27)
            else: a(x)
        if vtype == 0: a(f's_branch {Lj}')
    a.label(Lj)
    stamp(a, 2)
    return hist

def pfB():
    t = S_T
    return [[f's_lshr_b32 s{t+4}, s2, 4', f's_mul_i32 s{t+4}, s{t+4}, 28', f's_mul_i32 s{t+5}, s{S_WAVE}, 7', f's_add_u32 s{t+4}, s{t+4}, s{t+5}'],
          ['v_lshrrev_b32 v200, 2, v1', 'v_min_u32 v200, 6, v200', f'v_add_u32 v200, s{t+4}, v200', 'v_and_b32 v201, 3, v1'],
          ['v_lshlrev_b32 v201, 7, v201', 'v_lshl_add_u32 v202, v200, 13, v201', f's_lshl_b32 s{t+4}, s{S_H}, 9',
           f'buffer_load_dword v31, v202, {sr(S_WQ)}, s{t+4} offen'],
          ['v_mul_u32_u24 v202, 3584, v200', 'v_add_u32 v202, v202, v201', f's_lshl_b32 s{t+4}, s{S_F0}, 1', f's_and_b32 s{t+4}, s{t+4}, 0xffffff80',
           f'buffer_load_dword v31, v202, {sr(S_W1)}, s{t+4} offen']]
def cpfB():
    t = S_T
    CPN, CP0 = (36, 0) if OPT.get('fsplit', False) else (20, 32768)
    return [[f's_lshr_b32 s{t+4}, s2, 3', f's_mul_i32 s{t+4}, s{t+4}, {CPN*128}', f's_add_u32 s{t+4}, s{t+4}, {CP0}',
             f'v_min_u32 v200, {CPN-1}, v1', 'v_lshlrev_b32 v200, 7, v200', f'v_add_u32 v200, s{t+4}, v200',
             'v_min_u32 v200, M_CODE_END-M_CODE_START-4, v200', f'global_load_dword v31, v200, s[{S_PC}:{S_PC+1}]']]

def pfD_big(a):
    t = S_T
    L = a.newlabel('PD'); L7 = a.newlabel('PD'); La = a.newlabel('PD')
    a(f's_cmp_lt_u32 s{S_I}, 6'); a(f's_cbranch_scc1 {L}')
    a('v_lshlrev_b32 v2, 7, v0')
    a(f's_mul_i32 s{t+1}, s{S_H}, {256*896}'); a(f's_mul_i32 s{t+2}, s{S_F0}, 896')
    def wo(u): a(f's_add_u32 s{t}, s{t+1}, {u*32768}'); a(f'buffer_load_dword v31, v2, {sr(S_WO)}, s{t} offen')
    def w2(off): a(f's_add_u32 s{t}, s{t+2}, {off}'); a(f'buffer_load_dword v31, v2, {sr(S_W2)}, s{t} offen')
    n6 = OPT.get('pf_n6', 6)
    a(f's_cmp_eq_u32 s{S_ROLE}, 0'); a(f's_cbranch_scc1 {La}')
    a(f's_cmp_eq_u32 s{S_I}, 7'); a(f's_cbranch_scc1 {L7}')
    for u in range(n6): wo(u)
    a(f's_branch {L}')
    a.label(L7)
    for u in range(n6, 7): wo(u)
    for k in range(3): w2(k*32768)
    a(f's_branch {L}')
    a.label(La)
    a(f's_cmp_eq_u32 s{S_I}, 6'); a(f's_cbranch_scc1 {L}')
    a('v_min_u32 v3, 16256, v2')
    a(f's_add_u32 s{t}, s{t+2}, {3*32768}'); a(f'buffer_load_dword v31, v3, {sr(S_W2)}, s{t} offen')
    a('v_add_u32 v2, M_D_START-M_CODE_START-10240, v2')
    a(f's_mul_i32 s{t}, s{S_ODD}, 13056'); a(f's_cmp_ge_u32 s{S_WAVE}, 2'); a(f's_cselect_b32 s{t}, s{t}, 0'); a(f'v_add_u32 v2, s{t}, v2')
    a('v_min_u32 v2, M_CODE_END-M_CODE_START-4, v2')
    a(f'global_load_dword v31, v2, s[{S_PC}:{S_PC+1}]')
    a.label(L)

def pfD(v, code=True):
    t = S_T
    g = [[f's_lshr_b32 s{t+9}, s2, 4', f's_lshl_b32 s{t+9}, s{t+9}, 2', f's_add_u32 s{t+9}, s{t+9}, s{S_WAVE}',
          f's_lshl_b32 s{t+10}, s{S_H}, 6', f's_add_u32 s{t+10}, s{t+10}, s{t+9}', f's_mul_i32 s{t+10}, s{t+10}, {4*896}'],
         [f'v_lshlrev_b32 v{v}, 7, v1', f'v_min_u32 v{v}, 3580, v{v}', f'buffer_load_dword v31, v{v}, {sr(S_WO)}, s{t+10} offen'],
         [f's_mul_i32 s{t+10}, s{S_H}, {112*896}', f's_mul_i32 s{t+11}, s{t+9}, {2*896}', f's_add_u32 s{t+10}, s{t+10}, s{t+11}',
          f'v_min_u32 v{v}, 1788, v{v}', f'buffer_load_dword v31, v{v}, {sr(S_W2)}, s{t+10} offen']]
    if code:
        g += [[f's_lshl_b32 s{t+9}, s{t+9}, 9',
          f'v_min_u32 v{v}, 384, v{v}', f'v_add_u32 v{v}, s{t+9}, v{v}', f'v_add_u32 v{v}, M_D_START-M_CODE_START-10240, v{v}',
          f'v_min_u32 v{v}, M_CODE_END-M_CODE_START-4, v{v}', f'global_load_dword v31, v{v}, s[{S_PC}:{S_PC+1}]']]
    return g

def pack_store(k, tb, store):
    ops = [f'v_accvgpr_read_b32 v{tb+e}, a{8*k+e}' for e in range(8)]
    if OPT.get('kvs', 0): ops += [f'v_mul_f32 v{tb+e}, s{S_KVS}, v{tb+e}' for e in range(8)]
    ops += [f'v_cvt_pk_bf16_f32 v{PEND+4*k+e}, v{tb+2*e}, v{tb+2*e+1}' for e in range(4)]
    if store:
        st = kv_store(k)
        ops = st[:-1] + ops + st[-1:]
    return ops

def kv_store(k):
    ops = []
    if k > 0:
        b = min((k & -k).bit_length() - 1, 3)
        ops.append(f's_add_u32 s{S_KVO}, s{S_KVO}, s{S_DL+b}')
    ops.append(f'buffer_store_dwordx4 {vr(PEND+4*k)}, v{V_L16}, {sr(S_WS)}, s{S_KVO} offen {OPT.get("kvf", "sc1")} ;@KVST')
    return ops

def w_voffsets(a, dst, t):
    a(f's_lshl_b32 s{t}, s{S_WAVE}, 16'); a(f's_lshl_b32 s{t+1}, s{S_H}, 9'); a(f's_add_u32 s{t}, s{t}, s{t+1}')
    a(f's_and_b32 s{t+1}, s{S_WAVE}, 1'); a(f's_lshl_b32 s{t+1}, s{t+1}, 2')
    a('v_lshrrev_b32 v200, 5, v1'); a('v_and_b32 v201, 31, v1'); a('v_lshrrev_b32 v202, 1, v201')
    a(f'v_xor_b32 v202, s{t+1}, v202'); a('v_and_b32 v203, 1, v201')
    for i in range(4):
        a(f'v_add_u32 v2, {(2*i)&3}, v200'); a('v_xor_b32 v2, v202, v2'); a('v_lshl_add_u32 v2, v2, 1, v203')
        a('v_lshlrev_b32 v2, 4, v2'); a('v_lshl_add_u32 v2, v200, 13, v2')
        a(f'v_add_u32 v2, {2*i*8192-1024*i}, v2'); a(f'v_add_u32 v{dst+i}, s{t}, v2')

B_VW, B_V1, B_VX1, B_VX0 = A_VW, 28, 11, 10
B_WA, B_1A = 240, 248
B_XF = 160
B_WF, B_NB = 192, 8
B_TMP = 224
B_PT = 16
B_QS = 8
W1BASE = 98304

def B_setup(a, t):
    a(f's_and_b32 s{t+1}, s{S_WAVE}, 1'); a(f's_lshl_b32 s{t+1}, s{t+1}, 2')
    a(f's_mul_i32 s{t}, s{S_WAVE}, {8*3584}'); a(f's_lshl_b32 s{t+2}, s{S_F0}, 1'); a(f's_add_u32 s{t}, s{t}, s{t+2}')
    a('v_lshrrev_b32 v200, 4, v1'); a('v_and_b32 v201, 15, v1'); a('v_lshrrev_b32 v202, 1, v201')
    a(f'v_xor_b32 v202, s{t+1}, v202'); a('v_xor_b32 v202, v200, v202'); a('v_and_b32 v203, 1, v201')
    a('v_lshl_add_u32 v2, v202, 1, v203'); a('v_lshlrev_b32 v2, 4, v2')
    a('v_mul_u32_u24 v3, 3584, v200'); a('v_add_u32 v2, v2, v3')
    a(f'v_add_u32 v{B_V1}, s{t}, v2'); a(f'v_add_u32 v{B_V1+1}, {4*3584-1024}, v{B_V1}')
    a(f's_lshl_b32 s{t}, s{S_WAVE}, 1'); a(f's_sub_u32 s{S_Q1}, 7, s{t}');
    a('v_bfe_u32 v201, v1, 2, 2')
    a('v_lshl_add_u32 v202, v200, 3, v201')
    a('v_and_b32 v203, 3, v1'); a('v_lshlrev_b32 v203, 3, v203')
    a('v_and_b32 v2, 1, v200'); a('v_lshl_or_b32 v201, v2, 2, v201')
    a('v_lshl_add_u32 v204, v202, 9, v203')
    a('v_lshl_add_u32 v205, v202, 8, v203'); a(f'v_add_u32 v205, {W1BASE}, v205')
    for d in range(8):
        a(f'v_xor_b32 v2, {d}, v201')
        a(f'v_lshl_add_u32 v{B_WA+d}, v2, 5, v204')
        a(f'v_lshl_add_u32 v{B_1A+d}, v2, 5, v205')

def B_dma_w(u, ffn):
    sl = u % 4; t = S_T + 2
    g = [[f's_add_u32 m0, s{S_W4K}, {sl*16384}', f's_mov_b32 s{t}, {u*32*8192}',
          f'buffer_load_dwordx4 v{B_VW}, {sr(S_WQ)}, s{t} offen lds']]
    for i in range(1, 4): g.append([f'buffer_load_dwordx4 v{B_VW+i}, {sr(S_WQ)}, s{t} offen offset:{1024*i} lds'])
    if ffn:
        g.append([f's_add_u32 m0, s{S_W2K}, {W1BASE+(u%8)*8192}', f's_mov_b32 s{t}, {u*32*3584}',
                  f'buffer_load_dwordx4 v{B_V1}, {sr(S_W1)}, s{t} offen lds'])
        g.append([f'buffer_load_dwordx4 v{B_V1+1}, {sr(S_W1)}, s{t} offen offset:1024 lds'])
    return tag(g, f'B{u}')

def xr(u):
    return B_XF + u*8 if u < 4 else PEND + (u-4)*8
def B_dma_xp(p):
    g = []
    t = S_T + 3
    g.append([f's_add_u32 s{t}, s{S_XO}, {2*p*1024}'])
    for k in range(2):
        for qb, v in ((0, B_VX0), (1, B_VX1)):
            g.append([f'buffer_load_dwordx4 {vr(xr(2*p+k)+4*qb)}, v{v}, {sr(S_WS)}, s{t} offen offset:{k*1024} sc1'])
    return g

def B_dma(u, ffn):
    return (B_dma_xp((u+1)//2) if (u & 1) and (u+1)//2 <= 6 else []) + B_dma_w(u, ffn)

def B_head(ffn):
    h = []
    for u in range(3): h += flat(B_dma(u, ffn))
    return h

def phaseB_begin_ext(a):
    t = S_T
    spin_wait(a, S_FP)
    a(f's_lshl_b32 s{t}, s{S_EXT}, 2'); a(f's_add_u32 s{t}, s{t}, s{S_WAVE}'); a(f's_mul_i32 s{t}, s{t}, {2*14336}')
    a(f's_add_u32 s{S_XO}, s{t}, {hex(WS_XN)}')
    a('s_barrier')
    a(resolve_vm(B_head(False)))

def q_epi_ops():
    t = S_T + 8
    ops = [f's_lshl_b32 s{t}, s{S_PAIR}, 16', f's_lshl_b32 s{t+1}, s{S_WAVE}, 14', f's_add_u32 s{t}, s{t}, s{t+1}', f's_add_u32 s{t}, s{t}, {hex(WS_QX)}',
           f's_sub_u32 s{S_PUBQ}, s{S_T0}, s{S_HASX}', f's_cmp_eq_u32 s{S_PUBQ}, 0\ns_cselect_b32 s{t}, 0x70000000, s{t}',
           f'v_mov_b32 v{B_QS}, s{S_QSC}', f'v_mov_b32 v{B_QS+1}, s{S_QSC}']
    fr = []
    k = 0
    for s in range(8):
        for qb in range(2):
            tb = V_QO + (s*2+qb)*4; tm = B_TMP + 8*(k & 1); o = []
            if k % 4 == 0 and k: o.append(f's_add_u32 s{t}, s{t}, 4096')
            for half in range(2):
                src = ((2*s+half)*2+qb)*4
                o += [f'v_accvgpr_read_b32 v{tm+4*half+e}, a{src+e}' for e in range(4)]
            if k < OPT.get('nqw', 5) and OPT.get('qmul', True): o += [f'v_mul_f32 v{tm+e}, s{S_QSC}, v{tm+e}' for e in range(8)]
            else: o += [f'v_pk_mul_f32 {vr(tm+e,2)}, {vr(tm+e,2)}, {vr(B_QS,2)}' for e in range(0, 8, 2)]
            o += [f'v_cvt_pk_bf16_f32 v{tb+e}, v{tm+2*e}, v{tm+2*e+1}' for e in range(4)]
            o.append(f'buffer_store_dwordx4 {vr(tb)}, v{V_L16}, {sr(S_WS)}, s{t} offen offset:{1024*(k%4)} sc1')
            fr.append(o); k += 1
    return ops, fr

def phaseB_main(a, ffn, hist, nfb):
    NW = OPT.get('nweave', 8); NL = 16 + nfb
    DF = OPT.get('b_defer', True)
    NE = 16 if DF else NL
    pre = ['s_nop 7']
    nst_pre = OPT.get('nst_pre', 6)
    nsd = NW
    for k in range(NW, NE):
        pre += pack_store(k, 208 + 8*(k & 1), False)
        if ((k - NW) % 2 == 1 or DF) and nsd < NW + nst_pre: pre += kv_store(nsd); nsd += 1
    bias = ['s_waitcnt vmcnt(@BIAS)']
    for fb in range(nfb):
        for k in range(2):
            bias += [f'v_lshlrev_b32 v2, 16, v{B_TMP+2*fb+k}', f'v_and_b32 v3, 0xffff0000, v{B_TMP+2*fb+k}']
            for qb in range(2):
                bias += [f'v_accvgpr_write_b32 a{128+(fb*2+qb)*4+2*k}, v2', f'v_accvgpr_write_b32 a{128+(fb*2+qb)*4+2*k+1}, v3']
    if not DF: pre += bias
    pre += ['s_waitcnt vmcnt(@B0)', 's_barrier', 'STAMP']
    if DF:
        D0 = 14 - OPT.get('defn', 4); NI = OPT.get('defi', 2)
        order = [(u, 'Q') for u in range(NI)] + [(u, 'F') for u in range(NI)] + [(u, p) for u in range(NI, D0) for p in 'QF'] + \
                [(u, 'Q') for u in range(D0, 14)] + [(u, 'F') for u in range(D0, 14)]
    else: order = [(u, p) for u in range(14) for p in 'QF']
    steps = []; first = {}; pos = {}
    for (u, part) in order:
        sl = u % 4
        first.setdefault(u, len(steps)); pos[(u, part)] = len(steps)
        for f in (range(16) if part == 'Q' else range(16, 16+nfb)):
            buf = B_WF + (len(steps) % B_NB)*4
            if f < 16:
                rd = [f'ds_read_b64_tr_b16 {vr(buf+2*h,2)}, v{B_WA+(f&7)} offset:{sl*16384+2048*h+256*(f>>3)}' for h in range(2)]
                acc = f*8
            else:
                rd = [f'ds_read_b64_tr_b16 {vr(buf+2*h,2)}, v{B_1A+f-16} offset:{(u%8)*8192+1024*h}' for h in range(2)]
                acc = 128 + (f-16)*8
            mf = []
            for qb in range(2):
                c = '0' if (u == 0 and f < 16) else ar(acc+4*qb)
                mf.append(f'{MF} {ar(acc+4*qb)}, {vr(buf)}, {vr(xr(u)+4*qb)}, {c}')
            steps.append(Step(mf, rd)); steps[-1].u = u; steps[-1].part = part
    LA = OPT.get('bd_la', 6)
    bp = {}
    for u in range(13):
        bp[u] = first[u+1] - LA - 1
        steps[bp[u]].pre += [f's_waitcnt vmcnt(@B{u+1})', 's_barrier']
    for st in steps:
        if st.u > 0: st.gate = bp[st.u-1]
    for u in range(1, 11):
        assert max(i for i, st in enumerate(steps) if st.u == u-1 and st.part == 'Q') < bp[u], u
        if u >= 5: assert max(i for i, st in enumerate(steps) if st.u == u-5 and st.part == 'F') < bp[u], u
    SIGU = OPT.get('sigu', 10)
    steps[bp[SIGU]].pre.insert(0, 's_waitcnt vmcnt(@KVST)')
    sc = Sched(steps, LA=LA, wait_group=OPT.get('bd_wg', 2))
    sc.place(B_dma(3, ffn), 0, min(bp[1]-2, 20))
    for u in range(1, 11):
        sc.place(B_dma(u+3, ffn), bp[u], min(bp[u+1]-2, bp[u]+OPT.get('b_dw', 30)))
    if DF:
        e_ = []
        for k in range(NE, NL): e_ += pack_store(k, B_PT, False)
        sc.place(e_ + bias, 0, pos[(0, 'F')] - 3)
    st_ = []
    for k in range(nsd, 32):
        st_ += kv_store(k) if k < NL else pack_store(k, B_PT, True)
    sc.place(st_, pos[(0, 'F')] - (14 if DF else 16), bp[OPT.get('st_end', 7)])
    sc.place([[f's_lshr_b32 s{S_T+7}, s2, 4', f's_lshl_b32 s{S_T+7}, s{S_T+7}, 2', f's_add_u32 s{S_T+7}, s{S_T+7}, s{S_FKV}',
               f'buffer_store_dword v{V_NONCE}, v{V_SIG}, {sr(S_WS)}, s{S_T+7} offen sc1']], bp[SIGU], bp[SIGU]+3)
    qs, qf = q_epi_ops()
    NQ = OPT.get('nqw', 5) if DF else 0
    pl = [f's_mov_b32 s{S_FP}, s{S_FKV}']
    sc.place(pl + qs, bp[12], bp[12]+6)
    if NQ: sc.place(flat(qf[:NQ]), pos[(13, 'Q')] + 8, len(steps)-1)
    print('phaseB overflow', sc.overflow(0, len(steps)-1))
    tx = []
    cuts = [0] + [first[u] for u in (2, 4, 6, 8, 10, 12)] + [pos[(14-OPT.get('defn', 4), 'F')] if DF else len(steps)-1, len(steps)]
    for i in range(len(cuts)-1):
        tx += sc.text(cuts[i], cuts[i+1]-1)
        if OPT.get('bstamp') and i < len(cuts)-2: tx.append(f'STAMP{20+i}')
    body = resolve_vm(hist + ['MARKB'] + pre + sc.pre + tx)
    body = body[body.index('MARKB')+1:]
    for k in range(NE, 32):
        pi = max(i for i, x in enumerate(body) if x.startswith(f'v_cvt_pk_bf16_f32 v{PEND+4*k+3}, v{B_PT+6}'))
        si = next(i for i, x in enumerate(body) if x.startswith(f'buffer_store_dwordx4 {vr(PEND+4*k)}, v{V_L16}, {sr(S_WS)}, s{S_KVO}'))
        assert pi < si, k
    for u in range(4, 14):
        for qb in range(2):
            fr = (u-4)*2 + qb
            xi = next(i for i, x in enumerate(body) if x.startswith(f'buffer_load_dwordx4 {vr(xr(u)+4*qb)},'))
            si = [i for i, x in enumerate(body) if x.startswith(f'buffer_store_dwordx4 {vr(PEND+4*fr)}, v{V_L16}, {sr(S_WS)}, s{S_KVO}')]
            assert not si or si[0] < xi, (u, qb)
    rd_ = [int(x.split('a')[-1]) for x in body if x.startswith(f'v_accvgpr_read_b32 v{B_PT},') or x.startswith(f'v_accvgpr_read_b32 v{B_PT+7},')]
    assert rd_ == sorted(rd_), 'pack lists interleave'
    for x in body:
        if x == 'STAMP': stamp(a, 3)
        elif x.startswith('STAMP'): stamp(a, int(x[5:]))
        else: a(x)
    stamp(a, 4)
    a('s_nop 3')
    a(poll_issue(S_FP))
    a(flat(qf[NQ:]))
    return 16 - NQ

def qx_base(a, d):
    a(f's_lshl_b32 s{d}, s{S_PAIR}, 16'); a(f's_lshl_b32 s{d+1}, s{S_WAVE}, 14'); a(f's_add_u32 s{d}, s{d}, s{d+1}')
    a(f's_add_u32 s{d}, s{d}, {hex(WS_QX)}')

def phaseB_epi_h(a, nfb):
    for ks in range((nfb+1)//2):
        for qb in range(2):
            d = A_H + (ks*2+qb)*4
            for half in range(2):
                fb = 2*ks + half
                if fb >= nfb:
                    a(f'v_accvgpr_write_b32 a{d+2}, 0'); a(f'v_accvgpr_write_b32 a{d+3}, 0'); continue
                src = 128 + (fb*2+qb)*4
                tm = B_TMP + 8*half
                for e in range(4): a(f'v_accvgpr_read_b32 v{tm+e}, a{src+e}')
                for e in range(4): a(f'v_max_f32 v{tm+e}, 0, v{tm+e}')
                for e in range(0, 4, 2): a(f'v_pk_mul_f32 {vr(tm+e,2)}, {vr(tm+e,2)}, {vr(tm+e,2)}')
                for e in range(2): a(f'v_cvt_pk_bf16_f32 v{tm+4+e}, v{tm+2*e}, v{tm+2*e+1}')
                for e in range(2): a(f'v_accvgpr_write_b32 a{d+2*half+e}, v{tm+4+e}')

def fetch_qx(a):
    t = S_T
    a(f's_lshl_b32 s{S_FP}, s{S_PAIR}, 8'); a(f's_add_u32 s{S_FP}, s{S_FP}, {hex(WS_FLG + 0x30000)}')
    a(poll_issue(S_FP))
    a('s_waitcnt vmcnt(0)')
    spin_wait(a, S_FP, mask=1)
    a('s_barrier')
    qx_base(a, t)
    for k in range(16):
        if k % 4 == 0 and k: a(f's_add_u32 s{t}, s{t}, 4096')
        a(f'buffer_load_dwordx4 {ar(A_QX+4*k)}, v{V_L16}, {sr(S_WS)}, s{t} offen offset:{1024*(k%4)} sc1')

C_KA, C_VA, C_VD, C_DV, C_DV0, C_TM, C_NINF, C_ONE = 8, 9, 10, 11, 12, 13, 14, 16
C_BP16, C_BP32 = 20, 21
C_T = 22
C_S = [32, 48]
C_P, C_NM, C_L = 64, 72, 80
C_F, C_NB = 88, 8
C_MRG = 192

def C_dma(kind, m0expr):
    so = S_KO if kind == 'K' else S_VO
    g = [[m0expr, f's_add_u32 s{so}, s{so}, {KT_()}', f'buffer_load_dwordx4 v{C_VD}, {sr(S_WS)}, s{so} offen sc1 lds']]
    for i in range(1, 4): g.append([f'buffer_load_dwordx4 v{C_VD}, {sr(S_WS)}, s{so} offen offset:{1024*i} sc1 lds'])
    return g

def mask_ops(S, qb):
    ops = []
    for kb in range(2):
        for r in range(4): ops.append(f'v_cmp_gt_i32 s[{S_MK+2*r}:{S_MK+2*r+1}], {16*kb+r}, v{C_DV}')
        for r in range(4):
            reg = S + (kb*2+qb)*4 + r
            ops.append(f'v_cndmask_b32 v{reg}, v{reg}, v{C_NINF}, s[{S_MK+2*r}:{S_MK+2*r+1}]')
    return ops

def max_ops(S, half=False):
    r = [S + (kb*2+1)*4 + e for kb in range(2) for e in range(4)] if half else list(range(S, S+16))
    ops = [f'v_max3_f32 v{C_TM}, v{r[0]}, v{r[1]}, v{r[2]}']
    for i in range(3, len(r)-1, 2): ops.append(f'v_max3_f32 v{C_TM}, v{C_TM}, v{r[i]}, v{r[i+1]}')
    ops.append(f'v_max_f32 v{C_TM}, v{C_TM}, v{r[-1]}')
    return ops

def rowmax(a, S, qb, d):
    r = [S + (kb*2+qb)*4 + e for kb in range(2) for e in range(4)]
    a(f'v_max3_f32 v{d}, v{r[0]}, v{r[1]}, v{r[2]}')
    a(f'v_max3_f32 v{d}, v{d}, v{r[3]}, v{r[4]}')
    a(f'v_max3_f32 v{d}, v{d}, v{r[5]}, v{r[6]}')
    a(f'v_max_f32 v{d}, v{d}, v{r[7]}')
    for bp in (C_BP16, C_BP32):
        a(f'ds_bpermute_b32 v{C_T+7}, v{bp}, v{d}')
        a('s_waitcnt lgkmcnt(0)')
        a(f'v_max_f32 v{d}, v{d}, v{C_T+7}')

def rare_path(a, S, first):
    a('s_nop 7')
    for qb in range(2):
        d = C_T + qb
        rowmax(a, S, qb, d)
        if not first: a(f'v_max_f32 v{d}, 0, v{d}')
        for kb in range(2):
            for e in range(4):
                r = S + (kb*2+qb)*4 + e
                a(f'v_sub_f32 v{r}, v{r}, v{d}')
        for e in range(4): a(f'v_sub_f32 v{C_NM+4*qb+e}, v{C_NM+4*qb+e}, v{d}')
        if not first:
            al = C_T + 2 + qb
            a(f'v_exp_f32 v{al}, -v{d}')
            a('s_nop 0')
            for e in range(4): a(f'v_mul_f32 v{C_L+4*qb+e}, v{C_L+4*qb+e}, v{al}')
            for db in range(16):
                o = (db*2+qb)*4
                for e in range(3): a(f'v_accvgpr_read_b32 v{C_T+4+e}, a{o+e}')
                a(f'v_accvgpr_read_b32 v2, a{o+3}')
                for e in range(3): a(f'v_mul_f32 v{C_T+4+e}, v{C_T+4+e}, v{al}')
                a(f'v_mul_f32 v2, v2, v{al}')
                for e in range(3): a(f'v_accvgpr_write_b32 a{o+e}, v{C_T+4+e}')
                a(f'v_accvgpr_write_b32 a{o+3}, v2')
    a('s_nop 1')

def softmax_ops(S, qbs=(0, 1)):
    ops = []
    for qb in qbs:
        for kb in range(2):
            b = S + (kb*2+qb)*4
            for e in range(4): ops.append(f'v_exp_f32 v{b+e}, v{b+e}')
        for kb in range(2):
            b = S + (kb*2+qb)*4
            for e in range(2): ops.append(f'v_cvt_pk_bf16_f32 v{C_P+4*qb+2*kb+e}, v{b+2*e}, v{b+2*e+1}')
    return ops

def phaseC_begin(a, part=3):
    t = S_T
    lst = [('K', 0), ('K', 1), ('V', 0), ('K', 2), ('V', 1), ('K', 3)]
    if part & 1:
        a('s_barrier')
        a(f's_mul_i32 s{t}, s{S_H}, {KH_()}'); a(f's_mul_i32 s{t+1}, s{S_TS}, {KT_()}'); a(f's_add_u32 s{S_KO}, s{t}, s{t+1}')
        a(f's_add_u32 s{S_KO}, s{S_KO}, {hex(WS_KV - KT_())}')
        a(f's_add_u32 s{S_VO}, s{S_KO}, 16384')
        a(f'v_add_u32 v{C_VD}, s{S_W4K}, v{V_L16}')
    for kind, sl in (lst[:3] if part & 1 else []) + (lst[3:] if part & 2 else []):
        a(flat(C_dma(kind, f's_add_u32 m0, s{S_W4K}, {(0 if kind=="K" else 65536) + sl*16384}')))

def phaseC(a, own, rl, after_first_wait=None, tail_extra=None):
    t = S_T
    def AQ(i): return vr(V_QO+i) if own else ar(A_QX+i)
    NBUF = C_NB
    a(f's_mov_b32 s{S_PB}, s{S_W4K}'); a(f's_xor_b32 s{S_PO}, s{S_PB}, 0x8000')
    a(f'v_mov_b32 v{C_KA}, v{V_L16}'); a(f'v_add_u32 v{C_VA}, 0x18000, v{V_L16}')
    if own:
        a('v_and_b32 v2, 15, v1'); a('v_lshrrev_b32 v3, 4, v1'); a('v_lshlrev_b32 v3, 2, v3'); a(f'v_sub_u32 v{C_DV0}, v2, v3')
        a(f's_lshl_b32 s{t}, s{S_WAVE}, 4'); a(f'v_add_u32 v{C_DV0}, s{t}, v{C_DV0}')
        a(f's_sub_u32 s{t}, s{S_N}, 4'); a(f's_lshl_b32 s{t}, s{t}, 5')
        a(f'v_add_u32 v{C_DV}, s{t}, v{C_DV0}')
        a(f's_lshl_b32 s{S_RB}, s{S_Q1}, 4'); a(f's_sub_u32 s{S_RB}, s{S_RB}, 64')
        a(f'v_mov_b32 v{C_NINF}, 0xff800000')
    for e in range(4): a(f'v_mov_b32 v{C_ONE+e}, 0x3f803f80')
    a(f'v_xor_b32 v{C_BP16}, 16, v1'); a(f'v_lshlrev_b32 v{C_BP16}, 2, v{C_BP16}')
    a(f'v_xor_b32 v{C_BP32}, 32, v1'); a(f'v_lshlrev_b32 v{C_BP32}, 2, v{C_BP32}')
    for e in range(8): a(f'v_mov_b32 v{C_NM+e}, {f32(OPT.get("nm0", -8.0))}'); a(f'v_mov_b32 v{C_L+e}, 0')
    NZ = OPT.get('nz', 40)
    for r in range(128-NZ): a(f'v_accvgpr_write_b32 a{r}, 0')
    if own: phaseC_begin(a, 2)
    if own:
        Lw = a.newlabel('FW'); Lw2 = a.newlabel('FW')
        a(f's_cmp_eq_u32 s{S_HASX}, 0'); a(f's_cbranch_scc1 {Lw}')
        a('s_waitcnt vmcnt(29)'); a(f's_branch {Lw2}')
        a.label(Lw); a('s_waitcnt vmcnt(12)'); a.label(Lw2)
    else:
        fetch_qx(a)
        phaseC_begin(a, 2)
        a('s_waitcnt vmcnt(12)')
    a('s_barrier')
    if after_first_wait: after_first_wait(a)
    n = 10
    NM2, NM3, NM4 = 7, 10, 0
    steps = []; start = {}; h2s = {}
    def hf(j): return own and j >= n-2
    LV = OPT.get('lvalu', False)
    cnt = [0]
    def nbuf():
        b = C_F + (cnt[0] % OPT.get('c_nb', 8))*4; cnt[0] += 1; return b
    def ksteps(j, cinit):
        S = C_S[j & 1]
        for kb in range(2):
            for s in range(8):
                buf = nbuf()
                rd = f'ds_read_b128 {vr(buf)}, v{C_KA} offset:{(j&1)*16384 + (kb*8+s)*1024}'
                pv = f'v_xor_b32 v{C_KA}, 0x8000, v{C_KA}' if (kb == 0 and s == 0 and (j & 1) == 0 and j > 0) else None
                mf = []
                for qb in ((1,) if hf(j) else (0, 1)):
                    d = vr(S + (kb*2+qb)*4)
                    c = d if s > 0 else (cinit if cinit is not None else vr(C_NM+4*qb))
                    mf.append(f'{MF} {d}, {vr(buf)}, {AQ((s*2+qb)*4)}, {c}')
                steps.append(Step(mf, [rd], prev=pv))
                if hf(j): steps[-1].wg = 2
    def vsteps(j):
        for db in range(16):
            buf = nbuf()
            rd = f'ds_read_b128 {vr(buf)}, v{C_VA} offset:{(j&1)*16384 + db*1024}'
            pv = f'v_xor_b32 v{C_VA}, 0x8000, v{C_VA}' if (db == 0 and (j & 1) == 0) else None
            qbs = (1,) if hf(j) else (0, 1)
            mf = [f'{MF} {ar((db*2+qb)*4)}, {vr(buf)}, {vr(C_P+4*qb)}, {ar((db*2+qb)*4)}' for qb in qbs]
            if db == 15 and not LV:
                mf += [f'{MF} {vr(C_L+4*qb)}, {vr(C_ONE)}, {vr(C_P+4*qb)}, {vr(C_L+4*qb)}' for qb in qbs]
            steps.append(Step(mf, [rd], prev=pv))
            if hf(j): steps[-1].wg = 2
    start[-1] = 0
    ksteps(0, None)
    for j in range(n):
        start[j] = len(steps)
        if j < n-1: ksteps(j+1, None)
        h2s[j] = len(steps)
        vsteps(j)
        tail = j - (n-6)
        vm = {0: 12, 1: 12, 2: 8, 3: (4 + NM2 if own else 4), 4: (NM2 + NM3 if own else 0)}.get(max(tail, 0), None)
        if vm is not None: steps[h2s[j]+2].pre += [f's_waitcnt vmcnt({vm})', 's_barrier']
        if j == n-1: steps[h2s[j]].block += softmax_ops(C_S[j & 1], (1,) if hf(j) else (0, 1)) + ['s_nop 1']
    start[n] = len(steps)
    sc = Sched(steps, LA=OPT.get('c_la', 7), wait_group=OPT.get('c_wg', 4), wait_first=True)
    for j in range(n):
        p = j & 1; h2 = h2s[j]; end = start[j+1] - 1; tail = j - (n-6)
        if j < n-1 and not hf(j+1):
            S = C_S[p]
            regs = [S + (kb*2+qb)*4 + e for qb in range(2) for kb in range(2) for e in range(4)]
            for k in range(16):
                sc.put(start[j]+k, 0, f'v_exp_f32 v{regs[k]}, v{regs[k]}')
                if k & 1: sc.put(start[j]+k, 1, f'v_cvt_pk_bf16_f32 v{C_P+k//2}, v{regs[k-1]}, v{regs[k]}')
            adds = [f'v_add_f32 v{C_L+4*(k//8)}, v{C_L+4*(k//8)}, v{regs[k]}' for k in range(16)] if LV else []
        elif j < n-1:
            S = C_S[p]
            regs = [S + (kb*2+qb)*4 + e for qb in ((1,) if hf(j) else (0, 1)) for kb in range(2) for e in range(4)]
            o = []
            for k in range(len(regs)):
                o.append(f'v_exp_f32 v{regs[k]}, v{regs[k]}')
                if k >= 2 and k % 2 == 0: o.append(f'v_cvt_pk_bf16_f32 v{C_P+(4 if hf(j) else 0)+(k-2)//2}, v{regs[k-2]}, v{regs[k-1]}')
            o += ['s_nop 0', f'v_cvt_pk_bf16_f32 v{C_P+7}, v{regs[-2]}, v{regs[-1]}']
            sc.place(o, start[j], h2-3)
            adds = [f'v_add_f32 v{C_L+(4 if hf(j) else 4*(k//8))}, v{C_L+(4 if hf(j) else 4*(k//8))}, v{regs[k]}' for k in range(len(regs))] if LV else []
        else:
            S = C_S[p]
            regs = [S + (kb*2+qb)*4 + e for qb in ((1,) if hf(j) else (0, 1)) for kb in range(2) for e in range(4)]
            adds = [f'v_add_f32 v{C_L+(4 if hf(j) else 4*(k//8))}, v{C_L+(4 if hf(j) else 4*(k//8))}, v{regs[k]}' for k in range(len(regs))] if LV else []
        dv = C_dma('V', f's_add_u32 m0, s{S_PO if p==0 else S_PB}, {65536 + (16384 if p==0 else 0)}') if tail <= 2 else None
        dk = C_dma('K', f's_add_u32 m0, s{S_PB if p==0 else S_PO}, {16384 if p==0 else 0}') if tail <= 0 else None
        if dv:
            dv = flat(dv)
            sc.put(h2, 0, dv[0]); sc.put(h2, 0, dv[1])
            for x, st_ in zip(dv[2:], (2, 4, 5, 6)): sc.put(h2+st_, 0, x)
        else: sc.put(h2, 0, 's_nop 0')
        if dk:
            dk = flat(dk)
            sc.put(h2+7, 0, dk[0]); sc.put(h2+7, 0, dk[1])
            for x, st_ in zip(dk[2:], (8, 9, 10, 12)): sc.put(h2+st_, 0, x)
        if own:
            ml = merge_loads()
            if tail == 2: sc.place(ml[:NM2], h2+7, end)
            if tail == 3: sc.place(ml[NM2:NM2+NM3], h2+2, end)
            if tail == 2: sc.place(D_setup_v(), start[j], h2-1)
            if tail == 3: sc.place(D_setup_s(), h2+2, end)
            d0 = D_dma(0)
            if tail == 4: sc.place(d0[:6], h2+2, end)
            if tail == 5: sc.place(d0[6:], h2, end)
        if p == 1:
            e = [f's_xor_b32 s{S_PB}, s{S_PB}, 0x8000', f's_xor_b32 s{S_PO}, s{S_PO}, 0x8000']
            if j < 4: e += [f's_sub_u32 s{S_CNT}, s{S_CNT}, 2', f's_cmp_lg_u32 s{S_CNT}, 0']
            sc.place(e, end-2, end)
        if j < n-1:
            Sn = C_S[p ^ 1]; ops = []
            if own and tail == 1: ops += [f'v_mov_b32 v{C_DV}, v{C_DV0}'] + mask_ops(Sn, 0)
            if own and tail == 2: ops += [f'v_subrev_u32 v{C_DV}, 32, v{C_DV0}'] + mask_ops(Sn, 0)
            if own and tail == 3: ops += [f'v_add_u32 v{C_DV}, s{S_RB}, v{C_DV0}'] + mask_ops(Sn, 1)
            if own and tail == 4: ops += [f'v_subrev_u32 v{C_DV}, 32, v{C_DV}'] + mask_ops(Sn, 1)
            if hf(j+1): ops = [f'v_mov_b32 v{Sn+kb*8+e}, 0' for kb in range(2) for e in range(4)] + ops
            ops += max_ops(Sn, hf(j+1)) + [f'v_cmp_lt_f32 vcc, s{S_THR}, v{C_TM}']
            sc.place(ops, h2+(5 if hf(j) else 3), end)
        if adds:
            if j < n-1 and not hf(j+1):
                k0 = 0
                for st_ in range(2, 16, 2):
                    g = sc.gidx[start[j]+st_] + 1
                    if len(sc.gaps[g]) == 1: sc.put(start[j]+st_, 1, adds[k0]); k0 += 1
                sc.place(adds[k0:], h2, end)
            else: sc.place(adds, h2, end)
    if NZ: sc.place([f'v_accvgpr_write_b32 a{r}, 0' for r in range(128-NZ, 128)], 0, 15)
    def text(j0, j1): return sc.text(start[j0], start[j1+1]-1)
    def emit_iter(j):
        tx = resolve_vm(text(j, j))
        if own and j == n-6:
            a(f's_lshl_b32 s{S_FP}, s{S_PAIR}, 8'); a(f's_add_u32 s{S_FP}, s{S_FP}, {hex(WS_FLG + 0x20000)}')
            a(poll_issue(S_FP))
        if own and j == n-4:
            L = a.newlabel('NMC')
            for x in merge_setup(): a(x.split('\n'))
            a(f's_cmp_eq_u32 s{S_TS}, 0'); a(f's_cbranch_scc1 {L}')
            a('s_waitcnt vmcnt(12)')
            spin_wait(a, S_FP, mask=1)
            a.label(L)
        ab = OPT.get('ablate', '')
        if 'dma' in ab: tx = [x for x in tx if not (x.startswith('buffer_load') or 'vmcnt' in x)]
        if 'bar' in ab: tx = [x for x in tx if not x.startswith('s_barrier')]
        if 'exp' in ab: tx = [x for x in tx if not x.startswith('v_exp')]
        if 'max' in ab: tx = [x for x in tx if not x.startswith('v_max')]
        if 'read' in ab: tx = [x for x in tx if not (x.startswith('ds_read') or 'lgkmcnt' in x)]
        a(tx)
        if j < n-1 and not ab:
            Lb = a.newlabel('CB'); Ls = a.newlabel('CS')
            a(f's_cbranch_vccnz {Ls}')
            a.label(Lb)
            rl['stubs'].append((Ls, Lb, (j&1)^1))
    assert text(0, 1) == text(2, 3), 'not periodic'
    print('phaseC overflow per pair', sc.overflow(start[2], start[4]-1))
    if own: stamp(a, 14)
    a(sc.pre)
    a(text(-1, -1))
    if own: stamp(a, 15)
    if own:
        Lx = a.newlabel('FX')
        a(f's_cmp_eq_u32 s{S_HASX}, 0'); a(f's_cbranch_scc1 {Lx}')
        a('s_waitcnt vmcnt(12)')
        a.label(Lx)
    a('s_barrier')
    if own: publish_flag(a)
    a(flat(C_dma('V', f's_add_u32 m0, s{S_W4K}, {65536+2*16384}') + C_dma('K', f's_mov_b32 m0, s{S_W4K}')))
    if own: a(mask_ops(C_S[0], 0))
    S0 = C_S[0]
    for qb in range(2):
        r = [S0 + (kb*2+qb)*4 + e for kb in range(2) for e in range(4)]
        d = C_T + qb
        a(f'v_max3_f32 v{d}, v{r[0]}, v{r[1]}, v{r[2]}'); a(f'v_max3_f32 v{d}, v{d}, v{r[3]}, v{r[4]}')
        a(f'v_max3_f32 v{d}, v{d}, v{r[5]}, v{r[6]}'); a(f'v_max_f32 v{d}, v{d}, v{r[7]}')
    a(f'v_max_f32 v{C_T}, abs(v{C_T}), abs(v{C_T+1})')
    a(f'v_cmp_nge_f32 vcc, s{S_THR}, v{C_T}')
    Lb = a.newlabel('CB'); Ls = a.newlabel('CS')
    a(f's_cbranch_vccnz {Ls}')
    a.label(Lb)
    rl['stubs'].append((Ls, Lb, 'first'))
    if own: stamp(a, 16)
    Ltail4 = a.newlabel('CT4'); Ltail = a.newlabel('CT6'); Lloop = a.newlabel('CL')
    if own:
        a(f's_cmp_eq_u32 s{S_N}, 4'); a(f's_cbranch_scc1 {Ltail4}')
    a(f's_sub_u32 s{S_CNT}, s{S_N}, 6')
    a(f's_cmp_eq_u32 s{S_CNT}, 0'); a(f's_cbranch_scc1 {Ltail}')
    a.label(Lloop)
    emit_iter(2); emit_iter(3)
    a(f's_cbranch_scc1 {Lloop}')
    a.label(Ltail)
    if own: stamp(a, 17)
    emit_iter(4); emit_iter(5)
    if own: a.label(Ltail4)
    for j in range(6, 10): emit_iter(j)

def rare_subs(a, rl):
    for (Ls, Lb, p) in rl['stubs']:
        a.label(Ls)
        a(f's_cselect_b32 s{S_T+8}, 1, 0')
        a(f's_getpc_b64 s[{S_RET}:{S_RET+1}]')
        Lp = a.newlabel('CP'); a.label(Lp)
        a(f's_sub_u32 s{S_RET}, s{S_RET}, {Lp}-{Lb}'); a(f's_subb_u32 s{S_RET+1}, s{S_RET+1}, 0')
        a(f's_branch {rl[p]}')
    a.label(rl['first'])
    rare_path(a, C_S[0], True)
    a(f's_setpc_b64 s[{S_RET}:{S_RET+1}]')
    for p in range(2):
        a.label(rl[p])
        rare_path(a, C_S[p], False)
        a(f's_cmp_lg_u32 s{S_T+8}, 0')
        a(f's_setpc_b64 s[{S_RET}:{S_RET+1}]')

def op_base(a, d):
    a(f's_mul_i32 s{d}, s{S_PAIR}, {OP_PAIR}'); a(f's_mul_i32 s{d+1}, s{S_WAVE}, {OP_WAVE}')
    a(f's_add_u32 s{d}, s{d}, s{d+1}'); a(f's_add_u32 s{d}, s{d}, {hex(WS_OP)}')

def l_reduce(a):
    if not OPT.get('lvalu', False): return
    for bp in (C_BP16, C_BP32):
        for qb in range(2): a(f'ds_bpermute_b32 v{C_L+4*qb+1}, v{bp}, v{C_L+4*qb}')
        a('s_waitcnt lgkmcnt(0)')
        for qb in range(2): a(f'v_add_f32 v{C_L+4*qb}, v{C_L+4*qb}, v{C_L+4*qb+1}')

def publish_stores(a):
    t = S_T
    a('s_nop 7')
    l_reduce(a)
    op_base(a, t)
    a(f's_add_u32 s{t+1}, s{t}, 32768')
    a(f'v_mov_b32 v{C_T}, v{C_NM}'); a(f'v_mov_b32 v{C_T+1}, v{C_NM+4}'); a(f'v_mov_b32 v{C_T+2}, v{C_L}'); a(f'v_mov_b32 v{C_T+3}, v{C_L+4}')
    a(f'buffer_store_dwordx4 {vr(C_T)}, v{V_L16}, {sr(S_WS)}, s{t+1} offen sc1')
    for k in range(16):
        if k % 4 == 0 and k: a(f's_add_u32 s{t}, s{t}, 4096')
        tb = 32 + 16*(k & 1)
        for e in range(8): a(f'v_accvgpr_read_b32 v{tb+e}, a{8*k+e}')
        for e in range(4): a(f'v_cvt_pk_bf16_f32 v{tb+8+e}, v{tb+2*e}, v{tb+2*e+1}')
        a(f'buffer_store_dwordx4 {vr(tb+8)}, v{V_L16}, {sr(S_WS)}, s{t} offen offset:{1024*(k%4)} sc1')
    a('s_nop 1')

def publish_flag(a):
    L = a.newlabel('PF')
    a(f's_cmp_eq_u32 s{S_HASX}, 0'); a(f's_cbranch_scc1 {L}')
    a(f's_lshl_b32 s{S_T}, s{S_PAIR}, 8'); a(f's_add_u32 s{S_T}, s{S_T}, {hex(WS_FLG + 0x20000)}')
    a(f'buffer_store_dword v{V_NONCE}, v{V_SIG}, {sr(S_WS)}, s{S_T} offen sc1')
    a.label(L)

D_CTX = 32
D_WF, D_NB = 176, 8
D_ACC = 128
D_PK = 160
D_VO = 120
D_RA, D_RB = 20, 24
D_ST1 = 28
DSLOT = 49152
S_MB = 71
C_ML = 124

def merge_setup():
    t = S_T + 4
    return [f's_mul_i32 s{S_MB}, s{S_PAIR}, {OP_PAIR}', f's_mul_i32 s{t}, s{S_WAVE}, {OP_WAVE}',
            f's_add_u32 s{S_MB}, s{S_MB}, s{t}', f's_add_u32 s{S_MB}, s{S_MB}, {hex(WS_OP)}',
            f's_cmp_eq_u32 s{S_TS}, 0\ns_cselect_b32 s{S_MB}, 0x70000000, s{S_MB}']

def merge_loads():
    t = S_T + 4
    g = [[f's_add_u32 s{t}, s{S_MB}, 32768', f'buffer_load_dwordx4 {vr(C_ML)}, v{V_L16}, {sr(S_WS)}, s{t} offen sc1']]
    for k in range(16):
        pre = [f's_add_u32 s{S_MB}, s{S_MB}, 4096'] if (k % 4 == 0 and k) else []
        g.append(pre + [f'buffer_load_dwordx4 {vr(C_MRG+4*k)}, v{V_L16}, {sr(S_WS)}, s{S_MB} offen offset:{1024*(k%4)} sc1'])
    return g

def D_setup_v(): return D_setup()[:12]
def D_setup_s(): return D_setup()[12:]
def D_setup():
    t = S_T + 5
    r = ['v_lshrrev_b32 v2, 3, v1', 'v_mul_u32_u24 v3, 896, v2', 'v_bfe_u32 v2, v1, 4, 2', f'v_bfe_u32 v{D_VO}, v1, 1, 2', f'v_xor_b32 v2, v2, v{D_VO}',
         f'v_and_b32 v{D_VO}, 1, v1', f'v_lshl_add_u32 v2, v2, 1, v{D_VO}', 'v_lshl_add_u32 v3, v2, 4, v3']
    r += [f'v_add_u32 v{D_VO+i}, {i*(8*896-1024)}, v3' for i in range(4)]
    r += [f's_lshl_b32 s{t}, s{S_H}, 8', f's_lshl_b32 s{t+1}, s{S_WAVE}, 6', f's_add_u32 s{t}, s{t}, s{t+1}', f's_mul_i32 s{S_DO}, s{t}, 896',
          f's_lshl_b32 s{t+1}, s{S_WAVE}, 5', f's_add_u32 s{t}, s{S_F0}, s{t+1}', f's_mul_i32 s{S_D2}, s{t}, 896']
    return r

def finalize(a):
    t = S_T
    Lno = a.newlabel('NOMRG'); Ldone = a.newlabel('FIN')
    l_reduce(a)
    a(f's_cmp_lg_u32 s{S_TS}, 0'); a(f's_cbranch_scc0 {Lno}')
    a('s_waitcnt vmcnt(24)')
    a(f's_mov_b32 s{t}, 0xffff0000')
    for qb in range(2):
        nm_a = C_NM + 4*qb; nm_b = C_ML + qb; l_a = C_L + 4*qb; l_b = C_ML + 2 + qb
        sa = 8 + 2*qb; sb = 16 + 2*qb
        a(f'v_min_f32 v2, v{nm_a}, v{nm_b}')
        a(f'v_sub_f32 v3, v2, v{nm_a}'); a(f'v_exp_f32 v{sa}, v3')
        a(f'v_sub_f32 v3, v2, v{nm_b}'); a(f'v_exp_f32 v{sb}, v3')
        a('s_nop 0')
        a(f'v_mul_f32 v2, v{sa}, v{l_a}'); a(f'v_fmac_f32 v2, v{sb}, v{l_b}')
        if OPT.get('kvs', 0): a(f'v_mul_f32 v2, s{S_VS}, v2')
        a('v_rcp_f32 v2, v2'); a('s_nop 0')
        a(f'v_mul_f32 v{sa}, v{sa}, v2'); a(f'v_mul_f32 v{sb}, v{sb}, v2')
        a(f'v_mov_b32 v{sa+1}, v{sa}'); a(f'v_mov_b32 v{sb+1}, v{sb}')
    k = 0
    for s in range(8):
        for qb in range(2):
            for half in range(2):
                o = ((2*s+half)*2+qb)*4; tb = 12 if k & 1 else 20; k += 1
                for e in range(4): a(f'v_accvgpr_read_b32 v{tb+e}, a{o+e}')
                for e in range(2):
                    a(f'v_lshlrev_b32 v{24+2*e}, 16, v{C_MRG+o//2+e}'); a(f'v_and_b32 v{25+2*e}, s{t}, v{C_MRG+o//2+e}')
                for e in (0, 2): a(f'v_pk_mul_f32 {vr(tb+e,2)}, {vr(tb+e,2)}, {vr(8+2*qb,2)}')
                for e in (0, 2): a(f'v_pk_fma_f32 {vr(tb+e,2)}, {vr(24+e,2)}, {vr(16+2*qb,2)}, {vr(tb+e,2)}')
                for e in range(2): a(f'v_cvt_pk_bf16_f32 v{D_CTX+(s*2+qb)*4+2*half+e}, v{tb+2*e}, v{tb+2*e+1}')
    a(f's_branch {Ldone}')
    a.label(Lno)
    if OPT.get('kvs', 0):
        for qb in range(2): a(f'v_mul_f32 v{C_L+4*qb}, s{S_VS}, v{C_L+4*qb}')
    for qb in range(2): a(f'v_rcp_f32 v{8+2*qb}, v{C_L+4*qb}')
    a('s_nop 0')
    for qb in range(2): a(f'v_mov_b32 v{9+2*qb}, v{8+2*qb}')
    for s in range(8):
        for qb in range(2):
            for half in range(2):
                o = ((2*s+half)*2+qb)*4; tb = 12 if k & 1 else 20; k += 1
                for e in range(4): a(f'v_accvgpr_read_b32 v{tb+e}, a{o+e}')
                for e in (0, 2): a(f'v_pk_mul_f32 {vr(tb+e,2)}, {vr(tb+e,2)}, {vr(8+2*qb,2)}')
                for e in range(2): a(f'v_cvt_pk_bf16_f32 v{D_CTX+(s*2+qb)*4+2*half+e}, v{tb+2*e}, v{tb+2*e+1}')
    a.label(Ldone)

def D_dma(tile):
    t = S_T; sl = (tile % 3)*DSLOT
    g = []
    for half in range(2):
        first = [f's_lshl_b32 s{t}, s{S_W4K}, 1'] if half == 0 else []
        first += [f's_add_u32 m0, s{t}, {sl + 4096*half}', f's_add_u32 s{t+1}, s{S_DO}, {half*32*896 + tile*128}']
        for i in range(4):
            g.append((first if i == 0 else []) + [f'buffer_load_dwordx4 v{D_VO+i}, {sr(S_WO)}, s{t+1} offen offset:{1024*i} lds'])
    first = [f's_add_u32 m0, s{S_W4K}, {sl + 32768}', f's_add_u32 s{t+1}, s{S_D2}, {tile*128}']
    for i in range(4):
        g.append((first if i == 0 else []) + [f'buffer_load_dwordx4 v{D_VO+i}, {sr(S_W2)}, s{t+1} offen offset:{1024*i} lds'])
    return tag(g, f'T{tile}')

def phaseD_begin(a):
    a('s_barrier')
    a(resolve_vm(flat(D_dma(1))))

def phaseD(a, nks):
    t = S_T
    a('v_lshrrev_b32 v2, 2, v1'); a('v_bfe_u32 v3, v1, 3, 2')
    a('v_and_b32 v8, 3, v1'); a('v_lshlrev_b32 v8, 3, v8'); a('v_lshl_add_u32 v8, v2, 7, v8')
    for c in range(4):
        a(f'v_xor_b32 v2, {c}, v3'); a(f'v_lshl_add_u32 v{D_RB+c}, v2, 5, v8')
    a(f's_lshl_b32 s{t}, s{S_OWN}, 3'); a(f's_add_u32 s{t}, s{t}, s{S_WAVE}'); a(f's_mul_i32 s{t}, s{t}, {14*16384}')
    a(f's_lshl_b32 s{t+1}, s{S_H}, 10'); a(f's_add_u32 s{t}, s{t}, s{t+1}')
    a(f's_add_u32 s{S_PRT}, s{t}, {hex(WS_PART)}')
    a(f's_mul_i32 s{t}, s{S_Q1}, {14*16384}'); a(f'v_add_u32 v{D_ST1}, s{t}, v{V_L16}')
    steps = []
    for tile in range(7):
        sl = tile % 3
        for c in range(4):
            for ks in range(nks):
                buf = D_WF + (len(steps) % D_NB)*4
                rd = [f'ds_read_b64_tr_b16 {vr(buf+2*h,2)}, v{D_RA+c} offset:{4096*ks+2048*h}' for h in range(2)]
                pv = f'v_add_u32 v{D_RA+c}, {sl*DSLOT}, v{D_RB+c}' if ks == 0 else None
                mf = []
                for qb in range(2):
                    d = vr(D_ACC + (c*2+qb)*4)
                    b = vr(D_CTX + (ks*2+qb)*4) if ks < 8 else ar(A_H + ((ks-8)*2+qb)*4)
                    mf.append(f'{MF} {d}, {vr(buf)}, {b}, {d if ks else "0"}')
                steps.append(Step(mf, rd, prev=pv))
    nst = 4*nks; LA = OPT.get('bd_la', 6)
    bp = {}
    for tile in range(6):
        bp[tile] = (tile+1)*nst - LA - 1
        steps[bp[tile]].pre += [f's_waitcnt vmcnt(@T{tile+1})', 's_barrier']
        for f in range(nst): steps[(tile+1)*nst+f].gate = bp[tile]
    FUSE = OPT.get('fuse_r', True)
    if FUSE:
        bp[6] = 7*nst - LA - 1
        steps[bp[6]].pre += ['s_barrier']
        for tile in range(1, 7): steps[bp[tile]].pre.insert(0, f's_waitcnt vmcnt(@P{2*tile-1-OPT.get("plag", 0)})')
        a(f's_lshl_b32 s{S_FP}, s{S_OWN}, 12'); a(f's_add_u32 s{S_FP}, s{S_FP}, {hex(WS_FLG + 0x40000)}')
        a(f's_lshl_b32 s{S_MB}, s{S_H}, 2'); a(f's_add_u32 s{S_MB}, s{S_MB}, s{S_FP}')
    D2 = OPT.get('d2bar', True)
    if D2:
        for tile in range(1, 5): steps[tile*nst+1].pre += ['s_barrier']
    sc = Sched(steps, LA=LA, wait_group=OPT.get('bd_wg', 2))
    if FUSE:
        for tile in range(1, 7):
            sc.place([f'v_add_u32 v{8+(tile&1)}, {2*tile-OPT.get("plag", 0)}, v{V_NONCE}', f'buffer_store_dword v{8+(tile&1)}, v{V_SIG}, {sr(S_WS)}, s{S_MB} offen sc1'], bp[tile], bp[tile]+1)
    sc.place(D_dma(2), 0, 24)
    for tile in range(1, 5):
        if D2: sc.place(D_dma(tile+2), tile*nst+1, tile*nst+1+OPT.get('d_dw2', 30))
        else: sc.place(D_dma(tile+2), bp[tile], bp[tile]+OPT.get('d_dw', 16))
    tail_ops = None
    for tile in range(7):
        for cp in range(2):
            v = tile*2 + cp
            endstep = (tile*4 + cp*2 + 2)*nks
            ops = []
            for qb in range(2):
                pk = D_PK + (cp*2+qb)*4
                for half in range(2):
                    src = D_ACC + ((cp*2+half)*2+qb)*4
                    for e in range(2): ops.append(f'v_cvt_pk_bf16_f32 v{pk+2*half+e}, v{src+2*e}, v{src+2*e+1}')
                st = [f's_add_u32 s{t+4}, s{S_PRT}, {v*16384}'] if qb == 0 else []
                ops.append(st + [f'buffer_store_dwordx4 {vr(pk)}, v{V_L16 if qb==0 else D_ST1}, {sr(S_WS)}, s{t+4} offen sc1 ;@P{v}'])
            if endstep + 3 < len(steps): sc.place(ops, endstep+3, endstep+12)
            else: tail_ops = ops
    print('phaseD overflow', sc.overflow(0, len(steps)-1))
    head = flat(D_dma(0) + D_dma(1))
    tx = []
    for tile in range(7):
        if OPT.get('dstamp'): tx.append(f'STAMP{20+tile}')
        tx += sc.text(tile*nst, (tile+1)*nst-1)
    if OPT.get('dstamp'): tx.append('STAMP27')
    body = resolve_vm(head + ['MARK', 's_waitcnt vmcnt(@T0)', 's_barrier'] + sc.pre + tx)
    for x in body[body.index('MARK')+1:]:
        if x.startswith('STAMP'): stamp(a, int(x[5:]))
        else: a(x)
    a('s_nop 7')
    a(resolve_vm(flat(tail_ops)))

def phaseR(a, Lend):
    t = S_T
    S_OUT, S_B2 = S_CKV, S_W
    S_CT, S_U, S_IT, S_MSK = 57, 58, 59, 60
    a(f's_load_dwordx4 s[{t+4}:{t+7}], s[0:1], 80')
    a(poll_issue(S_FP))
    a('s_waitcnt vmcnt(0)')
    a('s_barrier')
    a(f'v_add_u32 v8, 14, v{V_NONCE}')
    a(f'buffer_store_dword v8, v{V_SIG}, {sr(S_WS)}, s{S_MB} offen sc1')
    stamp(a, 13)
    a('s_waitcnt lgkmcnt(0)')
    srd(a, S_B2, t+4, 448*2); srd(a, S_OUT, t+6, 2048*448*2)
    a(f's_add_u32 s{S_CT}, s{S_FP}, 0x10000')
    a(f's_mov_b32 s{S_IT}, 0'); a(f's_mov_b32 s{S_MSK}, 0xffff0000')
    a('v_and_b32 v10, 15, v1'); a('v_mul_u32_u24 v10, 896, v10'); a('v_lshrrev_b32 v11, 4, v1'); a('v_lshlrev_b32 v11, 3, v11')
    a('v_add_u32 v10, v10, v11')
    def wait_prog(need_sgpr, have=False):
        Ls = a.newlabel('RP'); Lo = a.newlabel('RP'); Lc = a.newlabel('RP')
        a(f's_mov_b32 s{t+1}, 0')
        a(f's_sub_u32 s{t+2}, 14, s{need_sgpr}')
        if have: a(f's_branch {Lc}')
        a.label(Ls)
        a(poll_issue(S_FP))
        a('s_waitcnt vmcnt(0)')
        a.label(Lc)
        a(f'v_sub_u32 v2, v{V_POLL}, v{V_NONCE}'); a(f'v_subrev_u32 v2, s{need_sgpr}, v2')
        a(f'v_cmp_ge_u32 vcc, s{t+2}, v2')
        a(f's_and_b32 s{t}, vcc_lo, 0xffff')
        a(f's_cmp_eq_u32 s{t}, 0xffff'); a(f's_cbranch_scc1 {Lo}')
        a(f's_sleep {OPT.get("rsleep", 3)}')
        a(f's_add_u32 s{t+1}, s{t+1}, 1')
        a(f's_cmp_lt_u32 s{t+1}, 20000'); a(f's_cbranch_scc1 {Ls}')
        a.label(Lo)
    Lloop = a.newlabel('RL'); Lsk = a.newlabel('RS'); Lw = a.newlabel('RW'); Lf = a.newlabel('RF'); Lhave = a.newlabel('RV')
    S_PRE = 61
    UP = OPT.get('upre', 0)
    def grab():
        a('v_mov_b32 v13, 1')
        a(f'buffer_atomic_add v13, v{V_SIG}, {sr(S_WS)}, s{S_CT} offen sc0 sc1')
        a(poll_issue(S_FP))
    a(f's_mov_b32 s{S_PRE}, 0')
    a(f's_cmp_lg_u32 s{S_WAVE}, 0'); a(f's_cbranch_scc1 {Lloop}')
    a(f's_mov_b32 s{t+3}, 1')
    wait_prog(t+3, True)
    a.label(Lloop)
    a(f'v_mov_b32 v12, s{S_IT}')
    a(f's_cmp_lg_u32 s{S_WAVE}, 0'); a(f's_cbranch_scc1 {Lsk}')
    a(f's_cmp_lg_u32 s{S_PRE}, 0'); a(f's_cbranch_scc1 {Lhave}')
    grab()
    a('s_waitcnt vmcnt(0)')
    a.label(Lhave)
    a(f'v_readfirstlane_b32 s{S_U}, v13')
    a(f's_cmp_ge_u32 s{S_U}, 28'); a(f's_cbranch_scc1 {Lw}')
    a(f's_lshr_b32 s{t+3}, s{S_U}, 1'); a(f's_add_u32 s{t+3}, s{t+3}, 1')
    wait_prog(t+3, True)
    a.label(Lw)
    a(f'v_mov_b32 v3, s{S_U}')
    a('ds_write_b32 v12, v3')
    a('s_waitcnt lgkmcnt(0)')
    a.label(Lsk)
    a('s_barrier')
    a('ds_read_b32 v3, v12')
    a('s_waitcnt lgkmcnt(0)')
    a(f'v_readfirstlane_b32 s{S_U}, v3')
    a(f's_xor_b32 s{S_IT}, s{S_IT}, 4')
    a(f's_cmp_ge_u32 s{S_U}, 28'); a(f's_cbranch_scc1 {Lf}')
    a(f's_and_b32 s{t}, s{S_U}, 1'); a(f's_lshl_b32 s{t}, s{t}, 2'); a(f's_add_u32 s{t}, s{t}, s{S_WAVE}')
    a(f's_lshl_b32 s{t+1}, s{S_OWN}, 3'); a(f's_add_u32 s{t}, s{t}, s{t+1}')
    a(f's_lshr_b32 s{t+1}, s{S_U}, 1')
    a(f's_mul_i32 s{t+2}, s{t}, 14'); a(f's_add_u32 s{t+2}, s{t+2}, s{t+1}'); a(f's_lshl_b32 s{t+2}, s{t+2}, 14')
    a(f's_add_u32 s{t+2}, s{t+2}, {hex(WS_PART)}')
    for h in range(16):
        a(f'buffer_load_dwordx4 {vr(32+4*h)}, v{V_L16}, {sr(S_WS)}, s{t+2} offen offset:{(h%4)*1024} sc1')
        if h % 4 == 3 and h < 15: a(f's_add_u32 s{t+2}, s{t+2}, 4096')
    a(f's_mul_i32 s{t}, s{t}, {16*896}'); a(f's_lshl_b32 s{t+1}, s{t+1}, 6'); a(f's_add_u32 s{t}, s{t}, s{t+1}')
    a(f'buffer_load_dwordx2 v[96:97], v10, {sr(S_XIN)}, s{t} offen')
    a(f'buffer_load_dwordx2 v[98:99], v10, {sr(S_XIN)}, s{t} offen offset:32')
    a(f'buffer_load_dwordx2 v[100:101], v11, {sr(S_B2)}, s{t+1} offen')
    a(f'buffer_load_dwordx2 v[102:103], v11, {sr(S_B2)}, s{t+1} offen offset:32')
    Ln = a.newlabel('RN')
    a(f's_cmp_lt_u32 s{S_U}, {UP}'); a(f's_cselect_b32 s{S_PRE}, 1, 0'); a(f's_cbranch_scc0 {Ln}')
    grab()
    a.label(Ln)
    for h in range(18):
        a(f's_waitcnt vmcnt({19-h if h < 16 else (2 if h == 16 else 0)})')
        src = 32 + 4*h
        for i in range(4):
            if h == 0:
                a(f'v_lshlrev_b32 v{16+2*i}, 16, v{src+i}'); a(f'v_and_b32 v{17+2*i}, s{S_MSK}, v{src+i}')
            else:
                a(f'v_lshlrev_b32 v14, 16, v{src+i}'); a(f'v_and_b32 v15, s{S_MSK}, v{src+i}')
                a(f'v_add_f32 v{16+2*i}, v{16+2*i}, v14'); a(f'v_add_f32 v{17+2*i}, v{17+2*i}, v15')
    for i in range(4): a(f'v_cvt_pk_bf16_f32 v{24+i}, v{16+2*i}, v{17+2*i}')
    a(f'buffer_store_dwordx2 v[24:25], v10, {sr(S_OUT)}, s{t} offen')
    a(f'buffer_store_dwordx2 v[26:27], v10, {sr(S_OUT)}, s{t} offen offset:32')
    a(f's_cmp_lt_u32 s{S_U}, {OPT.get("u0", 20)}'); a(f's_cbranch_scc1 {Lloop}')
    a.label(Lf)
    if DBG[0]:
        a('s_waitcnt vmcnt(0)')
        stamp(a, 18)

def build_srds(a):
    P = PTR
    srd(a, S_WS, P+26, WS_BYTES); srd(a, S_CKV, P+2, 2048*1024*2); srd(a, S_XIN, P+0, 2048*448*2)
    a(f's_cmp_eq_u32 s{S_KVT}, 0')
    a(f's_cselect_b32 s{P+6}, s{P+6}, s{P+8}'); a(f's_cselect_b32 s{P+7}, s{P+7}, s{P+9}')
    srd(a, S_W, P+6, 1024*4096*2)
    srd(a, S_WQ, P+4, 448*4096*2); srd(a, S_W1, P+14, 448*1792*2); srd(a, S_WO, P+10, 4096*448*2)
    srd(a, S_W2, P+18, 1792*448*2); srd(a, S_B1, P+16, 1792*2); srd(a, S_DBG, P+24, 256)

def gen_mega(a, name='m_kernel', dbg=False):
    DBG[0] = dbg
    a.raw('.text'); a.raw('.p2align 8')
    a.label('M_CODE_START')
    front_pos = len(a.L)
    kstart(a, name)
    Lend = a.newlabel('MEND')
    Lgo = a.newlabel('GO')
    a('s_cmp_lt_u32 s2, 256'); a(f's_cbranch_scc1 {Lgo}')
    a('s_endpgm')
    a.label(Lgo)
    a(f's_load_dwordx16 s[{PTR}:{PTR+15}], s[0:1], 0')
    a(f's_load_dwordx8 s[{PTR+16}:{PTR+23}], s[0:1], 64')
    a(f's_load_dwordx4 s[{PTR+24}:{PTR+27}], s[0:1], 96')
    Lp = a.newlabel('PC')
    a(f's_getpc_b64 s[{S_PC}:{S_PC+1}]')
    a.label(Lp)
    a(f's_sub_u32 s{S_PC}, s{S_PC}, {Lp}-M_CODE_START'); a(f's_subb_u32 s{S_PC+1}, s{S_PC+1}, 0')
    a(flat(code_pf(0, OPT.get('cpf0', 1), 200)))
    if OPT.get('cpfs'):
        ns = OPT['cpfs']; per = (OPT.get('codekb', 112)*1024 // ns) // 128
        a('s_lshr_b32 s4, s2, 3'); a(f's_and_b32 s4, s4, {ns-1}'); a(f's_mul_i32 s4, s4, {per*128}')
        a(f'v_min_u32 v200, {per-1}, v0'); a('v_lshlrev_b32 v200, 7, v200'); a('v_add_u32 v200, s4, v200')
        a('v_min_u32 v200, M_CODE_END-M_CODE_START-4, v200')
        a(f'global_load_dword v31, v200, s[{S_PC}:{S_PC+1}]')
    a('v_and_b32 v1, 63, v0')
    a('v_lshrrev_b32 v2, 6, v0')
    a(f'v_lshlrev_b32 v{V_L16}, 4, v1')
    a(f'v_readfirstlane_b32 s{S_WAVE}, v2')
    t = 4
    a(f's_and_b32 s{t}, s2, 7'); a(f's_lshr_b32 s{t+1}, s2, 3'); a(f's_and_b32 s{t+2}, s{t+1}, 1')
    if OPT.get('xswap'): a(f's_xor_b32 s{t}, s{t}, {OPT["xswap"]}')
    a(f's_lshl_b32 s{t}, s{t}, 1'); a(f's_add_u32 s{S_H}, s{t}, s{t+2}')
    a(f's_lshr_b32 s{t+1}, s{t+1}, 1'); a(f's_and_b32 s{S_ROLE}, s{t+1}, 1'); a(f's_lshr_b32 s{S_I}, s{t+1}, 1')
    a(f's_lshl_b32 s{S_W4K}, s{S_WAVE}, 12'); a(f's_lshl_b32 s{S_W2K}, s{S_WAVE}, 11')
    a(f's_lshl_b32 s{S_PAIR}, s{S_H}, 3'); a(f's_add_u32 s{S_PAIR}, s{S_PAIR}, s{S_I}')
    a(f's_lshl_b32 s{S_FKV}, s{S_H}, 12'); a(f's_add_u32 s{S_FKV}, s{S_FKV}, {hex(WS_FLG)}')
    lo = sum(T0[i] << (8*i) for i in range(4)); hi = sum(T0[4+i] << (8*i) for i in range(4))
    a(f's_mov_b32 s{t}, {hex(lo)}'); a(f's_mov_b32 s{t+1}, {hex(hi)}')
    a(f's_lshl_b32 s{t+2}, s{S_I}, 3'); a(f's_lshr_b64 s[{t}:{t+1}], s[{t}:{t+1}], s{t+2}'); a(f's_and_b32 s{S_T0}, s{t}, 0xff')
    a(f's_sub_u32 s{S_EXT}, 15, s{S_I}')
    a(f's_cmp_eq_u32 s{S_ROLE}, 0'); a(f's_cselect_b32 s{S_OWN}, s{S_EXT}, s{S_I}')
    a(f's_mul_i32 s{S_HASX}, s{S_ROLE}, s{S_T0}')
    a(f's_mov_b32 s{S_QSC}, {f32(1.4426950408889634/16*2**OPT.get("kvs", 0))}'); a(f's_mov_b32 s{S_KVS}, {f32(2.0**-OPT.get("kvs", 0))}'); a(f's_mov_b32 s{S_VS}, {f32(2.0**-OPT.get("vs", 0))}')
    a(f's_cmp_eq_u32 s{S_KVT}, 0'); a(f's_cselect_b32 s{S_KVS}, s{S_KVS}, s{S_VS}')
    a(f's_mov_b32 s{S_THR}, {f32(16.0)}')
    a('v_mov_b32 v3, 0x7fffff00'); a('v_cmp_eq_u32 vcc, 0, v0'); a(f'v_mov_b32 v{V_NONCE}, 0')
    a('v_lshlrev_b32 v2, 2, v0')
    a(f'v_cndmask_b32 v{V_SIG}, v3, 0, vcc')
    a('v_cmp_gt_u32 vcc, 16, v0'); a('s_nop 1')
    a(f'v_cndmask_b32 v{V_SIG16}, v3, v2, vcc')
    hist = phaseA(a)
    SPLIT = OPT.get('fsplit', False)
    def two(fn_even, fn_odd, front=False):
        if not SPLIT: fn_even(); return
        Lo = a.newlabel('OD'); Le = a.newlabel('EV')
        a(f's_cmp_lg_u32 s{S_ODD}, 0'); a(f's_cbranch_scc1 {Lo}')
        fn_even()
        if front:
            a.label(Le)
            main = a.L; a.L = []
            a.label(Lo); fn_odd(); a(f's_branch {Le}')
            main[front_pos:front_pos] = a.L
            a.L = main
        else:
            a(f's_branch {Le}')
            a.label(Lo); fn_odd(); a.label(Le)
    nq_after = 16 - OPT.get('nqw', 5)
    two(lambda: phaseB_main(a, True, hist, 8 if SPLIT else 7), lambda: phaseB_main(a, True, hist, 6), front=True)
    Lown = a.newlabel('OWN'); Lown2 = a.newlabel('OWN2')
    rl = {0: a.newlabel('RARE'), 1: a.newlabel('RARE'), 'first': a.newlabel('RARE'), 'stubs': []}
    def qsc(): a(f'v_mov_b32 v{B_QS}, s{S_QSC}'); a(f'v_mov_b32 v{B_QS+1}, s{S_QSC}')
    def own_params():
        a(f's_lshl_b32 s{S_RB}, s{S_OWN}, 2'); a(f's_add_u32 s{S_N}, s{S_RB}, 4'); a(f's_add_u32 s{S_RB}, s{S_RB}, s{S_WAVE}')
        a(f's_cmp_eq_u32 s{S_ROLE}, 0'); a(f's_cselect_b32 s{S_TS}, s{S_T0}, 0')
        a(f's_sub_u32 s{S_N}, s{S_N}, s{S_TS}')
    own_params()
    a(f's_cmp_lg_u32 s{S_HASX}, 0'); a(f's_cselect_b32 s{S_N}, s{S_T0}, s{S_N}')
    a(f's_waitcnt vmcnt({nq_after})')
    spin_wait(a, S_FP)
    stamp(a, 8)
    phaseC_begin(a, 1)
    two(lambda: phaseB_epi_h(a, 8 if SPLIT else 7), lambda: phaseB_epi_h(a, 6))
    Lq = a.newlabel('QF')
    a(f's_cmp_eq_u32 s{S_PUBQ}, 0'); a(f's_cbranch_scc1 {Lq}')
    a('s_waitcnt vmcnt(12)')
    a('s_barrier')
    a(f's_lshl_b32 s{S_T}, s{S_PAIR}, 8'); a(f's_add_u32 s{S_T}, s{S_T}, {hex(WS_FLG + 0x30000)}')
    a(f'buffer_store_dword v{V_NONCE}, v{V_SIG}, {sr(S_WS)}, s{S_T} offen sc1')
    a.label(Lq)
    stamp(a, 5)
    a(f's_cmp_eq_u32 s{S_HASX}, 0'); a(f's_cbranch_scc1 {Lown2}')
    phaseC(a, False, rl, after_first_wait=lambda a: stamp(a, 6))
    stamp(a, 9)
    own_params()
    phaseC_begin(a, 1)
    publish_stores(a)
    a.label(Lown2)
    stamp(a, 10)
    t = S_T
    def afw(a):
        if OPT.get('pfd_c0'): a(flat(pfD(2)))
        if OPT.get('pfd_big', True): pfD_big(a)
    phaseC(a, True, rl, after_first_wait=afw)
    a.label('M_D_START')
    stamp(a, 11)
    phaseD_begin(a)
    finalize(a)
    stamp(a, 12)
    two(lambda: phaseD(a, 12), lambda: phaseD(a, 11))
    if OPT.get('fuse_r', True): phaseR(a, Lend)
    elif dbg:
        a('s_waitcnt vmcnt(0)')
        stamp(a, 13)
    a.label(Lend)
    a('s_endpgm')
    rare_subs(a, rl)
    a.label('M_CODE_END')
    kdesc(a, name, 512, 256, sgpr=102)
```
